```python
import torch

def _softmax(x, axis=-1):
    return torch.softmax(x, dim=axis)
def _gelu(x):
    return torch.nn.functional.gelu(x, approximate="tanh")
def _silu(x):
    return torch.nn.functional.silu(x)
def _sigmoid(x):
    return torch.sigmoid(x)
def _layernorm(x, axis=-1, eps=1e-5):
    m = x.mean(dim=axis, keepdim=True)
    v = x.var(dim=axis, keepdim=True, unbiased=False)
    return (x - m) / torch.sqrt(v + eps)
def _scatter_add(tgt, idx, src, axis=0):
    return tgt.clone().index_add_(axis, idx, src)
def _segment_sum(src, seg, n):
    out = torch.zeros((n,) + src.shape[1:], dtype=src.dtype)
    return out.index_add_(0, seg, src)
def _pad(x, pw):
    flat = tuple(v for pair in reversed(pw) for v in pair)
    return torch.nn.functional.pad(x, flat)

kernel_name = 'parallel_sum__spectral_gfnet__dense_activation_gelu__prompt'

def setup_inputs():

    _w = (lambda a: (lambda t: t.to(torch.bfloat16) if t.is_floating_point() else t)(torch.as_tensor(a)))
    def _A_setup():
        B, S, D = 1, 2048, 576
        Df = D // 2 + 1
        return {
            "x": _w((lambda *s: torch.randn(*s, dtype=torch.bfloat16) * 0.05)(B, S, D)),
            "w_r": _w((lambda *s: torch.randn(*s, dtype=torch.bfloat16) * 0.8)(S, Df) * 0.02),
            "w_i": _w((lambda *s: torch.randn(*s, dtype=torch.bfloat16) * 0.8)(S, Df) * 0.02),
        }
    _A_in = _A_setup()

    def _B_setup():
        B, S, D, F = 1, 2048, 576, 4608
        return {
            "x": _w((lambda *s: torch.randn(*s, dtype=torch.bfloat16) * 0.05)(B, S, D)),
            "w1": _w((lambda *s: torch.randn(*s, dtype=torch.bfloat16) * 0.4)(D, F) * (D ** -0.5)),
            "b1": _w((lambda *s: torch.randn(*s, dtype=torch.bfloat16) * 12.8)(F) * 0.01),
            "w2": _w((lambda *s: torch.randn(*s, dtype=torch.bfloat16) * 0.2)(F, D) * (F ** -0.5)),
            "b2": _w((lambda *s: torch.randn(*s, dtype=torch.bfloat16) * 1.6)(D) * 0.01),
        }
    _B_in = _B_setup()

    return {
        "A_x": _A_in["x"],
        "A_w_r": _A_in["w_r"],
        "A_w_i": _A_in["w_i"],
        "B_x": _B_in["x"],
        "B_w1": _B_in["w1"],
        "B_b1": _B_in["b1"],
        "B_w2": _B_in["w2"],
        "B_b2": _B_in["b2"],
    }

def reference(A_x, A_w_r, A_w_i, B_x, B_w1, B_b1, B_w2, B_b2):
    def _A_ref(x, w_r, w_i):
        B, S, D = x.shape
        X = (lambda x, axes=(-2,-1): torch.fft.rfft2(x.float(), dim=axes))(x, axes=(-2, -1))
        W = w_r + 1j * w_i
        X = X * W
        y = (lambda x, s, axes=(-2,-1): torch.fft.irfft2(x, s=s, dim=axes).to(torch.bfloat16))(X, (S, D), axes=(-2, -1))
        return y

    def _B_ref(x, w1, b1, w2, b2):
        h = torch.einsum("bsd,df->bsf", x, w1) + b1
        h = _gelu(h)
        return torch.einsum("bsf,fd->bsd", h, w2) + b2

    x = A_x
    xn = _layernorm(x, axis=-1)
    return x + _A_ref(xn, A_w_r, A_w_i) + _B_ref(xn, B_w1, B_b1, B_w2, B_b2)
```

```python
import re, struct


def f32bits(x):
    return struct.unpack("<I", struct.pack("<f", x))[0]


def hx(x):
    return "0x%x" % (x & 0xFFFFFFFF)


def vr(b, n=1):
    return "v%d" % b if n == 1 else "v[%d:%d]" % (b, b + n - 1)


def sr(b, n=1):
    return "s%d" % b if n == 1 else "s[%d:%d]" % (b, b + n - 1)


_REG = re.compile(r"^(-?\|?)([vsa])(?:(\d+)|\[(\d+):(\d+)\])\|?$")


def parse_reg(tok):
    tok = tok.strip()
    if tok in ("vcc",):
        return ("s", {106, 107})
    if tok == "vcc_lo":
        return ("s", {106})
    if tok == "vcc_hi":
        return ("s", {107})
    if tok == "exec":
        return ("s", {126, 127})
    if tok == "m0":
        return ("s", {124})
    m = _REG.match(tok)
    if not m:
        return None
    k = m.group(2)
    if m.group(3) is not None:
        return (k, {int(m.group(3))})
    return (k, set(range(int(m.group(4)), int(m.group(5)) + 1)))


TRANS = ("v_exp_f32", "v_log_f32", "v_rcp_f32", "v_rsq_f32", "v_sqrt_f32", "v_sin_f32", "v_cos_f32")


class Ins:
    __slots__ = ("text", "op", "cls", "wv", "rv", "ws", "rs", "srcc", "ab", "passes", "states", "storedata",
                 "dpp", "lds_dma", "is_label", "is_branch", "ldst_dst")

    def __init__(self, text):
        self.text = text
        t = text.split(";")[0].strip()
        self.wv = set(); self.rv = set(); self.ws = set(); self.rs = set()
        self.srcc = set(); self.ab = set(); self.passes = 0; self.states = 1
        self.storedata = set(); self.dpp = False; self.lds_dma = False
        self.is_label = False; self.is_branch = False; self.ldst_dst = set()
        if not t or t.startswith("."):
            self.op = ""; self.cls = "none"; self.states = 0
            return
        if t.endswith(":"):
            self.op = ""; self.cls = "label"; self.is_label = True; self.states = 0
            return
        parts = t.split(None, 1)
        op = parts[0]
        self.op = op
        rest = parts[1] if len(parts) > 1 else ""
        ops = []
        depth = 0; cur = ""
        for ch in rest:
            if ch == "[": depth += 1
            if ch == "]": depth -= 1
            if ch == "," and depth == 0:
                ops.append(cur.strip()); cur = ""
            else:
                cur += ch
        if cur.strip():
            ops.append(cur.strip())
        mods = ""
        if ops:
            sp = ops[-1].split(None, 1)
            if len(sp) > 1:
                ops[-1] = sp[0]; mods = sp[1]
        regs = [parse_reg(o) for o in ops]

        def key(r):
            k, s = r
            return {i + 1000 for i in s} if k == "a" else s

        def addr(r):
            if r is None: return
            if r[0] == "s": self.rs |= r[1]
            else: self.rv |= key(r)

        def addw(r):
            if r is None: return
            if r[0] == "s": self.ws |= r[1]
            else: self.wv |= key(r)

        if op.startswith("v_mfma"):
            self.cls = "mfma"
            addw(regs[0])
            for r in regs[1:3]:
                addr(r)
                if r: self.ab |= key(r)
            if regs[3]:
                addr(regs[3]); self.srcc = key(regs[3])
            self.passes = 8 if "32x32x16" in op else 4
        elif op.startswith("v_"):
            self.cls = "valu"
            if "dpp" in op or "row_" in mods or "quad_perm" in mods:
                self.dpp = True
            if op.startswith("v_cmp"):
                addw(regs[0])
                for r in regs[1:]: addr(r)
            elif op.startswith("v_permlane"):
                for r in regs[:2]:
                    addw(r); addr(r)
            elif op.startswith(("v_add_co", "v_sub_co", "v_subrev_co")):
                addw(regs[0]); addw(regs[1])
                for r in regs[2:]: addr(r)
            elif op.startswith(("v_addc_co", "v_subb_co", "v_subbrev_co")):
                addw(regs[0]); addw(regs[1])
                for r in regs[2:]: addr(r)
            else:
                addw(regs[0])
                for r in regs[1:]: addr(r)
                if op.startswith(("v_fmac", "v_dot2c", "v_mac")) or "dst_unused:UNUSED_PRESERVE" in mods:
                    addr(regs[0])
                if self.dpp:
                    addr(regs[0])
        elif op.startswith("ds_"):
            self.cls = "ds"
            if op.startswith(("ds_read", "ds_bpermute", "ds_permute", "ds_swizzle")):
                addw(regs[0]); self.ldst_dst = set(self.wv)
                for r in regs[1:]: addr(r)
                if "d16" in op: addr(regs[0])
            else:
                for r in regs: addr(r)
        elif op.startswith(("buffer_", "global_")):
            self.cls = "vmem"
            is_lds = bool(re.search(r"\blds\b", mods)) or "_lds_" in op
            if op.startswith(("buffer_wbl2", "buffer_inv")):
                pass
            elif is_lds:
                self.lds_dma = True
                for r in regs: addr(r)
                self.rs.add(124)
            elif "load" in op:
                addw(regs[0]); self.ldst_dst = set(self.wv)
                for r in regs[1:]: addr(r)
                if "d16" in op: addr(regs[0])
            else:
                for r in regs: addr(r)
                if re.search(r"x[34]$", op):
                    di = 0 if op.startswith("buffer_") else 1
                    self.storedata = key(regs[di])
        elif op.startswith("s_"):
            self.cls = "salu"
            if op == "s_nop":
                self.states = int(ops[0], 0) + 1
            elif op.startswith(("s_cbranch", "s_branch")):
                self.is_branch = True
            elif op.startswith(("s_waitcnt", "s_barrier", "s_endpgm", "s_setprio", "s_sleep")):
                pass
            elif op.startswith("s_cmp"):
                for r in regs: addr(r)
            elif op.startswith(("s_load", "s_memtime", "s_memrealtime", "s_getreg", "s_getpc")):
                addw(regs[0])
                for r in regs[1:]: addr(r)
            else:
                addw(regs[0])
                for r in regs[1:]: addr(r)
                if "saveexec" in op:
                    self.ws |= {126, 127}
        else:
            raise ValueError("unknown instruction: " + text)


def required_gap(p, c):
    need = 0
    if p.cls == "valu":
        if c.cls == "mfma" and (p.wv & c.rv): need = max(need, 2)
        if c.cls == "valu" and c.dpp and (p.wv & c.rv): need = max(need, 2)
        if c.op.startswith("v_permlane") and (p.wv & c.rv): need = max(need, 2)
        if c.op.startswith(("v_readfirstlane", "v_readlane")) and (p.wv & c.rv): need = max(need, 1)
        if p.op.split("_e")[0] in TRANS and c.cls in ("valu", "mfma") and (p.wv & c.rv): need = max(need, 1 if c.cls == "valu" else 2)
        if p.ws:
            if c.cls == "vmem" and (p.ws & c.rs): need = max(need, 5)
            if c.cls == "valu" and (p.ws & c.rs):
                need = max(need, 4 if c.op.startswith(("v_readlane", "v_writelane")) else 2)
            if c.cls == "valu" and c.op.startswith("v_cndmask") and (p.ws & {106, 107}) and "vcc" in c.text: need = max(need, 2)
            if c.cls == "valu" and c.op.startswith(("v_addc", "v_subb")) and (p.ws & {106, 107}): need = max(need, 2)
            if c.cls == "salu" and (p.ws & c.rs): need = max(need, 1)
        if ("sdwa" in p.op or "op_sel" in p.text) and c.cls == "valu" and (p.wv & (c.rv | c.wv)): need = max(need, 1)
    if p.cls == "mfma":
        tbl = {4: (0, 6, 8, 8, 3), 8: (0, 10, 12, 12, 7)}[p.passes]
        if c.cls == "mfma":
            if p.wv & c.ab: need = max(need, tbl[2])
            if p.wv & c.srcc:
                if not (c.srcc == p.wv and c.passes == p.passes): need = max(need, tbl[1])
            elif p.wv & c.wv:
                need = max(need, tbl[1])
        elif c.cls == "valu":
            if p.wv & (c.rv | c.wv): need = max(need, tbl[3])
            if p.srcc & c.wv: need = max(need, tbl[4])
        elif c.cls in ("ds", "vmem"):
            if p.wv & (c.rv | c.wv): need = max(need, tbl[3])
            if p.srcc & c.ldst_dst: need = max(need, tbl[4])
    if p.cls == "salu":
        if 124 in p.ws and c.lds_dma: need = max(need, 1)
    if p.storedata:
        if c.cls == "valu" and (p.storedata & c.wv): need = max(need, 2)
        elif c.cls in ("ds", "vmem", "mfma") and (p.storedata & c.wv): need = max(need, 1)
    return need


class Asm:
    def __init__(self):
        self.lines = []
        self.nlabel = 0
        self.vm = []
        self.lg = []
        self.smem_pending = False

    def __call__(self, text):
        for l in text.split("\n"):
            l = l.strip()
            if l:
                self.lines.append(l)

    def label(self, name=None):
        if name is None:
            name = "L%d" % self.nlabel
            self.nlabel += 1
        return name

    def vmem(self, text):
        self(text)
        tok = object()
        self.vm.append(tok)
        return tok

    def lds(self, text):
        self(text)
        tok = object()
        self.lg.append(tok)
        return tok

    def wait(self, vm=None, lg=None):
        s = []
        for toks, q, name, mx in ((vm, self.vm, "vmcnt", 63), (lg, self.lg, "lgkmcnt", 15)):
            if toks is None:
                continue
            if not isinstance(toks, (list, tuple)):
                toks = [toks]
            idx = -1
            for t in toks:
                if t in q:
                    idx = max(idx, q.index(t))
            if idx < 0:
                continue
            n = len(q) - 1 - idx
            if n > mx:
                n = mx
                del q[: len(q) - n]
            else:
                del q[: idx + 1]
            s.append("%s(%d)" % (name, n))
        if s:
            self("s_waitcnt " + " ".join(s))

    def wait_all(self, vm=True, lg=True):
        s = []
        if vm:
            s.append("vmcnt(0)"); self.vm = []
        if lg:
            s.append("lgkmcnt(0)"); self.lg = []
        self("s_waitcnt " + " ".join(s))

    def fix_hazards(self, verbose=False):
        out = []
        inserted = 0
        WINDOW = 14

        def need_before(hist, c):
            need = 0
            dist = 0
            for p in reversed(hist):
                if dist >= WINDOW:
                    break
                if p.states == 0:
                    continue
                g = required_gap(p, c)
                if g > dist:
                    need = max(need, g - dist)
                dist += p.states
            return need

        label_pos = {}
        for l in self.lines:
            c = Ins(l)
            if c.is_label:
                label_pos[l[:-1]] = len(out)
            if c.states and c.cls != "none":
                n = need_before(out, c)
                if n:
                    out.append(Ins("s_nop %d" % (n - 1)))
                    inserted += 1
                    if verbose:
                        print("hazard: nop %d before %s" % (n, l))
            out.append(c)
        i = 0
        while i < len(out):
            c = out[i]
            if c.is_branch:
                tgt = c.text.split()[1]
                if tgt in label_pos:
                    tp = None
                    for j, o in enumerate(out):
                        if o.is_label and o.text[:-1] == tgt:
                            tp = j
                            break
                    hist = out[max(0, i - 20): i + 1]
                    worst = 0
                    h = list(hist)
                    cnt = 0
                    for o in out[tp:]:
                        if cnt >= WINDOW:
                            break
                        if o.states:
                            n = need_before(h, o)
                            worst = max(worst, n)
                            cnt += o.states
                        h.append(o)
                        if o.is_branch and o.op == "s_branch":
                            break
                    if worst:
                        out.insert(i, Ins("s_nop %d" % (worst - 1)))
                        inserted += 1
                        i += 1
                        if verbose:
                            print("hazard(back-edge): nop %d before %s" % (worst, c.text))
            i += 1
        self.lines = [o.text for o in out]
        return inserted

    def text(self):
        return "\n".join(("" if l.endswith(":") or l.startswith(".") else "    ") + l for l in self.lines) + "\n"


def kernel_header(name):
    return ".text\n.globl %s\n.p2align 8\n.type %s,@function\n%s:\n" % (name, name, name)


def kernel_desc(name, nvgpr, nsgpr=96, accum=None):
    if accum is None:
        accum = (nvgpr + 3) // 4 * 4
    return """.section .rodata,"a"
.p2align 6
.amdhsa_kernel %s
  .amdhsa_next_free_vgpr %d
  .amdhsa_next_free_sgpr %d
  .amdhsa_accum_offset %d
  .amdhsa_group_segment_fixed_size 0
  .amdhsa_kernarg_size 88
  .amdhsa_user_sgpr_count 2
  .amdhsa_user_sgpr_kernarg_segment_ptr 1
  .amdhsa_system_sgpr_workgroup_id_x 1
.end_amdhsa_kernel
""" % (name, nvgpr, nsgpr, accum)
```

```python
from asmgen import *
from layout import *
from gen_mlp import srd

FFT_LDS = 8192 + 64
MF = "v_mfma_f32_16x16x32_f16"


def fft_body(a, vb, lane, s_col, s_w, lds_base, sws, st):
    Z = vb
    FO = Z + 32
    F0 = FO + 16
    F1 = F0 + 16
    G = F1 + 16
    W = G + 16
    AC = W + 8
    TW = AC + 24
    T = TW + 16
    D = Z
    L16, N, Gq, VA, VB_, VST = T + 6, T + 7, T + 8, T + 9, T + 10, T + 11
    S = lambda i: "s%d" % (st + i)
    srdw = "s[%d:%d]" % (sws, sws + 3)
    a("v_lshlrev_b32 v%d, 4, v%d" % (L16, lane))
    a("v_and_b32 v%d, 15, v%d" % (N, lane))
    a("v_lshrrev_b32 v%d, 4, v%d" % (Gq, lane))
    a("s_lshl_b32 %s, s%d, 13" % (S(0), s_col))
    a("s_cmp_eq_u32 s%d, 288" % s_col)
    a("s_cselect_b32 %s, 4096, %s" % (S(0), S(0)))
    a("s_cselect_b32 %s, 1, 0" % S(2))
    a("s_cmp_eq_u32 s%d, 0" % s_col)
    a("s_cselect_b32 %s, 1, %s" % (S(2), S(2)))
    a("s_add_u32 %s, %s, 4096" % (S(1), S(0)))
    a("s_cmp_lg_u32 %s, 0" % S(2))
    a("s_cselect_b32 %s, 0x20000000, %s" % (S(1), S(1)))
    a("s_add_u32 %s, %s, %s" % (S(2), S(0), hx(ZF_OFF)))
    a("s_add_u32 %s, %s, %s" % (S(3), S(1), hx(ZF_OFF)))
    a("s_lshl_b32 %s, s%d, 13" % (S(4), s_col))
    a("s_lshl_b32 %s, s%d, 11" % (S(5), s_w))
    a("s_add_u32 %s, %s, %s" % (S(4), S(4), S(5)))
    a("s_add_u32 %s, %s, %s" % (S(4), S(4), hx(WT_OFF)))
    a("v_lshlrev_b32 v%d, 5, v%d" % (VA, lane))
    wt = [a.vmem("buffer_load_dwordx4 %s, v%d, %s, %s offen offset:%d" % (vr(W + 4 * i, 4), VA, srdw, S(4), 16 * i)) for i in range(2)]
    zt = {}
    a("s_lshl_b32 %s, s%d, 12" % (S(5), s_w))
    a("s_add_u32 %s, %s, %s" % (S(5), S(5), hx(CONST_OFF)))
    fo = [a.vmem("buffer_load_dwordx4 %s, v%d, %s, %s offen offset:%d" % (vr(FO + 4 * i, 4), L16, srdw, S(5), 1024 * i)) for i in range(4)]
    for ri in range(2):
        for f in range(4):
            zt[(ri, f)] = a.vmem("buffer_load_dwordx4 %s, v%d, %s, %s offen offset:%d" % (vr(Z + 16 * ri + 4 * f, 4), L16, srdw, S(2 + ri), 1024 * f))
    a("s_mov_b32 %s, %s" % (S(5), hx(CONST_OFF + 16384)))
    gt = [a.vmem("buffer_load_dwordx4 %s, v%d, %s, %s offen offset:%d" % (vr(G + 4 * i, 4), L16, srdw, S(5), 1024 * i)) for i in range(4)]
    a("s_lshr_b32 %s, s%d, 1" % (S(6), s_w))
    a("s_lshl_b32 %s, %s, 13" % (S(5), S(6)))
    a("s_add_u32 %s, %s, %s" % (S(5), S(5), hx(CONST_OFF)))
    a("s_add_u32 %s, %s, 4096" % (S(7), S(5)))
    ft = [a.vmem("buffer_load_dwordx4 %s, v%d, %s, %s offen offset:%d" % (vr(F0 + 4 * i, 4), L16, srdw, S(5 + 2 * (i >> 2)), 1024 * (i & 3))) for i in range(8)]
    a("s_lshl_b32 %s, s%d, 4" % (S(8), s_w))
    a("v_add_u32 v%d, %s, v%d" % (T, S(8), N))
    a("v_cvt_f32_u32 v%d, v%d" % (T, T))
    a("v_mul_f32 v%d, %s, v%d" % (T, hx(f32bits(1 / 2048.)), T))
    a("v_lshlrev_b32 v%d, 2, v%d" % (T + 1, Gq))
    a("v_cvt_f32_u32 v%d, v%d" % (T + 1, T + 1))
    def twiddles(fa, fb):
        pass
    for e in range(8):
        a("v_add_f32 v%d, %s, v%d" % (T + 2 + (e & 1), hx(f32bits(float(16 * (e >> 2) + (e & 3)))), T + 1))
        a("v_mul_f32 v%d, v%d, v%d" % (T + 2 + (e & 1), T, T + 2 + (e & 1)))
        a("v_cos_f32 v%d, v%d" % (TW + 2 * e, T + 2 + (e & 1)))
        a("v_sin_f32 v%d, v%d" % (TW + 2 * e + 1, T + 2 + (e & 1)))
    a.wait(vm=wt)
    M = T + 2
    for e in range(8):
        a("v_lshlrev_b32 v%d, 16, v%d" % (T + 3, W + e))
        a("v_and_b32 v%d, 0x7fff0000, v%d" % (T + 4, W + e))
        if e == 0:
            a("v_max_f32 v%d, |v%d|, v%d" % (M, T + 3, T + 4))
        else:
            a("v_max3_f32 v%d, |v%d|, v%d, v%d" % (M, T + 3, T + 4, M))
    for sh in (8, 4, 2, 1):
        a("v_max_f32_dpp v%d, v%d, v%d row_ror:%d row_mask:0xf bank_mask:0xf" % (M, M, M, sh))
    for i in range(4):
        a("v_readlane_b32 %s, v%d, %d" % (S(8 + (i & 1)) if i < 2 else S(10), M, 16 * i))
        if i >= 1:
            a("s_max_u32 %s, %s, %s" % (S(8), S(8), S(9) if i == 1 else S(10)))
    a("v_mov_b32 v%d, %s" % (M, S(8)))
    a("s_lshl_b32 %s, s%d, 2" % (S(9), s_w))
    a("s_add_u32 %s, %s, s%d" % (S(9), S(9), lds_base))
    a("v_mov_b32 v%d, %s" % (T + 3, S(9)))
    mw = a.lds("ds_write_b32 v%d, v%d offset:8192" % (T + 3, M))
    a("v_mov_b32 v%d, s%d" % (T + 3, lds_base))
    a.wait(lg=mw)
    a("s_barrier")
    mr = a.lds("ds_read_b128 %s, v%d offset:8192" % (vr(AC, 4), T + 3))
    a.wait(lg=mr)
    a("v_max3_u32 v%d, v%d, v%d, v%d" % (M, AC, AC + 1, AC + 2))
    a("v_max_u32 v%d, v%d, v%d" % (M, M, AC + 3))
    a("v_lshrrev_b32 v%d, 23, v%d" % (M, M))
    a("v_med3_u32 v%d, v%d, 1, v%d" % (M, M, VA)) if False else None
    a("v_max_u32 v%d, 1, v%d" % (M, M))
    a("v_min_u32 v%d, 252, v%d" % (M, M))
    WS_, FS = T + 4, T + 5
    a("v_sub_u32 v%d, 253, v%d" % (WS_, M))
    a("v_lshlrev_b32 v%d, 23, v%d" % (WS_, WS_))
    a("v_add_u32 v%d, 1, v%d" % (FS, M))
    a("v_lshlrev_b32 v%d, 23, v%d" % (FS, FS))
    a("v_mul_f32 v%d, %s, v%d" % (FS, hx(f32bits(1 / 36.)), FS))
    Zr = lambda mb, t: vr(Z + 4 * (2 * mb + t), 4)
    Zi = lambda mb, t: vr(Z + 16 + 4 * (2 * mb + t), 4)
    C = lambda b, t: vr(b + 4 * t, 4)
    Sn = lambda b, t: vr(b + 8 + 4 * t, 4)
    acc = lambda i, m: AC + 8 * i + 4 * m
    def mf(d, A, B, first):
        a("%s %s, %s, %s, %s" % (MF, vr(d, 4), A, B, "0" if first else vr(d, 4)))
    a.wait(vm=fo)
    for t in range(2):
        for mb in range(2):
            a.wait(vm=zt[(0, 2 * mb + t)])
            mf(acc(0, mb), Zr(mb, t), C(FO, t), t == 0)
            mf(acc(2, mb), Zr(mb, t), Sn(FO, t), t == 0)
    for t in range(2):
        for mb in range(2):
            a.wait(vm=zt[(1, 2 * mb + t)])
            mf(acc(0, mb), Zi(mb, t), Sn(FO, t), False)
            mf(acc(1, mb), Zi(mb, t), C(FO, t), t == 0)
    X = T
    def cmul_store(e, re, im, c, s, sign, outr, outi):
        a("v_mul_f32 v%d, v%d, v%d" % (outr, re, c))
        a("v_mul_f32 v%d, v%d, v%d" % (outi, im, c))
        a("v_fma_f32 v%d, %sv%d, v%d, v%d" % (outr, "-" if sign > 0 else "", im, s, outr))
        a("v_fma_f32 v%d, %sv%d, v%d, v%d" % (outi, "" if sign > 0 else "-", re, s, outi))
    R_, I_ = D + 8, D + 16
    for e in range(8):
        re, p3, p2 = AC + e, AC + 8 + e, AC + 16 + e
        a("v_sub_f32 v%d, v%d, v%d" % (p3, p3, p2))
    for e in range(8):
        cmul_store(e, AC + e, AC + 8 + e, TW + 2 * e, TW + 2 * e + 1, -1, R_ + e, I_ + e)
    for h in range(4):
        a("v_cvt_pk_f16_f32 v%d, v%d, v%d" % (D + h, R_ + 2 * h, R_ + 2 * h + 1))
        a("v_cvt_pk_f16_f32 v%d, v%d, v%d" % (D + 4 + h, I_ + 2 * h, I_ + 2 * h + 1))
    Dr, Di = vr(D, 4), vr(D + 4, 4)
    C32 = lambda b: vr(G + 8 * b, 4)
    S32 = lambda b: vr(G + 8 * b + 4, 4)
    a.wait(vm=gt)
    for b in range(2):
        mf(acc(0, b), C32(b), Dr, True)
        mf(acc(1, b), C32(b), Di, True)
        mf(acc(2, b), S32(b), Dr, True)
    for b in range(2):
        mf(acc(0, b), S32(b), Di, False)
    a("s_lshl_b32 %s, s%d, 4" % (S(8), s_w))
    a("v_lshl_add_u32 v%d, v%d, 2, %s" % (X, Gq, S(8)))
    a("v_cvt_f32_u32 v%d, v%d" % (X, X))
    a("v_cvt_f32_u32 v%d, v%d" % (X + 1, N))
    a("v_mul_f32 v%d, %s, v%d" % (X + 1, hx(f32bits(1 / 2048.)), X + 1))
    a("v_add_f32 v%d, %s, v%d" % (X + 2, hx(f32bits(16 / 2048.)), X + 1))
    for e in range(8):
        a("v_add_f32 v%d, %s, v%d" % (X + 3, hx(f32bits(float(e & 3))), X))
        a("v_mul_f32 v%d, v%d, v%d" % (X + 3, X + 3, X + 1 + (e >> 2)))
        a("v_cos_f32 v%d, v%d" % (TW + 2 * e, X + 3))
        a("v_sin_f32 v%d, v%d" % (TW + 2 * e + 1, X + 3))
    for e in range(8):
        a("v_sub_f32 v%d, v%d, v%d" % (AC + 8 + e, AC + 8 + e, AC + 16 + e))
        a("v_lshlrev_b32 v%d, 16, v%d" % (X, W + e))
        a("v_and_b32 v%d, 0xffff0000, v%d" % (X + 1, W + e))
        a("v_mul_f32 v%d, v%d, v%d" % (X, X, WS_))
        a("v_mul_f32 v%d, v%d, v%d" % (X + 1, X + 1, WS_))
        cmul_store(e, AC + e, AC + 8 + e, X, X + 1, +1, R_ + e, I_ + e)
    for h in range(4):
        a("v_cvt_pk_f16_f32 v%d, v%d, v%d" % (D + h, R_ + 2 * h, R_ + 2 * h + 1))
        a("v_cvt_pk_f16_f32 v%d, v%d, v%d" % (D + 4 + h, I_ + 2 * h, I_ + 2 * h + 1))
    for b in range(2):
        mf(acc(0, b), Di, C32(b), True)
        mf(acc(1, b), Dr, C32(b), True)
        mf(acc(2, b), Di, S32(b), True)
    for b in range(2):
        mf(acc(0, b), Dr, S32(b), False)
    a("s_lshr_b32 %s, s%d, 1" % (S(8), s_w))
    a("s_lshl_b32 %s, %s, 10" % (S(8), S(8)))
    a("s_and_b32 %s, s%d, 1" % (S(9), s_w))
    a("s_lshl_b32 %s, %s, 3" % (S(10), S(9)))
    a("s_add_u32 %s, %s, %s" % (S(8), S(8), S(10)))
    a("s_add_u32 %s, %s, s%d" % (S(8), S(8), lds_base))
    a("v_add_u32 v%d, %s, v%d" % (VA, S(8), L16))
    a("s_lshl_b32 %s, %s, 11" % (S(10), S(9)))
    a("s_add_u32 %s, %s, s%d" % (S(10), S(10), lds_base))
    a("v_add_u32 v%d, %s, v%d" % (VB_, S(10), L16))
    a("v_lshlrev_b32 v%d, 7, v%d" % (VST, N))
    a("v_lshl_add_u32 v%d, v%d, 4, v%d" % (VST, Gq, VST))
    a("s_lshl_b32 %s, %s, 11" % (S(9), S(9)))
    a("s_lshl_b32 %s, %s, 6" % (S(10), S(6)))
    a("s_add_u32 %s, %s, %s" % (S(9), S(9), S(10)))
    a("s_add_u32 %s, %s, %s" % (S(9), S(9), hx(UT_OFF)))
    a("s_add_u32 %s, %s, %s" % (S(0), S(0), S(9)))
    a("s_add_u32 %s, %s, %s" % (S(1), S(1), S(9)))
    for e in range(8):
        a("v_sub_f32 v%d, v%d, v%d" % (AC + 8 + e, AC + 8 + e, AC + 16 + e))
    for e in range(8):
        cmul_store(e, AC + 8 + e, AC + e, TW + 2 * e, TW + 2 * e + 1, +1, R_ + e, I_ + e)
    for h in range(4):
        a("v_cvt_pk_f16_f32 v%d, v%d, v%d" % (D + h, R_ + 2 * h, R_ + 2 * h + 1))
        a("v_cvt_pk_f16_f32 v%d, v%d, v%d" % (D + 4 + h, I_ + 2 * h, I_ + 2 * h + 1))
    ww = []
    for ri in range(2):
        for nb in range(2):
            ww.append(a.lds("ds_write_b64 v%d, %s offset:%d" % (VA, vr(D + 4 * ri + 2 * nb, 2), (ri * 2 + nb) * 2048)))
    a.wait(lg=ww)
    a("s_barrier")
    V = D + 8
    vt = {}
    for t in range(2):
        for ri in range(2):
            vt[(ri, t)] = a.lds("ds_read_b128 %s, v%d offset:%d" % (vr(V + 8 * ri + 4 * t, 4), VB_, ri * 4096 + t * 1024))
    Vr = lambda t: vr(V + 4 * t, 4)
    Vi = lambda t: vr(V + 8 + 4 * t, 4)
    a.wait(vm=ft)
    for t in range(2):
        a.wait(lg=vt[(0, t)])
        for m, Fb in enumerate((F0, F1)):
            mf(acc(1, m), C(Fb, t), Vr(t), t == 0)
            mf(acc(0, m), Sn(Fb, t), Vr(t), t == 0)
        a.wait(lg=vt[(1, t)])
        for m, Fb in enumerate((F0, F1)):
            mf(acc(2, m), Sn(Fb, t), Vi(t), t == 0)
            mf(acc(0, m), C(Fb, t), Vi(t), False)
    for e in range(8):
        a("v_sub_f32 v%d, v%d, v%d" % (AC + 8 + e, AC + 8 + e, AC + 16 + e))
    for e in range(8):
        a("v_mul_f32 v%d, v%d, v%d" % (AC + 8 + e, AC + 8 + e, FS))
        a("v_mul_f32 v%d, v%d, v%d" % (AC + e, AC + e, FS))
    for h in range(4):
        a("v_cvt_pk_bf16_f32 v%d, v%d, v%d" % (D + h, AC + 8 + 2 * h, AC + 9 + 2 * h))
        a("v_cvt_pk_bf16_f32 v%d, v%d, v%d" % (D + 4 + h, AC + 2 * h, AC + 1 + 2 * h))
    a.vmem("buffer_store_dwordx4 %s, v%d, %s, %s offen" % (vr(D, 4), VST, srdw, S(0)))
    a.vmem("buffer_store_dwordx4 %s, v%d, %s, %s offen" % (vr(D + 4, 4), VST, srdw, S(1)))
    return T + 12


def gen_fft(name):
    a = Asm()
    a("s_cmp_ge_u32 s2, 289")
    a("s_cbranch_scc1 %s_end" % name)
    a("s_load_dwordx2 s[46:47], s[0:1], 80")
    a("v_lshrrev_b32 v1, 6, v0")
    a("v_and_b32 v2, 63, v0")
    a("v_readfirstlane_b32 s22, v1")
    a("s_mov_b32 s23, 0")
    a("s_waitcnt lgkmcnt(0)")
    srd(a, 12, 46, 47, WS_BYTES)
    nv = fft_body(a, 4, 2, 2, 22, 23, 12, 24)
    a("%s_end:" % name)
    a("s_endpgm")
    n = a.fix_hazards()
    print("fft: nops", n, "vgprs", nv, "lines", len(a.lines))
    return kernel_header(name) + a.text() + kernel_desc(name, nv, 64), FFT_LDS
```

```python
from asmgen import *
from layout import *
from gen_mlp import srd

MAGIC576 = 7456541
for n_ in list(range(0, 170000, 1)):
    assert (n_ * MAGIC576) >> 32 == n_ // 576
K1_LDS = 36864 + 12288


def mod576(a, dst, src, tmp, smagic, s576):
    a("v_mul_hi_u32 v%d, v%d, s%d" % (tmp, src, smagic))
    a("v_mul_u32_u24 v%d, s%d, v%d" % (tmp, s576, tmp))
    a("v_sub_u32 v%d, v%d, v%d" % (dst, src, tmp))


def gen_k1(name, stamps=False):
    a = Asm()
    INV576 = hx(f32bits(1.0 / 576.0))
    a("s_cmp_ge_u32 s2, 256")
    a("s_cbranch_scc1 %s_end" % name)
    a("s_load_dwordx4 s[40:43], s[0:1], 0")
    a("s_load_dwordx2 s[44:45], s[0:1], 16")
    a("s_load_dwordx2 s[48:49], s[0:1], 40")
    a("s_load_dwordx2 s[46:47], s[0:1], 80")
    a("v_lshrrev_b32 v1, 6, v0")
    a("v_and_b32 v2, 63, v0")
    a("v_readfirstlane_b32 s22, v1")
    a("s_mov_b32 s50, %d" % MAGIC576)
    a("s_movk_i32 s51, 576")
    a("s_mov_b32 s52, %s" % INV576)
    a("s_cmp_ge_u32 s2, 192")
    a("s_cbranch_scc1 %s_prep" % name)
    a("s_and_b32 s20, s2, 7")
    a("s_lshr_b32 s21, s2, 3")
    a("s_mul_i32 s23, s21, 43")
    a("s_lshr_b32 s23, s23, 7")
    a("s_mul_i32 s24, s23, 3")
    a("s_sub_u32 s24, s21, s24")
    a("s_lshl_b32 s23, s23, 3")
    a("s_add_u32 s23, s23, s20")
    a("s_lshr_b32 s25, s23, 1")
    a("s_and_b32 s26, s23, 1")
    a("v_lshrrev_b32 v3, 4, v2")
    a("v_and_b32 v4, 15, v2")
    a("s_lshl_b32 s27, s22, 2")
    a("v_add_u32 v5, s27, v3")
    a("s_mov_b32 s28, %d" % (32 * 1152))
    a("v_mul_lo_u32 v6, v5, s28")
    a("v_lshl_add_u32 v6, v4, 3, v6")
    a("s_lshl_b32 s29, s26, 10")
    a("s_add_u32 s29, s29, s25")
    a("s_mul_i32 s29, s29, 1152")
    a("s_waitcnt lgkmcnt(0)")
    srd(a, 4, 40, 41, 2048 * 1152)
    srd(a, 12, 46, 47, WS_BYTES)
    XR = 8
    xt = []
    for j in range(9):
        xt.append(a.vmem("buffer_load_dwordx2 %s, v6, s[4:7], s29 offen offset:%d" % (vr(XR + 2 * j, 2), j * 128)))
    CF = [100, 172]
    U0 = 28
    def gen_cf(blk_s, base):
        a("s_lshl_b32 s30, s%d, 4" % blk_s)
        a("v_add_u32 v40, s30, v4")
        a("v_lshrrev_b32 v41, 1, v40")
        a("v_and_b32 v42, 1, v40")
        a("v_cmp_eq_u32 vcc, 1, v40")
        a("v_mov_b32 v43, 288")
        a("v_mov_b32 v44, 0")
        a("v_cndmask_b32 v41, v41, v43, vcc")
        a("v_cndmask_b32 v42, v42, v44, vcc")
        a("v_cvt_f32_u32 v42, v42")
        a("v_mul_f32 v42, 0.25, v42") if False else a("v_mul_f32 v42, %s, v42" % hx(f32bits(0.25)))
        a("v_lshlrev_b32 v43, 5, v41")
        mod576(a, 43, 43, 44, 50, 51)
        a("v_cvt_f32_u32 v43, v43")
        a("v_mul_f32 v%d, s52, v43" % (U0 + 8))
        a("v_lshlrev_b32 v45, 2, v3")
        for e in range(8):
            d0 = 16 * (e >> 2) + (e & 3)
            a("v_add_u32 v43, %d, v45" % d0)
            a("v_mul_u32_u24 v43, v43, v41")
            mod576(a, 43, 43, 44, 50, 51)
            a("v_cvt_f32_u32 v43, v43")
            a("v_fma_f32 v%d, v43, s52, v42" % (U0 + e))
        T = 40
        for t in range(18):
            for e in range(8):
                if t == 0:
                    a("v_cos_f32 v%d, v%d" % (T + e, U0 + e))
                else:
                    a("v_fmamk_f32 v%d, v%d, %s, v%d" % (T + 8 + e, U0 + 8, hx(f32bits(float(t))), U0 + e))
            if t:
                for e in range(8):
                    a("v_cos_f32 v%d, v%d" % (T + e, T + 8 + e))
            for h in range(4):
                a("v_cvt_pk_f16_f32 v%d, v%d, v%d" % (base + 4 * t + h, T + 2 * h, T + 2 * h + 1))
    a("s_mul_i32 s31, s24, 12")
    a("s_add_u32 s31, s31, s22")
    gen_cf(31, CF[0])
    a("s_cmp_ge_u32 s22, 4")
    a("s_cbranch_scc1 %s_noB" % name)
    a("s_add_u32 s32, s31, 8")
    gen_cf(32, CF[1])
    a("%s_noB:" % name)
    XF = 40
    a.wait(vm=xt)
    for i in range(18):
        a("v_lshlrev_b32 v%d, 16, v%d" % (XF + 2 * i, XR + i))
        a("v_and_b32 v%d, 0xffff0000, v%d" % (XF + 2 * i + 1, XR + i))
    A0 = 28
    a("v_pk_add_f32 %s, %s, %s" % (vr(A0, 2), vr(XF, 2), vr(XF + 2, 2)))
    a("v_pk_add_f32 %s, %s, %s" % (vr(A0 + 2, 2), vr(XF + 4, 2), vr(XF + 6, 2)))
    for i in range(4, 18):
        d = A0 + 2 * (i & 1)
        a("v_pk_add_f32 %s, %s, %s" % (vr(d, 2), vr(d, 2), vr(XF + 2 * i, 2)))
    a("v_pk_add_f32 %s, %s, %s" % (vr(A0, 2), vr(A0, 2), vr(A0 + 2, 2)))
    a("v_add_f32 v%d, v%d, v%d" % (A0, A0, A0 + 1))
    def rowsum(r):
        for sh in (8, 4, 2, 1):
            a("v_add_f32_dpp v%d, v%d, v%d row_ror:%d row_mask:0xf bank_mask:0xf" % (r, r, r, sh))
    rowsum(A0)
    a("v_mul_f32 v%d, s52, v%d" % (A0, A0))
    a("v_sub_f32 v%d, 0, v%d" % (A0 + 2, A0))
    a("v_sub_f32 v%d, 0, v%d" % (A0 + 3, A0))
    a("v_cvt_pk_bf16_f32 v%d, v%d, v%d" % (A0 + 1, A0 + 2, A0 + 2))
    a("v_lshlrev_b32 v%d, 16, v%d" % (A0 + 4, A0 + 1))
    a("v_lshlrev_b32 v%d, 16, v%d" % (A0 + 5, A0 + 1))
    a("v_mov_b32 v%d, 0" % (A0 + 6)); a("v_mov_b32 v%d, 0" % (A0 + 7))
    a("v_mov_b32 v%d, 0" % (A0 + 8)); a("v_mov_b32 v%d, 0" % (A0 + 9))
    TT = 76
    for i in range(18):
        t = TT + 2 * (i & 3)
        d = A0 + 6 + 2 * (i & 1)
        a("v_pk_add_f32 %s, %s, %s" % (vr(t, 2), vr(XF + 2 * i, 2), vr(A0 + 2, 2)))
        a("v_pk_fma_f32 %s, %s, %s, %s" % (vr(d, 2), vr(t, 2), vr(t, 2), vr(d, 2)))
    a("v_pk_add_f32 %s, %s, %s" % (vr(A0 + 6, 2), vr(A0 + 6, 2), vr(A0 + 8, 2)))
    a("v_add_f32 v%d, v%d, v%d" % (A0 + 6, A0 + 6, A0 + 7))
    rowsum(A0 + 6)
    V = A0 + 6
    a("v_mul_f32 v%d, s52, v%d" % (V, V))
    a("v_cvt_pk_bf16_f32 v%d, v%d, v%d" % (V, V, V))
    a("v_lshlrev_b32 v%d, 16, v%d" % (V, V))
    a("v_add_f32 v%d, %s, v%d" % (V, hx(f32bits(1e-5)), V))
    a("v_cvt_pk_bf16_f32 v%d, v%d, v%d" % (V, V, V))
    a("v_lshlrev_b32 v%d, 16, v%d" % (V, V))
    a("v_sqrt_f32 v%d, v%d" % (V, V))
    a("v_cvt_pk_bf16_f32 v%d, v%d, v%d" % (V, V, V))
    a("v_lshlrev_b32 v%d, 16, v%d" % (V, V))
    a("v_rcp_f32 v%d, v%d" % (V, V))
    a("v_mov_b32 v%d, v%d" % (V + 1, V))
    a("v_and_b32 v84, 3, v4")
    a("v_lshrrev_b32 v85, 3, v4")
    a("v_lshl_add_u32 v86, v85, 2, v84")
    a("v_and_b32 v87, 15, v5")
    a("v_xor_b32 v86, v86, v87")
    a("v_lshl_add_u32 v86, v84, 4, v86")
    a("v_lshl_add_u32 v86, v85, 6, v86")
    a("v_lshrrev_b32 v87, 4, v5")
    a("v_mul_u32_u24 v87, %d, v87" % (18 * 64))
    a("v_add_u32 v86, v86, v87")
    a("v_lshlrev_b32 v86, 4, v86")
    a("v_bfe_u32 v87, v4, 2, 1")
    a("v_lshl_add_u32 v86, v87, 3, v86")
    a("v_bfe_u32 v88, v5, 2, 2")
    a("v_lshlrev_b32 v88, 3, v88")
    a("v_bfe_u32 v89, v5, 4, 1")
    a("v_lshl_add_u32 v88, v89, 2, v88")
    a("v_and_b32 v89, 3, v5")
    a("v_add_u32 v88, v88, v89")
    a("v_and_b32 v89, 1, v4")
    a("v_lshl_add_u32 v88, v89, 5, v88")
    a("v_lshrrev_b32 v89, 2, v4")
    a("v_lshl_add_u32 v88, v89, 6, v88")
    a("v_lshlrev_b32 v88, 4, v88")
    a("v_bfe_u32 v89, v4, 1, 1")
    a("v_lshl_add_u32 v88, v89, 3, v88")
    a("v_add_u32 v88, 36864, v88")
    for j in range(9):
        for i in (2 * j, 2 * j + 1):
            x = XF + 2 * i
            a("v_pk_add_f32 %s, %s, %s" % (vr(x, 2), vr(x, 2), vr(A0 + 4, 2)))
        for i in (2 * j, 2 * j + 1):
            x = XF + 2 * i
            a("v_cvt_pk_bf16_f32 v%d, v%d, v%d" % (XR + i, x, x + 1))
        for i in (2 * j, 2 * j + 1):
            x = XF + 2 * i
            a("v_lshlrev_b32 v%d, 16, v%d" % (x, XR + i))
            a("v_and_b32 v%d, 0xffff0000, v%d" % (x + 1, XR + i))
        for i in (2 * j, 2 * j + 1):
            x = XF + 2 * i
            a("v_pk_mul_f32 %s, %s, %s" % (vr(x, 2), vr(x, 2), vr(V, 2)))
        for i in (2 * j, 2 * j + 1):
            x = XF + 2 * i
            a("v_cvt_pk_bf16_f32 v%d, v%d, v%d" % (XR + i, x, x + 1))
        for i in (2 * j, 2 * j + 1):
            x = XF + 2 * i
            a("v_lshlrev_b32 v%d, 16, v%d" % (x, XR + i))
            a("v_and_b32 v%d, 0xffff0000, v%d" % (x + 1, XR + i))
        x = XF + 4 * j
        a("v_cvt_pk_f16_f32 v%d, v%d, v%d" % (x, x, x + 1))
        a("v_cvt_pk_f16_f32 v%d, v%d, v%d" % (x + 1, x + 2, x + 3))
        a.lds("ds_write_b64 v86, %s offset:%d" % (vr(x, 2), j * 2048))
    for nt in range(3):
        a("s_cmp_lg_u32 s24, %d" % nt)
        a("s_cbranch_scc1 %s_x%d" % (name, nt))
        for jl in range(3):
            a("ds_write_b64 v88, %s offset:%d" % (vr(XR + 2 * (3 * nt + jl), 2), jl * 4096))
        a("%s_x%d:" % (name, nt))
    a("v_xor_b32 v84, v3, v4")
    a("v_lshl_add_u32 v85, v3, 4, v84")
    a("v_lshlrev_b32 v85, 4, v85")
    a("v_xor_b32 v84, 4, v84")
    a("v_lshl_add_u32 v86, v3, 4, v84")
    a("v_lshlrev_b32 v86, 4, v86")
    a("v_lshlrev_b32 v87, 12, v4")
    a("v_lshl_add_u32 v87, v3, 8, v87")
    a("s_lshr_b32 s33, s25, 4")
    a("s_lshl_b32 s33, s33, 1")
    a("s_add_u32 s33, s33, s26")
    a("s_lshl_b32 s33, s33, 6")
    a("s_and_b32 s34, s25, 15")
    a("s_add_u32 s33, s33, s34")
    a("s_lshl_b32 s33, s33, 4")
    a("s_add_u32 s33, s33, %s" % hx(ZF_OFF))
    a("s_lshl_b32 s34, s31, 16")
    a("s_add_u32 s33, s33, s34")
    a.wait_all(vm=False, lg=True)
    a("s_barrier")
    AF = 40
    ACC = 8

    def mm(nblk):
        toks = {}
        def rd(t):
            af = AF + 8 * (t % 3)
            toks[t] = [a.lds("ds_read_b128 %s, v%d offset:%d" % (vr(af + 4 * mb, 4), 85 + (t & 1), (mb * 18 + t) * 1024)) for mb in range(2)]
        rd(0); rd(1)
        for t in range(18):
            if t + 2 < 18: rd(t + 2)
            af = AF + 8 * (t % 3)
            for mb in range(2):
                a.wait(lg=toks[t][mb])
                for bl in range(nblk):
                    d = ACC + 8 * bl + 4 * mb
                    a("v_mfma_f32_16x16x32_f16 %s, %s, %s, %s" % (vr(d, 4), vr(af + 4 * mb, 4), vr(CF[bl] + 4 * t, 4), "0" if t == 0 else vr(d, 4)))
        for bl in range(nblk):
            d = ACC + 8 * bl
            for i in range(8):
                a("v_mul_f32 v%d, %s, v%d" % (d + i, hx(f32bits(2.0 ** -5)), d + i))
            for h in range(4):
                a("v_cvt_pk_f16_f32 v%d, v%d, v%d" % (64 + 4 * bl + h, d + 2 * h, d + 2 * h + 1))
            if bl:
                a("s_add_u32 s33, s33, %d" % (8 << 16))
            a("buffer_store_dwordx4 %s, v87, s[12:15], s33 offen" % vr(64 + 4 * bl, 4))
    a("s_cmp_ge_u32 s22, 4")
    a("s_cbranch_scc1 %s_mm1" % name)
    mm(2)
    a("s_endpgm")
    a("%s_mm1:" % name)
    a("s_sub_u32 s34, s22, 4")
    a("s_mul_i32 s34, s34, 3072")
    a("v_lshlrev_b32 v88, 4, v2")
    a("v_add_u32 v89, s34, v88")
    ct = [a.lds("ds_read_b128 %s, v89 offset:%d" % (vr(172 + 4 * i, 4), 36864 + 1024 * i)) for i in range(3)]
    a("s_mul_i32 s35, s23, 36864")
    a("s_mul_i32 s36, s24, 12288")
    a("s_add_u32 s35, s35, s36")
    a("s_add_u32 s35, s35, s34")
    a("s_add_u32 s35, s35, %s" % hx(XNF_OFF))
    for i in range(3):
        a.wait(lg=ct[i])
        a("buffer_store_dwordx4 %s, v88, s[12:15], s35 offen offset:%d" % (vr(172 + 4 * i, 4), 1024 * i))
    mm(1)
    a("s_endpgm")

    a("%s_prep:" % name)
    a.vm = []; a.lg = []
    a("s_sub_u32 s20, s2, 192")
    a("s_and_b32 s21, s20, 31")
    a("s_lshr_b32 s23, s20, 5")
    a("s_waitcnt lgkmcnt(0)")
    srd(a, 4, 42, 43, 2048 * 578)
    srd(a, 8, 44, 45, 2048 * 578)
    srd(a, 12, 46, 47, WS_BYTES)
    srd(a, 16, 48, 49, 9216)
    a("s_bfe_u32 s24, s22, 0x10002")
    a("s_lshl_b32 s25, s23, 1")
    a("s_add_u32 s24, s24, s25")
    a("s_lshl_b32 s24, s24, 2")
    a("s_and_b32 s25, s22, 3")
    a("s_add_u32 s24, s24, s25")
    a("s_lshl_b32 s24, s24, 6")
    a("s_lshl_b32 s25, s21, 1")
    a("s_add_u32 s24, s24, s25")
    a("s_mul_i32 s24, s24, 578")
    a("s_add_u32 s25, s24, %d" % (16 * 64 * 578))
    a("v_lshlrev_b32 v3, 2, v2")
    WL = 100
    wt = []
    for mb in range(2):
        for arr in range(2):
            for it in range(5):
                if it == 4: a("s_mov_b32 exec_hi, 1")
                wt.append(a.vmem("buffer_load_dword v%d, v3, s[%d:%d], s%d offen offset:%d" % (WL + (mb * 2 + arr) * 5 + it, 4 + 4 * arr, 7 + 4 * arr, 24 + mb, 256 * it)))
                if it == 4: a("s_mov_b32 exec_hi, -1")
    a("s_lshl_b32 s26, s20, 9")
    a("v_add_u32 v4, s26, v0")
    a("v_lshlrev_b32 v5, 1, v4")
    bt = a.vmem("buffer_load_ushort v6, v5, s[16:19], 0 offen")
    a("v_and_b32 v8, 15, v2")
    a("v_lshrrev_b32 v9, 4, v2")
    a("v_lshlrev_b32 v7, 4, v2")
    a("s_lshl_b32 s27, s20, 3")
    a("s_add_u32 s27, s27, s22")
    a("%s_cinv:" % name)
    a("s_mul_i32 s28, s27, 3641")
    a("s_lshr_b32 s28, s28, 16")
    a("s_mul_i32 s29, s28, 18")
    a("s_sub_u32 s29, s27, s29")
    a("s_lshl_b32 s28, s28, 4")
    a("v_add_u32 v10, s28, v8")
    a("s_lshl_b32 s29, s29, 5")
    a("v_lshl_add_u32 v11, v9, 2, s29")
    for e in range(8):
        off = 16 * (e >> 2) + (e & 3)
        a("v_add_u32 v12, %d, v11" % off)
        a("v_lshrrev_b32 v13, 1, v12")
        if e == 1:
            a("v_cmp_eq_u32 vcc, 1, v12")
            a("v_mov_b32 v14, 288")
            a("v_mov_b32 v16, %s" % hx(f32bits(0.25)))
            a("v_cndmask_b32 v13, v13, v14, vcc")
            a("v_cndmask_b32 v16, v16, 0, vcc")
        a("v_mul_u32_u24 v13, v13, v10")
        mod576(a, 13, 13, 14, 50, 51)
        a("v_cvt_f32_u32 v13, v13")
        if e == 1:
            a("v_fma_f32 v13, v13, s52, v16")
        elif e & 1:
            a("v_mov_b32 v16, %s" % hx(f32bits(0.25)))
            a("v_fma_f32 v13, v13, s52, v16")
        else:
            a("v_mul_f32 v13, s52, v13")
        a("v_cos_f32 v13, v13")
        if e < 2:
            a("v_cmp_gt_u32 vcc, 2, v12")
            a("v_mov_b32 v14, 2.0")
            a("v_cndmask_b32 v14, v14, 1.0, vcc")
            a("v_mul_f32 v%d, v14, v13" % (20 + e))
        else:
            a("v_add_f32 v%d, v13, v13" % (20 + e))
    for h in range(4):
        a("v_cvt_pk_bf16_f32 v%d, v%d, v%d" % (28 + h, 20 + 2 * h, 21 + 2 * h))
    a("s_lshl_b32 s28, s27, 10")
    a("s_add_u32 s28, s28, %s" % hx(CINV_OFF))
    a("buffer_store_dwordx4 v[28:31], v7, s[12:15], s28 offen")
    a("s_add_u32 s27, s27, 512")
    a("s_cmp_lt_u32 s27, 648")
    a("s_cbranch_scc1 %s_cinv" % name)
    a("s_sub_u32 s28, s27, %d" % (512 + 136))
    a("s_cmp_ge_u32 s28, 20")
    a("s_cbranch_scc1 %s_nocf" % name)
    a("s_lshr_b32 s31, s28, 2")
    a("s_bfe_u32 s32, s28, 0x10001")
    a("s_and_b32 s33, s28, 1")
    a("s_bfe_u32 s34, s28, 0x10001")
    a("s_cmp_lt_u32 s28, 16")
    a("s_cselect_b32 s30, 1, 0")
    a("s_cselect_b32 s31, s31, s34")
    a("s_cselect_b32 s32, s32, s33")
    a("s_cselect_b32 s33, s33, 0")
    a("s_cselect_b32 s34, 63, 31")
    a("s_lshl_b32 s30, s30, 23")
    a("s_sub_u32 s35, %s, s30" % hx(f32bits(1 / 32.)))
    a("s_sub_u32 s36, %s, s30" % hx(f32bits(0.25)))
    a("s_cmp_eq_u32 s32, 0")
    a("s_cselect_b32 s37, 0, %s" % hx(f32bits(0.75)))
    a("s_lshl_b32 s31, s31, 4")
    a("v_add_u32 v10, s31, v8")
    a("s_lshl_b32 s33, s33, 5")
    a("v_lshl_add_u32 v11, v9, 2, s33")
    a("v_mov_b32 v16, s37")
    for e in range(8):
        off = 16 * (e >> 2) + (e & 3)
        a("v_add_u32 v12, %d, v11" % off)
        a("v_mul_u32_u24 v13, v12, v10")
        a("v_and_b32 v13, s34, v13")
        a("v_cvt_f32_u32 v13, v13")
        a("v_fma_f32 v13, v13, s35, v16")
        a("v_cos_f32 v13, v13")
        a("v_mul_f32 v%d, s36, v13" % (20 + e))
    for h in range(4):
        a("v_cvt_pk_f16_f32 v%d, v%d, v%d" % (28 + h, 20 + 2 * h, 21 + 2 * h))
    a("s_lshl_b32 s28, s28, 10")
    a("s_add_u32 s28, s28, %s" % hx(CONST_OFF))
    a("buffer_store_dwordx4 v[28:31], v7, s[12:15], s28 offen")
    a("%s_nocf:" % name)
    a.wait_all(vm=True, lg=False)
    a("v_lshlrev_b32 v6, 16, v6")
    a("v_lshlrev_b32 v5, 2, v4")
    a("v_cmp_gt_u32 vcc, 4608, v4")
    a("s_mov_b32 s28, %s" % hx(B1F_OFF))
    a("s_and_saveexec_b64 s[30:31], vcc")
    a("s_cbranch_execz %s_nob1" % name)
    a("buffer_store_dword v6, v5, s[12:15], s28 offen")
    a("%s_nob1:" % name)
    a("s_mov_b64 exec, -1")
    a("s_mul_i32 s28, s22, 1160")
    a("v_add_u32 v10, s28, v3")
    for mb in range(2):
        for arr in range(2):
            for it in range(5):
                if it == 4: a("s_mov_b32 exec_hi, 1")
                a("ds_write_b32 v10, v%d offset:%d" % (WL + (mb * 2 + arr) * 5 + it, (arr * 16 + mb * 8) * 1160 + 256 * it))
                if it == 4: a("s_mov_b32 exec_hi, -1")
    a("s_waitcnt lgkmcnt(0)")
    a("s_barrier")
    a("s_lshr_b32 s28, s21, 3")
    a("s_lshl_b32 s28, s28, 11")
    a("s_and_b32 s29, s21, 7")
    a("s_lshl_b32 s29, s29, 6")
    a("s_add_u32 s28, s28, s29")
    a("s_lshl_b32 s29, s23, 10")
    a("s_add_u32 s28, s28, s29")
    a("s_add_u32 s28, s28, %s" % hx(WT_OFF))
    for it in range(3):
        a("v_add_u32 v10, %d, v0" % (512 * it))
        a("v_and_b32 v11, 1, v10")
        a("v_bfe_u32 v12, v10, 1, 1")
        a("v_lshrrev_b32 v13, 2, v10")
        a("v_min_u32 v13, 288, v13")
        a("v_mul_u32_u24 v14, 578, v11")
        a("v_lshl_add_u32 v14, v13, 1, v14")
        a("v_mul_u32_u24 v15, %d, v12" % (4 * 1160))
        a("v_add_u32 v14, v14, v15")
        for mb in range(2):
            for r in range(4):
                e = mb * 4 + r
                a("ds_read_u16 v%d, v14 offset:%d" % (32 + e, (mb * 8 + r) * 1160))
                a("ds_read_u16 v%d, v14 offset:%d" % (40 + e, (16 + mb * 8 + r) * 1160))
        a("v_lshlrev_b32 v15, 13, v13")
        a("v_lshl_add_u32 v15, v12, 9, v15")
        a("v_lshl_add_u32 v15, v11, 5, v15")
        a("s_waitcnt lgkmcnt(0)")
        for e in range(8):
            a("v_lshl_or_b32 v%d, v%d, 16, v%d" % (20 + e, 40 + e, 32 + e))
        a("buffer_store_dwordx4 v[20:23], v15, s[12:15], s28 offen")
        a("buffer_store_dwordx4 v[24:27], v15, s[12:15], s28 offen offset:16")
    a("%s_end:" % name)
    a("s_endpgm")
    n = a.fix_hazards()
    print("k1: nops inserted", n, "lines", len(a.lines))
    return kernel_header(name) + a.text() + kernel_desc(name, 244), K1_LDS
```

```python
from asmgen import *
from layout import *
from gen_mlp import srd
K3_LDS = 36864

def gen_k3(name, NPART=16):
    a = Asm()
    a("s_cmp_ge_u32 s2, 256")
    a("s_cbranch_scc1 %s_end" % name)
    a("s_load_dwordx2 s[40:41], s[0:1], 0")
    a("s_load_dwordx4 s[44:47], s[0:1], 56")
    a("s_load_dwordx2 s[48:49], s[0:1], 80")
    a("v_lshrrev_b32 v1, 6, v0")
    a("v_and_b32 v2, 63, v0")
    a("v_readfirstlane_b32 s22, v1")
    a("s_and_b32 s20, s2, 7")
    a("s_lshr_b32 s21, s2, 5")
    a("s_lshl_b32 s21, s21, 3")
    a("s_add_u32 s20, s20, s21")
    a("s_bfe_u32 s21, s2, 0x20003")
    a("s_mul_i32 s23, s21, 9")
    a("s_add_u32 s23, s23, s22")
    a("v_lshlrev_b32 v3, 4, v2")
    a("v_lshrrev_b32 v4, 2, v2")
    a("v_bfe_u32 v5, v2, 4, 1")
    a("v_lshlrev_b32 v5, 1, v5")
    a("v_and_b32 v6, 3, v2")
    a("v_xor_b32 v5, v5, v6")
    a("v_lshlrev_b32 v5, 4, v5")
    a("v_lshl_add_u32 v4, v4, 12, v5")
    a("s_lshl_b32 s24, s22, 18")
    a("s_lshl_b32 s25, s20, 6")
    a("s_add_u32 s24, s24, s25")
    a("s_add_u32 s24, s24, %s" % hx(UT_OFF))
    a("s_lshl_b32 s25, s22, 12")
    a("s_mul_i32 s26, s23, 18432")
    a("s_add_u32 s26, s26, %s" % hx(CINV_OFF))
    a("s_mul_i32 s27, s20, 36")
    a("s_add_u32 s27, s27, s23")
    a("s_lshl_b32 s27, s27, 10")
    a("s_add_u32 s27, s27, %s" % hx(PART_OFF))
    a("v_lshrrev_b32 v5, 4, v2")
    a("v_bfe_u32 v7, v2, 2, 4")
    a("v_lshlrev_b32 v7, 6, v7")
    a("v_lshl_add_u32 v7, v6, 3, v7")
    a("v_and_b32 v8, 1, v5")
    a("v_lshl_add_u32 v9, v8, 5, v7")
    a("v_xor_b32 v10, 32, v9")
    a("v_and_b32 v11, 15, v2")
    a("v_and_b32 v12, 3, v11")
    a("v_bfe_u32 v13, v11, 2, 1")
    a("v_lshl_add_u32 v12, v13, 4, v12")
    a("v_bfe_u32 v13, v11, 3, 1")
    a("v_lshl_add_u32 v12, v13, 2, v12")
    a("s_mov_b32 s28, %d" % (32 * 1152))
    a("v_mul_lo_u32 v12, v12, s28")
    a("v_lshl_add_u32 v12, v5, 3, v12")
    a("v_add_u32 v13, %d, v12" % (8 * 32 * 1152))
    a("s_lshr_b32 s28, s20, 1")
    a("s_and_b32 s29, s20, 1")
    a("s_lshl_b32 s29, s29, 10")
    a("s_add_u32 s28, s28, s29")
    a("s_mul_i32 s28, s28, 1152")
    a("s_lshl_b32 s29, s23, 5")
    a("s_add_u32 s28, s28, s29")
    a("v_lshlrev_b32 v14, 3, v5")
    a("s_waitcnt lgkmcnt(0)")
    srd(a, 4, 40, 41, 2048 * 1152)
    srd(a, 8, 46, 47, 2048 * 1152)
    srd(a, 16, 44, 45, 1152)
    srd(a, 12, 48, 49, WS_BYTES)
    ut = []
    for i in range(4):
        a("s_add_u32 m0, s25, %d" % (1024 * i))
        a("s_add_u32 s30, s24, %d" % (65536 * i))
        ut.append(a.vmem("buffer_load_dwordx4 v4, s[12:15], s30 offen lds"))
    CA = 24
    PT = 96
    ACC = 128
    S_ = 136
    BFR = 144
    T = BFR
    NB = NPART // 2
    def pload(c):
        a("s_add_u32 s30, s27, %s" % hx(c * 64 * 36864))
        return a.vmem("buffer_load_dwordx4 %s, v3, s[12:15], s30 offen" % vr(PT + 4 * (c % NB), 4))
    def psum(c, tok):
        a.wait(vm=tok)
        for h in range(4):
            p = PT + 4 * (c % NB) + h
            dst = S_ + 2 * h if c == 0 else T + 2 * h
            a("v_lshlrev_b32 v%d, 16, v%d" % (dst, p))
            a("v_and_b32 v%d, 0xffff0000, v%d" % (dst + 1, p))
        if c:
            for h in range(4):
                a("v_pk_add_f32 %s, %s, %s" % (vr(S_ + 2 * h, 2), vr(S_ + 2 * h, 2), vr(T + 2 * h, 2)))
    pt = [pload(c) for c in range(NB)]
    ct = []
    for t in range(18):
        if t % 4 == 0:
            a("s_add_u32 s30, s26, %d" % (1024 * t))
        ct.append(a.vmem("buffer_load_dwordx4 %s, v3, s[12:15], s30 offen offset:%d" % (vr(CA + 4 * t, 4), 1024 * (t % 4))))
    xt = [a.vmem("buffer_load_dwordx2 %s, v%d, s[4:7], s28 offen" % (vr(16 + 2 * sb, 2), 12 + sb)) for sb in range(2)]
    bt = a.vmem("buffer_load_dwordx2 v[20:21], v14, s[16:19], s29 offen")
    for c in range(NB):
        psum(c, pt[c])
        pt.append(pload(NB + c))
    a("s_barrier")
    toks = {}
    def rd(t):
        b = BFR + 8 * (t % 3)
        toks[t] = [a.lds("ds_read_b64_tr_b16 %s, v%d offset:%d" % (vr(b + 4 * sb + 2 * i, 2), 9 + sb, t * 2048 + i * 1024)) for sb in range(2) for i in range(2)]
    rd(0); rd(1)
    for t in range(18):
        if t + 2 < 18: rd(t + 2)
        b = BFR + 8 * (t % 3)
        for sb in range(2):
            a.wait(vm=ct[t], lg=toks[t][2 * sb: 2 * sb + 2])
            d = ACC + 4 * sb
            a("v_mfma_f32_16x16x32_bf16 %s, %s, %s, %s" % (vr(d, 4), vr(CA + 4 * t, 4), vr(b + 4 * sb, 4), "0" if t == 0 else vr(d, 4)))
    for c in range(NB, NPART):
        psum(c, pt[c])
    def rnd(r):
        a("v_cvt_pk_bf16_f32 v%d, v%d, v%d" % (T + 8, r, r + 1))
        a("v_lshlrev_b32 v%d, 16, v%d" % (r, T + 8))
        a("v_and_b32 v%d, 0xffff0000, v%d" % (r + 1, T + 8))
    a.wait(vm=xt + [bt])
    B2 = 24
    for h in range(2):
        a("v_lshlrev_b32 v%d, 16, v%d" % (B2 + 2 * h, 20 + h))
        a("v_and_b32 v%d, 0xffff0000, v%d" % (B2 + 2 * h + 1, 20 + h))
    for h in range(4):
        s_ = S_ + 2 * h; y = ACC + 2 * h
        rnd(s_)
        a("v_pk_add_f32 %s, %s, %s" % (vr(s_, 2), vr(s_, 2), vr(B2 + 2 * (h & 1), 2)))
        rnd(s_)
        rnd(y)
        a("v_lshlrev_b32 v%d, 16, v%d" % (T, 16 + h))
        a("v_and_b32 v%d, 0xffff0000, v%d" % (T + 1, 16 + h))
        a("v_pk_add_f32 %s, %s, %s" % (vr(y, 2), vr(y, 2), vr(T, 2)))
        rnd(y)
        a("v_pk_add_f32 %s, %s, %s" % (vr(y, 2), vr(y, 2), vr(s_, 2)))
        a("v_cvt_pk_bf16_f32 v%d, v%d, v%d" % (28 + h, y, y + 1))
    for sb in range(2):
        a("buffer_store_dwordx2 %s, v%d, s[8:11], s28 offen" % (vr(28 + 2 * sb, 2), 12 + sb))
    a("%s_end:" % name)
    a("s_endpgm")
    n = a.fix_hazards()
    print("k3: nops", n, "lines", len(a.lines))
    return kernel_header(name) + a.text() + kernel_desc(name, 168, 64), K3_LDS
```

```python
from asmgen import *
from layout import *
from collections import deque

C0 = -2.0 * 1.4426950408889634 * 0.7978845608028654
C1 = C0 * 0.044715
MFMA = "v_mfma_f32_32x32x16_bf16"


def srd(a, s, lo, hi, nbytes):
    a("s_mov_b32 s%d, s%d" % (s, lo))
    a("s_and_b32 s%d, s%d, 0xffff" % (s + 1, hi))
    a("s_mov_b32 s%d, %s" % (s + 2, hx(nbytes)))
    a("s_mov_b32 s%d, 0x20000" % (s + 3))


STG = 12288
NS = 7
PBASE = NS * STG
BIASB = PBASE + 73728
MLP_LDS = BIASB + 1152
NSTG = 54


def gen_mlp(name, PD=2, NFILL=7, GDELAY=16, SEGB=120, segprio=0, nowait=0, d2=2, stf=0, stamps=False, pre_hook=None, prio=0, nostore=False, rot=1, cmap=1,
            nodma=0, nogelu=0, nobar=0, fakep=0):
    a = Asm()
    XN0 = 16
    def XN(t): return XN0 + t * 4
    def PF(i): return XN(i)
    ACC = [160, 176]
    ACC2 = [XN(20), XN(24)]
    AF = 192
    TMP = AF + 8 * (PD + 1)
    PK = TMP + 8
    AD = PK + 16
    names = ["vD1", "vD1h", "vD2", "vA", "vAH", "vAh", "vAhH",
             "vBias", "vPw", "vL16", "vPart", "vC1"]
    free = list(range(1, 16)) + list(range(AD, 256))
    R = {}
    for nme in names:
        R[nme] = free.pop(0)
    NV = max(max(R.values()) + 1, AD)
    assert NV <= 256, NV
    if stamps == 2: NV = 256

    a("s_cmp_ge_u32 s2, 256")
    a("s_cbranch_scc1 %s_end" % name)
    a("s_load_dwordx4 s[40:43], s[0:1], 32")
    a("s_load_dwordx2 s[44:45], s[0:1], 48")
    a("s_load_dwordx2 s[46:47], s[0:1], 80")
    if stamps:
        a("s_memtime s[60:61]")
    L = 166
    a("v_lshrrev_b32 v167, 6, v0")
    a("v_and_b32 v%d, 63, v0" % L)
    a("v_readfirstlane_b32 s22, v167")
    if cmap == 0:
        a("s_and_b32 s20, s2, 15")
        a("s_lshr_b32 s21, s2, 4")
    else:
        a("s_and_b32 s20, s2, 3")
        a("s_lshl_b32 s20, s20, 2")
        a("s_bfe_u32 s48, s2, 0x20003")
        a("s_add_u32 s20, s20, s48")
        a("s_bfe_u32 s21, s2, 0x10002")
        a("s_lshl_b32 s21, s21, 3")
        a("s_lshr_b32 s48, s2, 5")
        a("s_add_u32 s21, s21, s48")
    if rot:
        a("s_and_b32 s54, s21, 3")
    else:
        a("s_mov_b32 s54, 0")
    a("s_and_b32 s23, s20, 1")
    a("s_and_b32 s38, s22, 3")
    a("s_lshr_b32 s39, s22, 2")
    a("s_mul_i32 s24, s20, 576")
    a("s_lshl_b32 s48, s23, 6")
    a("s_add_u32 s24, s24, s48")
    a("s_mul_i32 s25, s20, 576")
    a("s_cmp_eq_u32 s23, 0")
    a("s_cselect_b32 s48, 512, 0")
    a("s_add_u32 s25, s25, s48")
    a("s_mul_i32 s26, s20, 288")
    a("s_lshl_b32 s48, s23, 5")
    a("s_add_u32 s26, s26, s48")
    a("s_mul_i32 s26, s26, 1152")
    a("s_mul_i32 s48, s23, %d" % (288 * 1152))
    a("s_sub_u32 s27, s26, s48")
    for u in range(4):
        a("s_add_u32 s48, s54, %d" % u)
        a("s_and_b32 s48, s48, 3")
        a("s_lshl_b32 s48, s48, 7")
        a("s_add_u32 s%d, s24, s48" % (72 + u))
    def slab_off(dst, iota_s):
        a("s_lshr_b32 s48, s%d, 1" % iota_s)
        a("s_add_u32 s48, s48, s54")
        a("s_and_b32 s48, s48, 3")
        a("s_lshl_b32 s48, s48, 1")
        a("s_and_b32 s51, s%d, 1" % iota_s)
        a("s_add_u32 s48, s48, s51")
        a("s_mul_i32 s48, s48, %d" % (32 * 1152))
        a("s_add_u32 s%d, s26, s48" % dst)
    for io in range(8):
        a("s_mov_b32 s55, %d" % io)
        slab_off(76 + io, 55)
    a("s_add_u32 s84, s27, %d" % (256 * 1152))
    a("s_lshl_b32 s28, s38, 10")
    a("s_mov_b32 s32, -1")
    a("s_mov_b32 s33, 0")
    a("s_lshl_b32 s36, s21, 2")
    a("s_add_u32 s36, s36, s38")
    a("s_mul_i32 s37, s36, 36864")
    a("s_mul_i32 s48, s39, 3072")
    a("s_add_u32 s36, s37, s48")
    a("s_add_u32 s36, s36, %s" % hx(XNF_OFF))
    a("s_mul_i32 s35, s38, 6144")
    a("s_add_u32 s35, s35, s48")
    a("s_add_u32 s35, s35, %d" % PBASE)
    a("s_mul_i32 s48, s20, %d" % (64 * 36864))
    a("s_add_u32 s37, s37, s48")
    a("s_lshl_b32 s48, s39, 11")
    a("s_add_u32 s37, s37, s48")
    a("s_add_u32 s37, s37, %s" % hx(PART_OFF))
    x0, x1, x2, x3, x4, x5 = 160, 161, 162, 163, 164, 165
    a("v_lshrrev_b32 v%d, 3, v%d" % (x0, L))
    a("v_bfe_u32 v%d, v%d, 4, 1" % (x1, L))
    a("v_lshlrev_b32 v%d, 2, v%d" % (x1, x1))
    a("v_and_b32 v%d, 7, v%d" % (x2, L))
    a("v_xor_b32 v%d, v%d, v%d" % (x3, x1, x2))
    a("v_lshlrev_b32 v%d, 4, v%d" % (x3, x3))
    a("s_lshl_b32 s48, s38, 3")
    a("v_add_u32 v%d, s48, v%d" % (x4, x0))
    a("s_movk_i32 s49, 9216")
    a("s_movk_i32 s50, 1152")
    a("v_mad_u32_u24 v%d, v%d, s49, v%d" % (R["vD1"], x4, x3))
    a("v_mad_u32_u24 v%d, v%d, s50, v%d" % (R["vD2"], x4, x3))
    a("v_lshrrev_b32 v%d, 2, v%d" % (x0, L))
    a("v_and_b32 v%d, 3, v%d" % (x3, L))
    a("v_lshlrev_b32 v%d, 4, v%d" % (x3, x3))
    a("s_lshl_b32 s48, s38, 4")
    a("v_add_u32 v%d, s48, v%d" % (x4, x0))
    a("v_mad_u32_u24 v%d, v%d, s49, v%d" % (R["vD1h"], x4, x3))
    a("v_lshrrev_b32 v%d, 5, v%d" % (x0, L))
    a("v_bfe_u32 v%d, v%d, 2, 2" % (x1, L))
    a("v_lshl_add_u32 v%d, v%d, 2, v%d" % (x3, x0, x1))
    a("v_and_b32 v%d, 3, v%d" % (x2, L))
    a("v_bfe_u32 v%d, v%d, 4, 1" % (x4, L))
    a("v_lshlrev_b32 v%d, 5, v%d" % (x4, x4))
    a("v_lshl_add_u32 v%d, v%d, 3, v%d" % (x4, x2, x4))
    a("v_bfe_u32 v%d, v%d, 3, 1" % (x5, L))
    a("v_xor_b32 v%d, s39, v%d" % (x5, x5))
    a("v_lshl_add_u32 v%d, v%d, 6, v%d" % (x5, x5, x4))
    a("v_lshl_add_u32 v%d, v%d, 7, v%d" % (R["vA"], x3, x5))
    a("v_add_u32 v%d, %d, v%d" % (R["vAH"], 5 * STG, R["vA"]))
    a("v_lshl_add_u32 v%d, v%d, 6, v%d" % (R["vAh"], x3, x4))
    a("v_add_u32 v%d, %d, v%d" % (R["vAhH"], 5 * STG, R["vAh"]))
    a("s_lshl_b32 s48, s39, 7")
    a("s_add_u32 s48, s48, %d" % BIASB)
    a("v_lshl_add_u32 v%d, v%d, 4, s48" % (R["vBias"], x0))
    a("s_mul_i32 s48, s38, 18432")
    a("s_add_u32 s48, s48, %d" % PBASE)
    a("v_lshl_add_u32 v%d, v%d, 4, s48" % (R["vPw"], L))
    a("v_lshlrev_b32 v%d, 4, v%d" % (R["vL16"], L))
    a("v_and_b32 v%d, 15, v%d" % (x1, L))
    a("v_lshl_add_u32 v%d, v%d, 4, v%d" % (x1, x0, x1))
    a("v_bfe_u32 v%d, v%d, 4, 1" % (x2, L))
    a("v_lshl_add_u32 v%d, v%d, 5, v%d" % (x1, x2, x1))
    a("v_lshlrev_b32 v%d, 4, v%d" % (R["vPart"], x1))
    a("v_mov_b32 v%d, %s" % (R["vC1"], hx(f32bits(C1))))
    VX = TMP + 7
    a("s_mul_i32 s48, s38, 6144")
    a("s_add_u32 s48, s48, %d" % PBASE)
    a("v_lshl_add_u32 v%d, v%d, 4, s48" % (VX, L))
    a("v_lshrrev_b32 v%d, 4, v%d" % (x1, L))
    a("v_add_u32 v%d, s54, v%d" % (x1, x1))
    a("v_and_b32 v%d, 3, v%d" % (x1, x1))
    a("v_lshlrev_b32 v%d, 8, v%d" % (x1, x1))
    a("v_and_b32 v%d, 15, v%d" % (x2, L))
    a("v_lshl_add_u32 v%d, v%d, 4, v%d" % (x1, x2, x1))
    a("s_lshl_b32 s56, s24, 1")
    a("s_add_u32 s56, s56, %s" % hx(B1F_OFF))
    a("s_lshl_b32 s57, s25, 1")
    a("s_add_u32 s57, s57, %s" % hx(B1F_OFF))
    a("s_waitcnt lgkmcnt(0)")
    srd(a, 4, 40, 41, 576 * 9216)
    srd(a, 8, 44, 45, 4608 * 1152)
    srd(a, 12, 46, 47, WS_BYTES)

    def stage_desc(q):
        if q < 24:
            u, sg = divmod(q, 6)
            return (4, "vD1", [(72 + u, (96 * sg + 32 * k) * 9216) for k in range(3)])
        if q < 27:
            sg = q - 24
            return (4, "vD1h", [(25, (192 * sg + 64 * k) * 9216) for k in range(3)])
        pi, sg = divmod(q - 27, 3)
        return (8, "vD2", [(76 + 3 * sg + k, 128 * pi) for k in range(3)])

    dma_tok = {}

    def dma_items(q):
        s, vf, offs = stage_desc(q)
        slot = q % NS
        dma_tok[q] = []
        out = []
        for k in range(3):
            def g(k=k):
                a("s_add_u32 m0, s28, %d" % (slot * STG + 4096 * k))
                a("s_add_u32 s30, s%d, %s" % (offs[k][0], hx(offs[k][1])))
                dma_tok[q].append(a.vmem("buffer_load_dwordx4 v%d, s[%d:%d], s30 offen lds" % (R[vf], s, s + 3)))
            out.append(g)
        return out

    xdma_tok = {}

    def xdma_items(k):
        xdma_tok[k] = []
        def g():
            a("s_add_u32 m0, s35, %d" % ((k % 3) * 24576))
            a("s_add_u32 s30, s36, %d" % (k * 6144))
            for j in range(3):
                xdma_tok[k].append(a.vmem("buffer_load_dwordx4 v%d, s[12:15], s30 offen offset:%d lds" % (R["vL16"], j * 1024)))
        return [g]

    a("s_cmp_lg_u32 s39, 0")
    a("s_cbranch_scc1 %s_h1" % name)
    vm_save = list(a.vm); lg_save = list(a.lg)
    dma_save = {k: list(v) for k, v in dma_tok.items()}
    xdma_save = {k: list(v) for k, v in xdma_tok.items()}

    def body(hf):
        a.vm = list(vm_save); a.lg = list(lg_save)
        dma_tok.clear(); dma_tok.update({k: list(v) for k, v in dma_save.items()})
        xdma_tok.clear(); xdma_tok.update({k: list(v) for k, v in xdma_save.items()})
        if prio and hf == prio - 1:
            a("s_setprio 1")
        for q in range(4):
            if q % 2 == hf:
                for g in dma_items(q): g()
            if q == 0 and hf == 1:
                a("s_mov_b32 m0, %d" % BIASB)
                btk = [a.vmem("buffer_load_dwordx4 v%d, s[12:15], s56 offen lds" % x1)]
                a("s_mov_b32 m0, %d" % (BIASB + 1024))
                a("s_mov_b64 exec, 0xff")
                btk.append(a.vmem("buffer_load_dwordx4 v%d, s[12:15], s57 offen lds" % R["vL16"]))
                a("s_mov_b64 exec, -1")
                dma_tok[0] = btk
            if q < 3:
                for g in xdma_items(q): g()
        if pre_hook:
            pre_hook(a)
        def duty(q):
            if q <= 9: return q % 2
            if q < 22: return 1 if 1 <= q % 6 <= 3 else 0
            if q <= 30: return 1
            return q % 2 if d2 == 2 else d2
        WR = {0: {0: 16, 1: 22, 2: 25, 3: 27, 4: 29}, 1: {0: 13, 1: 19, 2: 25, 3: 26}}[hf]
        steps = []
        for u in range(4):
            for s_ in range(18):
                steps.append(("p1", u, s_, 6 * u + s_ // 3, s_ % 3))
        for s_ in range(18):
            steps.append(("p1h", 4, s_, 24 + s_ // 6, s_ % 6))
        for pi in range(9):
            for s_ in range(9):
                steps.append(("p2", pi, s_, 27 + 3 * pi + s_ // 3, s_ % 3))
        if hf == 1:
            steps = [s for s in steps if not (s[0] == "p1h" and s[4] >= 3)]
        NSTEP = len(steps)

        hi = deque()
        fill = deque()
        rd_tok = {}
        bias_tok = {}
        pw_pending = []
        pw_later = []
        wr_items = {}
        published = set()
        xn_dead = set()
        p_tok = {}
        xn_tok = {}
        st = {"next_dma": 4}

        dq = deque()

        def emit_fill(n):
            while hi and n > 0:
                hi.popleft()(); n -= 1
            for _ in range(n):
                if not fill:
                    return
                tag, f = fill.popleft()
                f()

        def emit_hi(n):
            while hi and n > 0:
                hi.popleft()(); n -= 1

        def segment(budget):
            while dq:
                dq.popleft()(); budget -= 30
            while fill and budget > 0:
                n0 = len(a.lines)
                tag, f = fill.popleft()
                f()
                for l in a.lines[n0:]:
                    op = l.split()[0]
                    budget -= 8 if op in TRANS else (12 if op.startswith(("buffer", "ds_write")) else 4)

        def flush_hi():
            while hi: hi.popleft()()
            while dq: dq.popleft()()

        def flush_tag(tag):
            flush_hi()
            while any(t == tag for t, _ in fill):
                tg, f = fill.popleft(); f()

        def try_p_reads():
            for i in range(18):
                if i in published and i in xn_dead and i not in p_tok:
                    p_tok[i] = None
                    def rd(i=i):
                        p_tok[i] = a.lds("ds_read_b128 %s, v%d offset:%d" % (vr(PF(i), 4), R["vPw"], i * 1024))
                    hi.append(rd)

        def do_barrier():
            if pw_pending:
                a.wait(lg=[t for t, _ in pw_pending])
            if not nobar: a("s_barrier")
            for _, ii in pw_pending:
                published.update(ii)
            del pw_pending[:]

        def barrier(q):
            flush_hi()
            w = list(dma_tok.get(q, []))
            if q < 6: w += xdma_tok[q]
            if not (nowait and q > 6): a.wait(vm=w)
            if 1 <= q <= 3:
                a.wait(lg=[xn_tok[t] for t in range(6 * (q - 1), 6 * q)])
            do_barrier()
            if stamps == 2:
                a("s_memtime s[%d:%d]" % (88 + 2 * (q & 1), 89 + 2 * (q & 1)))
                if q >= 1:
                    a("s_sub_u32 s92, s%d, s60" % (88 + 2 * ((q - 1) & 1)))
                    a("v_writelane_b32 v255, s92, %d" % (q - 1))
            if q < 6:
                for t in range(6 * q, 6 * q + 6):
                    xn_tok[t] = None
                    def rd(t=t):
                        xn_tok[t] = a.lds("ds_read_b128 %s, v%d offset:%d" % (vr(XN(t), 4), VX, (q % 3) * 24576 + (t - 6 * q) * 1024))
                    if q == 0: rd()
                    else: hi.append(rd)
            if 1 <= q <= 3:
                dq.extend(xdma_items(q + 2))
            n = 0
            while st["next_dma"] < NSTG and st["next_dma"] <= q - 2 + NS and n < (1 if q <= 3 else 2) and q >= 1:
                if not nodma and duty(q) == hf: dq.extend(dma_items(st["next_dma"]))
                st["next_dma"] += 1; n += 1
            try_p_reads()

        def read_items(i):
            kind, ps, s_, q, kap = steps[i]
            rd_tok[i] = []
            if kind == "p1h" and hf == 1:
                return []
            slot = q % NS
            h_ = slot >= 5
            base = (slot - 5 if h_ else slot) * STG
            af = AF + 8 * (i % (PD + 1))
            out = []
            for k2 in range(2):
                for ii in range(2):
                    if kind == "p1h":
                        va = R["vAhH" if h_ else "vAh"]; off = base + kap * 2048 + k2 * 1024 + ii * 512
                    else:
                        va = R["vAH" if h_ else "vA"]; off = base + kap * 4096 + k2 * 2048 + ii * 1024
                    def rd(k2=k2, ii=ii, va=va, off=off):
                        rd_tok[i].append(a.lds("ds_read_b64_tr_b16 %s, v%d offset:%d" % (vr(af + 4 * k2 + 2 * ii, 2), va, off)))
                    out.append(rd)
            return out

        def queue_bias(ps):
            stt = ACC[ps % 2]
            bias_tok[ps] = []
            off = 256 * ps if ps < 4 else 1024
            for q4 in range(4):
                def rd(q4=q4):
                    bias_tok[ps].append(a.lds("ds_read_b128 %s, v%d offset:%d" % (vr(stt + 4 * q4, 4), R["vBias"], off + 32 * q4)))
                fill.append(("b%d" % ps, rd))

        def gelu_group(tag, regs, outs):
            T = [TMP + k for k in range(4)]
            seq = []
            for k in range(4): seq.append("v_mul_f32 v%d, v%d, v%d" % (T[k], regs[k], regs[k]))
            for k in range(4): seq.append("v_fmaak_f32 v%d, v%d, v%d, %s" % (T[k], T[k], R["vC1"], hx(f32bits(C0))))
            for k in range(4): seq.append("v_mul_f32 v%d, v%d, v%d" % (T[k], regs[k], T[k]))
            for k in range(4): seq.append("v_exp_f32 v%d, v%d" % (T[k], T[k]))
            for k in range(4): seq.append("v_add_f32 v%d, 1.0, v%d" % (T[k], T[k]))
            for k in range(4): seq.append("v_rcp_f32 v%d, v%d" % (T[k], T[k]))
            for k in range(4): seq.append("v_mul_f32 v%d, v%d, v%d" % (T[k], regs[k], T[k]))
            seq.append("v_cvt_pk_bf16_f32 v%d, v%d, v%d" % (outs[0], T[0], T[1]))
            seq.append("v_cvt_pk_bf16_f32 v%d, v%d, v%d" % (outs[1], T[2], T[3]))
            if nogelu: seq = seq[-2:]
            for s_ in seq:
                fill.append((tag, lambda s_=s_: a(s_)))

        def queue_gelu(ps):
            stt = ACC[ps % 2]
            tag = "g%d" % ps
            i0 = 4 * ps + 2 * hf if ps < 4 else 16
            for j in (0, 1):
                pk = PK + 8 * (ps % 2) + 4 * j
                for q2 in (0, 1):
                    b = stt + 8 * j + 4 * q2
                    gelu_group(tag, [b, b + 1, b + 2, b + 3], [pk + 2 * q2, pk + 2 * q2 + 1])
                def wr(j=j, pk=pk):
                    tk = a.lds("ds_write_b128 v%d, %s offset:%d" % (R["vPw"], vr(pk, 4), (i0 + j) * 1024))
                    pw_later.append((tk, []))
                wr_items.setdefault(WR[ps], []).append((tag, wr))

        def queue_store(pi):
            stt = ACC2[pi % 2]
            tag = "s%d" % pi
            fill.append((tag, lambda: a("s_add_u32 s34, s37, %d" % (pi * 4096))))
            for k in (0, 1):
                pk = PK + 4 * k
                b = stt + 8 * k
                for h in range(4):
                    fill.append((tag, lambda pk=pk, b=b, h=h: a("v_cvt_pk_bf16_f32 v%d, v%d, v%d" % (pk + h, b + 2 * h, b + 2 * h + 1))))
                fill.append((tag, lambda: a("s_nop 0")))
                fill.append((tag, lambda pk=pk: a("v_permlane16_swap_b32 v%d, v%d" % (pk, pk + 2))))
                fill.append((tag, lambda pk=pk: a("v_permlane16_swap_b32 v%d, v%d" % (pk + 1, pk + 3))))
                if not nostore or pi == 8:
                    fill.append((tag, lambda pk=pk, k=k: a.vmem("buffer_store_dwordx4 %s, v%d, s[12:15], s34 offen offset:%d%s" % (vr(pk, 4), R["vPart"], k * 1024, ["", " sc1", " sc0 sc1", " nt", " sc1 nt"][stf]))))

        PUB = {0: 17, 1: 23, 2: 26, 3: 28, 4: 30}
        pub_at = {}
        for ps_, q_ in PUB.items():
            pub_at.setdefault(q_, []).append(ps_)

        def barrier2(q):
            single = (hf == 0 and 25 <= q <= 27)
            if hf == 0 and q >= 1:
                if segprio: a("s_setprio 0")
                segment(SEGB if not single else 0)
            pw_pending.extend(pw_later); del pw_later[:]
            for ps_ in pub_at.get(q, []):
                assert ps_ not in WR or WR[ps_] < q
                pw_pending.append((None, list(range(4 * ps_, 4 * ps_ + 4)) if ps_ < 4 else [16, 17]))
            for tag, wr in wr_items.pop(q, []):
                flush_tag(tag)
                wr()
            barrier(q)
            if hf == 0 and segprio: a("s_setprio 1")
            if hf == 1 and q >= 1:
                if segprio: a("s_setprio 0")
                emit_hi(8)
                segment(SEGB if not (24 <= q <= 26) else 2 * SEGB)
                if segprio: a("s_setprio 1")

        barrier2(0)
        if stamps:
            a("s_memtime s[62:63]")
        queue_bias(0); flush_tag("b0")
        for i in range(PD):
            for r_ in read_items(i): r_()
        for i in range(NSTEP):
            kind, ps, s_, q, kap = steps[i]
            j = i + PD
            rds = []
            if j < NSTEP:
                if steps[j][4] == 0:
                    barrier2(steps[j][3])
                rds = read_items(j)
            af = AF + 8 * (i % (PD + 1))
            first = (s_ == 0)
            idle = (kind == "p1h" and hf == 1)
            if first and not idle:
                if kind == "p2":
                    if ps >= 2: flush_tag("s%d" % (ps - 2))
                else:
                    flush_tag("b%d" % ps)
            for k2 in range(2):
                if not idle:
                    need = rd_tok[i][2 * k2: 2 * k2 + 2]
                    if kind == "p2":
                        d = ACC2[ps % 2]; t = 2 * s_ + k2
                        c = "0" if (first and k2 == 0) else vr(d, 16)
                        if p_tok.get(t) is None:
                            flush_hi()
                        assert p_tok.get(t) is not None, ("P frag not available", hf, ps, t)
                        need = need + [p_tok[t]]
                        b = PF(t)
                    else:
                        d = ACC[ps % 2]; t = 2 * s_ + k2
                        c = vr(d, 16)
                        if first and k2 == 0: need = need + bias_tok[ps]
                        if ps == 0:
                            if xn_tok[t] is None: flush_hi()
                            need = need + [xn_tok[t]]
                        b = XN(t)
                    a.wait(lg=need)
                    a("%s %s, %s, %s, %s" % (MFMA, vr(d, 16), vr(af + 4 * k2, 4), vr(b, 4), c))
                for r_ in rds[2 * k2: 2 * k2 + 2]: r_()
                emit_hi(2)
                if hf == 0 and kind == "p1h": emit_fill(4)
                if hf == 0 and kind == "p2" and ps == 0: emit_fill(3)
                if (kind == "p1h" and hf == 0) or (kind == "p1" and ps == 3 and hf == 1):
                    xn_dead.add(2 * s_ + k2)
                    try_p_reads()
            last = (kind == "p1" and s_ == 17) or (kind == "p1h" and s_ == 17) or (kind == "p2" and s_ == 8)
            if last and not idle:
                if kind == "p2":
                    queue_store(ps)
                else:
                    queue_gelu(ps)
                    if ps + 2 < 4 or (ps + 2 == 4 and hf == 0):
                        queue_bias(ps + 2)
            if kind == "p1" and ps == 0 and s_ == 0:
                queue_bias(1)
            if stamps and kind == "p1h" and kap == (5 if hf == 0 else 2) and q == 26:
                a("s_memtime s[64:65]")
        emit_fill(10000)
        if stamps:
            a("s_memtime s[66:67]")
            a("s_waitcnt vmcnt(0) lgkmcnt(0)")
            a("s_memtime s[68:69]")
            a("s_waitcnt lgkmcnt(0)")
            for k in range(4):
                a("s_sub_u32 s%d, s%d, s60" % (62 + 2 * k, 62 + 2 * k))
                a("v_mov_b32 v%d, s%d" % (160 + k, 62 + 2 * k))
            a("s_lshl_b32 s48, s2, 3")
            a("s_add_u32 s48, s48, s22")
            a("s_lshl_b32 s48, s48, 4")
            a("s_add_u32 s48, s48, %s" % hx(STAMP_OFF))
            a("v_mov_b32 v164, 0")
            a("s_mov_b64 exec, 1")
            a("buffer_store_dwordx4 v[160:163], v164, s[12:15], s48 offen")
            if stamps == 2:
                a("s_mov_b64 exec, -1")
                a("s_lshl_b32 s48, s2, 3")
                a("s_add_u32 s48, s48, s22")
                a("s_lshl_b32 s48, s48, 8")
                a("s_add_u32 s48, s48, %s" % hx(STAMP_OFF + 0x100000))
                a("v_lshrrev_b32 v164, 2, v%d" % R["vL16"])
                a("buffer_store_dword v255, v164, s[12:15], s48 offen")
        a("s_endpgm")

    body(0)
    a("%s_h1:" % name)
    body(1)
    a("%s_end:" % name)
    a("s_endpgm")
    n = a.fix_hazards()
    print("mlp: nops inserted", n, "vgprs", NV, "lds", MLP_LDS, "lines", len(a.lines))
    return kernel_header(name) + a.text() + kernel_desc(name, NV), MLP_LDS
```

```python
import sys
from gen_mlp3 import gen_mlp
from gen_k1 import gen_k1
from gen_fft import gen_fft
from gen_k3 import gen_k3
kw = {}
for arg in sys.argv[2:]:
    k, v = arg.split("="); kw[k] = int(v)
k1, l1 = gen_k1("k1_kernel")
kf, lf = gen_fft("fft_kernel")
km, lm = gen_mlp("mlp_kernel", **kw)
k3, l3 = gen_k3("k3_kernel", NPART=8)
hdr = """; parallel_sum(spectral_gfnet, dense_gelu): LN + 2D-FFT filter (MFMA DFT) + fused MLP. Generated by own scripts.
; @launch kernel=k1_kernel grid=(256,1,1) block=(512,1,1) lds=%d
; @launch kernel=fft_kernel grid=(289,1,1) block=(256,1,1) lds=%d
; @launch kernel=mlp_kernel grid=(256,1,1) block=(512,1,1) lds=%d
; @launch kernel=k3_kernel grid=(256,1,1) block=(576,1,1) lds=%d
.amdgcn_target "amdgcn-amd-amdhsa--gfx950"
""" % (l1, lf, lm, l3)
open(sys.argv[1], "w").write(hdr + k1 + kf + km + k3)
```

```python
from asmgen import *
from layout import *
from gen_mlp import srd

MAGIC576 = 7456541
for n_ in list(range(0, 170000, 1)):
    assert (n_ * MAGIC576) >> 32 == n_ // 576
K1_LDS = 36864 + 12288


def mod576(a, dst, src, tmp, smagic, s576):
    a("v_mul_hi_u32 v%d, v%d, s%d" % (tmp, src, smagic))
    a("v_mul_u32_u24 v%d, s%d, v%d" % (tmp, s576, tmp))
    a("v_sub_u32 v%d, v%d, v%d" % (dst, src, tmp))


def gen_k1(name, stamps=False):
    a = Asm()
    INV576 = hx(f32bits(1.0 / 576.0))
    a("s_cmp_ge_u32 s2, 256")
    a("s_cbranch_scc1 %s_end" % name)
    a("s_load_dwordx4 s[40:43], s[0:1], 0")
    a("s_load_dwordx2 s[44:45], s[0:1], 16")
    a("s_load_dwordx2 s[48:49], s[0:1], 40")
    a("s_load_dwordx2 s[46:47], s[0:1], 80")
    a("v_lshrrev_b32 v1, 6, v0")
    a("v_and_b32 v2, 63, v0")
    a("v_readfirstlane_b32 s22, v1")
    a("s_mov_b32 s50, %d" % MAGIC576)
    a("s_movk_i32 s51, 576")
    a("s_mov_b32 s52, %s" % INV576)
    a("s_cmp_ge_u32 s2, 192")
    a("s_cbranch_scc1 %s_prep" % name)
    a("s_and_b32 s20, s2, 7")
    a("s_lshr_b32 s21, s2, 3")
    a("s_mul_i32 s23, s21, 43")
    a("s_lshr_b32 s23, s23, 7")
    a("s_mul_i32 s24, s23, 3")
    a("s_sub_u32 s24, s21, s24")
    a("s_lshl_b32 s23, s23, 3")
    a("s_add_u32 s23, s23, s20")
    a("s_lshr_b32 s25, s23, 1")
    a("s_and_b32 s26, s23, 1")
    a("v_lshrrev_b32 v3, 4, v2")
    a("v_and_b32 v4, 15, v2")
    a("s_lshl_b32 s27, s22, 2")
    a("v_add_u32 v5, s27, v3")
    a("s_mov_b32 s28, %d" % (32 * 1152))
    a("v_mul_lo_u32 v6, v5, s28")
    a("v_lshl_add_u32 v6, v4, 3, v6")
    a("s_lshl_b32 s29, s26, 10")
    a("s_add_u32 s29, s29, s25")
    a("s_mul_i32 s29, s29, 1152")
    a("s_waitcnt lgkmcnt(0)")
    srd(a, 4, 40, 41, 2048 * 1152)
    srd(a, 12, 46, 47, WS_BYTES)
    XR = 8
    xt = []
    for j in range(9):
        xt.append(a.vmem("buffer_load_dwordx2 %s, v6, s[4:7], s29 offen offset:%d" % (vr(XR + 2 * j, 2), j * 128)))
    CF = [100, 172]
    U0 = 28
    def gen_cf(blk_s, base):
        a("s_lshl_b32 s30, s%d, 4" % blk_s)
        a("v_add_u32 v40, s30, v4")
        a("v_lshrrev_b32 v41, 1, v40")
        a("v_and_b32 v42, 1, v40")
        a("v_cmp_eq_u32 vcc, 1, v40")
        a("v_mov_b32 v43, 288")
        a("v_mov_b32 v44, 0")
        a("v_cndmask_b32 v41, v41, v43, vcc")
        a("v_cndmask_b32 v42, v42, v44, vcc")
        a("v_cvt_f32_u32 v42, v42")
        a("v_mul_f32 v42, 0.25, v42") if False else a("v_mul_f32 v42, %s, v42" % hx(f32bits(0.25)))
        a("v_lshlrev_b32 v43, 5, v41")
        mod576(a, 43, 43, 44, 50, 51)
        a("v_cvt_f32_u32 v43, v43")
        a("v_mul_f32 v%d, s52, v43" % (U0 + 8))
        a("v_lshlrev_b32 v45, 2, v3")
        for e in range(8):
            d0 = 16 * (e >> 2) + (e & 3)
            a("v_add_u32 v43, %d, v45" % d0)
            a("v_mul_u32_u24 v43, v43, v41")
            mod576(a, 43, 43, 44, 50, 51)
            a("v_cvt_f32_u32 v43, v43")
            a("v_fma_f32 v%d, v43, s52, v42" % (U0 + e))
        T = 40
        for t in range(18):
            for e in range(8):
                if t == 0:
                    a("v_cos_f32 v%d, v%d" % (T + e, U0 + e))
                else:
                    a("v_fmamk_f32 v%d, v%d, %s, v%d" % (T + 8 + e, U0 + 8, hx(f32bits(float(t))), U0 + e))
            if t:
                for e in range(8):
                    a("v_cos_f32 v%d, v%d" % (T + e, T + 8 + e))
            for h in range(4):
                a("v_cvt_pk_f16_f32 v%d, v%d, v%d" % (base + 4 * t + h, T + 2 * h, T + 2 * h + 1))
    a("s_mul_i32 s31, s24, 12")
    a("s_add_u32 s31, s31, s22")
    gen_cf(31, CF[0])
    a("s_cmp_ge_u32 s22, 4")
    a("s_cbranch_scc1 %s_noB" % name)
    a("s_add_u32 s32, s31, 8")
    gen_cf(32, CF[1])
    a("%s_noB:" % name)
    XF = 40
    a.wait(vm=xt)
    for i in range(18):
        a("v_lshlrev_b32 v%d, 16, v%d" % (XF + 2 * i, XR + i))
        a("v_and_b32 v%d, 0xffff0000, v%d" % (XF + 2 * i + 1, XR + i))
    A0 = 28
    a("v_pk_add_f32 %s, %s, %s" % (vr(A0, 2), vr(XF, 2), vr(XF + 2, 2)))
    a("v_pk_add_f32 %s, %s, %s" % (vr(A0 + 2, 2), vr(XF + 4, 2), vr(XF + 6, 2)))
    for i in range(4, 18):
        d = A0 + 2 * (i & 1)
        a("v_pk_add_f32 %s, %s, %s" % (vr(d, 2), vr(d, 2), vr(XF + 2 * i, 2)))
    a("v_pk_add_f32 %s, %s, %s" % (vr(A0, 2), vr(A0, 2), vr(A0 + 2, 2)))
    a("v_add_f32 v%d, v%d, v%d" % (A0, A0, A0 + 1))
    def rowsum(r):
        for sh in (8, 4, 2, 1):
            a("v_add_f32_dpp v%d, v%d, v%d row_ror:%d row_mask:0xf bank_mask:0xf" % (r, r, r, sh))
    rowsum(A0)
    a("v_mul_f32 v%d, s52, v%d" % (A0, A0))
    a("v_sub_f32 v%d, 0, v%d" % (A0 + 2, A0))
    a("v_sub_f32 v%d, 0, v%d" % (A0 + 3, A0))
    a("v_cvt_pk_bf16_f32 v%d, v%d, v%d" % (A0 + 1, A0 + 2, A0 + 2))
    a("v_lshlrev_b32 v%d, 16, v%d" % (A0 + 4, A0 + 1))
    a("v_lshlrev_b32 v%d, 16, v%d" % (A0 + 5, A0 + 1))
    a("v_mov_b32 v%d, 0" % (A0 + 6)); a("v_mov_b32 v%d, 0" % (A0 + 7))
    a("v_mov_b32 v%d, 0" % (A0 + 8)); a("v_mov_b32 v%d, 0" % (A0 + 9))
    TT = 76
    for i in range(18):
        t = TT + 2 * (i & 3)
        d = A0 + 6 + 2 * (i & 1)
        a("v_pk_add_f32 %s, %s, %s" % (vr(t, 2), vr(XF + 2 * i, 2), vr(A0 + 2, 2)))
        a("v_pk_fma_f32 %s, %s, %s, %s" % (vr(d, 2), vr(t, 2), vr(t, 2), vr(d, 2)))
    a("v_pk_add_f32 %s, %s, %s" % (vr(A0 + 6, 2), vr(A0 + 6, 2), vr(A0 + 8, 2)))
    a("v_add_f32 v%d, v%d, v%d" % (A0 + 6, A0 + 6, A0 + 7))
    rowsum(A0 + 6)
    V = A0 + 6
    a("v_mul_f32 v%d, s52, v%d" % (V, V))
    a("v_cvt_pk_bf16_f32 v%d, v%d, v%d" % (V, V, V))
    a("v_lshlrev_b32 v%d, 16, v%d" % (V, V))
    a("v_add_f32 v%d, %s, v%d" % (V, hx(f32bits(1e-5)), V))
    a("v_cvt_pk_bf16_f32 v%d, v%d, v%d" % (V, V, V))
    a("v_lshlrev_b32 v%d, 16, v%d" % (V, V))
    a("v_sqrt_f32 v%d, v%d" % (V, V))
    a("v_cvt_pk_bf16_f32 v%d, v%d, v%d" % (V, V, V))
    a("v_lshlrev_b32 v%d, 16, v%d" % (V, V))
    a("v_rcp_f32 v%d, v%d" % (V, V))
    a("v_mov_b32 v%d, v%d" % (V + 1, V))
    a("v_and_b32 v84, 3, v4")
    a("v_lshrrev_b32 v85, 3, v4")
    a("v_lshl_add_u32 v86, v85, 2, v84")
    a("v_and_b32 v87, 15, v5")
    a("v_xor_b32 v86, v86, v87")
    a("v_lshl_add_u32 v86, v84, 4, v86")
    a("v_lshl_add_u32 v86, v85, 6, v86")
    a("v_lshrrev_b32 v87, 4, v5")
    a("v_mul_u32_u24 v87, %d, v87" % (18 * 64))
    a("v_add_u32 v86, v86, v87")
    a("v_lshlrev_b32 v86, 4, v86")
    a("v_bfe_u32 v87, v4, 2, 1")
    a("v_lshl_add_u32 v86, v87, 3, v86")
    a("v_bfe_u32 v88, v5, 2, 1")
    a("v_lshlrev_b32 v88, 3, v88")
    a("v_bfe_u32 v89, v5, 4, 1")
    a("v_lshl_add_u32 v88, v89, 2, v88")
    a("v_and_b32 v89, 3, v5")
    a("v_add_u32 v88, v88, v89")
    a("v_lshl_add_u32 v88, v84, 4, v88")
    a("v_lshl_add_u32 v88, v85, 6, v88")
    a("v_bfe_u32 v89, v5, 3, 1")
    a("v_mul_u32_u24 v89, %d, v89" % (6 * 64))
    a("v_add_u32 v88, v88, v89")
    a("v_lshlrev_b32 v88, 4, v88")
    a("v_bfe_u32 v89, v4, 2, 1")
    a("v_lshl_add_u32 v88, v89, 3, v88")
    a("v_add_u32 v88, 36864, v88")
    for j in range(9):
        for i in (2 * j, 2 * j + 1):
            x = XF + 2 * i
            a("v_pk_add_f32 %s, %s, %s" % (vr(x, 2), vr(x, 2), vr(A0 + 4, 2)))
        for i in (2 * j, 2 * j + 1):
            x = XF + 2 * i
            a("v_cvt_pk_bf16_f32 v%d, v%d, v%d" % (XR + i, x, x + 1))
        for i in (2 * j, 2 * j + 1):
            x = XF + 2 * i
            a("v_lshlrev_b32 v%d, 16, v%d" % (x, XR + i))
            a("v_and_b32 v%d, 0xffff0000, v%d" % (x + 1, XR + i))
        for i in (2 * j, 2 * j + 1):
            x = XF + 2 * i
            a("v_pk_mul_f32 %s, %s, %s" % (vr(x, 2), vr(x, 2), vr(V, 2)))
        for i in (2 * j, 2 * j + 1):
            x = XF + 2 * i
            a("v_cvt_pk_bf16_f32 v%d, v%d, v%d" % (XR + i, x, x + 1))
        for i in (2 * j, 2 * j + 1):
            x = XF + 2 * i
            a("v_lshlrev_b32 v%d, 16, v%d" % (x, XR + i))
            a("v_and_b32 v%d, 0xffff0000, v%d" % (x + 1, XR + i))
        x = XF + 4 * j
        a("v_cvt_pk_f16_f32 v%d, v%d, v%d" % (x, x, x + 1))
        a("v_cvt_pk_f16_f32 v%d, v%d, v%d" % (x + 1, x + 2, x + 3))
        a.lds("ds_write_b64 v86, %s offset:%d" % (vr(x, 2), j * 2048))
    for nt in range(3):
        a("s_cmp_lg_u32 s24, %d" % nt)
        a("s_cbranch_scc1 %s_x%d" % (name, nt))
        for jl in range(3):
            a("ds_write_b64 v88, %s offset:%d" % (vr(XR + 2 * (3 * nt + jl), 2), jl * 2048))
        a("%s_x%d:" % (name, nt))
    a("v_xor_b32 v84, v3, v4")
    a("v_lshl_add_u32 v85, v3, 4, v84")
    a("v_lshlrev_b32 v85, 4, v85")
    a("v_xor_b32 v84, 4, v84")
    a("v_lshl_add_u32 v86, v3, 4, v84")
    a("v_lshlrev_b32 v86, 4, v86")
    a("v_lshlrev_b32 v87, 12, v4")
    a("v_lshl_add_u32 v87, v3, 8, v87")
    a("s_lshr_b32 s33, s25, 4")
    a("s_lshl_b32 s33, s33, 1")
    a("s_add_u32 s33, s33, s26")
    a("s_lshl_b32 s33, s33, 6")
    a("s_and_b32 s34, s25, 15")
    a("s_add_u32 s33, s33, s34")
    a("s_lshl_b32 s33, s33, 4")
    a("s_add_u32 s33, s33, %s" % hx(ZF_OFF))
    a("s_lshl_b32 s34, s31, 16")
    a("s_add_u32 s33, s33, s34")
    a.wait_all(vm=False, lg=True)
    a("s_barrier")
    AF = 40
    ACC = 8

    def mm(nblk):
        toks = {}
        def rd(t):
            af = AF + 8 * (t % 3)
            toks[t] = [a.lds("ds_read_b128 %s, v%d offset:%d" % (vr(af + 4 * mb, 4), 85 + (t & 1), (mb * 18 + t) * 1024)) for mb in range(2)]
        rd(0); rd(1)
        for t in range(18):
            if t + 2 < 18: rd(t + 2)
            af = AF + 8 * (t % 3)
            for mb in range(2):
                a.wait(lg=toks[t][mb])
                for bl in range(nblk):
                    d = ACC + 8 * bl + 4 * mb
                    a("v_mfma_f32_16x16x32_f16 %s, %s, %s, %s" % (vr(d, 4), vr(af + 4 * mb, 4), vr(CF[bl] + 4 * t, 4), "0" if t == 0 else vr(d, 4)))
        for bl in range(nblk):
            d = ACC + 8 * bl
            for i in range(8):
                a("v_mul_f32 v%d, %s, v%d" % (d + i, hx(f32bits(2.0 ** -5)), d + i))
            for h in range(4):
                a("v_cvt_pk_f16_f32 v%d, v%d, v%d" % (64 + 4 * bl + h, d + 2 * h, d + 2 * h + 1))
            if bl:
                a("s_add_u32 s33, s33, %d" % (8 << 16))
            a("buffer_store_dwordx4 %s, v87, s[12:15], s33 offen" % vr(64 + 4 * bl, 4))
    a("s_cmp_ge_u32 s22, 4")
    a("s_cbranch_scc1 %s_mm1" % name)
    mm(2)
    a("s_endpgm")
    a("%s_mm1:" % name)
    a("s_sub_u32 s34, s22, 4")
    a("s_mul_i32 s34, s34, 3072")
    a("v_lshlrev_b32 v88, 4, v2")
    a("v_add_u32 v89, s34, v88")
    ct = [a.lds("ds_read_b128 %s, v89 offset:%d" % (vr(172 + 4 * i, 4), 36864 + 1024 * i)) for i in range(3)]
    a("s_mul_i32 s35, s23, 36864")
    a("s_mul_i32 s36, s24, 6144")
    a("s_add_u32 s35, s35, s36")
    a("s_add_u32 s35, s35, s34")
    a("s_cmp_ge_u32 s22, 6")
    a("s_cselect_b32 s36, %d, 0" % (18432 - 6144))
    a("s_add_u32 s35, s35, s36")
    a("s_add_u32 s35, s35, %s" % hx(XNF_OFF))
    for i in range(3):
        a.wait(lg=ct[i])
        a("buffer_store_dwordx4 %s, v88, s[12:15], s35 offen offset:%d" % (vr(172 + 4 * i, 4), 1024 * i))
    mm(1)
    a("s_endpgm")

    a("%s_prep:" % name)
    a.vm = []; a.lg = []
    a("s_sub_u32 s20, s2, 192")
    a("s_and_b32 s21, s20, 31")
    a("s_lshr_b32 s23, s20, 5")
    a("s_waitcnt lgkmcnt(0)")
    srd(a, 4, 42, 43, 2048 * 578)
    srd(a, 8, 44, 45, 2048 * 578)
    srd(a, 12, 46, 47, WS_BYTES)
    srd(a, 16, 48, 49, 9216)
    a("s_bfe_u32 s24, s22, 0x10002")
    a("s_lshl_b32 s25, s23, 1")
    a("s_add_u32 s24, s24, s25")
    a("s_lshl_b32 s24, s24, 2")
    a("s_and_b32 s25, s22, 3")
    a("s_add_u32 s24, s24, s25")
    a("s_lshl_b32 s24, s24, 6")
    a("s_lshl_b32 s25, s21, 1")
    a("s_add_u32 s24, s24, s25")
    a("s_mul_i32 s24, s24, 578")
    a("s_add_u32 s25, s24, %d" % (16 * 64 * 578))
    a("v_lshlrev_b32 v3, 2, v2")
    WL = 100
    wt = []
    for mb in range(2):
        for arr in range(2):
            for it in range(5):
                if it == 4: a("s_mov_b32 exec_hi, 1")
                wt.append(a.vmem("buffer_load_dword v%d, v3, s[%d:%d], s%d offen offset:%d" % (WL + (mb * 2 + arr) * 5 + it, 4 + 4 * arr, 7 + 4 * arr, 24 + mb, 256 * it)))
                if it == 4: a("s_mov_b32 exec_hi, -1")
    a("s_lshl_b32 s26, s20, 9")
    a("v_add_u32 v4, s26, v0")
    a("v_lshlrev_b32 v5, 1, v4")
    bt = a.vmem("buffer_load_ushort v6, v5, s[16:19], 0 offen")
    a("v_and_b32 v8, 15, v2")
    a("v_lshrrev_b32 v9, 4, v2")
    a("v_lshlrev_b32 v7, 4, v2")
    a("s_lshl_b32 s27, s20, 3")
    a("s_add_u32 s27, s27, s22")
    a("%s_cinv:" % name)
    a("s_mul_i32 s28, s27, 3641")
    a("s_lshr_b32 s28, s28, 16")
    a("s_mul_i32 s29, s28, 18")
    a("s_sub_u32 s29, s27, s29")
    a("s_lshl_b32 s28, s28, 4")
    a("v_add_u32 v10, s28, v8")
    a("s_lshl_b32 s29, s29, 5")
    a("v_lshl_add_u32 v11, v9, 2, s29")
    for e in range(8):
        off = 16 * (e >> 2) + (e & 3)
        a("v_add_u32 v12, %d, v11" % off)
        a("v_lshrrev_b32 v13, 1, v12")
        if e == 1:
            a("v_cmp_eq_u32 vcc, 1, v12")
            a("v_mov_b32 v14, 288")
            a("v_mov_b32 v16, %s" % hx(f32bits(0.25)))
            a("v_cndmask_b32 v13, v13, v14, vcc")
            a("v_cndmask_b32 v16, v16, 0, vcc")
        a("v_mul_u32_u24 v13, v13, v10")
        mod576(a, 13, 13, 14, 50, 51)
        a("v_cvt_f32_u32 v13, v13")
        if e == 1:
            a("v_fma_f32 v13, v13, s52, v16")
        elif e & 1:
            a("v_mov_b32 v16, %s" % hx(f32bits(0.25)))
            a("v_fma_f32 v13, v13, s52, v16")
        else:
            a("v_mul_f32 v13, s52, v13")
        a("v_cos_f32 v13, v13")
        if e < 2:
            a("v_cmp_gt_u32 vcc, 2, v12")
            a("v_mov_b32 v14, 2.0")
            a("v_cndmask_b32 v14, v14, 1.0, vcc")
            a("v_mul_f32 v%d, v14, v13" % (20 + e))
        else:
            a("v_add_f32 v%d, v13, v13" % (20 + e))
    for h in range(4):
        a("v_cvt_pk_bf16_f32 v%d, v%d, v%d" % (28 + h, 20 + 2 * h, 21 + 2 * h))
    a("s_lshl_b32 s28, s27, 10")
    a("s_add_u32 s28, s28, %s" % hx(CINV_OFF))
    a("buffer_store_dwordx4 v[28:31], v7, s[12:15], s28 offen")
    a("s_add_u32 s27, s27, 512")
    a("s_cmp_lt_u32 s27, 648")
    a("s_cbranch_scc1 %s_cinv" % name)
    a("s_sub_u32 s28, s27, %d" % (512 + 136))
    a("s_cmp_ge_u32 s28, 20")
    a("s_cbranch_scc1 %s_nocf" % name)
    a("s_lshr_b32 s31, s28, 2")
    a("s_bfe_u32 s32, s28, 0x10001")
    a("s_and_b32 s33, s28, 1")
    a("s_bfe_u32 s34, s28, 0x10001")
    a("s_cmp_lt_u32 s28, 16")
    a("s_cselect_b32 s30, 1, 0")
    a("s_cselect_b32 s31, s31, s34")
    a("s_cselect_b32 s32, s32, s33")
    a("s_cselect_b32 s33, s33, 0")
    a("s_cselect_b32 s34, 63, 31")
    a("s_lshl_b32 s30, s30, 23")
    a("s_sub_u32 s35, %s, s30" % hx(f32bits(1 / 32.)))
    a("s_sub_u32 s36, %s, s30" % hx(f32bits(0.25)))
    a("s_cmp_eq_u32 s32, 0")
    a("s_cselect_b32 s37, 0, %s" % hx(f32bits(0.75)))
    a("s_lshl_b32 s31, s31, 4")
    a("v_add_u32 v10, s31, v8")
    a("s_lshl_b32 s33, s33, 5")
    a("v_lshl_add_u32 v11, v9, 2, s33")
    a("v_mov_b32 v16, s37")
    for e in range(8):
        off = 16 * (e >> 2) + (e & 3)
        a("v_add_u32 v12, %d, v11" % off)
        a("v_mul_u32_u24 v13, v12, v10")
        a("v_and_b32 v13, s34, v13")
        a("v_cvt_f32_u32 v13, v13")
        a("v_fma_f32 v13, v13, s35, v16")
        a("v_cos_f32 v13, v13")
        a("v_mul_f32 v%d, s36, v13" % (20 + e))
    for h in range(4):
        a("v_cvt_pk_f16_f32 v%d, v%d, v%d" % (28 + h, 20 + 2 * h, 21 + 2 * h))
    a("s_lshl_b32 s28, s28, 10")
    a("s_add_u32 s28, s28, %s" % hx(CONST_OFF))
    a("buffer_store_dwordx4 v[28:31], v7, s[12:15], s28 offen")
    a("%s_nocf:" % name)
    a.wait_all(vm=True, lg=False)
    a("v_lshlrev_b32 v6, 16, v6")
    a("v_lshlrev_b32 v5, 2, v4")
    a("v_cmp_gt_u32 vcc, 4608, v4")
    a("s_mov_b32 s28, %s" % hx(B1F_OFF))
    a("s_and_saveexec_b64 s[30:31], vcc")
    a("s_cbranch_execz %s_nob1" % name)
    a("buffer_store_dword v6, v5, s[12:15], s28 offen")
    a("%s_nob1:" % name)
    a("s_mov_b64 exec, -1")
    a("s_mul_i32 s28, s22, 1160")
    a("v_add_u32 v10, s28, v3")
    for mb in range(2):
        for arr in range(2):
            for it in range(5):
                if it == 4: a("s_mov_b32 exec_hi, 1")
                a("ds_write_b32 v10, v%d offset:%d" % (WL + (mb * 2 + arr) * 5 + it, (arr * 16 + mb * 8) * 1160 + 256 * it))
                if it == 4: a("s_mov_b32 exec_hi, -1")
    a("s_waitcnt lgkmcnt(0)")
    a("s_barrier")
    a("s_lshr_b32 s28, s21, 3")
    a("s_lshl_b32 s28, s28, 11")
    a("s_and_b32 s29, s21, 7")
    a("s_lshl_b32 s29, s29, 6")
    a("s_add_u32 s28, s28, s29")
    a("s_lshl_b32 s29, s23, 10")
    a("s_add_u32 s28, s28, s29")
    a("s_add_u32 s28, s28, %s" % hx(WT_OFF))
    for it in range(3):
        a("v_add_u32 v10, %d, v0" % (512 * it))
        a("v_and_b32 v11, 1, v10")
        a("v_bfe_u32 v12, v10, 1, 1")
        a("v_lshrrev_b32 v13, 2, v10")
        a("v_min_u32 v13, 288, v13")
        a("v_mul_u32_u24 v14, 578, v11")
        a("v_lshl_add_u32 v14, v13, 1, v14")
        a("v_mul_u32_u24 v15, %d, v12" % (4 * 1160))
        a("v_add_u32 v14, v14, v15")
        for mb in range(2):
            for r in range(4):
                e = mb * 4 + r
                a("ds_read_u16 v%d, v14 offset:%d" % (32 + e, (mb * 8 + r) * 1160))
                a("ds_read_u16 v%d, v14 offset:%d" % (40 + e, (16 + mb * 8 + r) * 1160))
        a("v_lshlrev_b32 v15, 13, v13")
        a("v_lshl_add_u32 v15, v12, 9, v15")
        a("v_lshl_add_u32 v15, v11, 5, v15")
        a("s_waitcnt lgkmcnt(0)")
        for e in range(8):
            a("v_lshl_or_b32 v%d, v%d, 16, v%d" % (20 + e, 40 + e, 32 + e))
        a("buffer_store_dwordx4 v[20:23], v15, s[12:15], s28 offen")
        a("buffer_store_dwordx4 v[24:27], v15, s[12:15], s28 offen offset:16")
    a("%s_end:" % name)
    a("s_endpgm")
    n = a.fix_hazards()
    print("k1: nops inserted", n, "lines", len(a.lines))
    return kernel_header(name) + a.text() + kernel_desc(name, 244), K1_LDS
```

```python
from asmgen import *
from layout import *
from collections import deque

C0 = -2.0 * 1.4426950408889634 * 0.7978845608028654
C1 = C0 * 0.044715
MFMA = "v_mfma_f32_32x32x16_bf16"


def srd(a, s, lo, hi, nbytes):
    a("s_mov_b32 s%d, s%d" % (s, lo))
    a("s_and_b32 s%d, s%d, 0xffff" % (s + 1, hi))
    a("s_mov_b32 s%d, %s" % (s + 2, hx(nbytes)))
    a("s_mov_b32 s%d, 0x20000" % (s + 3))


STG = 12288
NS = 7
PBASE = NS * STG
BIASB = PBASE + 73728
MLP_LDS = BIASB + 1152
NSTG = 54


def gen_mlp(name, PD=2, NFILL=7, GDELAY=16, SEGB=120, segprio=0, nowait=0, d2=2, stf=0, stamps=False, pre_hook=None, prio=0, nostore=False, rot=1, cmap=1,
            nodma=0, nogelu=0, nobar=0, fakep=0):
    a = Asm()
    XN0 = 16
    def XN(t): return XN0 + t * 4
    def PF(i): return XN(i)
    ACC = [160, 176]
    ACC2 = [XN(20), XN(24)]
    AF = 192
    TMP = AF + 8 * (PD + 1)
    PK = TMP + 8
    AD = PK + 16
    names = ["vD1", "vD1h", "vD2", "vA", "vAH", "vAh", "vAhH",
             "vBias", "vPw", "vL16", "vPart", "vC1"]
    free = list(range(1, 16)) + list(range(AD, 256))
    R = {}
    for nme in names:
        R[nme] = free.pop(0)
    NV = max(max(R.values()) + 1, AD)
    assert NV <= 256, NV
    if stamps == 2: NV = 256

    a("s_cmp_ge_u32 s2, 256")
    a("s_cbranch_scc1 %s_end" % name)
    a("s_load_dwordx4 s[40:43], s[0:1], 32")
    a("s_load_dwordx2 s[44:45], s[0:1], 48")
    a("s_load_dwordx2 s[46:47], s[0:1], 80")
    if stamps:
        a("s_memtime s[60:61]")
        a("s_memrealtime s[58:59]")
    L = 166
    a("v_lshrrev_b32 v167, 6, v0")
    a("v_and_b32 v%d, 63, v0" % L)
    a("v_readfirstlane_b32 s22, v167")
    if cmap == 0:
        a("s_and_b32 s20, s2, 15")
        a("s_lshr_b32 s21, s2, 4")
    else:
        a("s_and_b32 s20, s2, 3")
        a("s_lshl_b32 s20, s20, 2")
        a("s_bfe_u32 s48, s2, 0x20003")
        a("s_add_u32 s20, s20, s48")
        a("s_bfe_u32 s21, s2, 0x10002")
        a("s_lshl_b32 s21, s21, 3")
        a("s_lshr_b32 s48, s2, 5")
        a("s_add_u32 s21, s21, s48")
    if rot:
        a("s_and_b32 s54, s21, 3")
    else:
        a("s_mov_b32 s54, 0")
    a("s_and_b32 s23, s20, 1")
    a("s_and_b32 s38, s22, 3")
    a("s_lshr_b32 s39, s22, 2")
    a("s_mul_i32 s24, s20, 576")
    a("s_lshl_b32 s48, s23, 6")
    a("s_add_u32 s24, s24, s48")
    a("s_mul_i32 s25, s20, 576")
    a("s_cmp_eq_u32 s23, 0")
    a("s_cselect_b32 s48, 512, 0")
    a("s_add_u32 s25, s25, s48")
    a("s_mul_i32 s26, s20, 288")
    a("s_lshl_b32 s48, s23, 5")
    a("s_add_u32 s26, s26, s48")
    a("s_mul_i32 s26, s26, 1152")
    a("s_mul_i32 s48, s23, %d" % (288 * 1152))
    a("s_sub_u32 s27, s26, s48")
    for u in range(4):
        a("s_add_u32 s48, s54, %d" % u)
        a("s_and_b32 s48, s48, 3")
        a("s_lshl_b32 s48, s48, 7")
        a("s_add_u32 s%d, s24, s48" % (72 + u))
    def slab_off(dst, iota_s):
        a("s_lshr_b32 s48, s%d, 1" % iota_s)
        a("s_add_u32 s48, s48, s54")
        a("s_and_b32 s48, s48, 3")
        a("s_lshl_b32 s48, s48, 1")
        a("s_and_b32 s51, s%d, 1" % iota_s)
        a("s_add_u32 s48, s48, s51")
        a("s_mul_i32 s48, s48, %d" % (32 * 1152))
        a("s_add_u32 s%d, s26, s48" % dst)
    for io in range(8):
        a("s_mov_b32 s55, %d" % io)
        slab_off(76 + io, 55)
    a("s_add_u32 s84, s27, %d" % (256 * 1152))
    a("s_lshl_b32 s28, s38, 10")
    a("s_mov_b32 s32, -1")
    a("s_mov_b32 s33, 0")
    a("s_lshl_b32 s36, s21, 2")
    a("s_add_u32 s36, s36, s38")
    a("s_mul_i32 s37, s36, 36864")
    a("s_mul_i32 s48, s39, 3072")
    a("s_add_u32 s36, s37, s48")
    a("s_add_u32 s36, s36, %s" % hx(XNF_OFF))
    a("s_mul_i32 s35, s38, 6144")
    a("s_add_u32 s35, s35, s48")
    a("s_add_u32 s35, s35, %d" % PBASE)
    a("s_mul_i32 s48, s20, %d" % (64 * 36864))
    a("s_add_u32 s37, s37, s48")
    a("s_lshl_b32 s48, s39, 11")
    a("s_add_u32 s37, s37, s48")
    a("s_add_u32 s37, s37, %s" % hx(PART_OFF))
    x0, x1, x2, x3, x4, x5 = 160, 161, 162, 163, 164, 165
    a("v_lshrrev_b32 v%d, 3, v%d" % (x0, L))
    a("v_bfe_u32 v%d, v%d, 4, 1" % (x1, L))
    a("v_lshlrev_b32 v%d, 2, v%d" % (x1, x1))
    a("v_and_b32 v%d, 7, v%d" % (x2, L))
    a("v_xor_b32 v%d, v%d, v%d" % (x3, x1, x2))
    a("v_lshlrev_b32 v%d, 4, v%d" % (x3, x3))
    a("s_lshl_b32 s48, s38, 3")
    a("v_add_u32 v%d, s48, v%d" % (x4, x0))
    a("s_movk_i32 s49, 9216")
    a("s_movk_i32 s50, 1152")
    a("v_mad_u32_u24 v%d, v%d, s49, v%d" % (R["vD1"], x4, x3))
    a("v_mad_u32_u24 v%d, v%d, s50, v%d" % (R["vD2"], x4, x3))
    a("v_lshrrev_b32 v%d, 2, v%d" % (x0, L))
    a("v_and_b32 v%d, 3, v%d" % (x3, L))
    a("v_lshlrev_b32 v%d, 4, v%d" % (x3, x3))
    a("s_lshl_b32 s48, s38, 4")
    a("v_add_u32 v%d, s48, v%d" % (x4, x0))
    a("v_mad_u32_u24 v%d, v%d, s49, v%d" % (R["vD1h"], x4, x3))
    a("v_lshrrev_b32 v%d, 5, v%d" % (x0, L))
    a("v_bfe_u32 v%d, v%d, 2, 2" % (x1, L))
    a("v_lshl_add_u32 v%d, v%d, 2, v%d" % (x3, x0, x1))
    a("v_and_b32 v%d, 3, v%d" % (x2, L))
    a("v_bfe_u32 v%d, v%d, 4, 1" % (x4, L))
    a("v_lshlrev_b32 v%d, 5, v%d" % (x4, x4))
    a("v_lshl_add_u32 v%d, v%d, 3, v%d" % (x4, x2, x4))
    a("v_bfe_u32 v%d, v%d, 3, 1" % (x5, L))
    a("v_xor_b32 v%d, s39, v%d" % (x5, x5))
    a("v_lshl_add_u32 v%d, v%d, 6, v%d" % (x5, x5, x4))
    a("v_lshl_add_u32 v%d, v%d, 7, v%d" % (R["vA"], x3, x5))
    a("v_add_u32 v%d, %d, v%d" % (R["vAH"], 5 * STG, R["vA"]))
    a("v_lshl_add_u32 v%d, v%d, 6, v%d" % (R["vAh"], x3, x4))
    a("v_add_u32 v%d, %d, v%d" % (R["vAhH"], 5 * STG, R["vAh"]))
    a("s_lshl_b32 s48, s39, 7")
    a("s_add_u32 s48, s48, %d" % BIASB)
    a("v_lshl_add_u32 v%d, v%d, 4, s48" % (R["vBias"], x0))
    a("s_mul_i32 s48, s38, 18432")
    a("s_add_u32 s48, s48, %d" % PBASE)
    a("v_lshl_add_u32 v%d, v%d, 4, s48" % (R["vPw"], L))
    a("v_lshlrev_b32 v%d, 4, v%d" % (R["vL16"], L))
    a("v_and_b32 v%d, 15, v%d" % (x1, L))
    a("v_lshl_add_u32 v%d, v%d, 4, v%d" % (x1, x0, x1))
    a("v_bfe_u32 v%d, v%d, 4, 1" % (x2, L))
    a("v_lshl_add_u32 v%d, v%d, 5, v%d" % (x1, x2, x1))
    a("v_lshlrev_b32 v%d, 4, v%d" % (R["vPart"], x1))
    a("v_mov_b32 v%d, %s" % (R["vC1"], hx(f32bits(C1))))
    VX = TMP + 7
    a("s_mul_i32 s48, s38, 6144")
    a("s_add_u32 s48, s48, %d" % PBASE)
    a("v_lshl_add_u32 v%d, v%d, 4, s48" % (VX, L))
    a("v_lshrrev_b32 v%d, 4, v%d" % (x1, L))
    a("v_add_u32 v%d, s54, v%d" % (x1, x1))
    a("v_and_b32 v%d, 3, v%d" % (x1, x1))
    a("v_lshlrev_b32 v%d, 8, v%d" % (x1, x1))
    a("v_and_b32 v%d, 15, v%d" % (x2, L))
    a("v_lshl_add_u32 v%d, v%d, 4, v%d" % (x1, x2, x1))
    a("s_lshl_b32 s56, s24, 1")
    a("s_add_u32 s56, s56, %s" % hx(B1F_OFF))
    a("s_lshl_b32 s57, s25, 1")
    a("s_add_u32 s57, s57, %s" % hx(B1F_OFF))
    a("s_waitcnt lgkmcnt(0)")
    srd(a, 4, 40, 41, 576 * 9216)
    srd(a, 8, 44, 45, 4608 * 1152)
    srd(a, 12, 46, 47, WS_BYTES)

    def stage_desc(q):
        if q < 24:
            u, sg = divmod(q, 6)
            return (4, "vD1", [(72 + u, (96 * sg + 32 * k) * 9216) for k in range(3)])
        if q < 27:
            sg = q - 24
            return (4, "vD1h", [(25, (192 * sg + 64 * k) * 9216) for k in range(3)])
        pi, sg = divmod(q - 27, 3)
        return (8, "vD2", [(76 + 3 * sg + k, 128 * pi) for k in range(3)])

    dma_tok = {}

    def dma_items(q):
        s, vf, offs = stage_desc(q)
        slot = q % NS
        dma_tok[q] = []
        out = []
        for k in range(3):
            def g(k=k):
                a("s_add_u32 m0, s28, %d" % (slot * STG + 4096 * k))
                a("s_add_u32 s30, s%d, %s" % (offs[k][0], hx(offs[k][1])))
                dma_tok[q].append(a.vmem("buffer_load_dwordx4 v%d, s[%d:%d], s30 offen lds" % (R[vf], s, s + 3)))
            out.append(g)
        return out

    xdma_tok = {}

    def xdma_items(k):
        xdma_tok[k] = []
        def g():
            a("s_add_u32 m0, s35, %d" % ((k % 3) * 24576))
            a("s_add_u32 s30, s36, %d" % (k * 6144))
            for j in range(3):
                xdma_tok[k].append(a.vmem("buffer_load_dwordx4 v%d, s[12:15], s30 offen offset:%d lds" % (R["vL16"], j * 1024)))
        return [g]

    a("s_cmp_lg_u32 s39, 0")
    a("s_cbranch_scc1 %s_h1" % name)
    vm_save = list(a.vm); lg_save = list(a.lg)
    dma_save = {k: list(v) for k, v in dma_tok.items()}
    xdma_save = {k: list(v) for k, v in xdma_tok.items()}

    def body(hf):
        a.vm = list(vm_save); a.lg = list(lg_save)
        dma_tok.clear(); dma_tok.update({k: list(v) for k, v in dma_save.items()})
        xdma_tok.clear(); xdma_tok.update({k: list(v) for k, v in xdma_save.items()})
        if prio and hf == prio - 1:
            a("s_setprio 1")
        for q in range(4):
            if q % 2 == hf:
                for g in dma_items(q): g()
            if q == 0 and hf == 1:
                a("s_mov_b32 m0, %d" % BIASB)
                btk = [a.vmem("buffer_load_dwordx4 v%d, s[12:15], s56 offen lds" % x1)]
                a("s_mov_b32 m0, %d" % (BIASB + 1024))
                a("s_mov_b64 exec, 0xff")
                btk.append(a.vmem("buffer_load_dwordx4 v%d, s[12:15], s57 offen lds" % R["vL16"]))
                a("s_mov_b64 exec, -1")
                dma_tok[0] = btk
            if q < 3:
                for g in xdma_items(q): g()
        if pre_hook:
            pre_hook(a)
        def duty(q):
            if q <= 9: return q % 2
            if q < 22: return 1 if 1 <= q % 6 <= 3 else 0
            if q <= 30: return 1
            return q % 2 if d2 == 2 else d2
        WR = {0: {0: 16, 1: 22, 2: 25, 3: 27, 4: 29}, 1: {0: 13, 1: 19, 2: 25, 3: 26}}[hf]
        steps = []
        for u in range(4):
            for s_ in range(18):
                steps.append(("p1", u, s_, 6 * u + s_ // 3, s_ % 3))
        for s_ in range(18):
            steps.append(("p1h", 4, s_, 24 + s_ // 6, s_ % 6))
        for pi in range(9):
            for s_ in range(9):
                steps.append(("p2", pi, s_, 27 + 3 * pi + s_ // 3, s_ % 3))
        if hf == 1:
            steps = [s for s in steps if not (s[0] == "p1h" and s[4] >= 3)]
        NSTEP = len(steps)

        hi = deque()
        fill = deque()
        rd_tok = {}
        bias_tok = {}
        pw_pending = []
        pw_later = []
        wr_items = {}
        published = set()
        xn_dead = set()
        p_tok = {}
        xn_tok = {}
        st = {"next_dma": 4}

        dq = deque()

        def emit_fill(n):
            while hi and n > 0:
                hi.popleft()(); n -= 1
            for _ in range(n):
                if not fill:
                    return
                tag, f = fill.popleft()
                f()

        def emit_hi(n):
            while hi and n > 0:
                hi.popleft()(); n -= 1

        def segment(budget):
            while dq:
                dq.popleft()(); budget -= 30
            while fill and budget > 0:
                n0 = len(a.lines)
                tag, f = fill.popleft()
                f()
                for l in a.lines[n0:]:
                    op = l.split()[0]
                    budget -= 8 if op in TRANS else (12 if op.startswith(("buffer", "ds_write")) else 4)

        def flush_hi():
            while hi: hi.popleft()()
            while dq: dq.popleft()()

        def flush_tag(tag):
            flush_hi()
            while any(t == tag for t, _ in fill):
                tg, f = fill.popleft(); f()

        def try_p_reads():
            for i in range(18):
                if i in published and i in xn_dead and i not in p_tok:
                    p_tok[i] = None
                    def rd(i=i):
                        p_tok[i] = a.lds("ds_read_b128 %s, v%d offset:%d" % (vr(PF(i), 4), R["vPw"], i * 1024))
                    hi.append(rd)

        def do_barrier():
            if pw_pending:
                a.wait(lg=[t for t, _ in pw_pending])
            if not nobar: a("s_barrier")
            for _, ii in pw_pending:
                published.update(ii)
            del pw_pending[:]

        def barrier(q):
            flush_hi()
            w = list(dma_tok.get(q, []))
            if q < 6: w += xdma_tok[q]
            if not (nowait and q > 6): a.wait(vm=w)
            if 1 <= q <= 3:
                a.wait(lg=[xn_tok[t] for t in range(6 * (q - 1), 6 * q)])
            do_barrier()
            if stamps == 2:
                a("s_memtime s[%d:%d]" % (88 + 2 * (q & 1), 89 + 2 * (q & 1)))
                if q >= 1:
                    a("s_sub_u32 s92, s%d, s60" % (88 + 2 * ((q - 1) & 1)))
                    a("v_writelane_b32 v255, s92, %d" % (q - 1))
            if q < 6:
                for t in range(6 * q, 6 * q + 6):
                    xn_tok[t] = None
                    def rd(t=t):
                        xn_tok[t] = a.lds("ds_read_b128 %s, v%d offset:%d" % (vr(XN(t), 4), VX, (q % 3) * 24576 + (t - 6 * q) * 1024))
                    if q == 0: rd()
                    else: hi.append(rd)
            if 1 <= q <= 3:
                dq.extend(xdma_items(q + 2))
            n = 0
            while st["next_dma"] < NSTG and st["next_dma"] <= q - 2 + NS and n < (1 if q <= 3 else 2) and q >= 1:
                if not nodma and duty(q) == hf: dq.extend(dma_items(st["next_dma"]))
                st["next_dma"] += 1; n += 1
            try_p_reads()

        def read_items(i):
            kind, ps, s_, q, kap = steps[i]
            rd_tok[i] = []
            if kind == "p1h" and hf == 1:
                return []
            slot = q % NS
            h_ = slot >= 5
            base = (slot - 5 if h_ else slot) * STG
            af = AF + 8 * (i % (PD + 1))
            out = []
            for k2 in range(2):
                for ii in range(2):
                    if kind == "p1h":
                        va = R["vAhH" if h_ else "vAh"]; off = base + kap * 2048 + k2 * 1024 + ii * 512
                    else:
                        va = R["vAH" if h_ else "vA"]; off = base + kap * 4096 + k2 * 2048 + ii * 1024
                    def rd(k2=k2, ii=ii, va=va, off=off):
                        rd_tok[i].append(a.lds("ds_read_b64_tr_b16 %s, v%d offset:%d" % (vr(af + 4 * k2 + 2 * ii, 2), va, off)))
                    out.append(rd)
            return out

        def queue_bias(ps):
            stt = ACC[ps % 2]
            bias_tok[ps] = []
            off = 256 * ps if ps < 4 else 1024
            for q4 in range(4):
                def rd(q4=q4):
                    bias_tok[ps].append(a.lds("ds_read_b128 %s, v%d offset:%d" % (vr(stt + 4 * q4, 4), R["vBias"], off + 32 * q4)))
                fill.append(("b%d" % ps, rd))

        def gelu_group(tag, regs, outs):
            T = [TMP + k for k in range(4)]
            seq = []
            for k in range(4): seq.append("v_mul_f32 v%d, v%d, v%d" % (T[k], regs[k], regs[k]))
            for k in range(4): seq.append("v_fmaak_f32 v%d, v%d, v%d, %s" % (T[k], T[k], R["vC1"], hx(f32bits(C0))))
            for k in range(4): seq.append("v_mul_f32 v%d, v%d, v%d" % (T[k], regs[k], T[k]))
            for k in range(4): seq.append("v_exp_f32 v%d, v%d" % (T[k], T[k]))
            for k in range(4): seq.append("v_add_f32 v%d, 1.0, v%d" % (T[k], T[k]))
            for k in range(4): seq.append("v_rcp_f32 v%d, v%d" % (T[k], T[k]))
            for k in range(4): seq.append("v_mul_f32 v%d, v%d, v%d" % (T[k], regs[k], T[k]))
            seq.append("v_cvt_pk_bf16_f32 v%d, v%d, v%d" % (outs[0], T[0], T[1]))
            seq.append("v_cvt_pk_bf16_f32 v%d, v%d, v%d" % (outs[1], T[2], T[3]))
            if nogelu: seq = seq[-2:]
            for s_ in seq:
                fill.append((tag, lambda s_=s_: a(s_)))

        def queue_gelu(ps):
            stt = ACC[ps % 2]
            tag = "g%d" % ps
            i0 = 4 * ps + 2 * hf if ps < 4 else 16
            for j in (0, 1):
                pk = PK + 8 * (ps % 2) + 4 * j
                for q2 in (0, 1):
                    b = stt + 8 * j + 4 * q2
                    gelu_group(tag, [b, b + 1, b + 2, b + 3], [pk + 2 * q2, pk + 2 * q2 + 1])
                def wr(j=j, pk=pk):
                    tk = a.lds("ds_write_b128 v%d, %s offset:%d" % (R["vPw"], vr(pk, 4), (i0 + j) * 1024))
                    pw_later.append((tk, []))
                wr_items.setdefault(WR[ps], []).append((tag, wr))

        def queue_store(pi):
            stt = ACC2[pi % 2]
            tag = "s%d" % pi
            fill.append((tag, lambda: a("s_add_u32 s34, s37, %d" % (pi * 4096))))
            for k in (0, 1):
                pk = PK + 4 * k
                b = stt + 8 * k
                for h in range(4):
                    fill.append((tag, lambda pk=pk, b=b, h=h: a("v_cvt_pk_bf16_f32 v%d, v%d, v%d" % (pk + h, b + 2 * h, b + 2 * h + 1))))
                fill.append((tag, lambda: a("s_nop 0")))
                fill.append((tag, lambda pk=pk: a("v_permlane16_swap_b32 v%d, v%d" % (pk, pk + 2))))
                fill.append((tag, lambda pk=pk: a("v_permlane16_swap_b32 v%d, v%d" % (pk + 1, pk + 3))))
                if not nostore or pi == 8:
                    fill.append((tag, lambda pk=pk, k=k: a.vmem("buffer_store_dwordx4 %s, v%d, s[12:15], s34 offen offset:%d%s" % (vr(pk, 4), R["vPart"], k * 1024, ["", " sc1", " sc0 sc1", " nt", " sc1 nt"][stf]))))

        PUB = {0: 17, 1: 23, 2: 26, 3: 28, 4: 30}
        pub_at = {}
        for ps_, q_ in PUB.items():
            pub_at.setdefault(q_, []).append(ps_)

        def barrier2(q):
            single = (hf == 0 and 25 <= q <= 27)
            if hf == 0 and q >= 1:
                if segprio: a("s_setprio 0")
                segment(SEGB if not single else 0)
            pw_pending.extend(pw_later); del pw_later[:]
            for ps_ in pub_at.get(q, []):
                assert ps_ not in WR or WR[ps_] < q
                pw_pending.append((None, list(range(4 * ps_, 4 * ps_ + 4)) if ps_ < 4 else [16, 17]))
            for tag, wr in wr_items.pop(q, []):
                flush_tag(tag)
                wr()
            barrier(q)
            if hf == 0 and segprio: a("s_setprio 1")
            if hf == 1 and q >= 1:
                if segprio: a("s_setprio 0")
                emit_hi(8)
                segment(SEGB if not (24 <= q <= 26) else 2 * SEGB)
                if segprio: a("s_setprio 1")

        barrier2(0)
        if stamps:
            a("s_memtime s[62:63]")
        queue_bias(0); flush_tag("b0")
        for i in range(PD):
            for r_ in read_items(i): r_()
        for i in range(NSTEP):
            kind, ps, s_, q, kap = steps[i]
            j = i + PD
            rds = []
            if j < NSTEP:
                if steps[j][4] == 0:
                    barrier2(steps[j][3])
                rds = read_items(j)
            af = AF + 8 * (i % (PD + 1))
            first = (s_ == 0)
            idle = (kind == "p1h" and hf == 1)
            if first and not idle:
                if kind == "p2":
                    if ps >= 2: flush_tag("s%d" % (ps - 2))
                else:
                    flush_tag("b%d" % ps)
            for k2 in range(2):
                if not idle:
                    need = rd_tok[i][2 * k2: 2 * k2 + 2]
                    if kind == "p2":
                        d = ACC2[ps % 2]; t = 2 * s_ + k2
                        c = "0" if (first and k2 == 0) else vr(d, 16)
                        if p_tok.get(t) is None:
                            flush_hi()
                        assert p_tok.get(t) is not None, ("P frag not available", hf, ps, t)
                        need = need + [p_tok[t]]
                        b = PF(t)
                    else:
                        d = ACC[ps % 2]; t = 2 * s_ + k2
                        c = vr(d, 16)
                        if first and k2 == 0: need = need + bias_tok[ps]
                        if ps == 0:
                            if xn_tok[t] is None: flush_hi()
                            need = need + [xn_tok[t]]
                        b = XN(t)
                    a.wait(lg=need)
                    a("%s %s, %s, %s, %s" % (MFMA, vr(d, 16), vr(af + 4 * k2, 4), vr(b, 4), c))
                for r_ in rds[2 * k2: 2 * k2 + 2]: r_()
                emit_hi(2)
                if hf == 0 and kind == "p1h": emit_fill(4)
                if hf == 0 and kind == "p2" and ps == 0: emit_fill(3)
                if (kind == "p1h" and hf == 0) or (kind == "p1" and ps == 3 and hf == 1):
                    xn_dead.add(2 * s_ + k2)
                    try_p_reads()
            last = (kind == "p1" and s_ == 17) or (kind == "p1h" and s_ == 17) or (kind == "p2" and s_ == 8)
            if last and not idle:
                if kind == "p2":
                    queue_store(ps)
                else:
                    queue_gelu(ps)
                    if ps + 2 < 4 or (ps + 2 == 4 and hf == 0):
                        queue_bias(ps + 2)
            if kind == "p1" and ps == 0 and s_ == 0:
                queue_bias(1)
            if stamps and kind == "p1h" and kap == (5 if hf == 0 else 2) and q == 26:
                a("s_memtime s[64:65]")
        emit_fill(10000)
        if stamps:
            a("s_memtime s[66:67]")
            a("s_waitcnt vmcnt(0) lgkmcnt(0)")
            a("s_memtime s[68:69]")
            a("s_memrealtime s[70:71]")
            a("s_waitcnt lgkmcnt(0)")
            for k in range(4):
                a("s_sub_u32 s%d, s%d, s60" % (62 + 2 * k, 62 + 2 * k))
                a("v_mov_b32 v%d, s%d" % (160 + k, 62 + 2 * k))
            a("s_lshl_b32 s48, s2, 3")
            a("s_add_u32 s48, s48, s22")
            a("s_lshl_b32 s48, s48, 4")
            a("s_add_u32 s48, s48, %s" % hx(STAMP_OFF))
            a("v_mov_b32 v164, 0")
            a("s_mov_b64 exec, 1")
            a("buffer_store_dwordx4 v[160:163], v164, s[12:15], s48 offen")
            a("v_mov_b32 v166, s58")
            a("v_mov_b32 v167, s70")
            a("s_add_u32 s48, s48, 0x80000")
            a("buffer_store_dwordx2 v[166:167], v164, s[12:15], s48 offen")
            if stamps == 2:
                a("s_mov_b64 exec, -1")
                a("s_lshl_b32 s48, s2, 3")
                a("s_add_u32 s48, s48, s22")
                a("s_lshl_b32 s48, s48, 8")
                a("s_add_u32 s48, s48, %s" % hx(STAMP_OFF + 0x100000))
                a("v_lshrrev_b32 v164, 2, v%d" % R["vL16"])
                a("buffer_store_dword v255, v164, s[12:15], s48 offen")
        a("s_endpgm")

    body(0)
    a("%s_h1:" % name)
    body(1)
    a("%s_end:" % name)
    a("s_endpgm")
    n = a.fix_hazards()
    print("mlp: nops inserted", n, "vgprs", NV, "lds", MLP_LDS, "lines", len(a.lines))
    return kernel_header(name) + a.text() + kernel_desc(name, NV), MLP_LDS
```

```python
from asmgen import *
from layout import *
from collections import deque

C0 = -2.0 * 1.4426950408889634 * 0.7978845608028654
C1 = C0 * 0.044715
MFMA = "v_mfma_f32_16x16x32_bf16"
SLOT = 16384
NSLOT = 10
MLP_LDS = SLOT * NSLOT
Q_H1, Q_P2, Q_H2, NSTG = 36, 41, 77, 82


def srd(a, s, lo, hi, nbytes):
    a("s_mov_b32 s%d, s%d" % (s, lo))
    a("s_and_b32 s%d, s%d, 0xffff" % (s + 1, hi))
    a("s_mov_b32 s%d, %s" % (s + 2, hx(nbytes)))
    a("s_mov_b32 s%d, 0x20000" % (s + 3))


XISS = {0: -1, 1: -1, 2: -1, 3: -1, 4: 0, 5: 0, 6: 1, 7: 1, 8: 2}
XPUB = {0: 0, 1: 0, 2: 1, 3: 2, 4: 3, 5: 3, 6: 4, 7: 4, 8: 5}
XREL = {0: 2, 1: 4, 2: 5, 3: 6, 4: 7}


XS0 = 5


def plan_slots(WRmin, PRD, DEPTH, NPRO, fft_slots=0):
    free = [x for x in range(5) if x >= NPRO]
    if fft_slots: free.remove(4)
    wslot = {q: q for q in range(NPRO)}; issue = {q: -1 for q in range(NPRO)}; pslot = {}
    nxt = NPRO
    rel = {}
    for i, b in XREL.items():
        if i < 4: rel.setdefault(b, []).append(XS0 + i)
    if fft_slots:
        rel.setdefault(1, []).append(4)
    for q in range(0, NSTG):
        if q - 2 >= 0:
            free.append(wslot[q - 2])
        for x in rel.get(q, []):
            free.append(x)
        for u, b in PRD.items():
            if b == q and u != 4:
                free.append(pslot[u])
        for u, b in WRmin.items():
            if b - 1 == q and u == 4:
                pslot[u] = 9
            elif b - 1 == q:
                c = [x for x in free if x >= 8] or free
                pslot[u] = c[0]; free.remove(c[0])
        n = 0
        while nxt < NSTG and n < 2 and nxt <= q + DEPTH:
            c = [x for x in free if x < 8]
            if not c: break
            wslot[nxt] = c[0]; free.remove(c[0]); issue[nxt] = q; nxt += 1; n += 1
            if q < 12: break
        assert nxt > q + 1 or nxt >= NSTG, ("ring underflow", q, nxt)
    return wslot, issue, pslot


def gen_mlp(name, PD=2, SEGB=70, stamps=False, fft_hook=None, nostore=False, rot=1, cmap=1, nodma=0, nogelu=0,
            stf=0, touch=0, DCOST=10, fine=0, HOL=1, DEPTH=4, NPRO=3, MINB=0, STG2=4):
    a = Asm()
    XN0 = 16
    def XN(sb, t): return XN0 + (sb * 18 + t) * 4
    ACC = [160, 176]
    AF = 192
    BIAS = AF + 8 * (PD + 1)
    TMP = BIAS + 8
    PK = TMP + 4
    ACCH = PK + 16
    AD = ACCH + 8
    names = ["vD1", "vD1h", "vD2", "vD2h", "vA00", "vA01", "vA10", "vA11", "vAh0", "vAh1",
             "vL0", "vL1", "vL2", "vBias", "vBiasH", "vPq", "vC1", "vT"]
    free = list(range(1, 16)) + list(range(AD, 256))
    R = {}
    for nme in names:
        R[nme] = free.pop(0)
    NV = max(max(R.values()) + 1, AD)
    assert NV <= 256, NV
    if stamps == 2: NV = 256

    WRT = {0: {0: 19, 1: 28, 2: 37, 3: 44, 4: 47}, 1: {0: 19 + STG2, 1: 28 + STG2, 2: 37 + min(STG2, 1), 3: 44 + min(STG2, 1), 4: 47 + min(STG2, 1)}}
    PUB = {0: 20 + STG2, 1: 29 + STG2, 2: 39, 3: 46, 4: 49}
    WRmin = {u: min(WRT[0][u], WRT[1][u]) for u in range(5)}
    PRD = {0: 39, 1: 40, 2: 41, 3: 48, 4: 51}
    wslot, issue_at, pslot = plan_slots(WRmin, PRD, DEPTH, NPRO, 1 if fft_hook else 0)

    def pieces(q, hf, n):
        hol = [any(q == b - k for b in WRT[r].values() for k in range(1, HOL + 1)) for r in range(2)]
        if hol[hf] and not hol[1 - hf]: return []
        if hol[1 - hf] and not hol[hf]: return list(range(n))
        return list(range(n // 2)) if hf == 0 else list(range(n // 2, n))

    a("s_cmp_ge_u32 s2, 256")
    a("s_cbranch_scc1 %s_end" % name)
    a("s_load_dwordx2 s[40:41], s[0:1], 32")
    a("s_load_dwordx2 s[44:45], s[0:1], 48")
    a("s_load_dwordx2 s[46:47], s[0:1], 80")
    if stamps:
        a("s_memtime s[60:61]")
        a("s_memrealtime s[58:59]")
    L = 166
    a("v_lshrrev_b32 v167, 6, v0")
    a("v_and_b32 v%d, 63, v0" % L)
    a("v_readfirstlane_b32 s22, v167")
    if cmap == 0:
        a("s_and_b32 s20, s2, 7")
        a("s_lshr_b32 s21, s2, 3")
    elif cmap == 1:
        a("s_and_b32 s20, s2, 3")
        a("s_lshl_b32 s20, s20, 1")
        a("s_bfe_u32 s48, s2, 0x10003")
        a("s_add_u32 s20, s20, s48")
        a("s_bfe_u32 s21, s2, 0x10002")
        a("s_lshl_b32 s21, s21, 4")
        a("s_lshr_b32 s48, s2, 4")
        a("s_add_u32 s21, s21, s48")
    else:
        a("s_and_b32 s20, s2, 1")
        a("s_lshl_b32 s20, s20, 2")
        a("s_bfe_u32 s48, s2, 0x20003")
        a("s_add_u32 s20, s20, s48")
        a("s_bfe_u32 s21, s2, 0x20001")
        a("s_lshl_b32 s21, s21, 3")
        a("s_lshr_b32 s48, s2, 5")
        a("s_add_u32 s21, s21, s48")
    a("s_and_b32 s54, s21, %d" % (3 if rot else 0))
    a("s_and_b32 s38, s22, 3")
    a("s_lshr_b32 s39, s22, 2")
    a("s_mul_i32 s24, s20, 1152")
    a("s_mul_i32 s26, s20, %d" % (576 * 1152))
    for u in range(4):
        a("s_add_u32 s48, s54, %d" % u)
        a("s_and_b32 s48, s48, 3")
        a("s_lshl_b32 s%d, s48, 8" % (64 + u))
        a("s_add_u32 s%d, s24, s%d" % (72 + u, 64 + u))
        a("s_mul_i32 s48, s48, %d" % (128 * 1152))
        a("s_add_u32 s%d, s26, s48" % (76 + u))
    a("s_add_u32 s25, s24, 1024")
    a("s_add_u32 s80, s26, %d" % (512 * 1152))
    a("s_lshl_b32 s28, s38, 10")
    a("s_lshl_b32 s29, s22, 10")
    a("s_lshl_b32 s36, s21, 2")
    a("s_lshr_b32 s48, s22, 1")
    a("s_add_u32 s36, s36, s48")
    a("s_mul_i32 s36, s36, 18432")
    a("s_and_b32 s48, s22, 1")
    a("s_lshl_b32 s48, s48, 10")
    a("s_add_u32 s36, s36, s48")
    a("s_add_u32 s36, s36, %s" % hx(XNF_OFF))
    a("s_lshl_b32 s37, s20, 6")
    a("s_lshl_b32 s48, s21, 1")
    a("s_add_u32 s37, s37, s48")
    a("s_add_u32 s37, s37, s39")
    a("s_mul_i32 s37, s37, 36864")
    a("s_add_u32 s37, s37, %s" % hx(PART_OFF))
    a("s_lshl_b32 s48, s38, 10")
    a("s_add_u32 s81, s37, s48")
    a("s_add_u32 s81, s81, 32768")
    a("s_lshl_b32 s48, s38, 11")
    a("s_add_u32 s37, s37, s48")
    a("s_mul_i32 s56, s20, 2304")
    a("s_add_u32 s56, s56, %s" % hx(B1F_OFF))
    x0, x1, x2, x3, x4, x5 = 160, 161, 162, 163, 164, 165
    a("s_movk_i32 s49, 9216")
    a("s_movk_i32 s50, 1152")
    a("v_lshrrev_b32 v%d, 4, v%d" % (x0, L))
    a("s_lshl_b32 s48, s38, 2")
    a("v_add_u32 v%d, s48, v%d" % (x4, x0))
    a("v_and_b32 v%d, 7, v%d" % (x1, x4))
    a("v_lshlrev_b32 v%d, 1, v%d" % (x1, x1))
    a("v_and_b32 v%d, 15, v%d" % (x2, L))
    a("v_xor_b32 v%d, v%d, v%d" % (x3, x1, x2))
    a("v_lshlrev_b32 v%d, 4, v%d" % (x3, x3))
    a("v_mad_u32_u24 v%d, v%d, s49, v%d" % (R["vD1"], x4, x3))
    a("v_mad_u32_u24 v%d, v%d, s50, v%d" % (R["vD2"], x4, x3))
    a("v_lshrrev_b32 v%d, 3, v%d" % (x0, L))
    a("s_lshl_b32 s48, s38, 3")
    a("v_add_u32 v%d, s48, v%d" % (x4, x0))
    a("v_and_b32 v%d, 6, v%d" % (x1, x0))
    a("v_and_b32 v%d, 7, v%d" % (x2, L))
    a("v_xor_b32 v%d, v%d, v%d" % (x3, x1, x2))
    a("v_lshlrev_b32 v%d, 4, v%d" % (x3, x3))
    a("v_mad_u32_u24 v%d, v%d, s49, v%d" % (R["vD1h"], x4, x3))
    a("v_mad_u32_u24 v%d, v%d, s50, v%d" % (R["vD2h"], x4, x3))
    a("v_bfe_u32 v%d, v%d, 2, 4" % (x3, L))
    a("v_and_b32 v%d, 3, v%d" % (x2, L))
    a("v_and_b32 v%d, 7, v%d" % (x1, x3))
    a("s_lshl_b32 s48, s38, 1")
    a("v_xor_b32 v%d, s48, v%d" % (x1, x1))
    a("v_lshlrev_b32 v%d, 5, v%d" % (x1, x1))
    a("v_lshl_add_u32 v%d, v%d, 8, v%d" % (x1, x3, x1))
    a("v_lshl_add_u32 v%d, v%d, 3, v%d" % (R["vA00"], x2, x1))
    a("v_xor_b32 v%d, 32, v%d" % (R["vA10"], R["vA00"]))
    a("v_bfe_u32 v%d, v%d, 1, 2" % (x1, x3))
    a("v_xor_b32 v%d, s38, v%d" % (x1, x1))
    a("v_lshlrev_b32 v%d, 5, v%d" % (x1, x1))
    a("v_lshl_add_u32 v%d, v%d, 7, v%d" % (x1, x3, x1))
    a("v_lshl_add_u32 v%d, v%d, 3, v%d" % (R["vAh0"], x2, x1))
    a("v_lshlrev_b32 v%d, 4, v%d" % (R["vL0"], L))
    for nm in ("vA0", "vA1", "vAh", "vL"):
        a("v_add_u32 v%d, 0x10000, v%d" % (R[nm + "1"], R[nm + "0"]))
        if nm == "vL": a("v_add_u32 v%d, 0x20000, v%d" % (R[nm + "2"], R[nm + "0"]))
    a("v_lshrrev_b32 v%d, 4, v%d" % (x0, L))
    a("v_lshlrev_b32 v%d, 4, v%d" % (x0, x0))
    a("v_add_u32 v%d, %d, v%d" % (x0, 9 * SLOT + 8192, x0))
    a("s_lshl_b32 s48, s38, 7")
    a("v_add_u32 v%d, s48, v%d" % (R["vBias"], x0))
    a("s_lshl_b32 s48, s38, 6")
    a("v_add_u32 v%d, s48, v%d" % (R["vBiasH"], x0))
    a("v_add_u32 v%d, s28, v%d" % (R["vPq"], R["vL0"]))
    a("v_mov_b32 v%d, %s" % (R["vC1"], hx(f32bits(C1))))
    a("s_waitcnt lgkmcnt(0)")
    srd(a, 4, 40, 41, 576 * 9216)
    srd(a, 8, 44, 45, 4608 * 1152)
    srd(a, 12, 46, 47, WS_BYTES)
    a("s_cmp_lg_u32 s39, 0")
    a("s_cbranch_scc1 %s_h1" % name)

    def ldsaddr(nm, off):
        return R[nm + str(off >> 16)], off & 0xFFFF

    def stage_desc(q):
        if q < Q_H1:
            u, sg = divmod(q, 9)
            return (4, "vD1", [(72 + u, None, (64 * sg + 16 * k) * 9216) for k in range(4)])
        if q < Q_P2:
            sg = q - Q_H1
            return (4, "vD1h", [(25, None, (128 * sg + 32 * k) * 9216) for k in range(4 if sg < 4 else 2)])
        if q < Q_H2:
            pi, sg = divmod(q - Q_P2, 9)
            rb = 76 + sg // 2 if sg < 8 else 80
            return (8, "vD2", [(rb, 64 + pi, (64 * (sg & 1 if sg < 8 else 0) + 16 * k) * 1152) for k in range(4)])
        sg = q - Q_H2
        rb = 76 + sg if sg < 4 else 80
        return (8, "vD2h", [(rb, None, 32 * k * 1152 + 1024) for k in range(4 if sg < 4 else 2)])

    def body(hf):
        a.vm = []; a.lg = []
        dma_tok = {}; xdma_tok = {}
        WR = WRT[hf]

        def dma_items(q, bq):
            s, vf, offs = stage_desc(q)
            dma_tok[q] = []
            out = []
            mine = pieces(bq, hf, len(offs))
            for k, (sa, sb_, imm) in enumerate(offs):
                if k not in mine: continue
                def g(k=k, sa=sa, sb_=sb_, imm=imm):
                    a("s_add_u32 m0, s28, %d" % (wslot[q] * SLOT + 4096 * k))
                    if sb_ is not None:
                        if k == mine[0]: a("s_add_u32 s31, s%d, s%d" % (sa, sb_))
                        a("s_add_u32 s30, s31, %s" % hx(imm))
                    else:
                        a("s_add_u32 s30, s%d, %s" % (sa, hx(imm)))
                    dma_tok[q].append(a.vmem("buffer_load_dwordx4 v%d, s[%d:%d], s30 offen lds" % (R[vf], s, s + 3)))
                out.append(g)
            return out

        def xdma(k):
            a("s_add_u32 m0, s29, %d" % (XS0 * SLOT + k * 8192))
            a("s_add_u32 s30, s36, %d" % (k * 2048))
            xdma_tok[k] = a.vmem("buffer_load_dwordx4 v%d, s[12:15], s30 offen lds" % R["vL0"])

        bias_tok = {}
        BIASB = 9 * SLOT + 8192
        def load_bias(ps):
            if ps < 4:
                bias_tok[ps] = [a.lds("ds_read_b128 %s, v%d offset:%d" % (vr(BIAS + 4 * bi, 4), R["vBias"], 512 * ps + 64 * bi)) for bi in range(2)]
            else:
                bias_tok[ps] = [a.lds("ds_read_b128 %s, v%d offset:2048" % (vr(BIAS, 4), R["vBiasH"]))]

        btk = []
        if hf == 1:
            for i2 in range(2):
                a("s_lshl_b32 s33, s%d, 1" % (64 + 2 * i2))
                a("s_lshl_b32 s34, s%d, 1" % (65 + 2 * i2))
                a("s_sub_u32 s34, s34, 512")
                a("v_mov_b32 v%d, s33" % x0)
                a("v_mov_b32 v%d, s34" % x1)
                a("v_cmp_gt_u32 vcc, 32, v%d" % L)
                a("s_mov_b32 m0, %d" % (BIASB + 1024 * i2))
                a("v_cndmask_b32 v%d, v%d, v%d, vcc" % (x0, x1, x0))
                a("v_add_u32 v%d, v%d, v%d" % (x0, x0, R["vL0"]))
                btk.append(a.vmem("buffer_load_dwordx4 v%d, s[12:15], s56 offen lds" % x0))
            a("s_mov_b32 m0, %d" % BIASB)
            a("s_mov_b64 exec, 0xffff")
            btk.append(a.vmem("buffer_load_dwordx4 v%d, s[12:15], s56 offen offset:2048 lds" % R["vL0"]))
            a("s_mov_b64 exec, -1")
        for q in range(NPRO):
            for g in dma_items(q, -1): g()
            if q < 2:
                xdma(2 * q); xdma(2 * q + 1)
        if touch:
            nsh = {0: 32, 1: 16, 2: 8}[cmap]
            per = 5184 // nsh
            reps = (per + 511) // 512
            a("s_and_b32 s33, s21, %d" % (nsh - 1))
            a("s_mul_i32 s33, s33, %d" % (per * 128))
            a("s_add_u32 s33, s33, s26")
            a("v_lshlrev_b32 v%d, 7, v0" % R["vT"])
            for r_ in range(reps):
                n = min(512, per - 512 * r_)
                a("v_cmp_gt_u32 vcc, %d, v0" % n)
                a("s_and_saveexec_b64 s[52:53], vcc")
                a("s_cbranch_execz %s_t%d_%d" % (name, hf, r_))
                a("buffer_load_dword v%d, v%d, s[8:11], s33 offen" % (TMP, R["vT"]))
                a("%s_t%d_%d:" % (name, hf, r_))
                a("s_mov_b64 exec, -1")
                if r_ + 1 < reps: a("s_add_u32 s33, s33, 65536")
        if fft_hook:
            fft_hook(a, hf)

        steps = []
        for u in range(4):
            for t in range(18):
                steps.append(("p1", u, t, 9 * u + t // 2, t % 2))
        for s_ in range(9):
            steps.append(("p1h", 4, s_, Q_H1 + s_ // 2, s_ % 2))
        for u in range(4):
            for t in range(18):
                steps.append(("p2", u, t, Q_P2 + 9 * u + t // 2, t % 2))
        for s_ in range(9):
            steps.append(("p2h", 4, s_, Q_H2 + s_ // 2, s_ % 2))
        NSTEP = len(steps)

        hi = deque(); dq = deque(); fill = deque()
        rd_tok = {}; pw_pending = []; pw_later = []; wr_items = {}
        published = set(); xn_dead = set(); p_tok = {}; xn_tok = {}

        def cost_of(lines):
            c = 0
            for l in lines:
                op = l.split()[0]
                c += 8 if op in TRANS else (8 if op.startswith(("buffer", "ds_write")) else (1 if op.startswith("s_") else 4))
            return c

        def emit_hi(n):
            while hi and n > 0:
                hi.popleft()(); n -= 1

        dead = {}
        cost = {}

        bucket = {"rate": 0.0, "tok": 0.0}

        def fine_fill():
            bucket["tok"] += bucket["rate"]
            while fill and bucket["tok"] >= 4:
                n0 = len(a.lines)
                tag, f = fill.popleft()
                f()
                c_ = cost_of(a.lines[n0:])
                bucket["tok"] -= c_
                if tag in cost: cost[tag] -= c_
            if not fill: bucket["tok"] = 0.0

        def segment(q):
            while dq:
                dq.popleft()()
            budget = MINB; cum = 0; seen = []
            if fine:
                for tg, _ in fill:
                    if tg not in seen:
                        seen.append(tg)
                        cum += cost.get(tg, 0)
                        left = max(1, dead.get(tg, q) + hf - q - (0 if hf == 0 else 1))
                        budget = max(budget, cum / left)
                bucket["rate"] = budget / 8.0 + 0.01
                return
            for tg, _ in fill:
                if tg not in seen:
                    seen.append(tg)
                    cum += cost.get(tg, 0)
                    left = max(1, dead.get(tg, q) - q + 1)
                    budget = max(budget, -(-cum // left))
            while fill and budget > 0:
                n0 = len(a.lines)
                tag, f = fill.popleft()
                f()
                c_ = cost_of(a.lines[n0:])
                budget -= c_
                if tag in cost: cost[tag] -= c_

        def flush_hi():
            while hi: hi.popleft()()
            while dq: dq.popleft()()

        def flush_tag(tag):
            while any(t == tag for t, _ in fill):
                tg, f = fill.popleft(); f()

        def p_off(t, sb):
            if t < 16:
                return pslot[t // 4] * SLOT + ((hf * 2 + sb) * 4 + t % 4) * 1024
            return pslot[4] * SLOT + ((hf * 2 + sb) * 2 + t - 16) * 1024

        def try_p_reads():
            for t in range(18):
                if t in published and t in xn_dead and (0, t) not in p_tok:
                    for sb in range(2):
                        p_tok[(sb, t)] = None
                        def rd(t=t, sb=sb):
                            v, im = ldsaddr("vL", p_off(t, sb))
                            p_tok[(sb, t)] = a.lds("ds_read_b128 %s, v%d offset:%d" % (vr(XN(sb, t), 4), v, im))
                        hi.append(rd)

        pub_at = {}
        for ps_, q_ in PUB.items():
            pub_at.setdefault(q_, []).append(ps_)

        def barrier(q):
            if hf == 0 and q >= 1:
                segment(q)
            pw_pending.extend(pw_later); del pw_later[:]
            for tag, wr in wr_items.pop(q, []):
                flush_tag(tag)
                wr()
            flush_hi()
            w = list(dma_tok.get(q, []))
            xparts = [k for k, b in XPUB.items() if b == q]
            w += [xdma_tok[k] for k in xparts]
            if q == 0: w += btk
            a.wait(vm=w)
            lw = list(pw_pending)
            for xi, b in XREL.items():
                if b == q:
                    for k in ([2 * xi, 2 * xi + 1] if xi < 4 else [8]):
                        lw += [xn_tok[(sb, 2 * k + k2)] for sb in range(2) for k2 in range(2)]
            for u, b in PRD.items():
                if b == q:
                    ts = range(4 * u, 4 * u + 4) if u < 4 else (16, 17)
                    for t in ts:
                        for sb in range(2):
                            assert p_tok.get((sb, t)) is not None, ("P read not issued before release", u, q)
                            lw.append(p_tok[(sb, t)])
            a.wait(lg=lw)
            a("s_barrier")
            del pw_pending[:]
            for ps_ in pub_at.get(q, []):
                assert WR[ps_] < q
                published.update(range(4 * ps_, 4 * ps_ + 4) if ps_ < 4 else [16, 17])
            if stamps == 2:
                a("s_memtime s[%d:%d]" % (88 + 2 * (q & 1), 89 + 2 * (q & 1)))
                if q >= 1:
                    a("s_sub_u32 s92, s%d, s60" % (88 + 2 * ((q - 1) & 1)))
                    a("v_writelane_b32 v%d, s92, %d" % (255 if q - 1 < 64 else 0, (q - 1) & 63))
            for k in xparts:
                for k2 in range(2):
                    for sb in range(2):
                        t = 2 * k + k2
                        xn_tok[(sb, t)] = None
                        def rd(t=t, sb=sb, k=k, k2=k2):
                            v, im = ldsaddr("vL", XS0 * SLOT + k * 8192 + ((2 * hf + sb) * 2 + k2) * 1024)
                            xn_tok[(sb, t)] = a.lds("ds_read_b128 %s, v%d offset:%d" % (vr(XN(sb, t), 4), v, im))
                        if q == 0 and k == 0: rd()
                        else: hi.append(rd)
            for k, b in XISS.items():
                if b == q: dq.append(lambda k=k: xdma(k))
            for q2, b in issue_at.items():
                if b == q and not (nodma and q > 8):
                    dq.extend(dma_items(q2, q))
            try_p_reads()
            if hf == 1:
                emit_hi(4)
                segment(q)

        def read_items(i):
            kind, ps, s_, q, kap = steps[i]
            rd_tok[i] = []
            base = wslot[q] * SLOT
            af = AF + 8 * (i % (PD + 1))
            out = []
            for f in range(2):
                for ii in range(2):
                    if kind.endswith("h"):
                        v, im = ldsaddr("vAh", base + (2 * kap + f) * 4096 + ii * 2048)
                    else:
                        v, im = ldsaddr("vA%d" % f, base + kap * 8192 + ii * 4096)
                    def rd(f=f, ii=ii, v=v, im=im):
                        rd_tok[i].append(a.lds("ds_read_b64_tr_b16 %s, v%d offset:%d" % (vr(af + 4 * f + 2 * ii, 2), v, im)))
                    out.append(rd)
            return out

        def gelu_group(tag, regs, outs):
            T = [TMP + k for k in range(4)]
            seq = []
            for k in range(4): seq.append("v_mul_f32 v%d, v%d, v%d" % (T[k], regs[k], regs[k]))
            for k in range(4): seq.append("v_fmaak_f32 v%d, v%d, v%d, %s" % (T[k], T[k], R["vC1"], hx(f32bits(C0))))
            for k in range(4): seq.append("v_mul_f32 v%d, v%d, v%d" % (T[k], regs[k], T[k]))
            for k in range(4): seq.append("v_exp_f32 v%d, v%d" % (T[k], T[k]))
            for k in range(4): seq.append("v_add_f32 v%d, 1.0, v%d" % (T[k], T[k]))
            for k in range(4): seq.append("v_rcp_f32 v%d, v%d" % (T[k], T[k]))
            for k in range(4): seq.append("v_mul_f32 v%d, v%d, v%d" % (T[k], regs[k], T[k]))
            seq.append("v_cvt_pk_bf16_f32 v%d, v%d, v%d" % (outs[0], T[0], T[1]))
            seq.append("v_cvt_pk_bf16_f32 v%d, v%d, v%d" % (outs[1], T[2], T[3]))
            if nogelu: seq = seq[-2:]
            cost[tag] = cost.get(tag, 0) + cost_of(seq)
            for s_ in seq:
                fill.append((tag, lambda s_=s_: a(s_)))

        def queue_gelu(ps):
            stt = ACC[ps % 2] if ps < 4 else ACCH
            tag = "g%d" % ps
            dead[tag] = min(WR[ps] - hf, 9 * (ps + 2) + 1) if ps < 2 else WR[ps] - hf
            pk0 = PK + 8 * (ps % 2)
            if ps < 4:
                for sb in range(2):
                    for bi in range(2):
                        b = stt + (bi * 2 + sb) * 4
                        gelu_group(tag, [b, b + 1, b + 2, b + 3], [pk0 + 4 * sb + 2 * bi, pk0 + 4 * sb + 2 * bi + 1])
                def wr():
                    a("v_add_u32 v%d, %s, v%d" % (R["vT"], hx(pslot[ps] * SLOT + hf * 8192), R["vPq"]))
                    for sb in range(2):
                        pw_later.append(a.lds("ds_write_b128 v%d, %s offset:%d" % (R["vT"], vr(pk0 + 4 * sb, 4), sb * 4096)))
            else:
                for sb in range(2):
                    b = stt + sb * 4
                    gelu_group(tag, [b, b + 1, b + 2, b + 3], [pk0 + 2 * sb, pk0 + 2 * sb + 1])
                def wr():
                    a("s_lshr_b32 s33, s38, 1")
                    a("s_lshl_b32 s33, s33, 10")
                    a("s_and_b32 s34, s38, 1")
                    a("s_lshl_b32 s34, s34, 3")
                    a("s_add_u32 s33, s33, s34")
                    a("s_add_u32 s33, s33, %s" % hx(pslot[4] * SLOT + hf * 4096))
                    a("v_add_u32 v%d, s33, v%d" % (R["vT"], R["vL0"]))
                    for sb in range(2):
                        pw_later.append(a.lds("ds_write_b64 v%d, %s offset:%d" % (R["vT"], vr(pk0 + 2 * sb, 2), sb * 2048)))
            wr_items.setdefault(WR[ps], []).append((tag, wr))

        def acc2(ps): return ACC[ps % 2] if ps < 4 else ACCH

        def queue_store(ps):
            stt = acc2(ps)
            tag = "s%d" % ps
            cost[tag] = 56
            dead[tag] = Q_P2 + 9 * (ps + 1) + 3
            fl = ["", " sc1", " sc0 sc1", " nt", " sc1 nt"][stf]
            if ps < 4:
                fill.append((tag, lambda: (a("s_lshl_b32 s34, s%d, 5" % (64 + ps)), a("s_add_u32 s34, s34, s37"))))
            for bi in range(2 if ps < 4 else 1):
                pk = PK + 8 * ((ps + 1) % 2) + 4 * bi
                for sb in range(2):
                    b = stt + ((bi * 2 + sb) * 4 if ps < 4 else sb * 4)
                    for h in range(2):
                        fill.append((tag, lambda pk=pk, sb=sb, b=b, h=h: a("v_cvt_pk_bf16_f32 v%d, v%d, v%d" % (pk + 2 * sb + h, b + 2 * h, b + 2 * h + 1))))
                if not nostore or ps == 4:
                    fill.append((tag, lambda pk=pk, bi=bi: a.vmem("buffer_store_dwordx4 %s, v%d, s[12:15], s%d offen offset:%d%s" % (vr(pk, 4), R["vL0"], 34 if ps < 4 else 81, bi * 1024, fl))))

        barrier(0)
        load_bias(0)
        for i in range(PD):
            for r_ in read_items(i): r_()
        for i in range(NSTEP):
            kind, ps, s_, q, kap = steps[i]
            j = i + PD
            rds = []
            if j < NSTEP:
                if steps[j][4] == 0:
                    barrier(steps[j][3])
                rds = read_items(j)
            af = AF + 8 * (i % (PD + 1))
            first = (s_ == 0)
            ph2 = kind.startswith("p2")
            half = kind.endswith("h")
            stt = acc2(ps)
            if first:
                if ph2:
                    flush_tag(["g2", "g3", "s0", "s1", "g4"][ps])
                elif 2 <= ps < 4:
                    flush_tag("g%d" % (ps - 2))
            for k in range(4):
                f, sb = k >> 1, k & 1
                t = 2 * s_ + f if half else s_
                d = stt + (sb * 4 if half else k * 4)
                need = rd_tok[i][2 * f: 2 * f + 2]
                vneed = None
                init = first and (not half or f == 0)
                if ph2:
                    c = "0" if init else vr(d, 4)
                    if ps == 0:
                        if p_tok.get((sb, t)) is None: flush_hi()
                        assert p_tok.get((sb, t)) is not None, ("P frag missing", hf, t)
                        need = need + [p_tok[(sb, t)]]
                else:
                    c = vr(BIAS + (0 if half else 4 * f), 4) if init else vr(d, 4)
                    if init: need = need + bias_tok[ps]
                    if ps == 0:
                        if xn_tok[(sb, t)] is None: flush_hi()
                        need = need + [xn_tok[(sb, t)]]
                a.wait(vm=vneed, lg=need)
                a("%s %s, %s, %s, %s" % (MFMA, vr(d, 4), vr(af + 4 * f, 4), vr(XN(sb, t), 4), c))
                if rds: rds[k]()
                emit_hi(1)
                if fine: fine_fill()
                if kind == "p1h" and sb == 1:
                    xn_dead.add(t)
                    try_p_reads()
            if kind == "p1" and s_ == 1:
                hi.append(lambda ps=ps: load_bias(ps + 1))
            last = s_ == (8 if half else 17)
            if last:
                if ph2: queue_store(ps)
                else: queue_gelu(ps)
            if stamps and kind == "p1h" and last:
                a("s_memtime s[62:63]")
        flush_hi()
        while fill:
            fill.popleft()[1]()
        if stamps:
            a("s_memtime s[66:67]")
            a("s_waitcnt vmcnt(0) lgkmcnt(0)")
            a("s_memtime s[68:69]")
            a("s_memrealtime s[70:71]")
            a("s_waitcnt lgkmcnt(0)")
            for k, sr_ in enumerate((62, 62, 66, 68)):
                a("s_sub_u32 s33, s%d, s60" % sr_)
                a("v_mov_b32 v%d, s33" % (160 + k))
            a("s_lshl_b32 s48, s2, 3")
            a("s_add_u32 s48, s48, s22")
            a("s_lshl_b32 s48, s48, 4")
            a("s_add_u32 s48, s48, %s" % hx(STAMP_OFF))
            a("v_mov_b32 v164, 0")
            a("s_mov_b64 exec, 1")
            a("buffer_store_dwordx4 v[160:163], v164, s[12:15], s48 offen")
            a("v_mov_b32 v166, s58")
            a("v_mov_b32 v167, s70")
            a("s_add_u32 s48, s48, 0x80000")
            a("buffer_store_dwordx2 v[166:167], v164, s[12:15], s48 offen")
            if stamps == 2:
                a("s_mov_b64 exec, -1")
                a("s_lshl_b32 s48, s2, 3")
                a("s_add_u32 s48, s48, s22")
                a("s_lshl_b32 s48, s48, 9")
                a("s_add_u32 s48, s48, %s" % hx(STAMP_OFF + 0x100000))
                a("v_lshrrev_b32 v164, 2, v%d" % R["vL0"])
                a("buffer_store_dword v255, v164, s[12:15], s48 offen")
                a("buffer_store_dword v0, v164, s[12:15], s48 offen offset:256")
        a("s_endpgm")

    body(0)
    a("%s_h1:" % name)
    body(1)
    a("%s_end:" % name)
    a("s_endpgm")
    n = a.fix_hazards()
    print("mlp3: nops inserted", n, "vgprs", NV, "lines", len(a.lines), "ahead:", " ".join(str(q - issue_at[q]) for q in range(5, NSTG)))
    return kernel_header(name) + a.text() + kernel_desc(name, NV), MLP_LDS
```

```python
from asmgen import *
from layout import *

MAGIC576 = 7456541
INV576 = hx(f32bits(1.0 / 576.0))


def mod576(a, dst, src, tmp, smagic, s576):
    a("v_mul_hi_u32 v%d, v%d, s%d" % (tmp, src, smagic))
    a("v_mul_u32_u24 v%d, s%d, v%d" % (tmp, s576, tmp))
    a("v_sub_u32 v%d, v%d, v%d" % (dst, src, tmp))


def cinv_gen(a, base, s_db, vM, vG, T, S):
    D_, U0, DL, SH, SG, X = T, T + 1, T + 5, T + 6, T + 7, T + 8
    chunks = []
    def setup():
        a("s_lshl_b32 s%d, s%d, 4" % (S + 3, s_db))
        a("v_add_u32 v%d, s%d, v%d" % (D_, S + 3, vM))
        a("v_lshlrev_b32 v%d, 4, v%d" % (X, D_))
        mod576(a, X, X, X + 1, S, S + 1)
        a("v_cvt_f32_u32 v%d, v%d" % (X, X))
        a("v_mul_f32 v%d, s%d, v%d" % (DL, S + 2, X))
        a("v_lshlrev_b32 v%d, 1, v%d" % (X + 2, vG))
        for h in range(4):
            a("v_add_u32 v%d, %d, v%d" % (X, 8 * (h >> 1) + (h & 1), X + 2))
            a("v_mul_u32_u24 v%d, v%d, v%d" % (X, X, D_))
            mod576(a, X, X, X + 1, S, S + 1)
            a("v_cvt_f32_u32 v%d, v%d" % (X, X))
            a("v_mul_f32 v%d, s%d, v%d" % (U0 + h, S + 2, X))
        a("v_and_b32 v%d, 1, v%d" % (SH, D_))
        a("v_lshlrev_b32 v%d, 4, v%d" % (SH, SH))
        a("v_add_u32 v%d, 1, v%d" % (X, D_))
        a("v_bfe_u32 v%d, v%d, 1, 1" % (X, X))
        a("v_lshlrev_b32 v%d, 31, v%d" % (X, X))
        a("v_bfe_u32 v%d, v%d, 1, 1" % (X + 1, D_))
        a("v_lshl_or_b32 v%d, v%d, 15, v%d" % (SG, X + 1, X))
    chunks.append(setup)
    for t in range(9):
        def step(t=t):
            for h in range(4):
                if t:
                    a("v_fmamk_f32 v%d, v%d, %s, v%d" % (X + 8 + h, DL, hx(f32bits(float(t))), U0 + h))
            for h in range(4):
                u = X + 8 + h if t else U0 + h
                a("v_cos_f32 v%d, v%d" % (X + 2 * h, u))
                a("v_sin_f32 v%d, -v%d" % (X + 2 * h + 1, u))
            for h in range(4):
                a("v_cvt_pk_bf16_f32 v%d, v%d, v%d" % (base + 4 * t + h, X + 2 * h, X + 2 * h + 1))
            for h in range(4):
                a("v_alignbit_b32 v%d, v%d, v%d, v%d" % (base + 36 + 4 * t + h, base + 4 * t + h, base + 4 * t + h, SH))
            for h in range(4):
                a("v_xor_b32 v%d, v%d, v%d" % (base + 36 + 4 * t + h, SG, base + 36 + 4 * t + h))
            if t == 0:
                a("v_lshlrev_b32 v%d, 27, v%d" % (X, SH))
                a("v_or_b32 v%d, 0x3f803f80, v%d" % (X, X))
                a("v_cmp_eq_u32 vcc, 0, v%d" % vG)
                a("s_nop 1")
                a("v_cndmask_b32 v%d, v%d, v%d, vcc" % (base, base, X))
        chunks.append(step)
    return chunks


def final_math(a, nh, S_, Y, XV, B2, T, OUT):
    def rnd(r):
        a("v_cvt_pk_bf16_f32 v%d, v%d, v%d" % (T + 2, r, r + 1))
        a("v_lshlrev_b32 v%d, 16, v%d" % (r, T + 2))
        a("v_and_b32 v%d, 0xffff0000, v%d" % (r + 1, T + 2))
    for h in range(nh):
        s_ = S_ + 2 * h; y = Y + 2 * h
        rnd(s_)
        a("v_pk_add_f32 %s, %s, %s" % (vr(s_, 2), vr(s_, 2), vr(B2 + 2 * (h & 1), 2)))
        rnd(s_)
        rnd(y)
        a("v_lshlrev_b32 v%d, 16, v%d" % (T, XV + h))
        a("v_and_b32 v%d, 0xffff0000, v%d" % (T + 1, XV + h))
        a("v_pk_add_f32 %s, %s, %s" % (vr(y, 2), vr(y, 2), vr(T, 2)))
        rnd(y)
        a("v_pk_add_f32 %s, %s, %s" % (vr(y, 2), vr(y, 2), vr(s_, 2)))
        a("v_cvt_pk_bf16_f32 v%d, v%d, v%d" % (OUT + h, y, y + 1))


def epilogue(a, name, hf, UBASE, vLane16, NPART=8, est=0, SLP=4, G1=7, uload=0, early=None):
    lab = "%s_e%d" % (name, hf)
    CA, CB = 16, 88
    ACC = 160
    BFR = 176
    T = 200
    M_, G_, VT0, VT1, VX0, VX1, VB = 220, 221, 222, 223, 224, 225, 226
    XV, B2R, XE, B2E = 228, 232, 234, 236
    PT = 16
    if est: a("s_memrealtime s[52:53]")
    a("s_load_dwordx2 s[40:41], s[0:1], 0")
    a("s_load_dwordx4 s[44:47], s[0:1], 56")
    a("s_load_dwordx2 s[42:43], s[0:1], 72")
    a("s_mov_b32 s64, %d" % MAGIC576)
    a("s_movk_i32 s65, 576")
    a("s_mov_b32 s66, %s" % INV576)
    a("v_lshrrev_b32 v%d, 4, v%d" % (T, vLane16))
    a("v_and_b32 v%d, 15, v%d" % (M_, T))
    a("v_lshrrev_b32 v%d, 4, v%d" % (G_, T))
    a("s_lshr_b32 s68, s20, 1")
    a("s_mul_i32 s68, s68, 9")
    a("s_add_u32 s69, s68, 8")
    a("s_add_u32 s68, s68, s22")
    a("s_and_b32 s70, s20, 1")
    a("s_lshl_b32 s71, s21, 1")
    a("s_add_u32 s70, s70, s71")
    a("v_bfe_u32 v%d, v%d, 2, 4" % (VT0, T))
    a("v_lshlrev_b32 v%d, 6, v%d" % (VT0, VT0))
    a("v_and_b32 v%d, 3, v%d" % (T + 1, T))
    a("v_lshl_add_u32 v%d, v%d, 3, v%d" % (VT0, T + 1, VT0))
    a("v_and_b32 v%d, 1, v%d" % (T + 1, G_))
    a("v_lshl_add_u32 v%d, v%d, 5, v%d" % (VT0, T + 1, VT0))
    a("v_add_u32 v%d, %s, v%d" % (VT0, hx(UBASE), VT0))
    a("v_xor_b32 v%d, 32, v%d" % (VT1, VT0))
    a("v_and_b32 v%d, 3, v%d" % (VX0, M_))
    a("v_bfe_u32 v%d, v%d, 2, 1" % (T + 1, M_))
    a("v_lshl_add_u32 v%d, v%d, 4, v%d" % (VX0, T + 1, VX0))
    a("v_bfe_u32 v%d, v%d, 3, 1" % (T + 1, M_))
    a("v_lshl_add_u32 v%d, v%d, 2, v%d" % (VX0, T + 1, VX0))
    a("s_mov_b32 s71, %d" % (32 * 1152))
    a("v_mul_lo_u32 v%d, v%d, s71" % (VX0, VX0))
    a("v_lshl_add_u32 v%d, v%d, 3, v%d" % (VX0, G_, VX0))
    a("v_add_u32 v%d, %d, v%d" % (VX1, 8 * 32 * 1152, VX0))
    a("v_lshlrev_b32 v%d, 3, v%d" % (VB, G_))
    a("s_lshr_b32 s72, s70, 1")
    a("s_and_b32 s73, s70, 1")
    a("s_lshl_b32 s73, s73, 10")
    a("s_add_u32 s72, s72, s73")
    a("s_mul_i32 s72, s72, 1152")
    a("s_lshl_b32 s73, s68, 5")
    a("s_lshl_b32 s75, s69, 5")
    a("s_add_u32 s74, s72, s75")
    a("s_and_b32 s78, s22, 1")
    a("s_mul_i32 s76, s78, %d" % (8 * 32 * 1152))
    a("s_add_u32 s74, s74, s76")
    a("s_add_u32 s72, s72, s73")
    a("s_mul_i32 s76, s70, 36")
    a("s_add_u32 s77, s76, s69")
    a("s_add_u32 s76, s76, s68")
    a("s_lshl_b32 s76, s76, 10")
    a("s_add_u32 s76, s76, %s" % hx(PART_OFF))
    a("s_lshl_b32 s77, s77, 10")
    a("s_lshl_b32 s78, s78, 3")
    a("s_add_u32 s77, s77, s78")
    a("s_add_u32 s77, s77, %s" % hx(PART_OFF))
    UR = 136
    if uload:
        a("v_lshrrev_b32 v240, 6, v%d" % vLane16)
        a("v_bfe_u32 v241, v%d, 8, 1" % vLane16)
        a("v_lshlrev_b32 v241, 5, v241")
        a("v_and_b32 v242, 48, v%d" % vLane16)
        a("v_xor_b32 v241, v241, v242")
        a("v_lshl_add_u32 v240, v240, 12, v241")
        a("s_lshl_b32 s83, s70, 6")
        a("s_lshl_b32 s84, s22, 16")
        a("s_add_u32 s83, s83, s84")
        a("s_add_u32 s83, s83, %s" % hx(UT_OFF))
        a("s_lshl_b32 s84, s22, 10")
        a("s_add_u32 s84, s84, %s" % hx(UBASE))
        a("v_add_u32 v241, s84, v%d" % vLane16)
        if hf == 0:
            a("s_cmp_lg_u32 s22, 0")
            a("s_cbranch_scc1 %s_fok" % lab)
            if early is not None:
                a("v_readfirstlane_b32 s80, v%d" % early)
                a("s_nop 3")
                a("s_cmp_ge_u32 s80, 289")
                a("s_cbranch_scc1 %s_fok" % lab)
            a("s_and_b32 s85, s2, 7")
            a("s_lshl_b32 s85, s85, 8")
            a("s_add_u32 s85, s85, %s" % hx(CNT_OFF + 8192))
            a("v_mov_b32 v238, 0")
            a("s_mov_b64 exec, 1")
            a("s_mov_b32 s81, 200000")
            a("%s_fpoll:" % lab)
            a("s_sub_u32 s81, s81, 1")
            a("s_cbranch_scc1 %s_fdone" % lab)
            a("buffer_load_dword v239, v238, s[12:15], s85 offen sc1")
            a("s_waitcnt vmcnt(0)")
            a("v_readfirstlane_b32 s80, v239")
            a("s_nop 3")
            a("s_cmp_ge_u32 s80, 289")
            a("s_cbranch_scc1 %s_fdone" % lab)
            a("s_sleep 8")
            a("s_branch %s_fpoll" % lab)
            a("%s_fdone:" % lab)
            a("s_mov_b64 exec, -1")
            a("%s_fok:" % lab)
    ch = cinv_gen(a, CA, 68, M_, G_, T, 64)
    for c in ch[:4]: c()
    a.wait_all(vm=True, lg=True)
    a("s_barrier")
    if est: a("s_memrealtime s[54:55]")
    for (s_, lo, hi, n) in ((4, 40, 41, 2048 * 1152), (8, 46, 47, 2048 * 1152), (16, 44, 45, 1152)):
        a("s_mov_b32 s%d, s%d" % (s_, lo))
        a("s_and_b32 s%d, s%d, 0xffff" % (s_ + 1, hi))
        a("s_mov_b32 s%d, %s" % (s_ + 2, hx(n)))
        a("s_mov_b32 s%d, 0x20000" % (s_ + 3))
    a("s_lshl_b32 s79, s21, 8")
    a("s_add_u32 s79, s79, %s" % hx(CNT_OFF))
    a("v_mov_b32 v%d, 0" % 238)
    a("v_mov_b32 v%d, 1" % 239)
    if hf == 0:
        a("s_cmp_lg_u32 s22, 0")
        a("s_cbranch_scc1 %s_noat" % lab)
        a("s_mov_b64 exec, 1")
        a("buffer_atomic_add v%d, v%d, s[12:15], s79 offen sc1" % (239, 238))
        a("s_mov_b64 exec, -1")
        a("%s_noat:" % lab)
    nu = 5 if hf == 0 else 4
    if uload:
        for i5 in range(nu):
            a("s_add_u32 s80, s83, %d" % (i5 * 8 * 65536))
            a("buffer_load_dwordx4 %s, v240, s[12:15], s80 offen sc1" % vr(UR + 4 * i5, 4))
    a("buffer_load_dwordx2 %s, v%d, s[4:7], s72 offen" % (vr(XV, 2), VX0))
    a("buffer_load_dwordx2 %s, v%d, s[4:7], s72 offen" % (vr(XV + 2, 2), VX1))
    a("buffer_load_dwordx2 %s, v%d, s[16:19], s73 offen" % (vr(B2R, 2), VB))
    PT = 88
    for c in ch[4:G1]: c()

    def mm(sbs, acc):
        toks = {}
        def rd(t):
            b = BFR + 8 * (t % 3)
            toks[t] = [a.lds("ds_read_b64_tr_b16 %s, v%d offset:%d" % (vr(b + 4 * k + 2 * i, 2), VT0 + sb, t * 2048 + i * 1024)) for k, sb in enumerate(sbs) for i in range(2)]
        rd(0); rd(1)
        for t in range(18):
            if t + 2 < 18: rd(t + 2)
            b = BFR + 8 * (t % 3)
            for k, sb in enumerate(sbs):
                a.wait(lg=toks[t][2 * k: 2 * k + 2])
                d = acc + 4 * k
                a("v_mfma_f32_16x16x32_bf16 %s, %s, %s, %s" % (vr(d, 4), vr(CA + 4 * t, 4), vr(b + 4 * k, 4), "0" if t == 0 else vr(d, 4)))

    def tail(extra, poll):
        if est: a("s_memrealtime s[56:57]")
        if uload:
            a("s_waitcnt vmcnt(3)")
            for i5 in range(nu):
                a("ds_write_b128 v241, %s offset:%d" % (vr(UR + 4 * i5, 4), 8192 * i5))
        if poll:
            a("s_mov_b64 exec, 1")
            a("s_mov_b32 s81, 200000")
            a("%s_poll:" % lab)
            a("s_sub_u32 s81, s81, 1")
            a("s_cbranch_scc1 %s_pdone" % lab)
            a("buffer_load_dword v239, v238, s[12:15], s79 offen sc1")
            a("s_waitcnt vmcnt(0)")
            a("v_readfirstlane_b32 s80, v239")
            a("s_nop 3")
            a("s_cmp_ge_u32 s80, %d" % NPART)
            a("s_cbranch_scc1 %s_pdone" % lab)
            a("s_sleep %d" % SLP)
            a("s_branch %s_poll" % lab)
            a("%s_pdone:" % lab)
            a("s_mov_b64 exec, -1")
        if uload: a("s_waitcnt lgkmcnt(0)")
        a("s_barrier")
        if est: a("s_memrealtime s[60:61]")
        a.vm = []
        pt = []; pe = []
        for c in range(NPART):
            a("s_add_u32 s80, s76, %s" % hx(c * 64 * 36864))
            pt.append(a.vmem("buffer_load_dwordx4 %s, v%d, s[12:15], s80 offen sc1" % (vr(PT + 4 * c, 4), vLane16)))
        if extra is not None:
            for c in range(NPART):
                a("s_add_u32 s80, s77, %s" % hx(c * 64 * 36864))
                pe.append(a.vmem("buffer_load_dwordx2 %s, v%d, s[12:15], s80 offen sc1" % (vr(PT + 32 + 2 * c, 2), vLane16)))
            a.vmem("buffer_load_dwordx2 %s, v%d, s[4:7], s74 offen" % (vr(XE, 2), VX0))
            xe = a.vmem("buffer_load_dwordx2 %s, v%d, s[16:19], s75 offen" % (vr(B2E, 2), VB))
        for c in ch[G1:]: c()
        mm([0, 1], ACC)
        if extra is not None:
            for c in cinv_gen(a, CA, 69, M_, G_, T, 64): c()
            mm([extra], ACC + 8)
        S_ = 176; TT = 188; B2 = 196
        def psum(c, tok, src, n, dst):
            a.wait(vm=tok)
            for h in range(n):
                d_ = dst + 2 * h if c == 0 else TT + 2 * h
                a("v_lshlrev_b32 v%d, 16, v%d" % (d_, src + h))
                a("v_and_b32 v%d, 0xffff0000, v%d" % (d_ + 1, src + h))
            if c:
                for h in range(n):
                    a("v_pk_add_f32 %s, %s, %s" % (vr(dst + 2 * h, 2), vr(dst + 2 * h, 2), vr(TT + 2 * h, 2)))
        for c in range(NPART):
            psum(c, pt[c], PT + 4 * c, 4, S_)
        for h in range(2):
            a("v_lshlrev_b32 v%d, 16, v%d" % (B2 + 2 * h, B2R + h))
            a("v_and_b32 v%d, 0xffff0000, v%d" % (B2 + 2 * h + 1, B2R + h))
        final_math(a, 4, S_, ACC, XV, B2, TT, T)
        a("buffer_store_dwordx2 %s, v%d, s[8:11], s72 offen" % (vr(T, 2), VX0))
        a("buffer_store_dwordx2 %s, v%d, s[8:11], s72 offen" % (vr(T + 2, 2), VX1))
        if extra is not None:
            a("s_waitcnt vmcnt(2)")
            for c in range(NPART):
                psum(c, None, PT + 32 + 2 * c, 2, S_ + 8)
            for h in range(2):
                a("v_lshlrev_b32 v%d, 16, v%d" % (B2 + 2 * h, B2E + h))
                a("v_and_b32 v%d, 0xffff0000, v%d" % (B2 + 2 * h + 1, B2E + h))
            final_math(a, 2, S_ + 8, ACC + 8, XE, B2, TT, T + 4)
            a("buffer_store_dwordx2 %s, v%d, s[8:11], s74 offen" % (vr(T + 4, 2), VX0))
        if est:
            a("s_memrealtime s[62:63]")
            a("s_waitcnt lgkmcnt(0)")
            for k_, r_ in enumerate((58, 52, 54, 56, 60, 62, 88, 90, 92, 94)):
                a("v_mov_b32 v%d, s%d" % (100 + k_, r_))
            a("s_lshl_b32 s80, s2, 3")
            a("s_add_u32 s80, s80, s22")
            a("s_lshl_b32 s80, s80, 6")
            a("s_add_u32 s80, s80, %s" % hx(STAMP_OFF + 0x600000))
            a("v_mov_b32 v112, 0")
            a("s_mov_b64 exec, 1")
            a("buffer_store_dwordx4 v[100:103], v112, s[12:15], s80 offen")
            a("buffer_store_dwordx4 v[104:107], v112, s[12:15], s80 offen offset:16")
            a("buffer_store_dwordx2 v[108:109], v112, s[12:15], s80 offen offset:32")
        a("s_endpgm")

    if hf == 0:
        a("s_cmp_eq_u32 s22, 2")
        a("s_cbranch_scc1 %s_w2" % lab)
        a("s_cmp_eq_u32 s22, 3")
        a("s_cbranch_scc1 %s_w3" % lab)
        a("s_cmp_eq_u32 s22, 1")
        a("s_cbranch_scc1 %s_plain" % lab)
        tail(None, True)
        a("%s_w2:" % lab)
        tail(0, False)
        a("%s_w3:" % lab)
        tail(1, False)
        a("%s_plain:" % lab)
    tail(None, False)
```

```python
from asmgen import *
from layout import *
from gen_mlp import srd

FFT_LDS = 8192 + 64
MF = "v_mfma_f32_16x16x32_f16"


def fft_body(a, vb, lane, s_col, s_w, lds_base, sws, st, stf="", after_loads=None, sync=None):
    Z = vb
    FO = Z + 32
    F0 = FO + 16
    F1 = F0 + 16
    G = F1 + 16
    W = G + 16
    AC = W + 8
    TW = AC + 24
    TI = TW + 16
    T = TI + 16
    D = Z
    L16, N, Gq, VA, VB_, VST = T + 6, T + 7, T + 8, T + 9, T + 10, T + 11
    S = lambda i: "s%d" % (st + i)
    srdw = "s[%d:%d]" % (sws, sws + 3)
    a("v_lshlrev_b32 v%d, 4, v%d" % (L16, lane))
    a("v_and_b32 v%d, 15, v%d" % (N, lane))
    a("v_lshrrev_b32 v%d, 4, v%d" % (Gq, lane))
    a("s_lshl_b32 %s, s%d, 13" % (S(0), s_col))
    a("s_cmp_eq_u32 s%d, 288" % s_col)
    a("s_cselect_b32 %s, 4096, %s" % (S(0), S(0)))
    a("s_cselect_b32 %s, 1, 0" % S(2))
    a("s_cmp_eq_u32 s%d, 0" % s_col)
    a("s_cselect_b32 %s, 1, %s" % (S(2), S(2)))
    a("s_add_u32 %s, %s, 4096" % (S(1), S(0)))
    a("s_cmp_lg_u32 %s, 0" % S(2))
    a("s_cselect_b32 %s, 0x20000000, %s" % (S(1), S(1)))
    a("s_cselect_b32 %s, 0, 0x800000" % S(11))
    a("s_add_u32 %s, %s, %s" % (S(11), S(11), hx(f32bits(1 / 36.))))
    a("s_add_u32 %s, %s, %s" % (S(2), S(0), hx(ZF_OFF)))
    a("s_add_u32 %s, %s, %s" % (S(3), S(1), hx(ZF_OFF)))
    a("s_lshl_b32 %s, s%d, 13" % (S(4), s_col))
    a("s_lshl_b32 %s, s%d, 11" % (S(5), s_w))
    a("s_add_u32 %s, %s, %s" % (S(4), S(4), S(5)))
    a("s_add_u32 %s, %s, %s" % (S(4), S(4), hx(WT_OFF)))
    a("s_lshl_b32 %s, s%d, 8" % (S(5), s_col))
    a("s_add_u32 %s, %s, %s" % (S(5), S(5), hx(WMAX_OFF)))
    a("v_lshlrev_b32 v%d, 2, v%d" % (VA, lane))
    mt = a.vmem("buffer_load_dword v%d, v%d, %s, %s offen" % (AC, VA, srdw, S(5)))
    a("v_lshlrev_b32 v%d, 5, v%d" % (VA, lane))
    wt = [a.vmem("buffer_load_dwordx4 %s, v%d, %s, %s offen offset:%d" % (vr(W + 4 * i, 4), VA, srdw, S(4), 16 * i)) for i in range(2)]
    zt = {}
    a("s_lshl_b32 %s, s%d, 12" % (S(5), s_w))
    a("s_add_u32 %s, %s, %s" % (S(5), S(5), hx(CONST_OFF)))
    fo = [a.vmem("buffer_load_dwordx4 %s, v%d, %s, %s offen offset:%d" % (vr(FO + 4 * i, 4), L16, srdw, S(5), 1024 * i)) for i in range(4)]
    for ri in range(2):
        for f in range(4):
            zt[(ri, f)] = a.vmem("buffer_load_dwordx4 %s, v%d, %s, %s offen offset:%d" % (vr(Z + 16 * ri + 4 * f, 4), L16, srdw, S(2 + ri), 1024 * f))
    a("s_mov_b32 %s, %s" % (S(5), hx(CONST_OFF + 16384)))
    gt = [a.vmem("buffer_load_dwordx4 %s, v%d, %s, %s offen offset:%d" % (vr(G + 4 * i, 4), L16, srdw, S(5), 1024 * i)) for i in range(4)]
    a("s_lshr_b32 %s, s%d, 1" % (S(6), s_w))
    a("s_lshl_b32 %s, %s, 13" % (S(5), S(6)))
    a("s_add_u32 %s, %s, %s" % (S(5), S(5), hx(CONST_OFF)))
    a("s_add_u32 %s, %s, 4096" % (S(7), S(5)))
    ft = [a.vmem("buffer_load_dwordx4 %s, v%d, %s, %s offen offset:%d" % (vr(F0 + 4 * i, 4), L16, srdw, S(5 + 2 * (i >> 2)), 1024 * (i & 3))) for i in range(8)]
    a("s_lshl_b32 %s, s%d, 4" % (S(8), s_w))
    a("v_add_u32 v%d, %s, v%d" % (T, S(8), N))
    a("v_cvt_f32_u32 v%d, v%d" % (T, T))
    a("v_mul_f32 v%d, %s, v%d" % (T, hx(f32bits(1 / 2048.)), T))
    a("v_lshlrev_b32 v%d, 2, v%d" % (T + 1, Gq))
    a("v_cvt_f32_u32 v%d, v%d" % (T + 1, T + 1))
    def twiddles(fa, fb):
        pass
    for e in range(8):
        a("v_add_f32 v%d, %s, v%d" % (T + 2 + (e & 1), hx(f32bits(float(16 * (e >> 2) + (e & 3)))), T + 1))
        a("v_mul_f32 v%d, v%d, v%d" % (T + 2 + (e & 1), T, T + 2 + (e & 1)))
        a("v_cos_f32 v%d, v%d" % (TW + 2 * e, T + 2 + (e & 1)))
        a("v_sin_f32 v%d, v%d" % (TW + 2 * e + 1, T + 2 + (e & 1)))
    X = T
    a("s_lshl_b32 %s, s%d, 4" % (S(8), s_w))
    a("v_lshl_add_u32 v%d, v%d, 2, %s" % (X, Gq, S(8)))
    a("v_cvt_f32_u32 v%d, v%d" % (X, X))
    a("v_cvt_f32_u32 v%d, v%d" % (X + 1, N))
    a("v_mul_f32 v%d, %s, v%d" % (X + 1, hx(f32bits(1 / 2048.)), X + 1))
    a("v_add_f32 v%d, %s, v%d" % (X + 2, hx(f32bits(16 / 2048.)), X + 1))
    for e in range(8):
        a("v_add_f32 v%d, %s, v%d" % (X + 3, hx(f32bits(float(e & 3))), X))
        a("v_mul_f32 v%d, v%d, v%d" % (X + 3, X + 3, X + 1 + (e >> 2)))
        a("v_cos_f32 v%d, v%d" % (TI + 2 * e, X + 3))
        a("v_sin_f32 v%d, v%d" % (TI + 2 * e + 1, X + 3))
    if after_loads: after_loads()
    a.wait(vm=mt)
    M = T + 2
    a("v_max_u32_dpp v%d, v%d, v%d row_ror:8 row_mask:0xf bank_mask:0xf" % (M, AC, AC))
    for sh in (4, 2, 1):
        a("v_max_u32_dpp v%d, v%d, v%d row_ror:%d row_mask:0xf bank_mask:0xf" % (M, M, M, sh))
    for i in range(4):
        a("v_readlane_b32 %s, v%d, %d" % (S(8 + (i & 1)) if i < 2 else S(10), M, 16 * i))
        if i >= 1:
            a("s_max_u32 %s, %s, %s" % (S(8), S(8), S(9) if i == 1 else S(10)))
    a("v_mov_b32 v%d, %s" % (M, S(8)))
    a("v_lshrrev_b32 v%d, 23, v%d" % (M, M))
    a("v_med3_u32 v%d, v%d, 1, v%d" % (M, M, VA)) if False else None
    a("v_max_u32 v%d, 1, v%d" % (M, M))
    a("v_min_u32 v%d, 252, v%d" % (M, M))
    WS_, FS = T + 4, T + 5
    a("v_sub_u32 v%d, 253, v%d" % (WS_, M))
    a("v_lshlrev_b32 v%d, 23, v%d" % (WS_, WS_))
    a("v_add_u32 v%d, 1, v%d" % (FS, M))
    a("v_lshlrev_b32 v%d, 23, v%d" % (FS, FS))
    a("v_mul_f32 v%d, %s, v%d" % (FS, S(11), FS))
    Zr = lambda mb, t: vr(Z + 4 * (2 * mb + t), 4)
    Zi = lambda mb, t: vr(Z + 16 + 4 * (2 * mb + t), 4)
    C = lambda b, t: vr(b + 4 * t, 4)
    Sn = lambda b, t: vr(b + 8 + 4 * t, 4)
    acc = lambda i, m: AC + 8 * i + 4 * m
    def mf(d, A, B, first):
        a("%s %s, %s, %s, %s" % (MF, vr(d, 4), A, B, "0" if first else vr(d, 4)))
    a.wait(vm=fo)
    for t in range(2):
        for mb in range(2):
            a.wait(vm=zt[(0, 2 * mb + t)])
            mf(acc(0, mb), Zr(mb, t), C(FO, t), t == 0)
            mf(acc(2, mb), Zr(mb, t), Sn(FO, t), t == 0)
    for t in range(2):
        for mb in range(2):
            a.wait(vm=zt[(1, 2 * mb + t)])
            mf(acc(0, mb), Zi(mb, t), Sn(FO, t), False)
            mf(acc(1, mb), Zi(mb, t), C(FO, t), t == 0)
    X = T
    def cmul_store(e, re, im, c, s, sign, outr, outi):
        a("v_mul_f32 v%d, v%d, v%d" % (outr, re, c))
        a("v_mul_f32 v%d, v%d, v%d" % (outi, im, c))
        a("v_fma_f32 v%d, %sv%d, v%d, v%d" % (outr, "-" if sign > 0 else "", im, s, outr))
        a("v_fma_f32 v%d, %sv%d, v%d, v%d" % (outi, "" if sign > 0 else "-", re, s, outi))
    R_, I_ = D + 8, D + 16
    for e in range(8):
        re, p3, p2 = AC + e, AC + 8 + e, AC + 16 + e
        a("v_sub_f32 v%d, v%d, v%d" % (p3, p3, p2))
    for e in range(8):
        cmul_store(e, AC + e, AC + 8 + e, TW + 2 * e, TW + 2 * e + 1, -1, R_ + e, I_ + e)
    for h in range(4):
        a("v_cvt_pk_f16_f32 v%d, v%d, v%d" % (D + h, R_ + 2 * h, R_ + 2 * h + 1))
        a("v_cvt_pk_f16_f32 v%d, v%d, v%d" % (D + 4 + h, I_ + 2 * h, I_ + 2 * h + 1))
    Dr, Di = vr(D, 4), vr(D + 4, 4)
    C32 = lambda b: vr(G + 8 * b, 4)
    S32 = lambda b: vr(G + 8 * b + 4, 4)
    a.wait(vm=gt)
    for b in range(2):
        mf(acc(0, b), C32(b), Dr, True)
        mf(acc(1, b), C32(b), Di, True)
        mf(acc(2, b), S32(b), Dr, True)
    for b in range(2):
        mf(acc(0, b), S32(b), Di, False)
    a.wait(vm=wt)
    for e in range(8):
        a("v_sub_f32 v%d, v%d, v%d" % (AC + 8 + e, AC + 8 + e, AC + 16 + e))
        a("v_lshlrev_b32 v%d, 16, v%d" % (X, W + e))
        a("v_and_b32 v%d, 0xffff0000, v%d" % (X + 1, W + e))
        a("v_mul_f32 v%d, v%d, v%d" % (X, X, WS_))
        a("v_mul_f32 v%d, v%d, v%d" % (X + 1, X + 1, WS_))
        cmul_store(e, AC + e, AC + 8 + e, X, X + 1, +1, R_ + e, I_ + e)
    for h in range(4):
        a("v_cvt_pk_f16_f32 v%d, v%d, v%d" % (D + h, R_ + 2 * h, R_ + 2 * h + 1))
        a("v_cvt_pk_f16_f32 v%d, v%d, v%d" % (D + 4 + h, I_ + 2 * h, I_ + 2 * h + 1))
    for b in range(2):
        mf(acc(0, b), Di, C32(b), True)
        mf(acc(1, b), Dr, C32(b), True)
        mf(acc(2, b), Di, S32(b), True)
    for b in range(2):
        mf(acc(0, b), Dr, S32(b), False)
    a("s_lshr_b32 %s, s%d, 1" % (S(8), s_w))
    a("s_lshl_b32 %s, %s, 10" % (S(8), S(8)))
    a("s_and_b32 %s, s%d, 1" % (S(9), s_w))
    a("s_lshl_b32 %s, %s, 3" % (S(10), S(9)))
    a("s_add_u32 %s, %s, %s" % (S(8), S(8), S(10)))
    a("s_add_u32 %s, %s, s%d" % (S(8), S(8), lds_base))
    a("v_add_u32 v%d, %s, v%d" % (VA, S(8), L16))
    a("s_lshl_b32 %s, %s, 11" % (S(10), S(9)))
    a("s_add_u32 %s, %s, s%d" % (S(10), S(10), lds_base))
    a("v_add_u32 v%d, %s, v%d" % (VB_, S(10), L16))
    a("v_lshlrev_b32 v%d, 7, v%d" % (VST, N))
    a("v_lshl_add_u32 v%d, v%d, 4, v%d" % (VST, Gq, VST))
    a("s_lshl_b32 %s, %s, 11" % (S(9), S(9)))
    a("s_lshl_b32 %s, %s, 6" % (S(10), S(6)))
    a("s_add_u32 %s, %s, %s" % (S(9), S(9), S(10)))
    a("s_add_u32 %s, %s, %s" % (S(9), S(9), hx(UT_OFF)))
    a("s_add_u32 %s, %s, %s" % (S(0), S(0), S(9)))
    a("s_add_u32 %s, %s, %s" % (S(1), S(1), S(9)))
    for e in range(8):
        a("v_sub_f32 v%d, v%d, v%d" % (AC + 8 + e, AC + 8 + e, AC + 16 + e))
    for e in range(8):
        cmul_store(e, AC + 8 + e, AC + e, TI + 2 * e, TI + 2 * e + 1, +1, R_ + e, I_ + e)
    for h in range(4):
        a("v_cvt_pk_f16_f32 v%d, v%d, v%d" % (D + h, R_ + 2 * h, R_ + 2 * h + 1))
        a("v_cvt_pk_f16_f32 v%d, v%d, v%d" % (D + 4 + h, I_ + 2 * h, I_ + 2 * h + 1))
    ww = []
    for ri in range(2):
        for nb in range(2):
            ww.append(a.lds("ds_write_b64 v%d, %s offset:%d" % (VA, vr(D + 4 * ri + 2 * nb, 2), (ri * 2 + nb) * 2048)))
    a.wait(lg=ww)
    if sync: sync(1)
    else: a("s_barrier")
    V = D + 8
    vt = {}
    for t in range(2):
        for ri in range(2):
            vt[(ri, t)] = a.lds("ds_read_b128 %s, v%d offset:%d" % (vr(V + 8 * ri + 4 * t, 4), VB_, ri * 4096 + t * 1024))
    Vr = lambda t: vr(V + 4 * t, 4)
    Vi = lambda t: vr(V + 8 + 4 * t, 4)
    a.wait(vm=ft)
    for t in range(2):
        a.wait(lg=vt[(0, t)])
        for m, Fb in enumerate((F0, F1)):
            mf(acc(1, m), C(Fb, t), Vr(t), t == 0)
            mf(acc(0, m), Sn(Fb, t), Vr(t), t == 0)
        a.wait(lg=vt[(1, t)])
        for m, Fb in enumerate((F0, F1)):
            mf(acc(2, m), Sn(Fb, t), Vi(t), t == 0)
            mf(acc(0, m), C(Fb, t), Vi(t), False)
    for e in range(8):
        a("v_sub_f32 v%d, v%d, v%d" % (AC + 8 + e, AC + 8 + e, AC + 16 + e))
    for e in range(8):
        a("v_mul_f32 v%d, v%d, v%d" % (AC + 8 + e, AC + 8 + e, FS))
        a("v_mul_f32 v%d, v%d, v%d" % (AC + e, AC + e, FS))
    for h in range(4):
        a("v_cvt_pk_bf16_f32 v%d, v%d, v%d" % (D + h, AC + 8 + 2 * h, AC + 9 + 2 * h))
        a("v_cvt_pk_bf16_f32 v%d, v%d, v%d" % (D + 4 + h, AC + 2 * h, AC + 1 + 2 * h))
    a.vmem("buffer_store_dwordx4 %s, v%d, %s, %s offen%s" % (vr(D, 4), VST, srdw, S(0), stf))
    a.vmem("buffer_store_dwordx4 %s, v%d, %s, %s offen%s" % (vr(D + 4, 4), VST, srdw, S(1), stf))
    return T + 12


def gen_fft(name):
    a = Asm()
    a("s_cmp_ge_u32 s2, 289")
    a("s_cbranch_scc1 %s_end" % name)
    a("s_load_dwordx2 s[46:47], s[0:1], 80")
    a("v_lshrrev_b32 v1, 6, v0")
    a("v_and_b32 v2, 63, v0")
    a("v_readfirstlane_b32 s22, v1")
    a("s_mov_b32 s23, 0")
    a("s_waitcnt lgkmcnt(0)")
    srd(a, 12, 46, 47, WS_BYTES)
    nv = fft_body(a, 4, 2, 2, 22, 23, 12, 24)
    a("%s_end:" % name)
    a("s_endpgm")
    n = a.fix_hazards()
    print("fft: nops", n, "vgprs", nv, "lines", len(a.lines))
    return kernel_header(name) + a.text() + kernel_desc(name, nv, 64), FFT_LDS
```

```python
from asmgen import *
from layout import *
from gen_mlp import srd

MAGIC576 = 7456541
for n_ in list(range(0, 170000, 1)):
    assert (n_ * MAGIC576) >> 32 == n_ // 576
K1_LDS = 36864 + 12288 + 32768


def mod576(a, dst, src, tmp, smagic, s576):
    a("v_mul_hi_u32 v%d, v%d, s%d" % (tmp, src, smagic))
    a("v_mul_u32_u24 v%d, s%d, v%d" % (tmp, s576, tmp))
    a("v_sub_u32 v%d, v%d, v%d" % (dst, src, tmp))


TILE_LDS = 49152


def tile_issue(a, s_tile, lane, vt, sw1, sw2, s0):
    S = lambda i: "s%d" % (s0 + i)
    lab = a.label(); lab2 = a.label()
    a("v_lshrrev_b32 v%d, 3, v%d" % (vt, lane))
    a("v_and_b32 v%d, 6, v%d" % (vt + 1, vt))
    a("v_xor_b32 v%d, v%d, v%d" % (vt + 1, vt + 1, lane))
    a("v_and_b32 v%d, 7, v%d" % (vt + 1, vt + 1))
    a("v_lshlrev_b32 v%d, 4, v%d" % (vt + 1, vt + 1))
    a("s_lshl_b32 %s, s22, 12" % S(3))
    a("s_add_u32 %s, %s, %d" % (S(3), S(3), TILE_LDS))
    a("s_cmp_ge_u32 s%d, 1296" % s_tile)
    a("s_cbranch_scc1 %s" % lab)
    a("s_mul_i32 %s, s%d, 3641" % (S(0), s_tile))
    a("s_lshr_b32 %s, %s, 16" % (S(0), S(0)))
    a("s_mul_i32 %s, %s, 18" % (S(1), S(0)))
    a("s_sub_u32 %s, s%d, %s" % (S(1), s_tile, S(1)))
    a("s_mul_i32 %s, %s, %d" % (S(4), S(0), 4 * 18432))
    a("s_lshl_b32 %s, %s, 10" % (S(5), S(1)))
    a("s_add_u32 %s, %s, %s" % (S(4), S(4), S(5)))
    a("s_add_u32 %s, %s, %s" % (S(4), S(4), hx(W1T_OFF)))
    a("s_mul_i32 %s, %s, %d" % (S(1), S(1), 32 * 9216))
    a("s_lshl_b32 %s, %s, 7" % (S(0), S(0)))
    a("s_add_u32 %s, %s, %s" % (S(0), S(0), S(1)))
    a("s_movk_i32 %s, 9216" % S(1))
    a("v_mad_u32_u24 v%d, v%d, %s, v%d" % (vt, vt, S(1), vt + 1))
    for k in range(4):
        a("s_add_u32 m0, %s, %d" % (S(3), 1024 * k))
        a("s_add_u32 %s, %s, %d" % (S(2), S(0), 8 * 9216 * k))
        a("buffer_load_dwordx4 v%d, s[%d:%d], %s offen lds" % (vt, sw1, sw1 + 3, S(2)))
    a("s_branch %s" % lab2)
    a("%s:" % lab)
    a("s_sub_u32 %s, s%d, 1296" % (S(2), s_tile))
    a("s_mul_i32 %s, %s, 7282" % (S(0), S(2)))
    a("s_lshr_b32 %s, %s, 16" % (S(0), S(0)))
    a("s_mul_i32 %s, %s, 9" % (S(1), S(0)))
    a("s_sub_u32 %s, %s, %s" % (S(1), S(2), S(1)))
    a("s_mul_i32 %s, %s, 3641" % (S(2), S(0)))
    a("s_lshr_b32 %s, %s, 16" % (S(2), S(2)))
    a("s_mul_i32 %s, %s, %d" % (S(4), S(2), 36 * 18432 - 18 * 1024))
    a("s_lshl_b32 %s, %s, 10" % (S(5), S(0)))
    a("s_add_u32 %s, %s, %s" % (S(4), S(4), S(5)))
    a("s_mul_i32 %s, %s, %d" % (S(5), S(1), 4 * 18432))
    a("s_add_u32 %s, %s, %s" % (S(4), S(4), S(5)))
    a("s_add_u32 %s, %s, %s" % (S(4), S(4), hx(W2T_OFF)))
    a("s_mul_i32 %s, %s, %d" % (S(0), S(0), 32 * 1152))
    a("s_lshl_b32 %s, %s, 7" % (S(1), S(1)))
    a("s_add_u32 %s, %s, %s" % (S(0), S(0), S(1)))
    a("s_movk_i32 %s, 1152" % S(1))
    a("v_mad_u32_u24 v%d, v%d, %s, v%d" % (vt, vt, S(1), vt + 1))
    for k in range(4):
        a("s_add_u32 m0, %s, %d" % (S(3), 1024 * k))
        a("s_add_u32 %s, %s, %d" % (S(2), S(0), 8 * 1152 * k))
        a("buffer_load_dwordx4 v%d, s[%d:%d], %s offen lds" % (vt, sw2, sw2 + 3, S(2)))
    a("%s:" % lab2)
    toks = [object() for _ in range(4)]
    a.vm.extend(toks)
    return toks


def tile_finish(a, toks, lane, vr0, vt, s0, stf=""):
    S = lambda i: "s%d" % (s0 + i)
    a("v_bfe_u32 v%d, v%d, 2, 4" % (vt, lane))
    a("v_bfe_u32 v%d, v%d, 1, 2" % (vt + 1, vt))
    a("v_lshlrev_b32 v%d, 5, v%d" % (vt + 1, vt + 1))
    a("v_lshl_add_u32 v%d, v%d, 7, v%d" % (vt, vt, vt + 1))
    a("v_and_b32 v%d, 3, v%d" % (vt + 1, lane))
    a("v_lshl_add_u32 v%d, v%d, 3, v%d" % (vt, vt + 1, vt))
    a("v_add_u32 v%d, %s, v%d" % (vt, S(3), vt))
    a.wait(vm=toks)
    rt = []
    for b in range(4):
        if b: a("v_xor_b32 v%d, %d, v%d" % (vt, (b ^ (b - 1)) * 32, vt))
        rt.append([a.lds("ds_read_b64_tr_b16 %s, v%d offset:%d" % (vr(vr0 + 4 * b + 2 * i, 2), vt, 2048 * i)) for i in range(2)])
    a("v_lshlrev_b32 v%d, 4, v%d" % (vt + 1, lane))
    for b in range(4):
        a.wait(lg=rt[b])
        if b: a("s_add_u32 %s, %s, 18432" % (S(4), S(4)))
        a.vmem("buffer_store_dwordx4 %s, v%d, s[12:15], %s offen%s" % (vr(vr0 + 4 * b, 4), vt + 1, S(4), stf))


def gen_k1(name, stamps=False, stf=""):
    a = Asm()
    INV576 = hx(f32bits(1.0 / 576.0))
    a("s_cmp_ge_u32 s2, 256")
    a("s_cbranch_scc1 %s_end" % name)
    a("s_load_dwordx4 s[40:43], s[0:1], 0")
    a("s_load_dwordx2 s[44:45], s[0:1], 16")
    a("s_load_dwordx4 s[56:59], s[0:1], 32")
    a("s_load_dwordx2 s[60:61], s[0:1], 48")
    a("s_load_dwordx2 s[46:47], s[0:1], 80")
    a("v_lshrrev_b32 v1, 6, v0")
    a("v_and_b32 v2, 63, v0")
    a("v_readfirstlane_b32 s22, v1")
    a("s_mov_b32 s50, %d" % MAGIC576)
    a("s_movk_i32 s51, 576")
    a("s_mov_b32 s52, %s" % INV576)
    a("s_lshl_b32 s62, s2, 3")
    a("s_add_u32 s62, s62, s22")
    a("s_cmp_ge_u32 s2, 192")
    a("s_cbranch_scc1 %s_prep" % name)
    a("s_and_b32 s20, s2, 7")
    a("s_lshr_b32 s21, s2, 3")
    a("s_mul_i32 s23, s21, 43")
    a("s_lshr_b32 s23, s23, 7")
    a("s_mul_i32 s24, s23, 3")
    a("s_sub_u32 s24, s21, s24")
    a("s_lshl_b32 s23, s23, 3")
    a("s_add_u32 s23, s23, s20")
    a("s_lshr_b32 s25, s23, 1")
    a("s_and_b32 s26, s23, 1")
    a("v_lshrrev_b32 v3, 4, v2")
    a("v_and_b32 v4, 15, v2")
    a("s_lshl_b32 s27, s22, 2")
    a("v_add_u32 v5, s27, v3")
    a("s_mov_b32 s28, %d" % (32 * 1152))
    a("v_mul_lo_u32 v6, v5, s28")
    a("v_lshl_add_u32 v6, v4, 3, v6")
    a("s_lshl_b32 s29, s26, 10")
    a("s_add_u32 s29, s29, s25")
    a("s_mul_i32 s29, s29, 1152")
    a("s_waitcnt lgkmcnt(0)")
    srd(a, 4, 40, 41, 2048 * 1152)
    srd(a, 12, 46, 47, WS_BYTES)
    srd(a, 64, 56, 57, 576 * 9216)
    srd(a, 68, 60, 61, 4608 * 1152)
    XR = 8
    xt = []
    for j in range(9):
        xt.append(a.vmem("buffer_load_dwordx2 %s, v6, s[4:7], s29 offen offset:%d" % (vr(XR + 2 * j, 2), j * 128)))
    ttk = tile_issue(a, 62, 2, 90, 64, 68, 72)
    CF = [100, 172]
    U0 = 28
    def gen_cf(blk_s, base):
        a("s_lshl_b32 s30, s%d, 4" % blk_s)
        a("v_add_u32 v40, s30, v4")
        a("v_lshrrev_b32 v41, 1, v40")
        a("v_and_b32 v42, 1, v40")
        a("v_cmp_eq_u32 vcc, 1, v40")
        a("v_mov_b32 v43, 288")
        a("v_mov_b32 v44, 0")
        a("v_cndmask_b32 v41, v41, v43, vcc")
        a("v_cndmask_b32 v42, v42, v44, vcc")
        a("v_cvt_f32_u32 v42, v42")
        a("v_mul_f32 v42, 0.25, v42") if False else a("v_mul_f32 v42, %s, v42" % hx(f32bits(0.25)))
        a("v_lshlrev_b32 v43, 5, v41")
        mod576(a, 43, 43, 44, 50, 51)
        a("v_cvt_f32_u32 v43, v43")
        a("v_mul_f32 v%d, s52, v43" % (U0 + 8))
        a("v_lshlrev_b32 v45, 2, v3")
        for e in range(8):
            d0 = 16 * (e >> 2) + (e & 3)
            a("v_add_u32 v43, %d, v45" % d0)
            a("v_mul_u32_u24 v43, v43, v41")
            mod576(a, 43, 43, 44, 50, 51)
            a("v_cvt_f32_u32 v43, v43")
            a("v_fma_f32 v%d, v43, s52, v42" % (U0 + e))
        a("v_and_b32 v46, 1, v41")
        a("v_mul_u32_u24 v46, 0x8000, v46")
        a("v_lshl_or_b32 v%d, v46, 16, v46" % (U0 + 10))
        a("v_and_b32 v43, 1, v40")
        a("v_and_b32 v44, 3, v41")
        a("v_lshlrev_b32 v43, 2, v43")
        a("v_add_u32 v43, v43, v44")
        a("v_lshrrev_b32 v43, v43, %s" % "v47") if False else None
        a("v_mov_b32 v47, 0x6c")
        a("v_lshrrev_b32 v43, v43, v47")
        a("v_and_b32 v43, 1, v43")
        a("v_mul_u32_u24 v43, 0x8000, v43")
        a("v_lshl_or_b32 v%d, v43, 16, v43" % (U0 + 9))
        T = 40
        for t in range(5):
            ne = 8 if t < 4 else 4
            for e in range(ne):
                if t:
                    a("v_fmamk_f32 v%d, v%d, %s, v%d" % (T + 8 + e, U0 + 8, hx(f32bits(float(t))), U0 + e))
            for e in range(ne):
                a("v_cos_f32 v%d, v%d" % (T + e, T + 8 + e if t else U0 + e))
            for h in range(ne // 2):
                a("v_cvt_pk_f16_f32 v%d, v%d, v%d" % (base + 4 * t + h, T + 2 * h, T + 2 * h + 1))
        for r in range(18):
            a("v_xor_b32_dpp v%d, v%d, v%d quad_perm:[0,1,3,2] row_mask:0xf bank_mask:0xf" % (base + 18 + r, base + r, U0 + 9))
        for r in range(36):
            a("v_xor_b32 v%d, v%d, v%d" % (base + 36 + r, U0 + 10, base + r))
    a("s_mul_i32 s31, s24, 12")
    a("s_add_u32 s31, s31, s22")
    gen_cf(31, CF[0])
    a("s_cmp_ge_u32 s22, 4")
    a("s_cbranch_scc1 %s_noB" % name)
    a("s_add_u32 s32, s31, 8")
    gen_cf(32, CF[1])
    a("%s_noB:" % name)
    XF = 40
    a.wait(vm=xt)
    for i in range(18):
        a("v_lshlrev_b32 v%d, 16, v%d" % (XF + 2 * i, XR + i))
        a("v_and_b32 v%d, 0xffff0000, v%d" % (XF + 2 * i + 1, XR + i))
    A0 = 28
    a("v_pk_add_f32 %s, %s, %s" % (vr(A0, 2), vr(XF, 2), vr(XF + 2, 2)))
    a("v_pk_add_f32 %s, %s, %s" % (vr(A0 + 2, 2), vr(XF + 4, 2), vr(XF + 6, 2)))
    for i in range(4, 18):
        d = A0 + 2 * (i & 1)
        a("v_pk_add_f32 %s, %s, %s" % (vr(d, 2), vr(d, 2), vr(XF + 2 * i, 2)))
    a("v_pk_add_f32 %s, %s, %s" % (vr(A0, 2), vr(A0, 2), vr(A0 + 2, 2)))
    a("v_add_f32 v%d, v%d, v%d" % (A0, A0, A0 + 1))
    def rowsum(r):
        for sh in (8, 4, 2, 1):
            a("v_add_f32_dpp v%d, v%d, v%d row_ror:%d row_mask:0xf bank_mask:0xf" % (r, r, r, sh))
    rowsum(A0)
    a("v_mul_f32 v%d, s52, v%d" % (A0, A0))
    a("v_sub_f32 v%d, 0, v%d" % (A0 + 2, A0))
    a("v_sub_f32 v%d, 0, v%d" % (A0 + 3, A0))
    a("v_cvt_pk_bf16_f32 v%d, v%d, v%d" % (A0 + 1, A0 + 2, A0 + 2))
    a("v_lshlrev_b32 v%d, 16, v%d" % (A0 + 4, A0 + 1))
    a("v_lshlrev_b32 v%d, 16, v%d" % (A0 + 5, A0 + 1))
    a("v_mov_b32 v%d, 0" % (A0 + 6)); a("v_mov_b32 v%d, 0" % (A0 + 7))
    a("v_mov_b32 v%d, 0" % (A0 + 8)); a("v_mov_b32 v%d, 0" % (A0 + 9))
    TT = 76
    for i in range(18):
        t = TT + 2 * (i & 3)
        d = A0 + 6 + 2 * (i & 1)
        a("v_pk_add_f32 %s, %s, %s" % (vr(t, 2), vr(XF + 2 * i, 2), vr(A0 + 2, 2)))
        a("v_pk_fma_f32 %s, %s, %s, %s" % (vr(d, 2), vr(t, 2), vr(t, 2), vr(d, 2)))
    a("v_pk_add_f32 %s, %s, %s" % (vr(A0 + 6, 2), vr(A0 + 6, 2), vr(A0 + 8, 2)))
    a("v_add_f32 v%d, v%d, v%d" % (A0 + 6, A0 + 6, A0 + 7))
    rowsum(A0 + 6)
    V = A0 + 6
    a("v_mul_f32 v%d, s52, v%d" % (V, V))
    a("v_cvt_pk_bf16_f32 v%d, v%d, v%d" % (V, V, V))
    a("v_lshlrev_b32 v%d, 16, v%d" % (V, V))
    a("v_add_f32 v%d, %s, v%d" % (V, hx(f32bits(1e-5)), V))
    a("v_cvt_pk_bf16_f32 v%d, v%d, v%d" % (V, V, V))
    a("v_lshlrev_b32 v%d, 16, v%d" % (V, V))
    a("v_sqrt_f32 v%d, v%d" % (V, V))
    a("v_cvt_pk_bf16_f32 v%d, v%d, v%d" % (V, V, V))
    a("v_lshlrev_b32 v%d, 16, v%d" % (V, V))
    a("v_rcp_f32 v%d, v%d" % (V, V))
    a("v_mov_b32 v%d, v%d" % (V + 1, V))
    a("v_and_b32 v84, 3, v4")
    a("v_lshrrev_b32 v85, 3, v4")
    a("v_lshl_add_u32 v86, v85, 2, v84")
    a("v_and_b32 v87, 15, v5")
    a("v_xor_b32 v86, v86, v87")
    a("v_lshl_add_u32 v86, v84, 4, v86")
    a("v_lshl_add_u32 v86, v85, 6, v86")
    a("v_lshrrev_b32 v87, 4, v5")
    a("v_mul_u32_u24 v87, %d, v87" % (18 * 64))
    a("v_add_u32 v86, v86, v87")
    a("v_lshlrev_b32 v86, 4, v86")
    a("v_bfe_u32 v87, v4, 2, 1")
    a("v_lshl_add_u32 v86, v87, 3, v86")
    a("v_bfe_u32 v88, v5, 2, 1")
    a("v_lshlrev_b32 v88, 3, v88")
    a("v_bfe_u32 v89, v5, 4, 1")
    a("v_lshl_add_u32 v88, v89, 2, v88")
    a("v_and_b32 v89, 3, v5")
    a("v_add_u32 v88, v88, v89")
    a("v_lshl_add_u32 v88, v84, 4, v88")
    a("v_lshl_add_u32 v88, v85, 6, v88")
    a("v_bfe_u32 v89, v5, 3, 1")
    a("v_mul_u32_u24 v89, %d, v89" % (6 * 64))
    a("v_add_u32 v88, v88, v89")
    a("v_lshlrev_b32 v88, 4, v88")
    a("v_bfe_u32 v89, v4, 2, 1")
    a("v_lshl_add_u32 v88, v89, 3, v88")
    a("v_add_u32 v88, 36864, v88")
    for j in range(9):
        for i in (2 * j, 2 * j + 1):
            x = XF + 2 * i
            a("v_pk_add_f32 %s, %s, %s" % (vr(x, 2), vr(x, 2), vr(A0 + 4, 2)))
        for i in (2 * j, 2 * j + 1):
            x = XF + 2 * i
            a("v_cvt_pk_bf16_f32 v%d, v%d, v%d" % (XR + i, x, x + 1))
        for i in (2 * j, 2 * j + 1):
            x = XF + 2 * i
            a("v_lshlrev_b32 v%d, 16, v%d" % (x, XR + i))
            a("v_and_b32 v%d, 0xffff0000, v%d" % (x + 1, XR + i))
        for i in (2 * j, 2 * j + 1):
            x = XF + 2 * i
            a("v_pk_mul_f32 %s, %s, %s" % (vr(x, 2), vr(x, 2), vr(V, 2)))
        for i in (2 * j, 2 * j + 1):
            x = XF + 2 * i
            a("v_cvt_pk_bf16_f32 v%d, v%d, v%d" % (XR + i, x, x + 1))
        for i in (2 * j, 2 * j + 1):
            x = XF + 2 * i
            a("v_lshlrev_b32 v%d, 16, v%d" % (x, XR + i))
            a("v_and_b32 v%d, 0xffff0000, v%d" % (x + 1, XR + i))
        x = XF + 4 * j
        a("v_cvt_pk_f16_f32 v%d, v%d, v%d" % (x, x, x + 1))
        a("v_cvt_pk_f16_f32 v%d, v%d, v%d" % (x + 1, x + 2, x + 3))
        a.lds("ds_write_b64 v86, %s offset:%d" % (vr(x, 2), j * 2048))
    for nt in range(3):
        a("s_cmp_lg_u32 s24, %d" % nt)
        a("s_cbranch_scc1 %s_x%d" % (name, nt))
        for jl in range(3):
            a("ds_write_b64 v88, %s offset:%d" % (vr(XR + 2 * (3 * nt + jl), 2), jl * 2048))
        a("%s_x%d:" % (name, nt))
    a.wait_all(vm=False, lg=True)
    tile_finish(a, ttk, 2, 40, 90, 72, stf)
    a("s_cmp_lt_u32 s2, 188")
    a("s_cbranch_scc1 %s_no2" % name)
    a("s_add_u32 s62, s62, %d" % (2048 - 188 * 8))
    a("s_waitcnt lgkmcnt(0)")
    vm0 = list(a.vm)
    tile_finish(a, tile_issue(a, 62, 2, 90, 64, 68, 72), 2, 40, 90, 72, stf)
    a("%s_no2:" % name)
    a.vm = [object() for _ in range(8)]; a.lg = []
    a("v_xor_b32 v84, v3, v4")
    a("v_lshl_add_u32 v85, v3, 4, v84")
    a("v_lshlrev_b32 v85, 4, v85")
    a("v_xor_b32 v84, 4, v84")
    a("v_lshl_add_u32 v86, v3, 4, v84")
    a("v_lshlrev_b32 v86, 4, v86")
    a("v_lshlrev_b32 v87, 12, v4")
    a("v_lshl_add_u32 v87, v3, 8, v87")
    a("s_lshr_b32 s33, s25, 4")
    a("s_lshl_b32 s33, s33, 1")
    a("s_add_u32 s33, s33, s26")
    a("s_lshl_b32 s33, s33, 6")
    a("s_and_b32 s34, s25, 15")
    a("s_add_u32 s33, s33, s34")
    a("s_lshl_b32 s33, s33, 4")
    a("s_add_u32 s33, s33, %s" % hx(ZF_OFF))
    a("s_lshl_b32 s34, s31, 16")
    a("s_add_u32 s33, s33, s34")
    a.wait_all(vm=False, lg=True)
    a("s_barrier")
    AF = 40
    ACC = 8

    def mm(nblk):
        toks = {}
        def rd(t):
            af = AF + 8 * (t % 3)
            toks[t] = [a.lds("ds_read_b128 %s, v%d offset:%d" % (vr(af + 4 * mb, 4), 85 + (t & 1), (mb * 18 + t) * 1024)) for mb in range(2)]
        rd(0); rd(1)
        for t in range(18):
            if t + 2 < 18: rd(t + 2)
            af = AF + 8 * (t % 3)
            for mb in range(2):
                a.wait(lg=toks[t][mb])
                for bl in range(nblk):
                    d = ACC + 8 * bl + 4 * mb
                    a("v_mfma_f32_16x16x32_f16 %s, %s, %s, %s" % (vr(d, 4), vr(af + 4 * mb, 4), vr(CF[bl] + 4 * t, 4), "0" if t == 0 else vr(d, 4)))
        for bl in range(nblk):
            d = ACC + 8 * bl
            for i in range(8):
                a("v_mul_f32 v%d, %s, v%d" % (d + i, hx(f32bits(2.0 ** -5)), d + i))
            for h in range(4):
                a("v_cvt_pk_f16_f32 v%d, v%d, v%d" % (64 + 4 * bl + h, d + 2 * h, d + 2 * h + 1))
            if bl:
                a("s_add_u32 s33, s33, %d" % (8 << 16))
            a("buffer_store_dwordx4 %s, v87, s[12:15], s33 offen" % vr(64 + 4 * bl, 4))
    a("s_cmp_ge_u32 s22, 4")
    a("s_cbranch_scc1 %s_mm1" % name)
    mm(2)
    a("s_endpgm")
    a("%s_mm1:" % name)
    a("s_sub_u32 s34, s22, 4")
    a("s_mul_i32 s34, s34, 3072")
    a("v_lshlrev_b32 v88, 4, v2")
    a("v_add_u32 v89, s34, v88")
    ct = [a.lds("ds_read_b128 %s, v89 offset:%d" % (vr(172 + 4 * i, 4), 36864 + 1024 * i)) for i in range(3)]
    a("s_mul_i32 s35, s23, 36864")
    a("s_mul_i32 s36, s24, 6144")
    a("s_add_u32 s35, s35, s36")
    a("s_add_u32 s35, s35, s34")
    a("s_cmp_ge_u32 s22, 6")
    a("s_cselect_b32 s36, %d, 0" % (18432 - 6144))
    a("s_add_u32 s35, s35, s36")
    a("s_add_u32 s35, s35, %s" % hx(XNF_OFF))
    for i in range(3):
        a.wait(lg=ct[i])
        a("buffer_store_dwordx4 %s, v88, s[12:15], s35 offen offset:%d" % (vr(172 + 4 * i, 4), 1024 * i))
    mm(1)
    a("s_endpgm")

    a("%s_prep:" % name)
    a.vm = []; a.lg = []
    a("s_sub_u32 s20, s2, 192")
    a("s_and_b32 s21, s20, 31")
    a("s_lshr_b32 s23, s20, 5")
    a("s_waitcnt lgkmcnt(0)")
    srd(a, 4, 42, 43, 2048 * 578)
    srd(a, 8, 44, 45, 2048 * 578)
    srd(a, 12, 46, 47, WS_BYTES)
    srd(a, 16, 58, 59, 9216)
    srd(a, 64, 56, 57, 576 * 9216)
    srd(a, 68, 60, 61, 4608 * 1152)
    a("s_bfe_u32 s24, s22, 0x10002")
    a("s_lshl_b32 s25, s23, 1")
    a("s_add_u32 s24, s24, s25")
    a("s_lshl_b32 s24, s24, 2")
    a("s_and_b32 s25, s22, 3")
    a("s_add_u32 s24, s24, s25")
    a("s_lshl_b32 s24, s24, 6")
    a("s_lshl_b32 s25, s21, 1")
    a("s_add_u32 s24, s24, s25")
    a("s_mul_i32 s24, s24, 578")
    a("s_add_u32 s25, s24, %d" % (16 * 64 * 578))
    a("v_lshlrev_b32 v3, 2, v2")
    WL = 100
    wt = []
    for mb in range(2):
        for arr in range(2):
            for it in range(5):
                if it == 4: a("s_mov_b32 exec_hi, 1")
                wt.append(a.vmem("buffer_load_dword v%d, v3, s[%d:%d], s%d offen offset:%d" % (WL + (mb * 2 + arr) * 5 + it, 4 + 4 * arr, 7 + 4 * arr, 24 + mb, 256 * it)))
                if it == 4: a("s_mov_b32 exec_hi, -1")
    a("s_cmp_lg_u32 s20, 63")
    a("s_cbranch_scc1 %s_nz" % name)
    for r_ in range(20, 24): a("v_mov_b32 v%d, 0" % r_)
    a("v_lshlrev_b32 v4, 5, v0")
    a("s_mov_b32 s26, %s" % hx(CNT_OFF))
    a("buffer_store_dwordx4 v[20:23], v4, s[12:15], s26 offen")
    a("buffer_store_dwordx4 v[20:23], v4, s[12:15], s26 offen offset:16")
    a("%s_nz:" % name)
    a("s_lshl_b32 s26, s20, 9")
    a("v_add_u32 v4, s26, v0")
    a("v_lshlrev_b32 v5, 1, v4")
    bt = a.vmem("buffer_load_ushort v6, v5, s[16:19], 0 offen")
    a("v_and_b32 v8, 15, v2")
    a("v_lshrrev_b32 v9, 4, v2")
    a("v_lshlrev_b32 v7, 4, v2")
    ttk = tile_issue(a, 62, 2, 90, 64, 68, 72)
    a("s_sub_u32 s28, s62, %d" % (192 * 8))
    a("s_cmp_ge_u32 s28, 20")
    a("s_cbranch_scc1 %s_nocf" % name)
    a("s_lshr_b32 s31, s28, 2")
    a("s_bfe_u32 s32, s28, 0x10001")
    a("s_and_b32 s33, s28, 1")
    a("s_bfe_u32 s34, s28, 0x10001")
    a("s_cmp_lt_u32 s28, 16")
    a("s_cselect_b32 s30, 1, 0")
    a("s_cselect_b32 s31, s31, s34")
    a("s_cselect_b32 s32, s32, s33")
    a("s_cselect_b32 s33, s33, 0")
    a("s_cselect_b32 s34, 63, 31")
    a("s_lshl_b32 s30, s30, 23")
    a("s_sub_u32 s35, %s, s30" % hx(f32bits(1 / 32.)))
    a("s_sub_u32 s36, %s, s30" % hx(f32bits(0.25)))
    a("s_cmp_eq_u32 s32, 0")
    a("s_cselect_b32 s37, 0, %s" % hx(f32bits(0.75)))
    a("s_lshl_b32 s31, s31, 4")
    a("v_add_u32 v10, s31, v8")
    a("s_lshl_b32 s33, s33, 5")
    a("v_lshl_add_u32 v11, v9, 2, s33")
    a("v_mov_b32 v16, s37")
    for e in range(8):
        off = 16 * (e >> 2) + (e & 3)
        a("v_add_u32 v12, %d, v11" % off)
        a("v_mul_u32_u24 v13, v12, v10")
        a("v_and_b32 v13, s34, v13")
        a("v_cvt_f32_u32 v13, v13")
        a("v_fma_f32 v13, v13, s35, v16")
        a("v_cos_f32 v13, v13")
        a("v_mul_f32 v%d, s36, v13" % (20 + e))
    for h in range(4):
        a("v_cvt_pk_f16_f32 v%d, v%d, v%d" % (28 + h, 20 + 2 * h, 21 + 2 * h))
    a("s_lshl_b32 s28, s28, 10")
    a("s_add_u32 s28, s28, %s" % hx(CONST_OFF))
    a("buffer_store_dwordx4 v[28:31], v7, s[12:15], s28 offen")
    a("%s_nocf:" % name)
    a.wait_all(vm=True, lg=False)
    tile_finish(a, [], 2, 40, 90, 72, stf)
    a("s_add_u32 s62, s62, %d" % (2048 - 188 * 8))
    a("s_waitcnt lgkmcnt(0)")
    ttk = tile_issue(a, 62, 2, 90, 64, 68, 72)
    a("v_lshlrev_b32 v6, 16, v6")
    a("v_lshlrev_b32 v5, 2, v4")
    a("v_cmp_gt_u32 vcc, 4608, v4")
    a("s_mov_b32 s28, %s" % hx(B1F_OFF))
    a("s_and_saveexec_b64 s[30:31], vcc")
    a("s_cbranch_execz %s_nob1" % name)
    a("buffer_store_dword v6, v5, s[12:15], s28 offen")
    a("%s_nob1:" % name)
    a("s_mov_b64 exec, -1")
    a("s_mul_i32 s28, s22, 1160")
    a("v_add_u32 v10, s28, v3")
    for mb in range(2):
        for arr in range(2):
            for it in range(5):
                if it == 4: a("s_mov_b32 exec_hi, 1")
                a("ds_write_b32 v10, v%d offset:%d" % (WL + (mb * 2 + arr) * 5 + it, (arr * 16 + mb * 8) * 1160 + 256 * it))
                if it == 4: a("s_mov_b32 exec_hi, -1")
    a("s_waitcnt lgkmcnt(0)")
    a("s_barrier")
    a("s_lshr_b32 s28, s21, 3")
    a("s_lshl_b32 s28, s28, 11")
    a("s_and_b32 s29, s21, 7")
    a("s_lshl_b32 s29, s29, 6")
    a("s_add_u32 s28, s28, s29")
    a("s_lshl_b32 s29, s23, 10")
    a("s_add_u32 s28, s28, s29")
    a("s_add_u32 s28, s28, %s" % hx(WT_OFF))
    a("s_lshl_b32 s29, s20, 2")
    a("s_add_u32 s29, s29, %s" % hx(WMAX_OFF))
    for it in range(3):
        a("v_add_u32 v10, %d, v0" % (512 * it))
        a("v_and_b32 v11, 1, v10")
        a("v_bfe_u32 v12, v10, 1, 1")
        a("v_lshrrev_b32 v13, 2, v10")
        a("v_min_u32 v13, 288, v13")
        a("v_mul_u32_u24 v14, 578, v11")
        a("v_lshl_add_u32 v14, v13, 1, v14")
        a("v_mul_u32_u24 v15, %d, v12" % (4 * 1160))
        a("v_add_u32 v14, v14, v15")
        for mb in range(2):
            for r in range(4):
                e = mb * 4 + r
                a("ds_read_u16 v%d, v14 offset:%d" % (32 + e, (mb * 8 + r) * 1160))
                a("ds_read_u16 v%d, v14 offset:%d" % (40 + e, (16 + mb * 8 + r) * 1160))
        a("v_lshlrev_b32 v15, 13, v13")
        a("v_lshl_add_u32 v15, v12, 9, v15")
        a("v_lshl_add_u32 v15, v11, 5, v15")
        a("s_waitcnt lgkmcnt(0)")
        for e in range(8):
            a("v_lshl_or_b32 v%d, v%d, 16, v%d" % (20 + e, 40 + e, 32 + e))
        for e in range(8):
            a("v_and_b32 v%d, 0x7fff, v%d" % (32 + e, 32 + e))
            a("v_and_b32 v%d, 0x7fff, v%d" % (40 + e, 40 + e))
        a("v_max3_u32 v32, v32, v33, v34")
        for e in range(3, 15, 2):
            a("v_max3_u32 v32, v32, v%d, v%d" % (32 + e, 33 + e))
        a("v_max_u32 v32, v32, v47")
        a("v_max_u32_dpp v32, v32, v32 quad_perm:[1,0,3,2] row_mask:0xf bank_mask:0xf")
        a("v_max_u32_dpp v32, v32, v32 quad_perm:[2,3,0,1] row_mask:0xf bank_mask:0xf")
        a("v_lshlrev_b32 v32, 16, v32")
        a("v_lshlrev_b32 v33, 8, v13")
        a("buffer_store_dword v32, v33, s[12:15], s29 offen")
        a("buffer_store_dwordx4 v[20:23], v15, s[12:15], s28 offen")
        a("buffer_store_dwordx4 v[24:27], v15, s[12:15], s28 offen offset:16")
    a.wait_all(vm=True, lg=False)
    tile_finish(a, [], 2, 40, 90, 72, stf)
    a("%s_end:" % name)
    a("s_endpgm")
    n = a.fix_hazards()
    print("k1: nops inserted", n, "lines", len(a.lines))
    return kernel_header(name) + a.text() + kernel_desc(name, 244), K1_LDS
```

```python
from asmgen import *
from layout import *
from gen_mlp import srd
K3_LDS = 36864

def gen_k3(name, NPART=16, order=0):
    a = Asm()
    a("s_cmp_ge_u32 s2, 256")
    a("s_cbranch_scc1 %s_end" % name)
    a("s_load_dwordx2 s[40:41], s[0:1], 0")
    a("s_load_dwordx4 s[44:47], s[0:1], 56")
    a("s_load_dwordx2 s[48:49], s[0:1], 80")
    a("v_lshrrev_b32 v1, 6, v0")
    a("v_and_b32 v2, 63, v0")
    a("v_readfirstlane_b32 s22, v1")
    a("s_and_b32 s20, s2, 7")
    a("s_lshr_b32 s21, s2, 5")
    a("s_lshl_b32 s21, s21, 3")
    a("s_add_u32 s20, s20, s21")
    a("s_bfe_u32 s21, s2, 0x20003")
    a("s_mul_i32 s23, s21, 9")
    a("s_add_u32 s23, s23, s22")
    a("v_lshlrev_b32 v3, 4, v2")
    a("v_lshrrev_b32 v4, 2, v2")
    a("v_bfe_u32 v5, v2, 4, 1")
    a("v_lshlrev_b32 v5, 1, v5")
    a("v_and_b32 v6, 3, v2")
    a("v_xor_b32 v5, v5, v6")
    a("v_lshlrev_b32 v5, 4, v5")
    a("v_lshl_add_u32 v4, v4, 12, v5")
    a("s_lshl_b32 s24, s22, 18")
    a("s_lshl_b32 s25, s20, 6")
    a("s_add_u32 s24, s24, s25")
    a("s_add_u32 s24, s24, %s" % hx(UT_OFF))
    a("s_lshl_b32 s25, s22, 12")
    a("s_mul_i32 s26, s23, 18432")
    a("s_add_u32 s26, s26, %s" % hx(CINV_OFF))
    a("s_mul_i32 s27, s20, 36")
    a("s_add_u32 s27, s27, s23")
    a("s_lshl_b32 s27, s27, 10")
    a("s_add_u32 s27, s27, %s" % hx(PART_OFF))
    a("v_lshrrev_b32 v5, 4, v2")
    a("v_bfe_u32 v7, v2, 2, 4")
    a("v_lshlrev_b32 v7, 6, v7")
    a("v_lshl_add_u32 v7, v6, 3, v7")
    a("v_and_b32 v8, 1, v5")
    a("v_lshl_add_u32 v9, v8, 5, v7")
    a("v_xor_b32 v10, 32, v9")
    a("v_and_b32 v11, 15, v2")
    a("v_and_b32 v12, 3, v11")
    a("v_bfe_u32 v13, v11, 2, 1")
    a("v_lshl_add_u32 v12, v13, 4, v12")
    a("v_bfe_u32 v13, v11, 3, 1")
    a("v_lshl_add_u32 v12, v13, 2, v12")
    a("s_mov_b32 s28, %d" % (32 * 1152))
    a("v_mul_lo_u32 v12, v12, s28")
    a("v_lshl_add_u32 v12, v5, 3, v12")
    a("v_add_u32 v13, %d, v12" % (8 * 32 * 1152))
    a("s_lshr_b32 s28, s20, 1")
    a("s_and_b32 s29, s20, 1")
    a("s_lshl_b32 s29, s29, 10")
    a("s_add_u32 s28, s28, s29")
    a("s_mul_i32 s28, s28, 1152")
    a("s_lshl_b32 s29, s23, 5")
    a("s_add_u32 s28, s28, s29")
    a("v_lshlrev_b32 v14, 3, v5")
    a("s_waitcnt lgkmcnt(0)")
    srd(a, 4, 40, 41, 2048 * 1152)
    srd(a, 8, 46, 47, 2048 * 1152)
    srd(a, 16, 44, 45, 1152)
    srd(a, 12, 48, 49, WS_BYTES)
    ut = []
    def udma():
        for i in range(4):
            a("s_add_u32 m0, s25, %d" % (1024 * i))
            a("s_add_u32 s30, s24, %d" % (65536 * i))
            ut.append(a.vmem("buffer_load_dwordx4 v4, s[12:15], s30 offen lds"))
    if order == 0: udma()
    CA = 24
    PT = 96
    ACC = 128
    S_ = 136
    BFR = 144
    T = BFR
    NB = NPART // 2 if NPART > 8 else NPART
    def pload(c):
        a("s_add_u32 s30, s27, %s" % hx(c * 64 * 36864))
        return a.vmem("buffer_load_dwordx4 %s, v3, s[12:15], s30 offen" % vr(PT + 4 * (c % NB), 4))
    def psum(c, tok):
        a.wait(vm=tok)
        for h in range(4):
            p = PT + 4 * (c % NB) + h
            dst = S_ + 2 * h if c == 0 else T + 2 * h
            a("v_lshlrev_b32 v%d, 16, v%d" % (dst, p))
            a("v_and_b32 v%d, 0xffff0000, v%d" % (dst + 1, p))
        if c:
            for h in range(4):
                a("v_pk_add_f32 %s, %s, %s" % (vr(S_ + 2 * h, 2), vr(S_ + 2 * h, 2), vr(T + 2 * h, 2)))
    pt = [pload(c) for c in range(NB)]
    ct = []
    for t in range(18):
        if t % 4 == 0:
            a("s_add_u32 s30, s26, %d" % (1024 * t))
        ct.append(a.vmem("buffer_load_dwordx4 %s, v3, s[12:15], s30 offen offset:%d" % (vr(CA + 4 * t, 4), 1024 * (t % 4))))
    xt = [a.vmem("buffer_load_dwordx2 %s, v%d, s[4:7], s28 offen" % (vr(16 + 2 * sb, 2), 12 + sb)) for sb in range(2)]
    bt = a.vmem("buffer_load_dwordx2 v[20:21], v14, s[16:19], s29 offen")
    if order == 1: udma()
    for c in range(NB):
        psum(c, pt[c])
        if NB + c < NPART: pt.append(pload(NB + c))
    a.wait(vm=ut)
    a("s_barrier")
    toks = {}
    def rd(t):
        b = BFR + 8 * (t % 3)
        toks[t] = [a.lds("ds_read_b64_tr_b16 %s, v%d offset:%d" % (vr(b + 4 * sb + 2 * i, 2), 9 + sb, t * 2048 + i * 1024)) for sb in range(2) for i in range(2)]
    rd(0); rd(1)
    for t in range(18):
        if t + 2 < 18: rd(t + 2)
        b = BFR + 8 * (t % 3)
        for sb in range(2):
            a.wait(vm=ct[t], lg=toks[t][2 * sb: 2 * sb + 2])
            d = ACC + 4 * sb
            a("v_mfma_f32_16x16x32_bf16 %s, %s, %s, %s" % (vr(d, 4), vr(CA + 4 * t, 4), vr(b + 4 * sb, 4), "0" if t == 0 else vr(d, 4)))
    for c in range(NB, NPART):
        psum(c, pt[c])
    def rnd(r):
        a("v_cvt_pk_bf16_f32 v%d, v%d, v%d" % (T + 8, r, r + 1))
        a("v_lshlrev_b32 v%d, 16, v%d" % (r, T + 8))
        a("v_and_b32 v%d, 0xffff0000, v%d" % (r + 1, T + 8))
    a.wait(vm=xt + [bt])
    B2 = 24
    for h in range(2):
        a("v_lshlrev_b32 v%d, 16, v%d" % (B2 + 2 * h, 20 + h))
        a("v_and_b32 v%d, 0xffff0000, v%d" % (B2 + 2 * h + 1, 20 + h))
    for h in range(4):
        s_ = S_ + 2 * h; y = ACC + 2 * h
        rnd(s_)
        a("v_pk_add_f32 %s, %s, %s" % (vr(s_, 2), vr(s_, 2), vr(B2 + 2 * (h & 1), 2)))
        rnd(s_)
        rnd(y)
        a("v_lshlrev_b32 v%d, 16, v%d" % (T, 16 + h))
        a("v_and_b32 v%d, 0xffff0000, v%d" % (T + 1, 16 + h))
        a("v_pk_add_f32 %s, %s, %s" % (vr(y, 2), vr(y, 2), vr(T, 2)))
        rnd(y)
        a("v_pk_add_f32 %s, %s, %s" % (vr(y, 2), vr(y, 2), vr(s_, 2)))
        a("v_cvt_pk_bf16_f32 v%d, v%d, v%d" % (28 + h, y, y + 1))
    for sb in range(2):
        a("buffer_store_dwordx2 %s, v%d, s[8:11], s28 offen" % (vr(28 + 2 * sb, 2), 12 + sb))
    a("%s_end:" % name)
    a("s_endpgm")
    n = a.fix_hazards()
    print("k3: nops", n, "lines", len(a.lines))
    return kernel_header(name) + a.text() + kernel_desc(name, 168, 64), K3_LDS
```

```python
from asmgen import *
from layout import *
from collections import deque
from gen_epi import epilogue

C0 = -2.0 * 1.4426950408889634 * 0.7978845608028654
C1 = C0 * 0.044715
MFMA = "v_mfma_f32_16x16x32_bf16"
SLOT = 16384
NSLOT = 10
MLP_LDS = SLOT * NSLOT
Q_H1, Q_P2, Q_H2, NSTG = 36, 41, 77, 82


def srd(a, s, lo, hi, nbytes):
    a("s_mov_b32 s%d, s%d" % (s, lo))
    a("s_and_b32 s%d, s%d, 0xffff" % (s + 1, hi))
    a("s_mov_b32 s%d, %s" % (s + 2, hx(nbytes)))
    a("s_mov_b32 s%d, 0x20000" % (s + 3))


XISS = {0: -1, 1: -1, 2: -1, 3: -1, 4: 0, 5: 0, 6: 1, 7: 1, 8: 2}
XPUB = {0: 0, 1: 0, 2: 1, 3: 2, 4: 3, 5: 3, 6: 4, 7: 4, 8: 5}
XREL = {0: 2, 1: 4, 2: 5, 3: 6, 4: 7}


XS0 = 5


def plan_slots(WRmin, PRD, DEPTH, NPRO, fft_slots=0, epi=0):
    free = [x for x in range(5) if x >= NPRO]
    if fft_slots: free.remove(4)
    wslot = {q: q for q in range(NPRO)}; issue = {q: -1 for q in range(NPRO)}; pslot = {}
    nxt = NPRO
    rel = {}
    for i, b in XREL.items():
        if i < 4: rel.setdefault(b, []).append(XS0 + i)
    if fft_slots:
        rel.setdefault(1, []).append(4)
    for q in range(0, NSTG):
        if q - 2 >= 0:
            free.append(wslot[q - 2])
        for x in rel.get(q, []):
            free.append(x)
        for u, b in PRD.items():
            if b == q and u != 4:
                free.append(pslot[u])
        for u, b in WRmin.items():
            if b - 1 == q and u == 4:
                pslot[u] = 9
            elif b - 1 == q:
                c = [x for x in free if x >= 8] or free
                pslot[u] = c[0]; free.remove(c[0])
        n = 0
        while nxt < NSTG and n < 2 and nxt <= q + DEPTH:
            c = [x for x in free if x < (7 if (epi and q >= 46) else 8)]
            if not c: break
            wslot[nxt] = c[0]; free.remove(c[0]); issue[nxt] = q; nxt += 1; n += 1
            if q < 12: break
        assert nxt > q + 1 or nxt >= NSTG, ("ring underflow", q, nxt)
    return wslot, issue, pslot


def gen_mlp(name, PD=2, SEGB=70, stamps=False, fft_hook=None, nostore=False, rot=1, cmap=1, nodma=0, nogelu=0,
            stf=0, touch=0, DCOST=10, fine=0, HOL=0, DEPTH=4, NPRO=3, MINB=0, STG2=0, epi=0, UQ=58, est=0, stfo=-1, SLP=4, G1=7):
    a = Asm()
    XN0 = 16
    def XN(sb, t): return XN0 + (sb * 18 + t) * 4
    ACC = [160, 176]
    AF = 192
    BIAS = AF + 8 * (PD + 1)
    TMP = BIAS + 8
    PK = TMP + 4
    ACCH = PK + 16
    AD = ACCH + 8
    names = ["vD1", "vD1h", "vD2", "vD2h", "vA00", "vA01", "vA10", "vA11", "vAh0", "vAh1",
             "vL0", "vL1", "vL2", "vBias", "vBiasH", "vPq", "vC1", "vT"]
    free = list(range(1, 16)) + list(range(AD, 256))
    R = {}
    for nme in names:
        R[nme] = free.pop(0)
    NV = max(max(R.values()) + 1, AD)
    assert NV <= 256, NV
    if stamps == 2: NV = 256

    WRT = {0: {0: 19, 1: 28, 2: 37, 3: 44, 4: 47}, 1: {0: 19 + STG2, 1: 28 + STG2, 2: 37 + min(STG2, 1), 3: 44 + min(STG2, 1), 4: 47 + min(STG2, 1)}}
    PUB = {0: 20 + STG2, 1: 29 + STG2, 2: 39, 3: 46, 4: 49}
    WRmin = {u: min(WRT[0][u], WRT[1][u]) for u in range(5)}
    PRD = {0: 39, 1: 40, 2: 41, 3: 48, 4: 51}
    wslot, issue_at, pslot = plan_slots(WRmin, PRD, DEPTH, NPRO, 1 if fft_hook else 0, epi)
    if epi:
        stf = 1 if stfo < 0 else stfo
        assert all(wslot[q] < 7 for q in range(UQ - 3, NSTG)) and all(b <= UQ - 1 for b in PRD.values())

    def pieces(q, hf, n):
        hol = [any(q == b - k for b in WRT[r].values() for k in range(1, HOL + 1)) for r in range(2)]
        if hol[hf] and not hol[1 - hf]: return []
        if hol[1 - hf] and not hol[hf]: return list(range(n))
        return list(range(n // 2)) if hf == 0 else list(range(n // 2, n))

    a("s_cmp_ge_u32 s2, 256")
    a("s_cbranch_scc1 %s_end" % name)
    a("s_load_dwordx2 s[40:41], s[0:1], 32")
    a("s_load_dwordx2 s[44:45], s[0:1], 48")
    a("s_load_dwordx2 s[46:47], s[0:1], 80")
    if est: a("s_memrealtime s[58:59]")
    if stamps:
        a("s_memtime s[60:61]")
        a("s_memrealtime s[58:59]")
    L = 166
    a("v_lshrrev_b32 v167, 6, v0")
    a("v_and_b32 v%d, 63, v0" % L)
    a("v_readfirstlane_b32 s22, v167")
    if cmap == 0:
        a("s_and_b32 s20, s2, 7")
        a("s_lshr_b32 s21, s2, 3")
    elif cmap == 1:
        a("s_and_b32 s20, s2, 3")
        a("s_lshl_b32 s20, s20, 1")
        a("s_bfe_u32 s48, s2, 0x10003")
        a("s_add_u32 s20, s20, s48")
        a("s_bfe_u32 s21, s2, 0x10002")
        a("s_lshl_b32 s21, s21, 4")
        a("s_lshr_b32 s48, s2, 4")
        a("s_add_u32 s21, s21, s48")
    else:
        a("s_and_b32 s20, s2, 1")
        a("s_lshl_b32 s20, s20, 2")
        a("s_bfe_u32 s48, s2, 0x20003")
        a("s_add_u32 s20, s20, s48")
        a("s_bfe_u32 s21, s2, 0x20001")
        a("s_lshl_b32 s21, s21, 3")
        a("s_lshr_b32 s48, s2, 5")
        a("s_add_u32 s21, s21, s48")
    a("s_and_b32 s54, s21, %d" % (3 if rot else 0))
    a("s_and_b32 s38, s22, 3")
    a("s_lshr_b32 s39, s22, 2")
    a("s_mul_i32 s24, s20, 1152")
    a("s_mul_i32 s26, s20, %d" % (576 * 1152))
    for u in range(4):
        a("s_add_u32 s48, s54, %d" % u)
        a("s_and_b32 s48, s48, 3")
        a("s_lshl_b32 s%d, s48, 8" % (64 + u))
        a("s_add_u32 s%d, s24, s%d" % (72 + u, 64 + u))
        a("s_mul_i32 s48, s48, %d" % (128 * 1152))
        a("s_add_u32 s%d, s26, s48" % (76 + u))
    a("s_add_u32 s25, s24, 1024")
    a("s_add_u32 s80, s26, %d" % (512 * 1152))
    a("s_lshl_b32 s28, s38, 10")
    a("s_lshl_b32 s29, s22, 10")
    a("s_lshl_b32 s36, s21, 2")
    a("s_lshr_b32 s48, s22, 1")
    a("s_add_u32 s36, s36, s48")
    a("s_mul_i32 s36, s36, 18432")
    a("s_and_b32 s48, s22, 1")
    a("s_lshl_b32 s48, s48, 10")
    a("s_add_u32 s36, s36, s48")
    a("s_add_u32 s36, s36, %s" % hx(XNF_OFF))
    a("s_lshl_b32 s37, s20, 6")
    a("s_lshl_b32 s48, s21, 1")
    a("s_add_u32 s37, s37, s48")
    a("s_add_u32 s37, s37, s39")
    a("s_mul_i32 s37, s37, 36864")
    a("s_add_u32 s37, s37, %s" % hx(PART_OFF))
    a("s_lshl_b32 s48, s38, 10")
    a("s_add_u32 s81, s37, s48")
    a("s_add_u32 s81, s81, 32768")
    a("s_lshl_b32 s48, s38, 11")
    a("s_add_u32 s37, s37, s48")
    a("s_mul_i32 s56, s20, 2304")
    a("s_add_u32 s56, s56, %s" % hx(B1F_OFF))
    x0, x1, x2, x3, x4, x5 = 160, 161, 162, 163, 164, 165
    a("s_movk_i32 s49, 9216")
    a("s_movk_i32 s50, 1152")
    a("v_lshrrev_b32 v%d, 4, v%d" % (x0, L))
    a("s_lshl_b32 s48, s38, 2")
    a("v_add_u32 v%d, s48, v%d" % (x4, x0))
    a("v_and_b32 v%d, 7, v%d" % (x1, x4))
    a("v_lshlrev_b32 v%d, 1, v%d" % (x1, x1))
    a("v_and_b32 v%d, 15, v%d" % (x2, L))
    a("v_xor_b32 v%d, v%d, v%d" % (x3, x1, x2))
    a("v_lshlrev_b32 v%d, 4, v%d" % (x3, x3))
    a("v_mad_u32_u24 v%d, v%d, s49, v%d" % (R["vD1"], x4, x3))
    a("v_mad_u32_u24 v%d, v%d, s50, v%d" % (R["vD2"], x4, x3))
    a("v_lshrrev_b32 v%d, 3, v%d" % (x0, L))
    a("s_lshl_b32 s48, s38, 3")
    a("v_add_u32 v%d, s48, v%d" % (x4, x0))
    a("v_and_b32 v%d, 6, v%d" % (x1, x0))
    a("v_and_b32 v%d, 7, v%d" % (x2, L))
    a("v_xor_b32 v%d, v%d, v%d" % (x3, x1, x2))
    a("v_lshlrev_b32 v%d, 4, v%d" % (x3, x3))
    a("v_mad_u32_u24 v%d, v%d, s49, v%d" % (R["vD1h"], x4, x3))
    a("v_mad_u32_u24 v%d, v%d, s50, v%d" % (R["vD2h"], x4, x3))
    a("v_bfe_u32 v%d, v%d, 2, 4" % (x3, L))
    a("v_and_b32 v%d, 3, v%d" % (x2, L))
    a("v_and_b32 v%d, 7, v%d" % (x1, x3))
    a("s_lshl_b32 s48, s38, 1")
    a("v_xor_b32 v%d, s48, v%d" % (x1, x1))
    a("v_lshlrev_b32 v%d, 5, v%d" % (x1, x1))
    a("v_lshl_add_u32 v%d, v%d, 8, v%d" % (x1, x3, x1))
    a("v_lshl_add_u32 v%d, v%d, 3, v%d" % (R["vA00"], x2, x1))
    a("v_xor_b32 v%d, 32, v%d" % (R["vA10"], R["vA00"]))
    a("v_bfe_u32 v%d, v%d, 1, 2" % (x1, x3))
    a("v_xor_b32 v%d, s38, v%d" % (x1, x1))
    a("v_lshlrev_b32 v%d, 5, v%d" % (x1, x1))
    a("v_lshl_add_u32 v%d, v%d, 7, v%d" % (x1, x3, x1))
    a("v_lshl_add_u32 v%d, v%d, 3, v%d" % (R["vAh0"], x2, x1))
    a("v_lshlrev_b32 v%d, 4, v%d" % (R["vL0"], L))
    for nm in ("vA0", "vA1", "vAh", "vL"):
        a("v_add_u32 v%d, 0x10000, v%d" % (R[nm + "1"], R[nm + "0"]))
        if nm == "vL": a("v_add_u32 v%d, 0x20000, v%d" % (R[nm + "2"], R[nm + "0"]))
    a("v_lshrrev_b32 v%d, 4, v%d" % (x0, L))
    a("v_lshlrev_b32 v%d, 4, v%d" % (x0, x0))
    a("v_add_u32 v%d, %d, v%d" % (x0, 9 * SLOT + 8192, x0))
    a("s_lshl_b32 s48, s38, 7")
    a("v_add_u32 v%d, s48, v%d" % (R["vBias"], x0))
    a("s_lshl_b32 s48, s38, 6")
    a("v_add_u32 v%d, s48, v%d" % (R["vBiasH"], x0))
    a("v_add_u32 v%d, s28, v%d" % (R["vPq"], R["vL0"]))
    a("v_mov_b32 v%d, %s" % (R["vC1"], hx(f32bits(C1))))
    a("s_waitcnt lgkmcnt(0)")
    srd(a, 4, 40, 41, 576 * 9216)
    srd(a, 8, 44, 45, 4608 * 1152)
    srd(a, 12, 46, 47, WS_BYTES)
    a("s_cmp_lg_u32 s39, 0")
    a("s_cbranch_scc1 %s_h1" % name)

    def ldsaddr(nm, off):
        return R[nm + str(off >> 16)], off & 0xFFFF

    def stage_desc(q):
        if q < Q_H1:
            u, sg = divmod(q, 9)
            return (4, "vD1", [(72 + u, None, (64 * sg + 16 * k) * 9216) for k in range(4)])
        if q < Q_P2:
            sg = q - Q_H1
            return (4, "vD1h", [(25, None, (128 * sg + 32 * k) * 9216) for k in range(4 if sg < 4 else 2)])
        if q < Q_H2:
            pi, sg = divmod(q - Q_P2, 9)
            rb = 76 + sg // 2 if sg < 8 else 80
            return (8, "vD2", [(rb, 64 + pi, (64 * (sg & 1 if sg < 8 else 0) + 16 * k) * 1152) for k in range(4)])
        sg = q - Q_H2
        rb = 76 + sg if sg < 4 else 80
        return (8, "vD2h", [(rb, None, 32 * k * 1152 + 1024) for k in range(4 if sg < 4 else 2)])

    def body(hf):
        a.vm = []; a.lg = []
        dma_tok = {}; xdma_tok = {}
        WR = WRT[hf]

        def dma_items(q, bq):
            s, vf, offs = stage_desc(q)
            dma_tok[q] = []
            out = []
            mine = pieces(bq, hf, len(offs))
            for k, (sa, sb_, imm) in enumerate(offs):
                if k not in mine: continue
                def g(k=k, sa=sa, sb_=sb_, imm=imm):
                    a("s_add_u32 m0, s28, %d" % (wslot[q] * SLOT + 4096 * k))
                    if sb_ is not None:
                        if k == mine[0]: a("s_add_u32 s31, s%d, s%d" % (sa, sb_))
                        a("s_add_u32 s30, s31, %s" % hx(imm))
                    else:
                        a("s_add_u32 s30, s%d, %s" % (sa, hx(imm)))
                    dma_tok[q].append(a.vmem("buffer_load_dwordx4 v%d, s[%d:%d], s30 offen lds" % (R[vf], s, s + 3)))
                out.append(g)
            return out

        def xdma(k):
            a("s_add_u32 m0, s29, %d" % (XS0 * SLOT + k * 8192))
            a("s_add_u32 s30, s36, %d" % (k * 2048))
            xdma_tok[k] = a.vmem("buffer_load_dwordx4 v%d, s[12:15], s30 offen lds" % R["vL0"])

        def udma(i5):
            if i5 == 0:
                T_ = TMP
                a("v_lshrrev_b32 v%d, 6, v%d" % (T_, R["vL0"]))
                a("v_bfe_u32 v%d, v%d, 8, 1" % (T_ + 1, R["vL0"]))
                a("v_lshlrev_b32 v%d, 5, v%d" % (T_ + 1, T_ + 1))
                a("v_and_b32 v%d, 48, v%d" % (T_ + 2, R["vL0"]))
                a("v_xor_b32 v%d, v%d, v%d" % (T_ + 1, T_ + 1, T_ + 2))
                a("v_lshl_add_u32 v%d, v%d, 12, v%d" % (R["vT"], T_, T_ + 1))
                a("s_and_b32 s83, s20, 1")
                a("s_lshl_b32 s84, s21, 1")
                a("s_add_u32 s83, s83, s84")
                a("s_lshl_b32 s83, s83, 6")
                a("s_lshl_b32 s84, s22, 16")
                a("s_add_u32 s83, s83, s84")
                a("s_add_u32 s83, s83, %s" % hx(UT_OFF))
            a("s_add_u32 m0, s29, %d" % (7 * SLOT + 8192 * i5))
            a("s_add_u32 s30, s83, %d" % (i5 * 8 * 65536))
            a.vmem("buffer_load_dwordx4 v%d, s[12:15], s30 offen lds" % R["vT"])

        bias_tok = {}
        BIASB = 9 * SLOT + 8192
        def load_bias(ps):
            if ps < 4:
                bias_tok[ps] = [a.lds("ds_read_b128 %s, v%d offset:%d" % (vr(BIAS + 4 * bi, 4), R["vBias"], 512 * ps + 64 * bi)) for bi in range(2)]
            else:
                bias_tok[ps] = [a.lds("ds_read_b128 %s, v%d offset:2048" % (vr(BIAS, 4), R["vBiasH"]))]

        btk = []
        if hf == 1:
            for i2 in range(2):
                a("s_lshl_b32 s33, s%d, 1" % (64 + 2 * i2))
                a("s_lshl_b32 s34, s%d, 1" % (65 + 2 * i2))
                a("s_sub_u32 s34, s34, 512")
                a("v_mov_b32 v%d, s33" % x0)
                a("v_mov_b32 v%d, s34" % x1)
                a("v_cmp_gt_u32 vcc, 32, v%d" % L)
                a("s_mov_b32 m0, %d" % (BIASB + 1024 * i2))
                a("v_cndmask_b32 v%d, v%d, v%d, vcc" % (x0, x1, x0))
                a("v_add_u32 v%d, v%d, v%d" % (x0, x0, R["vL0"]))
                btk.append(a.vmem("buffer_load_dwordx4 v%d, s[12:15], s56 offen lds" % x0))
            a("s_mov_b32 m0, %d" % BIASB)
            a("s_mov_b64 exec, 0xffff")
            btk.append(a.vmem("buffer_load_dwordx4 v%d, s[12:15], s56 offen offset:2048 lds" % R["vL0"]))
            a("s_mov_b64 exec, -1")
        for q in range(NPRO):
            for g in dma_items(q, -1): g()
            if q < 2:
                xdma(2 * q); xdma(2 * q + 1)
        def do_touch(which):
            nsh = {0: 32, 1: 16, 2: 8}[cmap]
            per = 5184 // nsh
            T_ = TMP
            for r_ in range((per + 511) // 512):
                a("v_add_u32 v%d, %d, v0" % (T_, 512 * r_))
                a("v_min_u32 v%d, %d, v%d" % (T_, per - 1, T_))
                a("s_and_b32 s33, s21, %d" % (nsh - 1))
                a("s_mul_i32 s33, s33, %d" % per)
                a("v_add_u32 v%d, s33, v%d" % (T_, T_))
                if which == 1:
                    a("s_mov_b32 s33, %d" % ((1 << 32) // 9 + 1))
                    a("v_mul_hi_u32 v%d, v%d, s33" % (T_ + 1, T_))
                    a("v_mul_u32_u24 v%d, %d, v%d" % (T_ + 1, 9216 - 9 * 128, T_ + 1))
                    a("v_lshl_add_u32 v%d, v%d, 7, v%d" % (T_, T_, T_ + 1))
                else:
                    a("v_lshlrev_b32 v%d, 7, v%d" % (T_, T_))
                a("s_mov_b32 m0, %d" % (9 * SLOT + 8192 + 4096))
                a.vmem("buffer_load_dword v%d, s[%d:%d], s%d offen lds" % (T_, 4 if which == 1 else 8, 7 if which == 1 else 11, 24 if which == 1 else 26))
        if touch & 1:
            do_touch(1)
        if fft_hook:
            fft_hook(a, hf)

        steps = []
        for u in range(4):
            for t in range(18):
                steps.append(("p1", u, t, 9 * u + t // 2, t % 2))
        for s_ in range(9):
            steps.append(("p1h", 4, s_, Q_H1 + s_ // 2, s_ % 2))
        for u in range(4):
            for t in range(18):
                steps.append(("p2", u, t, Q_P2 + 9 * u + t // 2, t % 2))
        for s_ in range(9):
            steps.append(("p2h", 4, s_, Q_H2 + s_ // 2, s_ % 2))
        NSTEP = len(steps)

        hi = deque(); dq = deque(); fill = deque()
        rd_tok = {}; pw_pending = []; pw_later = []; wr_items = {}
        published = set(); xn_dead = set(); p_tok = {}; xn_tok = {}

        def cost_of(lines):
            c = 0
            for l in lines:
                op = l.split()[0]
                c += 8 if op in TRANS else (8 if op.startswith(("buffer", "ds_write")) else (1 if op.startswith("s_") else 4))
            return c

        def emit_hi(n):
            while hi and n > 0:
                hi.popleft()(); n -= 1

        dead = {}
        cost = {}

        bucket = {"rate": 0.0, "tok": 0.0}

        def fine_fill():
            bucket["tok"] += bucket["rate"]
            while fill and bucket["tok"] >= 4:
                n0 = len(a.lines)
                tag, f = fill.popleft()
                f()
                c_ = cost_of(a.lines[n0:])
                bucket["tok"] -= c_
                if tag in cost: cost[tag] -= c_
            if not fill: bucket["tok"] = 0.0

        def segment(q):
            while dq:
                dq.popleft()()
            budget = MINB; cum = 0; seen = []
            if fine:
                for tg, _ in fill:
                    if tg not in seen:
                        seen.append(tg)
                        cum += cost.get(tg, 0)
                        left = max(1, dead.get(tg, q) + hf - q - (0 if hf == 0 else 1))
                        budget = max(budget, cum / left)
                bucket["rate"] = budget / 8.0 + 0.01
                return
            for tg, _ in fill:
                if tg not in seen:
                    seen.append(tg)
                    cum += cost.get(tg, 0)
                    left = max(1, dead.get(tg, q) - q + 1)
                    budget = max(budget, -(-cum // left))
            while fill and budget > 0:
                n0 = len(a.lines)
                tag, f = fill.popleft()
                f()
                c_ = cost_of(a.lines[n0:])
                budget -= c_
                if tag in cost: cost[tag] -= c_

        def flush_hi():
            while hi: hi.popleft()()
            while dq: dq.popleft()()

        def flush_tag(tag):
            while any(t == tag for t, _ in fill):
                tg, f = fill.popleft(); f()

        def p_off(t, sb):
            if t < 16:
                return pslot[t // 4] * SLOT + ((hf * 2 + sb) * 4 + t % 4) * 1024
            return pslot[4] * SLOT + ((hf * 2 + sb) * 2 + t - 16) * 1024

        def try_p_reads():
            for t in range(18):
                if t in published and t in xn_dead and (0, t) not in p_tok:
                    for sb in range(2):
                        p_tok[(sb, t)] = None
                        def rd(t=t, sb=sb):
                            v, im = ldsaddr("vL", p_off(t, sb))
                            p_tok[(sb, t)] = a.lds("ds_read_b128 %s, v%d offset:%d" % (vr(XN(sb, t), 4), v, im))
                        hi.append(rd)

        pub_at = {}
        for ps_, q_ in PUB.items():
            pub_at.setdefault(q_, []).append(ps_)

        def barrier(q):
            if hf == 0 and q >= 1:
                segment(q)
            pw_pending.extend(pw_later); del pw_later[:]
            for tag, wr in wr_items.pop(q, []):
                flush_tag(tag)
                wr()
            flush_hi()
            w = list(dma_tok.get(q, []))
            xparts = [k for k, b in XPUB.items() if b == q]
            w += [xdma_tok[k] for k in xparts]
            if q == 0: w += btk
            a.wait(vm=w)
            lw = list(pw_pending)
            for xi, b in XREL.items():
                if b == q:
                    for k in ([2 * xi, 2 * xi + 1] if xi < 4 else [8]):
                        lw += [xn_tok[(sb, 2 * k + k2)] for sb in range(2) for k2 in range(2)]
            for u, b in PRD.items():
                if b == q:
                    ts = range(4 * u, 4 * u + 4) if u < 4 else (16, 17)
                    for t in ts:
                        for sb in range(2):
                            assert p_tok.get((sb, t)) is not None, ("P read not issued before release", u, q)
                            lw.append(p_tok[(sb, t)])
            a.wait(lg=lw)
            a("s_barrier")
            del pw_pending[:]
            for ps_ in pub_at.get(q, []):
                assert WR[ps_] < q
                published.update(range(4 * ps_, 4 * ps_ + 4) if ps_ < 4 else [16, 17])
            if stamps == 2:
                a("s_memtime s[%d:%d]" % (88 + 2 * (q & 1), 89 + 2 * (q & 1)))
                if q >= 1:
                    a("s_sub_u32 s92, s%d, s60" % (88 + 2 * ((q - 1) & 1)))
                    a("v_writelane_b32 v%d, s92, %d" % (255 if q - 1 < 64 else 0, (q - 1) & 63))
            for k in xparts:
                for k2 in range(2):
                    for sb in range(2):
                        t = 2 * k + k2
                        xn_tok[(sb, t)] = None
                        def rd(t=t, sb=sb, k=k, k2=k2):
                            v, im = ldsaddr("vL", XS0 * SLOT + k * 8192 + ((2 * hf + sb) * 2 + k2) * 1024)
                            xn_tok[(sb, t)] = a.lds("ds_read_b128 %s, v%d offset:%d" % (vr(XN(sb, t), 4), v, im))
                        if q == 0 and k == 0: rd()
                        else: hi.append(rd)
            for k, b in XISS.items():
                if b == q: dq.append(lambda k=k: xdma(k))
            if (touch & 2) and q == 8:
                dq.append(lambda: do_touch(2))
            if epi and UQ <= q < UQ + 5:
                i5 = q - UQ
                if i5 < 4 or hf == 0:
                    dq.append(lambda i5=i5: udma(i5))
            for q2, b in issue_at.items():
                if b == q and not (nodma and q > 8):
                    dq.extend(dma_items(q2, q))
            try_p_reads()
            if hf == 1:
                emit_hi(4)
                segment(q)

        def read_items(i):
            kind, ps, s_, q, kap = steps[i]
            rd_tok[i] = []
            base = wslot[q] * SLOT
            af = AF + 8 * (i % (PD + 1))
            out = []
            for f in range(2):
                for ii in range(2):
                    if kind.endswith("h"):
                        v, im = ldsaddr("vAh", base + (2 * kap + f) * 4096 + ii * 2048)
                    else:
                        v, im = ldsaddr("vA%d" % f, base + kap * 8192 + ii * 4096)
                    def rd(f=f, ii=ii, v=v, im=im):
                        rd_tok[i].append(a.lds("ds_read_b64_tr_b16 %s, v%d offset:%d" % (vr(af + 4 * f + 2 * ii, 2), v, im)))
                    out.append(rd)
            return out

        def gelu_group(tag, regs, outs):
            T = [TMP + k for k in range(4)]
            seq = []
            for k in range(4): seq.append("v_mul_f32 v%d, v%d, v%d" % (T[k], regs[k], regs[k]))
            for k in range(4): seq.append("v_fmaak_f32 v%d, v%d, v%d, %s" % (T[k], T[k], R["vC1"], hx(f32bits(C0))))
            for k in range(4): seq.append("v_mul_f32 v%d, v%d, v%d" % (T[k], regs[k], T[k]))
            for k in range(4): seq.append("v_exp_f32 v%d, v%d" % (T[k], T[k]))
            for k in range(4): seq.append("v_add_f32 v%d, 1.0, v%d" % (T[k], T[k]))
            for k in range(4): seq.append("v_rcp_f32 v%d, v%d" % (T[k], T[k]))
            for k in range(4): seq.append("v_mul_f32 v%d, v%d, v%d" % (T[k], regs[k], T[k]))
            seq.append("v_cvt_pk_bf16_f32 v%d, v%d, v%d" % (outs[0], T[0], T[1]))
            seq.append("v_cvt_pk_bf16_f32 v%d, v%d, v%d" % (outs[1], T[2], T[3]))
            if nogelu: seq = seq[-2:]
            cost[tag] = cost.get(tag, 0) + cost_of(seq)
            for s_ in seq:
                fill.append((tag, lambda s_=s_: a(s_)))

        def queue_gelu(ps):
            stt = ACC[ps % 2] if ps < 4 else ACCH
            tag = "g%d" % ps
            dead[tag] = min(WR[ps] - hf, 9 * (ps + 2) + 1) if ps < 2 else WR[ps] - hf
            pk0 = PK + 8 * (ps % 2)
            if ps < 4:
                for sb in range(2):
                    for bi in range(2):
                        b = stt + (bi * 2 + sb) * 4
                        gelu_group(tag, [b, b + 1, b + 2, b + 3], [pk0 + 4 * sb + 2 * bi, pk0 + 4 * sb + 2 * bi + 1])
                def wr():
                    a("v_add_u32 v%d, %s, v%d" % (R["vT"], hx(pslot[ps] * SLOT + hf * 8192), R["vPq"]))
                    for sb in range(2):
                        pw_later.append(a.lds("ds_write_b128 v%d, %s offset:%d" % (R["vT"], vr(pk0 + 4 * sb, 4), sb * 4096)))
            else:
                for sb in range(2):
                    b = stt + sb * 4
                    gelu_group(tag, [b, b + 1, b + 2, b + 3], [pk0 + 2 * sb, pk0 + 2 * sb + 1])
                def wr():
                    a("s_lshr_b32 s33, s38, 1")
                    a("s_lshl_b32 s33, s33, 10")
                    a("s_and_b32 s34, s38, 1")
                    a("s_lshl_b32 s34, s34, 3")
                    a("s_add_u32 s33, s33, s34")
                    a("s_add_u32 s33, s33, %s" % hx(pslot[4] * SLOT + hf * 4096))
                    a("v_add_u32 v%d, s33, v%d" % (R["vT"], R["vL0"]))
                    for sb in range(2):
                        pw_later.append(a.lds("ds_write_b64 v%d, %s offset:%d" % (R["vT"], vr(pk0 + 2 * sb, 2), sb * 2048)))
            wr_items.setdefault(WR[ps], []).append((tag, wr))

        def acc2(ps): return ACC[ps % 2] if ps < 4 else ACCH

        def queue_store(ps):
            stt = acc2(ps)
            tag = "s%d" % ps
            cost[tag] = 56
            dead[tag] = Q_P2 + 9 * (ps + 1) + 3
            fl = ["", " sc1", " sc0 sc1", " nt", " sc1 nt"][stf]
            if ps < 4:
                fill.append((tag, lambda: (a("s_lshl_b32 s34, s%d, 5" % (64 + ps)), a("s_add_u32 s34, s34, s37"))))
            for bi in range(2 if ps < 4 else 1):
                pk = PK + 8 * ((ps + 1) % 2) + 4 * bi
                for sb in range(2):
                    b = stt + ((bi * 2 + sb) * 4 if ps < 4 else sb * 4)
                    for h in range(2):
                        fill.append((tag, lambda pk=pk, sb=sb, b=b, h=h: a("v_cvt_pk_bf16_f32 v%d, v%d, v%d" % (pk + 2 * sb + h, b + 2 * h, b + 2 * h + 1))))
                if not nostore or ps == 4:
                    fill.append((tag, lambda pk=pk, bi=bi: a.vmem("buffer_store_dwordx4 %s, v%d, s[12:15], s%d offen offset:%d%s" % (vr(pk, 4), R["vL0"], 34 if ps < 4 else 81, bi * 1024, fl))))

        barrier(0)
        load_bias(0)
        for i in range(PD):
            for r_ in read_items(i): r_()
        for i in range(NSTEP):
            kind, ps, s_, q, kap = steps[i]
            j = i + PD
            rds = []
            if j < NSTEP:
                if steps[j][4] == 0:
                    barrier(steps[j][3])
                rds = read_items(j)
            af = AF + 8 * (i % (PD + 1))
            first = (s_ == 0)
            ph2 = kind.startswith("p2")
            half = kind.endswith("h")
            stt = acc2(ps)
            if first:
                if ph2:
                    flush_tag(["g2", "g3", "s0", "s1", "g4"][ps])
                elif 2 <= ps < 4:
                    flush_tag("g%d" % (ps - 2))
            for k in range(4):
                f, sb = k >> 1, k & 1
                t = 2 * s_ + f if half else s_
                d = stt + (sb * 4 if half else k * 4)
                need = rd_tok[i][2 * f: 2 * f + 2]
                vneed = None
                init = first and (not half or f == 0)
                if ph2:
                    c = "0" if init else vr(d, 4)
                    if ps == 0:
                        if p_tok.get((sb, t)) is None: flush_hi()
                        assert p_tok.get((sb, t)) is not None, ("P frag missing", hf, t)
                        need = need + [p_tok[(sb, t)]]
                else:
                    c = vr(BIAS + (0 if half else 4 * f), 4) if init else vr(d, 4)
                    if init: need = need + bias_tok[ps]
                    if ps == 0:
                        if xn_tok[(sb, t)] is None: flush_hi()
                        need = need + [xn_tok[(sb, t)]]
                a.wait(vm=vneed, lg=need)
                a("%s %s, %s, %s, %s" % (MFMA, vr(d, 4), vr(af + 4 * f, 4), vr(XN(sb, t), 4), c))
                if rds: rds[k]()
                emit_hi(1)
                if fine: fine_fill()
                if kind == "p1h" and sb == 1:
                    xn_dead.add(t)
                    try_p_reads()
            if kind == "p1" and s_ == 1:
                hi.append(lambda ps=ps: load_bias(ps + 1))
            last = s_ == (8 if half else 17)
            if last:
                if ph2: queue_store(ps)
                else: queue_gelu(ps)
            if stamps and kind == "p1h" and last:
                a("s_memtime s[62:63]")
        flush_hi()
        while fill:
            fill.popleft()[1]()
        if stamps:
            a("s_memtime s[66:67]")
            a("s_waitcnt vmcnt(0) lgkmcnt(0)")
            a("s_memtime s[68:69]")
            a("s_memrealtime s[70:71]")
            a("s_waitcnt lgkmcnt(0)")
            for k, sr_ in enumerate((62, 62, 66, 68)):
                a("s_sub_u32 s33, s%d, s60" % sr_)
                a("v_mov_b32 v%d, s33" % (160 + k))
            a("s_lshl_b32 s48, s2, 3")
            a("s_add_u32 s48, s48, s22")
            a("s_lshl_b32 s48, s48, 4")
            a("s_add_u32 s48, s48, %s" % hx(STAMP_OFF))
            a("v_mov_b32 v164, 0")
            a("s_mov_b64 exec, 1")
            a("buffer_store_dwordx4 v[160:163], v164, s[12:15], s48 offen")
            a("v_mov_b32 v166, s58")
            a("v_mov_b32 v167, s70")
            a("s_add_u32 s48, s48, 0x80000")
            a("buffer_store_dwordx2 v[166:167], v164, s[12:15], s48 offen")
            if stamps == 2:
                a("s_mov_b64 exec, -1")
                a("s_lshl_b32 s48, s2, 3")
                a("s_add_u32 s48, s48, s22")
                a("s_lshl_b32 s48, s48, 9")
                a("s_add_u32 s48, s48, %s" % hx(STAMP_OFF + 0x100000))
                a("v_lshrrev_b32 v164, 2, v%d" % R["vL0"])
                a("buffer_store_dword v255, v164, s[12:15], s48 offen")
                a("buffer_store_dword v0, v164, s[12:15], s48 offen offset:256")
        if epi:
            epilogue(a, name, hf, 7 * SLOT, R["vL0"], est=est, SLP=SLP, G1=G1)
        else:
            a("s_endpgm")

    body(0)
    a("%s_h1:" % name)
    body(1)
    a("%s_end:" % name)
    a("s_endpgm")
    n = a.fix_hazards()
    print("mlp3: nops inserted", n, "vgprs", NV, "lines", len(a.lines), "ahead:", " ".join(str(q - issue_at[q]) for q in range(5, NSTG)))
    return kernel_header(name) + a.text() + kernel_desc(name, NV), MLP_LDS
```

```python
from asmgen import *
from layout import *
from collections import deque
from gen_epi import epilogue
from gen_fft import fft_body

C0 = -2.0 * 1.4426950408889634 * 0.7978845608028654
C1 = C0 * 0.044715
MFMA = "v_mfma_f32_16x16x32_bf16"
XB = 0
PB = 73728
BIASB = 147456
MLP4_LDS = 163840


def srd(a, s, lo, hi, nbytes):
    a("s_mov_b32 s%d, s%d" % (s, lo))
    a("s_and_b32 s%d, s%d, 0xffff" % (s + 1, hi))
    a("s_mov_b32 s%d, %s" % (s + 2, hx(nbytes)))
    a("s_mov_b32 s%d, 0x20000" % (s + 3))


def gen_mlp(name, DK=8, PB_D=2, stamps=0, cmap=1, nogelu=0, nostore=0, stf=0, RATE=8.5, prio=0, aux=0, epi=0, est=0, fft=0, SLP=4, G1=7, NA0=3, fprio=1):
    if epi: stf = 1
    a = Asm()
    AR = 16
    BR = AR + DK * 8
    ACC = [BR + (PB_D + 1) * 16, BR + (PB_D + 1) * 16 + 32]
    BIAS = ACC[1] + 32
    TMP = BIAS + 8
    PK = TMP + 4
    NV = PK + 8
    assert NV <= 256, NV
    vL, vLP, vBias, vPw, vC1, vPw8 = 1, 2, 3, 4, 5, 6
    LA = ["", " sc1", " nt", " sc0"][aux]

    a("s_cmp_ge_u32 s2, 256")
    a("s_cbranch_scc1 %s_end" % name)
    a("s_load_dwordx2 s[46:47], s[0:1], 80")
    if est: a("s_memrealtime s[58:59]")
    if stamps:
        a("s_memtime s[60:61]")
        a("s_memrealtime s[58:59]")
    a("v_lshrrev_b32 v8, 6, v0")
    a("v_and_b32 v9, 63, v0")
    a("v_readfirstlane_b32 s22, v8")
    if cmap == 0:
        a("s_and_b32 s20, s2, 7")
        a("s_lshr_b32 s21, s2, 3")
    else:
        a("s_and_b32 s20, s2, 3")
        a("s_lshl_b32 s20, s20, 1")
        a("s_bfe_u32 s48, s2, 0x10003")
        a("s_add_u32 s20, s20, s48")
        a("s_bfe_u32 s21, s2, 0x10002")
        a("s_lshl_b32 s21, s21, 4")
        a("s_lshr_b32 s48, s2, 4")
        a("s_add_u32 s21, s21, s48")
    a("s_and_b32 s38, s22, 3")
    a("s_lshr_b32 s39, s22, 2")
    a("s_add_u32 s23, s22, s21")
    a("s_and_b32 s23, s23, 7")
    a("s_mul_i32 s24, s20, %d" % (36 * 18432))
    a("s_mul_i32 s25, s23, 36864")
    a("s_add_u32 s25, s25, s24")
    a("s_add_u32 s26, s25, %d" % (16 * 18432))
    a("s_mul_i32 s27, s38, 18432")
    a("s_add_u32 s27, s27, s24")
    a("s_add_u32 s27, s27, %d" % (32 * 18432))
    a("s_lshl_b32 s36, s21, 2")
    a("s_mul_i32 s36, s36, 18432")
    a("s_mul_i32 s29, s38, 18432")
    a("s_add_u32 s36, s36, s29")
    a("s_add_u32 s36, s36, %s" % hx(XNF_OFF))
    a("s_lshl_b32 s37, s20, 6")
    a("s_lshl_b32 s48, s21, 1")
    a("s_add_u32 s37, s37, s48")
    a("s_mul_i32 s37, s37, 36864")
    a("s_add_u32 s37, s37, %s" % hx(PART_OFF))
    a("s_lshl_b32 s48, s23, 11")
    a("s_add_u32 s40, s37, s48")
    a("s_add_u32 s41, s40, 16384")
    a("s_lshl_b32 s48, s38, 10")
    a("s_add_u32 s42, s37, s48")
    a("s_add_u32 s42, s42, 32768")
    a("s_mul_i32 s56, s20, 2304")
    a("s_add_u32 s56, s56, %s" % hx(B1F_OFF))
    a("v_lshlrev_b32 v%d, 4, v9" % vL)
    a("v_add_u32 v%d, %d, v%d" % (vLP, PB, vL))
    a("v_lshrrev_b32 v8, 4, v9")
    a("s_lshl_b32 s48, s23, 7")
    a("s_add_u32 s48, s48, %d" % BIASB)
    a("v_lshl_add_u32 v%d, v8, 4, s48" % vBias)
    a("s_lshl_b32 s48, s38, 6")
    a("s_add_u32 s48, s48, %d" % (BIASB + 2048))
    a("v_lshl_add_u32 v7, v8, 4, s48")
    a("s_lshl_b32 s48, s23, 10")
    a("v_add_u32 v%d, s48, v%d" % (vPw, vLP))
    a("s_lshr_b32 s48, s38, 1")
    a("s_lshl_b32 s48, s48, 10")
    a("s_and_b32 s49, s38, 1")
    a("s_lshl_b32 s49, s49, 3")
    a("s_add_u32 s48, s48, s49")
    a("s_add_u32 s48, s48, 16384")
    a("v_add_u32 v%d, s48, v%d" % (vPw8, vLP))
    a("v_mov_b32 v%d, %s" % (vC1, hx(f32bits(C1))))
    a("s_waitcnt lgkmcnt(0)")
    srd(a, 12, 46, 47, WS_BYTES)
    a("s_cmp_lg_u32 s39, 0")
    a("s_cbranch_scc1 %s_h1" % name)

    def body(hf):
        a.vm = []; a.lg = []
        if prio and hf == prio - 1: a("s_setprio 1")
        npass = 3 if hf == 0 else 2
        tau_order = list(range(18))
        steps = []
        for ph in (1, 2):
            for ps in range(npass):
                for t in range(18):
                    steps.append((ph, ps, 2 if ps < 2 else 1, t))
        N = len(steps)
        a_tok = {}; b_tok = {}

        def issue_a(i):
            ph, ps, nb, t = steps[i]
            base = (W1T_OFF if ph == 1 else W2T_OFF)
            toks = []
            for bi in range(nb):
                if t % 4 == 0 or True:
                    pass
                sreg = 30 + bi
                if t % 4 == 0:
                    a("s_add_u32 s%d, s%d, %s" % (sreg, 25 + ps, hx(base + bi * 18432 + t * 1024)))
                toks.append(a.vmem("buffer_load_dwordx4 %s, v%d, s[12:15], s%d offen offset:%d%s" % (vr(AR + (i % DK) * 8 + 4 * bi, 4), vL, sreg, (t % 4) * 1024, LA)))
            a_tok[i] = toks

        def b_items(i):
            ph, ps, nb, t = steps[i]
            b_tok[i] = []
            out = []
            for sb in range(4):
                def rd(sb=sb):
                    off = (sb * 18 + t) * 1024
                    v = vL if ph == 1 else vLP
                    if off >= 65536:
                        v = 10 if ph == 1 else 11; off -= 65536
                    b_tok[i].append(a.lds("ds_read_b128 %s, v%d offset:%d" % (vr(BR + (i % (PB_D + 1)) * 16 + 4 * sb, 4), v, off)))
                out.append(rd)
            return out

        a("v_add_u32 v10, 0x10000, v%d" % vL)
        a("v_add_u32 v11, 0x10000, v%d" % vLP)
        xt = []
        def pro_loads():
            for k in range(18 if hf == 0 else 0):
                if k % 4 == 0:
                    a("s_add_u32 m0, s29, %d" % (XB + 1024 * k))
                    a("s_add_u32 s33, s36, %d" % (1024 * k))
                xt.append(a.vmem("buffer_load_dwordx4 v%d, s[12:15], s33 offen offset:%d lds" % (vL, 1024 * (k % 4))))
            if hf == 0:
                a("s_mov_b32 m0, %d" % BIASB)
                for k in range(2):
                    xt.append(a.vmem("buffer_load_dwordx4 v%d, s[12:15], s56 offen offset:%d lds" % (vL, 1024 * k)))
                a("s_mov_b64 exec, 0xffff")
                xt.append(a.vmem("buffer_load_dwordx4 v%d, s[12:15], s56 offen offset:2048 lds" % vL))
                a("s_mov_b64 exec, -1")
            for i in range(NA0): issue_a(i)
        SYNC = BIASB + 2304 + hf * 16
        def first_barrier(pl=True):
            if pl: pro_loads()
            a.wait(vm=xt)
            a("s_barrier")
            if est: a("s_memrealtime s[88:89]")
            for i in range(NA0, DK - 1): issue_a(i)
        if fft:
            a("v_mov_b32 v12, 0")
            a("v_and_b32 v13, 7, v9")
            a("v_lshlrev_b32 v13, 2, v13")
            a("v_add_u32 v13, %d, v13" % (BIASB + 2304))
            a("ds_write_b32 v13, v12")
            a("s_waitcnt lgkmcnt(0)")
            lab = "%s_f%d" % (name, hf)
            nsync = [0]
            def fsync(k):
                n = nsync[0]; nsync[0] += 1
                a("v_mov_b32 v12, %d" % (SYNC + 4 * k if k < 2 else BIASB + 2304 + 8))
                a("v_mov_b32 v13, 1")
                a("s_mov_b64 exec, 1")
                a("ds_add_u32 v12, v13")
                a("%s_s%d:" % (lab, n))
                a("ds_read_b32 v13, v12")
                a("s_waitcnt lgkmcnt(0)")
                a("v_readfirstlane_b32 s73, v13")
                a("s_nop 3")
                a("s_cmp_ge_u32 s73, %s" % ("4" if k < 2 else "s87"))
                a("s_cbranch_scc1 %s_d%d" % (lab, n))
                a("s_sleep 1")
                a("s_branch %s_s%d" % (lab, n))
                a("%s_d%d:" % (lab, n))
                a("s_mov_b64 exec, -1")
                a.lg = []
            if hf == 0:
                a("s_cmp_lt_u32 s2, 223")
                a("s_cbranch_scc1 %s_skip" % lab)
                a("s_add_u32 s72, s2, 33")
            else:
                a("s_mov_b32 s72, s2")
            a("s_mov_b32 s86, %d" % (PB if hf == 0 else BIASB + 2560))
            a("s_cmp_ge_u32 s2, 223")
            a("s_cselect_b32 s87, 8, 4")
            pro_loads()
            if fprio: a("s_setprio 2")
            nvf = fft_body(a, AR + 8 * (DK - 1), 9, 72, 38, 86, 12, 74, " sc1", lambda: first_barrier(False), fsync)
            assert nvf <= 244, nvf
            st_tok = list(a.vm[-2:])
            if fprio: a("s_setprio 0")
            a("s_nop 1")
            a("s_mov_b32 s88, 1") if not est else a("s_mov_b32 s96, 1")
            vm_fft = list(a.vm)
            if hf == 0:
                a("s_branch %s_join" % lab)
                a("%s_skip:" % lab)
                a.vm = []; a.lg = []; del xt[:]
                first_barrier()
                a("s_mov_b32 s88, 0") if not est else a("s_mov_b32 s96, 0")
            a("%s_join:" % lab)
            a.lg = []
            def publish():
                a("s_cmp_eq_u32 s%d, 0" % (96 if est else 88))
                a("s_cbranch_scc1 %s_pj" % lab)
                a("s_waitcnt lgkmcnt(0)")
                fsync(2)
                a("s_cmp_lg_u32 s38, 0")
                a("s_cbranch_scc1 %s_pj" % lab)
                a("v_lshlrev_b32 v12, 8, v9")
                a("v_mov_b32 v13, 1")
                a("s_mov_b32 s73, %s" % hx(CNT_OFF + 8192))
                a("s_mov_b64 exec, 0xff")
                a("buffer_atomic_add v13, v12, s[12:15], s73 offen sc1")
                a("s_mov_b64 exec, -1")
                a("%s_pj:" % lab)
        else:
            first_barrier()
        if stamps: a("s_memtime s[62:63]")
        if est: a("s_memrealtime s[90:91]")

        fill = deque()
        bucket = {"tok": 0.0}
        def cost_of(lines):
            c = 0
            for l in lines:
                op = l.split()[0]
                c += 8 if op in TRANS else (4 if op.startswith(("buffer", "ds_")) else (1 if op.startswith("s_") else 4))
            return c
        def fine(rate):
            bucket["tok"] += rate
            while fill and bucket["tok"] >= 4:
                n0 = len(a.lines)
                tag, f = fill.popleft(); f()
                bucket["tok"] -= cost_of(a.lines[n0:])
            if not fill: bucket["tok"] = 0.0
        def flush_tag(tag):
            while any(t == tag for t, _ in fill):
                fill.popleft()[1]()
        pw = {}

        def gelu_group(tag, regs, outs):
            T = [TMP + k for k in range(4)]
            seq = []
            for k in range(4): seq.append("v_mul_f32 v%d, v%d, v%d" % (T[k], regs[k], regs[k]))
            for k in range(4): seq.append("v_fmaak_f32 v%d, v%d, v%d, %s" % (T[k], T[k], vC1, hx(f32bits(C0))))
            for k in range(4): seq.append("v_mul_f32 v%d, v%d, v%d" % (T[k], regs[k], T[k]))
            for k in range(4): seq.append("v_exp_f32 v%d, v%d" % (T[k], T[k]))
            for k in range(4): seq.append("v_add_f32 v%d, 1.0, v%d" % (T[k], T[k]))
            for k in range(4): seq.append("v_rcp_f32 v%d, v%d" % (T[k], T[k]))
            for k in range(4): seq.append("v_mul_f32 v%d, v%d, v%d" % (T[k], regs[k], T[k]))
            seq.append("v_cvt_pk_bf16_f32 v%d, v%d, v%d" % (outs[0], T[0], T[1]))
            seq.append("v_cvt_pk_bf16_f32 v%d, v%d, v%d" % (outs[1], T[2], T[3]))
            if nogelu: seq = seq[-2:]
            for s_ in seq: fill.append((tag, lambda s_=s_: a(s_)))

        def accset(ph, ps):
            if ph == 1: return [ACC[0], ACC[1], ACC[0]][ps]
            return [ACC3, ACC[1], ACC[0]][ps] if hf == 0 else [ACC[0], ACC[1]][ps]

        def queue_gelu(ps, nb):
            st = accset(1, ps); tag = "g%d" % ps
            pw[ps] = []
            for sb in range(4):
                pk = PK + 4 * (sb & 1)
                for bi in range(nb):
                    b = st + (bi * 4 + sb) * 4
                    gelu_group(tag, [b, b + 1, b + 2, b + 3], [pk + 2 * bi, pk + 2 * bi + 1])
                def wr(sb=sb, pk=pk):
                    if nb == 2:
                        pw[ps].append(a.lds("ds_write_b128 v%d, %s offset:%d" % (vPw, vr(pk, 4), sb * 18432 + ps * 8192)))
                    else:
                        pw[ps].append(a.lds("ds_write_b64 v%d, %s offset:%d" % (vPw8, vr(pk, 2), sb * 18432)))
                fill.append((tag, wr))

        def queue_store(ps, nb):
            st = accset(2, ps); tag = "s%d" % ps
            fl = ["", " sc1", " sc0 sc1", " nt"][stf]
            k = 0
            for bi in range(nb):
                for rg in range(2):
                    pk = PK + 4 * (k & 1); k += 1
                    for s2 in range(2):
                        b = st + (bi * 4 + 2 * rg + s2) * 4
                        for h in range(2):
                            fill.append((tag, lambda pk=pk, s2=s2, b=b, h=h: a("v_cvt_pk_bf16_f32 v%d, v%d, v%d" % (pk + 2 * s2 + h, b + 2 * h, b + 2 * h + 1))))
                    def stv(pk=pk, bi=bi, rg=rg):
                        a("s_add_u32 s34, s%d, %d" % (40 + ps, rg * 36864))
                        a.vmem("buffer_store_dwordx4 %s, v%d, s[12:15], s34 offen offset:%d%s" % (vr(pk, 4), vL, bi * 1024, fl))
                    if not nostore or ps == npass - 1: fill.append((tag, stv))

        bias_tok = {}
        def load_bias(ps):
            if ps < 2:
                bias_tok[ps] = [a.lds("ds_read_b128 %s, v%d offset:%d" % (vr(BIAS + 4 * bi, 4), vBias, 1024 * ps + 64 * bi)) for bi in range(2)]
            else:
                bias_tok[ps] = [a.lds("ds_read_b128 %s, v7" % vr(BIAS, 4))]

        def sync(k):
            flush_tag("g%d" % k)
            if k in pw: a.wait(lg=pw[k])
            a("s_barrier")

        load_bias(0)
        for i in range(PB_D):
            for r_ in b_items(i): r_()
        for i in range(N):
            ph, ps, nb, t = steps[i]
            j = i + PB_D
            rds = []
            if j < N:
                if steps[j][0] == 2 and steps[j][1] == 0 and steps[j][3] in (0, 8, 16):
                    sync(steps[j][3] // 8)
                rds = b_items(j)
            st = accset(ph, ps)
            if t == 0:
                if ph == 1 and ps == 2: flush_tag("g0")
                if ph == 2:
                    for tg in ({0: [], 1: ["g1"], 2: ["g2", "g0"]} if hf == 0 else {0: ["g0"], 1: ["g1"]})[ps]: flush_tag(tg)
            br = BR + (i % (PB_D + 1)) * 16
            nm = 4 * nb
            for k in range(nm):
                bi, sb = k // 4, k % 4
                d = st + (bi * 4 + sb) * 4
                need = [b_tok[i][sb]] if bi == 0 else []
                if t == 0:
                    c = "0" if ph == 2 else vr(BIAS + 4 * bi, 4)
                    if ph == 1: need = need + bias_tok[ps]
                else:
                    c = vr(d, 4)
                a.wait(vm=a_tok[i][bi] if sb == 0 else None, lg=need)
                a("%s %s, %s, %s, %s" % (MFMA, vr(d, 4), vr(AR + (i % DK) * 8 + 4 * bi, 4), vr(br + 4 * sb, 4), c))
                if rds and (nb == 1 or k % 2 == 0): rds.pop(0)()
                if k == nm - 1 and i + DK - 1 < N + 0 and (i + DK - 1) >= DK - 1:
                    pass
                fine(RATE)
            if i + DK - 1 < N: issue_a(i + DK - 1)
            if fft and i == DK:
                lg_save = list(a.lg)
                publish()
                a.lg = lg_save
            if ph == 1 and t == 2 and ps + 1 < npass: load_bias(ps + 1)
            if t == 17:
                if ph == 1: queue_gelu(ps, nb)
                else: queue_store(ps, nb)
                if stamps and ph == 1 and ps == npass - 1: a("s_memtime s[64:65]")
                if est and ph == 1 and ps == npass - 1: a("s_memrealtime s[92:93]")
                if est and ph == 2 and ps == 0: a("s_memrealtime s[94:95]")
                if epi and fft and hf == 0 and ph == 2 and ps == 0:
                    a("s_and_b32 s85, s2, 7")
                    a("s_lshl_b32 s85, s85, 8")
                    a("s_add_u32 s85, s85, %s" % hx(CNT_OFF + 8192))
                    a("v_mov_b32 v12, 0")
                    a.vmem("buffer_load_dword v13, v12, s[12:15], s85 offen sc1")
        while fill: fill.popleft()[1]()
        if stamps:
            a("s_memtime s[66:67]")
            a("s_waitcnt vmcnt(0) lgkmcnt(0)")
            a("s_memtime s[68:69]")
            a("s_memrealtime s[70:71]")
            a("s_waitcnt lgkmcnt(0)")
            for k, sr_ in enumerate((62, 64, 66, 68)):
                a("s_sub_u32 s33, s%d, s60" % sr_)
                a("v_mov_b32 v%d, s33" % (16 + k))
            a("s_lshl_b32 s48, s2, 3")
            a("s_add_u32 s48, s48, s22")
            a("s_lshl_b32 s48, s48, 4")
            a("s_add_u32 s48, s48, %s" % hx(STAMP_OFF))
            a("v_mov_b32 v20, 0")
            a("s_mov_b64 exec, 1")
            a("buffer_store_dwordx4 v[16:19], v20, s[12:15], s48 offen")
            a("v_mov_b32 v22, s58")
            a("v_mov_b32 v23, s70")
            a("s_add_u32 s48, s48, 0x80000")
            a("buffer_store_dwordx2 v[22:23], v20, s[12:15], s48 offen")
        if epi:
            epilogue(a, name, hf, XB, vL, est=est, SLP=SLP, G1=G1, uload=1, early=13 if fft else None)
        else:
            a("s_endpgm")

    ACC3 = NV
    NV2 = NV + 32
    assert NV2 <= 256, NV2
    NV2 = max(NV2, 244)
    body(0)
    a("%s_h1:" % name)
    body(1)
    a("%s_end:" % name)
    a("s_endpgm")
    n = a.fix_hazards()
    print("mlp4: nops inserted", n, "vgprs", NV2, "lines", len(a.lines))
    return kernel_header(name) + a.text() + kernel_desc(name, NV2, 100), MLP4_LDS
```

```python
WS_BYTES = 268435456
XNF_OFF = 0
ZF_OFF = 0x400000
WT_OFF = 0x800000
UT_OFF = 0xC00000
CINV_OFF = 0x1000000
CONST_OFF = 0x1100000
PART_OFF = 0x2000000
STAMP_OFF = 0x8000000
B1F_OFF = 0x1200000
CNT_OFF = 0x1300000
W1T_OFF = 0x5000000
W2T_OFF = 0x5600000
WMAX_OFF = 0x1400000
```

```python
import sys
import gen_mlp3, gen_mlp4
from gen_k1 import gen_k1
from gen_fft import gen_fft
from gen_k3 import gen_k3
kw = {}
for arg in sys.argv[2:]:
    k, v = arg.split("="); kw[k] = float(v) if '.' in v else int(v)
TL = kw.pop("TL", 0)
EPI = kw.get("epi", 0)
FFT = kw.get("fft", 0)
K3O = kw.pop("K3O", 0)
K1S = kw.pop("K1S", 0)
k1, l1 = gen_k1("k1_kernel", stamps=kw.pop("K1T", 0), stf=["", " sc1", " nt", " sc0 sc1"][K1S])
kf, lf = gen_fft("fft_kernel")
V4 = kw.pop("V4", 1)
km, lm = (gen_mlp4 if V4 else gen_mlp3).gen_mlp("mlp_kernel", **kw)
k3, l3 = gen_k3("k3_kernel", NPART=8, order=K3O)
hdr = """; parallel_sum(spectral_gfnet, dense_gelu): LN + 2D-FFT filter (MFMA DFT) + fused MLP. Generated by own scripts.
; @launch kernel=k1_kernel grid=(256,1,1) block=(512,1,1) lds=%d
%s; @launch kernel=mlp_kernel grid=(256,1,1) block=(512,1,1) lds=%d
%s.amdgcn_target "amdgcn-amd-amdhsa--gfx950"
""" % (l1, "" if FFT else "; @launch kernel=fft_kernel grid=(289,1,1) block=(256,1,1) lds=%d\n" % lf, lm, "" if EPI else "; @launch kernel=k3_kernel grid=(256,1,1) block=(576,1,1) lds=%d\n" % l3)
if EPI: k3 = ""
if FFT: kf = ""
def tl(txt, name, idx):
    from layout import STAMP_OFF
    from asmgen import hx
    pre = """    s_memrealtime s[96:97]
    s_load_dwordx2 s[98:99], s[0:1], 80
    s_mov_b32 s100, s2
    v_readfirstlane_b32 s101, v0
"""
    post = """    s_waitcnt vmcnt(0) lgkmcnt(0)
    s_memrealtime s[94:95]
    s_mov_b32 s88, s98
    s_and_b32 s89, s99, 0xffff
    s_mov_b32 s90, 0x10000000
    s_mov_b32 s91, 0x20000
    s_lshl_b32 s92, s100, 4
    s_lshr_b32 s101, s101, 6
    s_add_u32 s92, s92, s101
    s_lshl_b32 s92, s92, 3
    s_add_u32 s92, s92, %s
    s_waitcnt lgkmcnt(0)
    v_mov_b32 v2, s96
    v_mov_b32 v3, s94
    v_mov_b32 v1, 0
    s_mov_b64 exec, 1
    s_nop 4
    buffer_store_dwordx2 v[2:3], v1, s[88:91], s92 offen
    s_endpgm
""" % hx(STAMP_OFF + 0x400000 + idx * 0x10000)
    txt = txt.replace(name + ":\n", name + ":\n" + pre, 1)
    parts = txt.split("    s_endpgm\n")
    txt = post.join(parts)
    return txt.replace("next_free_sgpr 96", "next_free_sgpr 102").replace("next_free_sgpr 64", "next_free_sgpr 102").replace("next_free_sgpr 100", "next_free_sgpr 102")
if TL:
    k1 = tl(k1, "k1_kernel", 0); kf = tl(kf, "fft_kernel", 1) if kf else ""; km = tl(km, "mlp_kernel", 1 if FFT else 2); k3 = tl(k3, "k3_kernel", 3) if k3 else ""
open(sys.argv[1], "w").write(hdr + k1 + kf + km + k3)
```

```python
from asmgen import *
from layout import *
from gen_mlp import srd

MAGIC576 = 7456541
for n_ in list(range(0, 170000, 1)):
    assert (n_ * MAGIC576) >> 32 == n_ // 576
K1_LDS = 36864 + 12288 + 65536


def mod576(a, dst, src, tmp, smagic, s576):
    a("v_mul_hi_u32 v%d, v%d, s%d" % (tmp, src, smagic))
    a("v_mul_u32_u24 v%d, s%d, v%d" % (tmp, s576, tmp))
    a("v_sub_u32 v%d, v%d, v%d" % (dst, src, tmp))


TILE_LDS = 49152


def tile_issue(a, s_tile, lane, vt, sw1, sw2, s0, ldsoff=0, vd=None):
    S = lambda i: "s%d" % (s0 + i)
    lab = a.label(); lab2 = a.label()
    a("v_lshrrev_b32 v%d, 3, v%d" % (vt, lane))
    a("v_and_b32 v%d, 6, v%d" % (vt + 1, vt))
    a("v_xor_b32 v%d, v%d, v%d" % (vt + 1, vt + 1, lane))
    a("v_and_b32 v%d, 7, v%d" % (vt + 1, vt + 1))
    a("v_lshlrev_b32 v%d, 4, v%d" % (vt + 1, vt + 1))
    a("s_lshl_b32 %s, s22, 12" % S(3))
    a("s_add_u32 %s, %s, %d" % (S(3), S(3), TILE_LDS + ldsoff))
    a("s_cmp_ge_u32 s%d, 1296" % s_tile)
    a("s_cbranch_scc1 %s" % lab)
    a("s_mul_i32 %s, s%d, 3641" % (S(1), s_tile))
    a("s_lshr_b32 %s, %s, 18" % (S(1), S(1)))
    a("s_mul_i32 %s, %s, 72" % (S(0), S(1)))
    a("s_sub_u32 %s, s%d, %s" % (S(0), s_tile, S(0)))
    a("s_mul_i32 %s, %s, %d" % (S(4), S(0), 4 * 18432))
    a("s_lshl_b32 %s, %s, 10" % (S(5), S(1)))
    a("s_add_u32 %s, %s, %s" % (S(4), S(4), S(5)))
    a("s_add_u32 %s, %s, %s" % (S(4), S(4), hx(W1T_OFF)))
    a("s_mul_i32 %s, %s, %d" % (S(1), S(1), 32 * 9216))
    a("s_lshl_b32 %s, %s, 7" % (S(0), S(0)))
    a("s_add_u32 %s, %s, %s" % (S(0), S(0), S(1)))
    a("s_movk_i32 %s, 9216" % S(1))
    a("v_mad_u32_u24 v%d, v%d, %s, v%d" % (vt, vt, S(1), vt + 1))
    for k in range(4):
        a("s_add_u32 %s, %s, %d" % (S(2), S(0), 8 * 9216 * k))
        a("buffer_load_dwordx4 %s, v%d, s[%d:%d], %s offen" % (vr(vd + 4 * k, 4), vt, sw1, sw1 + 3, S(2)))
    a("s_branch %s" % lab2)
    a("%s:" % lab)
    a("s_sub_u32 %s, s%d, 1296" % (S(2), s_tile))
    a("s_mul_i32 %s, %s, 7282" % (S(0), S(2)))
    a("s_lshr_b32 %s, %s, 16" % (S(0), S(0)))
    a("s_mul_i32 %s, %s, 9" % (S(1), S(0)))
    a("s_sub_u32 %s, %s, %s" % (S(1), S(2), S(1)))
    a("s_mul_i32 %s, %s, 3641" % (S(2), S(0)))
    a("s_lshr_b32 %s, %s, 16" % (S(2), S(2)))
    a("s_mul_i32 %s, %s, %d" % (S(4), S(2), 36 * 18432 - 18 * 1024))
    a("s_lshl_b32 %s, %s, 10" % (S(5), S(0)))
    a("s_add_u32 %s, %s, %s" % (S(4), S(4), S(5)))
    a("s_mul_i32 %s, %s, %d" % (S(5), S(1), 4 * 18432))
    a("s_add_u32 %s, %s, %s" % (S(4), S(4), S(5)))
    a("s_add_u32 %s, %s, %s" % (S(4), S(4), hx(W2T_OFF)))
    a("s_mul_i32 %s, %s, %d" % (S(0), S(0), 32 * 1152))
    a("s_lshl_b32 %s, %s, 7" % (S(1), S(1)))
    a("s_add_u32 %s, %s, %s" % (S(0), S(0), S(1)))
    a("s_movk_i32 %s, 1152" % S(1))
    a("v_mad_u32_u24 v%d, v%d, %s, v%d" % (vt, vt, S(1), vt + 1))
    for k in range(4):
        a("s_add_u32 %s, %s, %d" % (S(2), S(0), 8 * 1152 * k))
        a("buffer_load_dwordx4 %s, v%d, s[%d:%d], %s offen" % (vr(vd + 4 * k, 4), vt, sw2, sw2 + 3, S(2)))
    a("%s:" % lab2)
    toks = [object() for _ in range(4)]
    a.vm.extend(toks)
    return toks


def tile_finish(a, toks, lane, vr0, vt, s0, stf="", vd=None):
    S = lambda i: "s%d" % (s0 + i)
    a("v_bfe_u32 v%d, v%d, 2, 4" % (vt, lane))
    a("v_bfe_u32 v%d, v%d, 1, 2" % (vt + 1, vt))
    a("v_lshlrev_b32 v%d, 5, v%d" % (vt + 1, vt + 1))
    a("v_lshl_add_u32 v%d, v%d, 7, v%d" % (vt, vt, vt + 1))
    a("v_and_b32 v%d, 3, v%d" % (vt + 1, lane))
    a("v_lshl_add_u32 v%d, v%d, 3, v%d" % (vt, vt + 1, vt))
    a("v_add_u32 v%d, %s, v%d" % (vt, S(3), vt))
    a.wait(vm=toks)
    a("v_lshl_add_u32 v%d, v%d, 4, %s" % (vt + 1, lane, S(3)))
    wt_ = [a.lds("ds_write_b128 v%d, %s offset:%d" % (vt + 1, vr(vd + 4 * k, 4), 1024 * k)) for k in range(4)]
    a.wait(lg=wt_)
    rt = []
    for b in range(4):
        if b: a("v_xor_b32 v%d, %d, v%d" % (vt, (b ^ (b - 1)) * 32, vt))
        rt.append([a.lds("ds_read_b64_tr_b16 %s, v%d offset:%d" % (vr(vr0 + 4 * b + 2 * i, 2), vt, 2048 * i)) for i in range(2)])
    a("v_lshlrev_b32 v%d, 4, v%d" % (vt + 1, lane))
    for b in range(4):
        a.wait(lg=rt[b])
        if b: a("s_add_u32 %s, %s, 18432" % (S(4), S(4)))
        a.vmem("buffer_store_dwordx4 %s, v%d, s[12:15], %s offen%s" % (vr(vr0 + 4 * b, 4), vt + 1, S(4), stf))


def gen_k1(name, stamps=False, stf=""):
    a = Asm()
    def stamp(k):
        if stamps: a("s_memrealtime s[%d:%d]" % (80 + 2 * k, 81 + 2 * k))
    def dump(n):
        if not stamps: return
        a("s_waitcnt vmcnt(0)")
        stamp(n - 1)
        a("s_waitcnt lgkmcnt(0)")
        for k in range(8):
            a("v_mov_b32 v%d, s%d" % (100 + k, 80 + 2 * min(k, n - 1)))
        a("s_lshl_b32 s79, s2, 3")
        a("s_add_u32 s79, s79, s22")
        a("s_lshl_b32 s79, s79, 5")
        a("s_add_u32 s79, s79, %s" % hx(STAMP_OFF + 0x700000))
        a("v_mov_b32 v108, 0")
        a("s_mov_b64 exec, 1")
        a("buffer_store_dwordx4 v[100:103], v108, s[12:15], s79 offen")
        a("buffer_store_dwordx4 v[104:107], v108, s[12:15], s79 offen offset:16")
    INV576 = hx(f32bits(1.0 / 576.0))
    a("s_cmp_ge_u32 s2, 256")
    a("s_cbranch_scc1 %s_end" % name)
    stamp(0)
    a("s_load_dwordx4 s[40:43], s[0:1], 0")
    a("s_load_dwordx2 s[44:45], s[0:1], 16")
    a("s_load_dwordx4 s[56:59], s[0:1], 32")
    a("s_load_dwordx2 s[60:61], s[0:1], 48")
    a("s_load_dwordx2 s[46:47], s[0:1], 80")
    a("v_lshrrev_b32 v1, 6, v0")
    a("v_and_b32 v2, 63, v0")
    a("v_readfirstlane_b32 s22, v1")
    a("s_mov_b32 s50, %d" % MAGIC576)
    a("s_movk_i32 s51, 576")
    a("s_mov_b32 s52, %s" % INV576)
    a("s_lshl_b32 s62, s2, 3")
    a("s_add_u32 s62, s62, s22")
    a("s_cmp_ge_u32 s2, 192")
    a("s_cbranch_scc1 %s_prep" % name)
    a("s_and_b32 s20, s2, 7")
    a("s_lshr_b32 s21, s2, 3")
    a("s_mul_i32 s23, s21, 43")
    a("s_lshr_b32 s23, s23, 7")
    a("s_mul_i32 s24, s23, 3")
    a("s_sub_u32 s24, s21, s24")
    a("s_lshl_b32 s23, s23, 3")
    a("s_add_u32 s23, s23, s20")
    a("s_lshr_b32 s25, s23, 1")
    a("s_and_b32 s26, s23, 1")
    a("v_lshrrev_b32 v3, 4, v2")
    a("v_and_b32 v4, 15, v2")
    a("s_lshl_b32 s27, s22, 2")
    a("v_add_u32 v5, s27, v3")
    a("s_mov_b32 s28, %d" % (32 * 1152))
    a("v_mul_lo_u32 v6, v5, s28")
    a("v_lshl_add_u32 v6, v4, 3, v6")
    a("s_lshl_b32 s29, s26, 10")
    a("s_add_u32 s29, s29, s25")
    a("s_mul_i32 s29, s29, 1152")
    a("s_waitcnt lgkmcnt(0)")
    if stamps == 2: stamp(3)
    srd(a, 4, 40, 41, 2048 * 1152)
    srd(a, 12, 46, 47, WS_BYTES)
    srd(a, 64, 56, 57, 576 * 9216)
    srd(a, 68, 60, 61, 4608 * 1152)
    XR = 8
    xt = []
    for j in range(9):
        xt.append(a.vmem("buffer_load_dwordx2 %s, v6, s[4:7], s29 offen offset:%d" % (vr(XR + 2 * j, 2), j * 128)))
    ttk = tile_issue(a, 62, 2, 90, 64, 68, 72, 0, 56)
    a("s_cmp_lt_u32 s2, 188")
    a("s_cbranch_scc1 %s_no2a" % name)
    a("s_add_u32 s63, s62, %d" % (2048 - 188 * 8))
    vm0 = list(a.vm)
    tile_issue(a, 63, 2, 92, 64, 68, 34, 32768, 72)
    a.vm = vm0
    a("%s_no2a:" % name)
    if stamps == 2: stamp(4)
    CF = [100, 172]
    U0 = 28
    def gen_cf(blk_s, base):
        a("s_lshl_b32 s30, s%d, 4" % blk_s)
        a("v_add_u32 v40, s30, v4")
        a("v_lshrrev_b32 v41, 1, v40")
        a("v_and_b32 v42, 1, v40")
        a("v_cmp_eq_u32 vcc, 1, v40")
        a("v_mov_b32 v43, 288")
        a("v_mov_b32 v44, 0")
        a("v_cndmask_b32 v41, v41, v43, vcc")
        a("v_cndmask_b32 v42, v42, v44, vcc")
        a("v_cvt_f32_u32 v42, v42")
        a("v_mul_f32 v42, 0.25, v42") if False else a("v_mul_f32 v42, %s, v42" % hx(f32bits(0.25)))
        a("v_lshlrev_b32 v43, 5, v41")
        mod576(a, 43, 43, 44, 50, 51)
        a("v_cvt_f32_u32 v43, v43")
        a("v_mul_f32 v%d, s52, v43" % (U0 + 8))
        a("v_lshlrev_b32 v45, 2, v3")
        for e in range(8):
            d0 = 16 * (e >> 2) + (e & 3)
            a("v_add_u32 v43, %d, v45" % d0)
            a("v_mul_u32_u24 v43, v43, v41")
            mod576(a, 43, 43, 44, 50, 51)
            a("v_cvt_f32_u32 v43, v43")
            a("v_fma_f32 v%d, v43, s52, v42" % (U0 + e))
        a("v_and_b32 v46, 1, v41")
        a("v_mul_u32_u24 v46, 0x8000, v46")
        a("v_lshl_or_b32 v%d, v46, 16, v46" % (U0 + 10))
        a("v_and_b32 v43, 1, v40")
        a("v_and_b32 v44, 3, v41")
        a("v_lshlrev_b32 v43, 2, v43")
        a("v_add_u32 v43, v43, v44")
        a("v_lshrrev_b32 v43, v43, %s" % "v47") if False else None
        a("v_mov_b32 v47, 0x6c")
        a("v_lshrrev_b32 v43, v43, v47")
        a("v_and_b32 v43, 1, v43")
        a("v_mul_u32_u24 v43, 0x8000, v43")
        a("v_lshl_or_b32 v%d, v43, 16, v43" % (U0 + 9))
        T = 40
        for t in range(5):
            ne = 8 if t < 4 else 4
            for e in range(ne):
                if t:
                    a("v_fmamk_f32 v%d, v%d, %s, v%d" % (T + 8 + e, U0 + 8, hx(f32bits(float(t))), U0 + e))
            for e in range(ne):
                a("v_cos_f32 v%d, v%d" % (T + e, T + 8 + e if t else U0 + e))
            for h in range(ne // 2):
                a("v_cvt_pk_f16_f32 v%d, v%d, v%d" % (base + 4 * t + h, T + 2 * h, T + 2 * h + 1))
        for r in range(18):
            a("v_xor_b32_dpp v%d, v%d, v%d quad_perm:[0,1,3,2] row_mask:0xf bank_mask:0xf" % (base + 18 + r, base + r, U0 + 9))
        for r in range(36):
            a("v_xor_b32 v%d, v%d, v%d" % (base + 36 + r, U0 + 10, base + r))
    a("s_mul_i32 s31, s24, 12")
    a("s_add_u32 s31, s31, s22")
    gen_cf(31, CF[0])
    if stamps == 2: stamp(5)
    a("s_cmp_ge_u32 s22, 4")
    a("s_cbranch_scc1 %s_noB" % name)
    a("s_add_u32 s32, s31, 8")
    gen_cf(32, CF[1])
    a("%s_noB:" % name)
    XF = 40
    stamp(1)
    tile_finish(a, ttk, 2, 56, 90, 72, stf, 56)
    a("s_cmp_lt_u32 s2, 188")
    a("s_cbranch_scc1 %s_no2" % name)
    a("s_waitcnt vmcnt(4)")
    tile_finish(a, [], 2, 72, 92, 34, stf, 72)
    a("%s_no2:" % name)
    a.vm = []; a.lg = []
    a("s_nop 1")
    stamp(2)
    for i in range(18):
        a("v_lshlrev_b32 v%d, 16, v%d" % (XF + 2 * i, XR + i))
        a("v_and_b32 v%d, 0xffff0000, v%d" % (XF + 2 * i + 1, XR + i))
    A0 = 28
    a("v_pk_add_f32 %s, %s, %s" % (vr(A0, 2), vr(XF, 2), vr(XF + 2, 2)))
    a("v_pk_add_f32 %s, %s, %s" % (vr(A0 + 2, 2), vr(XF + 4, 2), vr(XF + 6, 2)))
    for i in range(4, 18):
        d = A0 + 2 * (i & 1)
        a("v_pk_add_f32 %s, %s, %s" % (vr(d, 2), vr(d, 2), vr(XF + 2 * i, 2)))
    a("v_pk_add_f32 %s, %s, %s" % (vr(A0, 2), vr(A0, 2), vr(A0 + 2, 2)))
    a("v_add_f32 v%d, v%d, v%d" % (A0, A0, A0 + 1))
    def rowsum(r):
        for sh in (8, 4, 2, 1):
            a("v_add_f32_dpp v%d, v%d, v%d row_ror:%d row_mask:0xf bank_mask:0xf" % (r, r, r, sh))
    rowsum(A0)
    a("v_mul_f32 v%d, s52, v%d" % (A0, A0))
    a("v_sub_f32 v%d, 0, v%d" % (A0 + 2, A0))
    a("v_sub_f32 v%d, 0, v%d" % (A0 + 3, A0))
    a("v_cvt_pk_bf16_f32 v%d, v%d, v%d" % (A0 + 1, A0 + 2, A0 + 2))
    a("v_lshlrev_b32 v%d, 16, v%d" % (A0 + 4, A0 + 1))
    a("v_lshlrev_b32 v%d, 16, v%d" % (A0 + 5, A0 + 1))
    a("v_mov_b32 v%d, 0" % (A0 + 6)); a("v_mov_b32 v%d, 0" % (A0 + 7))
    a("v_mov_b32 v%d, 0" % (A0 + 8)); a("v_mov_b32 v%d, 0" % (A0 + 9))
    TT = 76
    for i in range(18):
        t = TT + 2 * (i & 3)
        d = A0 + 6 + 2 * (i & 1)
        a("v_pk_add_f32 %s, %s, %s" % (vr(t, 2), vr(XF + 2 * i, 2), vr(A0 + 2, 2)))
        a("v_pk_fma_f32 %s, %s, %s, %s" % (vr(d, 2), vr(t, 2), vr(t, 2), vr(d, 2)))
    a("v_pk_add_f32 %s, %s, %s" % (vr(A0 + 6, 2), vr(A0 + 6, 2), vr(A0 + 8, 2)))
    a("v_add_f32 v%d, v%d, v%d" % (A0 + 6, A0 + 6, A0 + 7))
    rowsum(A0 + 6)
    V = A0 + 6
    a("v_mul_f32 v%d, s52, v%d" % (V, V))
    a("v_cvt_pk_bf16_f32 v%d, v%d, v%d" % (V, V, V))
    a("v_lshlrev_b32 v%d, 16, v%d" % (V, V))
    a("v_add_f32 v%d, %s, v%d" % (V, hx(f32bits(1e-5)), V))
    a("v_cvt_pk_bf16_f32 v%d, v%d, v%d" % (V, V, V))
    a("v_lshlrev_b32 v%d, 16, v%d" % (V, V))
    a("v_sqrt_f32 v%d, v%d" % (V, V))
    a("v_cvt_pk_bf16_f32 v%d, v%d, v%d" % (V, V, V))
    a("v_lshlrev_b32 v%d, 16, v%d" % (V, V))
    a("v_rcp_f32 v%d, v%d" % (V, V))
    a("v_mov_b32 v%d, v%d" % (V + 1, V))
    a("v_and_b32 v84, 3, v4")
    a("v_lshrrev_b32 v85, 3, v4")
    a("v_lshl_add_u32 v86, v85, 2, v84")
    a("v_and_b32 v87, 15, v5")
    a("v_xor_b32 v86, v86, v87")
    a("v_lshl_add_u32 v86, v84, 4, v86")
    a("v_lshl_add_u32 v86, v85, 6, v86")
    a("v_lshrrev_b32 v87, 4, v5")
    a("v_mul_u32_u24 v87, %d, v87" % (18 * 64))
    a("v_add_u32 v86, v86, v87")
    a("v_lshlrev_b32 v86, 4, v86")
    a("v_bfe_u32 v87, v4, 2, 1")
    a("v_lshl_add_u32 v86, v87, 3, v86")
    a("v_bfe_u32 v88, v5, 2, 1")
    a("v_lshlrev_b32 v88, 3, v88")
    a("v_bfe_u32 v89, v5, 4, 1")
    a("v_lshl_add_u32 v88, v89, 2, v88")
    a("v_and_b32 v89, 3, v5")
    a("v_add_u32 v88, v88, v89")
    a("v_lshl_add_u32 v88, v84, 4, v88")
    a("v_lshl_add_u32 v88, v85, 6, v88")
    a("v_bfe_u32 v89, v5, 3, 1")
    a("v_mul_u32_u24 v89, %d, v89" % (6 * 64))
    a("v_add_u32 v88, v88, v89")
    a("v_lshlrev_b32 v88, 4, v88")
    a("v_bfe_u32 v89, v4, 2, 1")
    a("v_lshl_add_u32 v88, v89, 3, v88")
    a("v_add_u32 v88, 36864, v88")
    for j in range(9):
        for i in (2 * j, 2 * j + 1):
            x = XF + 2 * i
            a("v_pk_add_f32 %s, %s, %s" % (vr(x, 2), vr(x, 2), vr(A0 + 4, 2)))
        for i in (2 * j, 2 * j + 1):
            x = XF + 2 * i
            a("v_cvt_pk_bf16_f32 v%d, v%d, v%d" % (XR + i, x, x + 1))
        for i in (2 * j, 2 * j + 1):
            x = XF + 2 * i
            a("v_lshlrev_b32 v%d, 16, v%d" % (x, XR + i))
            a("v_and_b32 v%d, 0xffff0000, v%d" % (x + 1, XR + i))
        for i in (2 * j, 2 * j + 1):
            x = XF + 2 * i
            a("v_pk_mul_f32 %s, %s, %s" % (vr(x, 2), vr(x, 2), vr(V, 2)))
        for i in (2 * j, 2 * j + 1):
            x = XF + 2 * i
            a("v_cvt_pk_bf16_f32 v%d, v%d, v%d" % (XR + i, x, x + 1))
        for i in (2 * j, 2 * j + 1):
            x = XF + 2 * i
            a("v_lshlrev_b32 v%d, 16, v%d" % (x, XR + i))
            a("v_and_b32 v%d, 0xffff0000, v%d" % (x + 1, XR + i))
        x = XF + 4 * j
        a("v_cvt_pk_f16_f32 v%d, v%d, v%d" % (x, x, x + 1))
        a("v_cvt_pk_f16_f32 v%d, v%d, v%d" % (x + 1, x + 2, x + 3))
        a.lds("ds_write_b64 v86, %s offset:%d" % (vr(x, 2), j * 2048))
    for nt in range(3):
        a("s_cmp_lg_u32 s24, %d" % nt)
        a("s_cbranch_scc1 %s_x%d" % (name, nt))
        for jl in range(3):
            a("ds_write_b64 v88, %s offset:%d" % (vr(XR + 2 * (3 * nt + jl), 2), jl * 2048))
        a("%s_x%d:" % (name, nt))
    if stamps != 2: stamp(3)
    a("v_xor_b32 v84, v3, v4")
    a("v_lshl_add_u32 v85, v3, 4, v84")
    a("v_lshlrev_b32 v85, 4, v85")
    a("v_xor_b32 v84, 4, v84")
    a("v_lshl_add_u32 v86, v3, 4, v84")
    a("v_lshlrev_b32 v86, 4, v86")
    a("v_lshlrev_b32 v87, 12, v4")
    a("v_lshl_add_u32 v87, v3, 8, v87")
    a("s_lshr_b32 s33, s25, 4")
    a("s_lshl_b32 s33, s33, 1")
    a("s_add_u32 s33, s33, s26")
    a("s_lshl_b32 s33, s33, 6")
    a("s_and_b32 s34, s25, 15")
    a("s_add_u32 s33, s33, s34")
    a("s_lshl_b32 s33, s33, 4")
    a("s_add_u32 s33, s33, %s" % hx(ZF_OFF))
    a("s_lshl_b32 s34, s31, 16")
    a("s_add_u32 s33, s33, s34")
    a.wait_all(vm=False, lg=True)
    if stamps != 2: stamp(4)
    a("s_barrier")
    if stamps != 2: stamp(5)
    AF = 40
    ACC = 8

    def mm(nblk):
        toks = {}
        def rd(t):
            af = AF + 8 * (t % 3)
            toks[t] = [a.lds("ds_read_b128 %s, v%d offset:%d" % (vr(af + 4 * mb, 4), 85 + (t & 1), (mb * 18 + t) * 1024)) for mb in range(2)]
        rd(0); rd(1)
        for t in range(18):
            if t + 2 < 18: rd(t + 2)
            af = AF + 8 * (t % 3)
            for mb in range(2):
                a.wait(lg=toks[t][mb])
                for bl in range(nblk):
                    d = ACC + 8 * bl + 4 * mb
                    a("v_mfma_f32_16x16x32_f16 %s, %s, %s, %s" % (vr(d, 4), vr(af + 4 * mb, 4), vr(CF[bl] + 4 * t, 4), "0" if t == 0 else vr(d, 4)))
        for bl in range(nblk):
            d = ACC + 8 * bl
            for i in range(8):
                a("v_mul_f32 v%d, %s, v%d" % (d + i, hx(f32bits(2.0 ** -5)), d + i))
            for h in range(4):
                a("v_cvt_pk_f16_f32 v%d, v%d, v%d" % (64 + 4 * bl + h, d + 2 * h, d + 2 * h + 1))
            if bl:
                a("s_add_u32 s33, s33, %d" % (8 << 16))
            a("buffer_store_dwordx4 %s, v87, s[12:15], s33 offen" % vr(64 + 4 * bl, 4))
    a("s_cmp_ge_u32 s22, 4")
    a("s_cbranch_scc1 %s_mm1" % name)
    mm(2)
    stamp(6); dump(8)
    a("s_endpgm")
    a("%s_mm1:" % name)
    a("s_sub_u32 s34, s22, 4")
    a("s_mul_i32 s34, s34, 3072")
    a("v_lshlrev_b32 v88, 4, v2")
    a("v_add_u32 v89, s34, v88")
    ct = [a.lds("ds_read_b128 %s, v89 offset:%d" % (vr(172 + 4 * i, 4), 36864 + 1024 * i)) for i in range(3)]
    a("s_mul_i32 s35, s23, 36864")
    a("s_mul_i32 s36, s24, 6144")
    a("s_add_u32 s35, s35, s36")
    a("s_add_u32 s35, s35, s34")
    a("s_cmp_ge_u32 s22, 6")
    a("s_cselect_b32 s36, %d, 0" % (18432 - 6144))
    a("s_add_u32 s35, s35, s36")
    a("s_add_u32 s35, s35, %s" % hx(XNF_OFF))
    a.wait(lg=ct)
    mm(1)
    for i in range(3):
        a("buffer_store_dwordx4 %s, v88, s[12:15], s35 offen offset:%d" % (vr(172 + 4 * i, 4), 1024 * i))
    stamp(6); dump(8)
    a("s_endpgm")

    a("%s_prep:" % name)
    a.vm = []; a.lg = []
    a("s_sub_u32 s20, s2, 192")
    a("s_and_b32 s21, s20, 31")
    a("s_lshr_b32 s23, s20, 5")
    a("s_waitcnt lgkmcnt(0)")
    srd(a, 4, 42, 43, 2048 * 578)
    srd(a, 8, 44, 45, 2048 * 578)
    srd(a, 12, 46, 47, WS_BYTES)
    srd(a, 16, 58, 59, 9216)
    srd(a, 64, 56, 57, 576 * 9216)
    srd(a, 68, 60, 61, 4608 * 1152)
    a("s_bfe_u32 s24, s22, 0x10002")
    a("s_lshl_b32 s25, s23, 1")
    a("s_add_u32 s24, s24, s25")
    a("s_lshl_b32 s24, s24, 2")
    a("s_and_b32 s25, s22, 3")
    a("s_add_u32 s24, s24, s25")
    a("s_lshl_b32 s24, s24, 6")
    a("s_lshl_b32 s25, s21, 1")
    a("s_add_u32 s24, s24, s25")
    a("s_mul_i32 s24, s24, 578")
    a("s_add_u32 s25, s24, %d" % (16 * 64 * 578))
    a("v_lshlrev_b32 v3, 2, v2")
    WL = 100
    wt = []
    for mb in range(2):
        for arr in range(2):
            for it in range(5):
                if it == 4: a("s_mov_b32 exec_hi, 1")
                wt.append(a.vmem("buffer_load_dword v%d, v3, s[%d:%d], s%d offen offset:%d" % (WL + (mb * 2 + arr) * 5 + it, 4 + 4 * arr, 7 + 4 * arr, 24 + mb, 256 * it)))
                if it == 4: a("s_mov_b32 exec_hi, -1")
    a("s_cmp_lg_u32 s20, 63")
    a("s_cbranch_scc1 %s_nz" % name)
    for r_ in range(20, 24): a("v_mov_b32 v%d, 0" % r_)
    a("v_lshlrev_b32 v4, 5, v0")
    a("s_mov_b32 s26, %s" % hx(CNT_OFF))
    a("buffer_store_dwordx4 v[20:23], v4, s[12:15], s26 offen")
    a("buffer_store_dwordx4 v[20:23], v4, s[12:15], s26 offen offset:16")
    a("%s_nz:" % name)
    a("s_lshl_b32 s26, s20, 9")
    a("v_add_u32 v4, s26, v0")
    a("v_lshlrev_b32 v5, 1, v4")
    bt = a.vmem("buffer_load_ushort v6, v5, s[16:19], 0 offen")
    a("v_and_b32 v8, 15, v2")
    a("v_lshrrev_b32 v9, 4, v2")
    a("v_lshlrev_b32 v7, 4, v2")
    ttk = tile_issue(a, 62, 2, 90, 64, 68, 72, 0, 128)
    a("s_add_u32 s63, s62, %d" % (2048 - 188 * 8))
    tile_issue(a, 63, 2, 92, 64, 68, 96, 32768, 144)
    a("s_sub_u32 s28, s62, %d" % (192 * 8))
    a("s_cmp_ge_u32 s28, 20")
    a("s_cbranch_scc1 %s_nocf" % name)
    a("s_lshr_b32 s31, s28, 2")
    a("s_bfe_u32 s32, s28, 0x10001")
    a("s_and_b32 s33, s28, 1")
    a("s_bfe_u32 s34, s28, 0x10001")
    a("s_cmp_lt_u32 s28, 16")
    a("s_cselect_b32 s30, 1, 0")
    a("s_cselect_b32 s31, s31, s34")
    a("s_cselect_b32 s32, s32, s33")
    a("s_cselect_b32 s33, s33, 0")
    a("s_cselect_b32 s34, 63, 31")
    a("s_lshl_b32 s30, s30, 23")
    a("s_sub_u32 s35, %s, s30" % hx(f32bits(1 / 32.)))
    a("s_sub_u32 s36, %s, s30" % hx(f32bits(0.25)))
    a("s_cmp_eq_u32 s32, 0")
    a("s_cselect_b32 s37, 0, %s" % hx(f32bits(0.75)))
    a("s_lshl_b32 s31, s31, 4")
    a("v_add_u32 v10, s31, v8")
    a("s_lshl_b32 s33, s33, 5")
    a("v_lshl_add_u32 v11, v9, 2, s33")
    a("v_mov_b32 v16, s37")
    for e in range(8):
        off = 16 * (e >> 2) + (e & 3)
        a("v_add_u32 v12, %d, v11" % off)
        a("v_mul_u32_u24 v13, v12, v10")
        a("v_and_b32 v13, s34, v13")
        a("v_cvt_f32_u32 v13, v13")
        a("v_fma_f32 v13, v13, s35, v16")
        a("v_cos_f32 v13, v13")
        a("v_mul_f32 v%d, s36, v13" % (20 + e))
    for h in range(4):
        a("v_cvt_pk_f16_f32 v%d, v%d, v%d" % (28 + h, 20 + 2 * h, 21 + 2 * h))
    a("s_lshl_b32 s28, s28, 10")
    a("s_add_u32 s28, s28, %s" % hx(CONST_OFF))
    a("buffer_store_dwordx4 v[28:31], v7, s[12:15], s28 offen")
    a("%s_nocf:" % name)
    stamp(1)
    a.wait_all(vm=True, lg=False)
    stamp(2)
    tile_finish(a, [], 2, 128, 90, 72, stf, 128)
    tile_finish(a, [], 2, 144, 92, 96, stf, 144)
    a("v_lshlrev_b32 v6, 16, v6")
    a("v_lshlrev_b32 v5, 2, v4")
    a("v_cmp_gt_u32 vcc, 4608, v4")
    a("s_mov_b32 s28, %s" % hx(B1F_OFF))
    a("s_and_saveexec_b64 s[30:31], vcc")
    a("s_cbranch_execz %s_nob1" % name)
    a("buffer_store_dword v6, v5, s[12:15], s28 offen")
    a("%s_nob1:" % name)
    a("s_mov_b64 exec, -1")
    a("s_mul_i32 s28, s22, 1160")
    a("v_add_u32 v10, s28, v3")
    for mb in range(2):
        for arr in range(2):
            for it in range(5):
                if it == 4: a("s_mov_b32 exec_hi, 1")
                a("ds_write_b32 v10, v%d offset:%d" % (WL + (mb * 2 + arr) * 5 + it, (arr * 16 + mb * 8) * 1160 + 256 * it))
                if it == 4: a("s_mov_b32 exec_hi, -1")
    a("s_waitcnt lgkmcnt(0)")
    stamp(3)
    a("s_barrier")
    stamp(4)
    a("s_lshr_b32 s28, s21, 3")
    a("s_lshl_b32 s28, s28, 11")
    a("s_and_b32 s29, s21, 7")
    a("s_lshl_b32 s29, s29, 6")
    a("s_add_u32 s28, s28, s29")
    a("s_lshl_b32 s29, s23, 10")
    a("s_add_u32 s28, s28, s29")
    a("s_add_u32 s28, s28, %s" % hx(WT_OFF))
    a("s_lshl_b32 s29, s20, 2")
    a("s_add_u32 s29, s29, %s" % hx(WMAX_OFF))
    for it in range(3):
        a("v_add_u32 v10, %d, v0" % (512 * it))
        a("v_and_b32 v11, 1, v10")
        a("v_bfe_u32 v12, v10, 1, 1")
        a("v_lshrrev_b32 v13, 2, v10")
        a("v_min_u32 v13, 288, v13")
        a("v_mul_u32_u24 v14, 578, v11")
        a("v_lshl_add_u32 v14, v13, 1, v14")
        a("v_mul_u32_u24 v15, %d, v12" % (4 * 1160))
        a("v_add_u32 v14, v14, v15")
        for mb in range(2):
            for r in range(4):
                e = mb * 4 + r
                a("ds_read_u16 v%d, v14 offset:%d" % (32 + e, (mb * 8 + r) * 1160))
                a("ds_read_u16 v%d, v14 offset:%d" % (40 + e, (16 + mb * 8 + r) * 1160))
        a("v_lshlrev_b32 v15, 13, v13")
        a("v_lshl_add_u32 v15, v12, 9, v15")
        a("v_lshl_add_u32 v15, v11, 5, v15")
        a("s_waitcnt lgkmcnt(0)")
        for e in range(8):
            a("v_lshl_or_b32 v%d, v%d, 16, v%d" % (20 + e, 40 + e, 32 + e))
        for e in range(8):
            a("v_and_b32 v%d, 0x7fff, v%d" % (32 + e, 32 + e))
            a("v_and_b32 v%d, 0x7fff, v%d" % (40 + e, 40 + e))
        a("v_max3_u32 v32, v32, v33, v34")
        for e in range(3, 15, 2):
            a("v_max3_u32 v32, v32, v%d, v%d" % (32 + e, 33 + e))
        a("v_max_u32 v32, v32, v47")
        a("v_max_u32_dpp v32, v32, v32 quad_perm:[1,0,3,2] row_mask:0xf bank_mask:0xf")
        a("v_max_u32_dpp v32, v32, v32 quad_perm:[2,3,0,1] row_mask:0xf bank_mask:0xf")
        a("v_lshlrev_b32 v32, 16, v32")
        a("v_lshlrev_b32 v33, 8, v13")
        a("buffer_store_dword v32, v33, s[12:15], s29 offen")
        a("buffer_store_dwordx4 v[20:23], v15, s[12:15], s28 offen")
        a("buffer_store_dwordx4 v[24:27], v15, s[12:15], s28 offen offset:16")
    stamp(5)
    stamp(6)
    dump(8)
    a("%s_end:" % name)
    a("s_endpgm")
    n = a.fix_hazards()
    print("k1: nops inserted", n, "lines", len(a.lines))
    return kernel_header(name) + a.text() + kernel_desc(name, 244, 102), K1_LDS
```

```python
from asmgen import *
from layout import *
from collections import deque
from gen_epi import epilogue
from gen_fft import fft_body

C0 = -2.0 * 1.4426950408889634 * 0.7978845608028654
C1 = C0 * 0.044715
MFMA = "v_mfma_f32_16x16x32_bf16"
XB = 0
PB = 73728
BIASB = 147456
MLP4_LDS = 163840


def srd(a, s, lo, hi, nbytes):
    a("s_mov_b32 s%d, s%d" % (s, lo))
    a("s_and_b32 s%d, s%d, 0xffff" % (s + 1, hi))
    a("s_mov_b32 s%d, %s" % (s + 2, hx(nbytes)))
    a("s_mov_b32 s%d, 0x20000" % (s + 3))


def gen_mlp(name, DK=8, PB_D=2, stamps=0, cmap=1, nogelu=0, nostore=0, stf=0, RATE=8.5, prio=0, aux=0, epi=0, est=0, fft=0, SLP=4, G1=7, NA0=3, fprio=1):
    if epi and not stf: stf = 1
    a = Asm()
    AR = 16
    BR = AR + DK * 8
    ACC = [BR + (PB_D + 1) * 16, BR + (PB_D + 1) * 16 + 32]
    BIAS = ACC[1] + 32
    TMP = BIAS + 8
    PK = TMP + 4
    NV = PK + 8
    assert NV <= 256, NV
    vL, vLP, vBias, vPw, vC1, vPw8 = 1, 2, 3, 4, 5, 6
    LA = ["", " sc1", " nt", " sc0"][aux]

    a("s_cmp_ge_u32 s2, 256")
    a("s_cbranch_scc1 %s_end" % name)
    a("s_load_dwordx2 s[46:47], s[0:1], 80")
    if est: a("s_memrealtime s[58:59]")
    if stamps:
        a("s_memtime s[60:61]")
        a("s_memrealtime s[58:59]")
    a("v_lshrrev_b32 v8, 6, v0")
    a("v_and_b32 v9, 63, v0")
    a("v_readfirstlane_b32 s22, v8")
    if cmap == 0:
        a("s_and_b32 s20, s2, 7")
        a("s_lshr_b32 s21, s2, 3")
    else:
        a("s_and_b32 s20, s2, 3")
        a("s_lshl_b32 s20, s20, 1")
        a("s_bfe_u32 s48, s2, 0x10003")
        a("s_add_u32 s20, s20, s48")
        a("s_bfe_u32 s21, s2, 0x10002")
        a("s_lshl_b32 s21, s21, 4")
        a("s_lshr_b32 s48, s2, 4")
        a("s_add_u32 s21, s21, s48")
    a("s_and_b32 s38, s22, 3")
    a("s_lshr_b32 s39, s22, 2")
    a("s_add_u32 s23, s22, s21")
    a("s_and_b32 s23, s23, 7")
    a("s_mul_i32 s24, s20, %d" % (36 * 18432))
    a("s_mul_i32 s25, s23, 36864")
    a("s_add_u32 s25, s25, s24")
    a("s_add_u32 s26, s25, %d" % (16 * 18432))
    a("s_mul_i32 s27, s38, 18432")
    a("s_add_u32 s27, s27, s24")
    a("s_add_u32 s27, s27, %d" % (32 * 18432))
    a("s_lshl_b32 s36, s21, 2")
    a("s_mul_i32 s36, s36, 18432")
    a("s_mul_i32 s29, s38, 18432")
    a("s_add_u32 s36, s36, s29")
    a("s_add_u32 s36, s36, %s" % hx(XNF_OFF))
    a("s_lshl_b32 s37, s20, 6")
    a("s_lshl_b32 s48, s21, 1")
    a("s_add_u32 s37, s37, s48")
    a("s_mul_i32 s37, s37, 36864")
    a("s_add_u32 s37, s37, %s" % hx(PART_OFF))
    a("s_lshl_b32 s48, s23, 11")
    a("s_add_u32 s40, s37, s48")
    a("s_add_u32 s41, s40, 16384")
    a("s_lshl_b32 s48, s38, 10")
    a("s_add_u32 s42, s37, s48")
    a("s_add_u32 s42, s42, 32768")
    a("s_mul_i32 s56, s20, 2304")
    a("s_add_u32 s56, s56, %s" % hx(B1F_OFF))
    a("v_lshlrev_b32 v%d, 4, v9" % vL)
    a("v_add_u32 v%d, %d, v%d" % (vLP, PB, vL))
    a("v_lshrrev_b32 v8, 4, v9")
    a("s_lshl_b32 s48, s23, 7")
    a("s_add_u32 s48, s48, %d" % BIASB)
    a("v_lshl_add_u32 v%d, v8, 4, s48" % vBias)
    a("s_lshl_b32 s48, s38, 6")
    a("s_add_u32 s48, s48, %d" % (BIASB + 2048))
    a("v_lshl_add_u32 v7, v8, 4, s48")
    a("s_lshl_b32 s48, s23, 10")
    a("v_add_u32 v%d, s48, v%d" % (vPw, vLP))
    a("s_lshr_b32 s48, s38, 1")
    a("s_lshl_b32 s48, s48, 10")
    a("s_and_b32 s49, s38, 1")
    a("s_lshl_b32 s49, s49, 3")
    a("s_add_u32 s48, s48, s49")
    a("s_add_u32 s48, s48, 16384")
    a("v_add_u32 v%d, s48, v%d" % (vPw8, vLP))
    a("v_mov_b32 v%d, %s" % (vC1, hx(f32bits(C1))))
    a("s_waitcnt lgkmcnt(0)")
    srd(a, 12, 46, 47, WS_BYTES)
    a("s_cmp_lg_u32 s39, 0")
    a("s_cbranch_scc1 %s_h1" % name)

    def body(hf):
        a.vm = []; a.lg = []
        if prio and hf == prio - 1: a("s_setprio 1")
        npass = 3 if hf == 0 else 2
        tau_order = list(range(18))
        steps = []
        for ph in (1, 2):
            for ps in range(npass):
                for t in range(18):
                    steps.append((ph, ps, 2 if ps < 2 else 1, t))
        N = len(steps)
        a_tok = {}; b_tok = {}

        def issue_a(i):
            ph, ps, nb, t = steps[i]
            base = (W1T_OFF if ph == 1 else W2T_OFF)
            toks = []
            for bi in range(nb):
                if t % 4 == 0 or True:
                    pass
                sreg = 30 + bi
                if t % 4 == 0:
                    a("s_add_u32 s%d, s%d, %s" % (sreg, 25 + ps, hx(base + bi * 18432 + t * 1024)))
                toks.append(a.vmem("buffer_load_dwordx4 %s, v%d, s[12:15], s%d offen offset:%d%s" % (vr(AR + (i % DK) * 8 + 4 * bi, 4), vL, sreg, (t % 4) * 1024, LA)))
            a_tok[i] = toks

        def b_items(i):
            ph, ps, nb, t = steps[i]
            b_tok[i] = []
            out = []
            for sb in range(4):
                def rd(sb=sb):
                    off = (sb * 18 + t) * 1024
                    v = vL if ph == 1 else vLP
                    if off >= 65536:
                        v = 10 if ph == 1 else 11; off -= 65536
                    b_tok[i].append(a.lds("ds_read_b128 %s, v%d offset:%d" % (vr(BR + (i % (PB_D + 1)) * 16 + 4 * sb, 4), v, off)))
                out.append(rd)
            return out

        a("v_add_u32 v10, 0x10000, v%d" % vL)
        a("v_add_u32 v11, 0x10000, v%d" % vLP)
        xt = []
        XS = AR + 8 * (DK - 1)
        def pro_loads():
            if hf == 0:
                for k in range(18):
                    if k % 4 == 0:
                        a("s_add_u32 s33, s36, %d" % (1024 * k))
                    xt.append(a.vmem("buffer_load_dwordx4 %s, v%d, s[12:15], s33 offen offset:%d" % (vr(XS + 4 * k, 4), vL, 1024 * (k % 4))))
                a("s_mul_i32 s33, s38, 576")
                a("s_add_u32 s34, s33, s56")
                xt.append(a.vmem("buffer_load_dwordx4 %s, v%d, s[12:15], s34 offen" % (vr(XS + 72, 4), vL)))
            for i in range(DK - 1): issue_a(i)
        def stage_x():
            if hf == 0:
                a("v_add_u32 v12, s29, v%d" % vL)
                ws_ = []
                for k in range(18):
                    a.wait(vm=xt[k])
                    ws_.append(a.lds("ds_write_b128 v12, %s offset:%d" % (vr(XS + 4 * k, 4), 1024 * k)))
                a("s_mul_i32 s33, s38, 576")
                a("s_add_u32 s33, s33, %d" % BIASB)
                a("v_add_u32 v12, s33, v%d" % vL)
                a.wait(vm=xt[18])
                a("s_mov_b32 exec_hi, 15")
                ws_.append(a.lds("ds_write_b128 v12, %s" % vr(XS + 72, 4)))
                a("s_mov_b32 exec_hi, -1")
                a.wait(lg=ws_)
        SYNC = BIASB + 2304 + hf * 16
        def first_barrier(pl=True):
            if pl:
                pro_loads(); stage_x()
            a("s_barrier")
            if est: a("s_memrealtime s[88:89]")
        if fft:
            a("v_mov_b32 v12, 0")
            a("v_and_b32 v13, 7, v9")
            a("v_lshlrev_b32 v13, 2, v13")
            a("v_add_u32 v13, %d, v13" % (BIASB + 2304))
            a("ds_write_b32 v13, v12")
            a("s_waitcnt lgkmcnt(0)")
            lab = "%s_f%d" % (name, hf)
            nsync = [0]
            def fsync(k):
                n = nsync[0]; nsync[0] += 1
                a("v_mov_b32 v12, %d" % (SYNC + 4 * k if k < 2 else BIASB + 2304 + 8))
                a("v_mov_b32 v13, 1")
                a("s_mov_b64 exec, 1")
                a("ds_add_u32 v12, v13")
                a("%s_s%d:" % (lab, n))
                a("ds_read_b32 v13, v12")
                a("s_waitcnt lgkmcnt(0)")
                a("v_readfirstlane_b32 s73, v13")
                a("s_nop 3")
                a("s_cmp_ge_u32 s73, %s" % ("4" if k < 2 else "s87"))
                a("s_cbranch_scc1 %s_d%d" % (lab, n))
                a("s_sleep 1")
                a("s_branch %s_s%d" % (lab, n))
                a("%s_d%d:" % (lab, n))
                a("s_mov_b64 exec, -1")
                a.lg = []
            if hf == 0:
                a("s_cmp_lt_u32 s2, 223")
                a("s_cbranch_scc1 %s_skip" % lab)
                a("s_add_u32 s72, s2, 33")
            else:
                a("s_mov_b32 s72, s2")
            a("s_mov_b32 s86, %d" % (PB if hf == 0 else BIASB + 2560))
            a("s_cmp_ge_u32 s2, 223")
            a("s_cselect_b32 s87, 8, 4")
            pro_loads(); stage_x()
            if hf == 0:
                first_barrier(False)
            if fprio: a("s_setprio 2")
            nvf = fft_body(a, AR + 8 * (DK - 1), 9, 72, 38, 86, 12, 74, " sc1", (lambda: first_barrier(False)) if hf == 1 else None, fsync)
            assert nvf <= 244, nvf
            st_tok = list(a.vm[-2:])
            if fprio: a("s_setprio 0")
            a("s_nop 1")
            a("s_mov_b32 s88, 1") if not est else a("s_mov_b32 s96, 1")
            vm_fft = list(a.vm)
            if hf == 0:
                a("s_branch %s_join" % lab)
                a("%s_skip:" % lab)
                a.vm = []; a.lg = []; del xt[:]
                first_barrier()
                a("s_mov_b32 s88, 0") if not est else a("s_mov_b32 s96, 0")
            a("%s_join:" % lab)
            a.lg = []
            def publish():
                a("s_cmp_eq_u32 s%d, 0" % (96 if est else 88))
                a("s_cbranch_scc1 %s_pj" % lab)
                a("s_waitcnt lgkmcnt(0)")
                fsync(2)
                a("s_cmp_lg_u32 s38, 0")
                a("s_cbranch_scc1 %s_pj" % lab)
                a("v_lshlrev_b32 v12, 8, v9")
                a("v_mov_b32 v13, 1")
                a("s_mov_b32 s73, %s" % hx(CNT_OFF + 8192))
                a("s_mov_b64 exec, 0xff")
                a("buffer_atomic_add v13, v12, s[12:15], s73 offen sc1")
                a("s_mov_b64 exec, -1")
                a("%s_pj:" % lab)
        else:
            first_barrier()
        if stamps: a("s_memtime s[62:63]")
        if est: a("s_memrealtime s[90:91]")

        fill = deque()
        bucket = {"tok": 0.0}
        def cost_of(lines):
            c = 0
            for l in lines:
                op = l.split()[0]
                c += 8 if op in TRANS else (4 if op.startswith(("buffer", "ds_")) else (1 if op.startswith("s_") else 4))
            return c
        def fine(rate):
            bucket["tok"] += rate
            while fill and bucket["tok"] >= 4:
                n0 = len(a.lines)
                tag, f = fill.popleft(); f()
                bucket["tok"] -= cost_of(a.lines[n0:])
            if not fill: bucket["tok"] = 0.0
        def flush_tag(tag):
            while any(t == tag for t, _ in fill):
                fill.popleft()[1]()
        pw = {}

        def gelu_group(tag, regs, outs):
            T = [TMP + k for k in range(4)]
            seq = []
            for k in range(4): seq.append("v_mul_f32 v%d, v%d, v%d" % (T[k], regs[k], regs[k]))
            for k in range(4): seq.append("v_fmaak_f32 v%d, v%d, v%d, %s" % (T[k], T[k], vC1, hx(f32bits(C0))))
            for k in range(4): seq.append("v_mul_f32 v%d, v%d, v%d" % (T[k], regs[k], T[k]))
            for k in range(4): seq.append("v_exp_f32 v%d, v%d" % (T[k], T[k]))
            for k in range(4): seq.append("v_add_f32 v%d, 1.0, v%d" % (T[k], T[k]))
            for k in range(4): seq.append("v_rcp_f32 v%d, v%d" % (T[k], T[k]))
            for k in range(4): seq.append("v_mul_f32 v%d, v%d, v%d" % (T[k], regs[k], T[k]))
            seq.append("v_cvt_pk_bf16_f32 v%d, v%d, v%d" % (outs[0], T[0], T[1]))
            seq.append("v_cvt_pk_bf16_f32 v%d, v%d, v%d" % (outs[1], T[2], T[3]))
            if nogelu: seq = seq[-2:]
            for s_ in seq: fill.append((tag, lambda s_=s_: a(s_)))

        def accset(ph, ps):
            if ph == 1: return [ACC[0], ACC[1], ACC[0]][ps]
            return [ACC3, ACC[1], ACC[0]][ps] if hf == 0 else [ACC[0], ACC[1]][ps]

        def queue_gelu(ps, nb):
            st = accset(1, ps); tag = "g%d" % ps
            pw[ps] = []
            for sb in range(4):
                pk = PK + 4 * (sb & 1)
                for bi in range(nb):
                    b = st + (bi * 4 + sb) * 4
                    gelu_group(tag, [b, b + 1, b + 2, b + 3], [pk + 2 * bi, pk + 2 * bi + 1])
                def wr(sb=sb, pk=pk):
                    if nb == 2:
                        pw[ps].append(a.lds("ds_write_b128 v%d, %s offset:%d" % (vPw, vr(pk, 4), sb * 18432 + ps * 8192)))
                    else:
                        pw[ps].append(a.lds("ds_write_b64 v%d, %s offset:%d" % (vPw8, vr(pk, 2), sb * 18432)))
                fill.append((tag, wr))

        def queue_store(ps, nb):
            st = accset(2, ps); tag = "s%d" % ps
            fl = ["", " sc1", " sc0 sc1", " nt", " sc1 nt"][stf]
            k = 0
            for bi in range(nb):
                for rg in range(2):
                    pk = PK + 4 * (k & 1); k += 1
                    for s2 in range(2):
                        b = st + (bi * 4 + 2 * rg + s2) * 4
                        for h in range(2):
                            fill.append((tag, lambda pk=pk, s2=s2, b=b, h=h: a("v_cvt_pk_bf16_f32 v%d, v%d, v%d" % (pk + 2 * s2 + h, b + 2 * h, b + 2 * h + 1))))
                    def stv(pk=pk, bi=bi, rg=rg):
                        a("s_add_u32 s34, s%d, %d" % (40 + ps, rg * 36864))
                        a.vmem("buffer_store_dwordx4 %s, v%d, s[12:15], s34 offen offset:%d%s" % (vr(pk, 4), vL, bi * 1024, fl))
                    if not nostore or ps == npass - 1: fill.append((tag, stv))

        bias_tok = {}
        def load_bias(ps):
            if ps < 2:
                bias_tok[ps] = [a.lds("ds_read_b128 %s, v%d offset:%d" % (vr(BIAS + 4 * bi, 4), vBias, 1024 * ps + 64 * bi)) for bi in range(2)]
            else:
                bias_tok[ps] = [a.lds("ds_read_b128 %s, v7" % vr(BIAS, 4))]

        def sync(k):
            flush_tag("g%d" % k)
            if k in pw: a.wait(lg=pw[k])
            a("s_barrier")

        load_bias(0)
        for i in range(PB_D):
            for r_ in b_items(i): r_()
        for i in range(N):
            ph, ps, nb, t = steps[i]
            j = i + PB_D
            rds = []
            if j < N:
                if steps[j][0] == 2 and steps[j][1] == 0 and steps[j][3] in (0, 8, 16):
                    sync(steps[j][3] // 8)
                rds = b_items(j)
            st = accset(ph, ps)
            if t == 0:
                if ph == 1 and ps == 2: flush_tag("g0")
                if ph == 2:
                    for tg in ({0: [], 1: ["g1"], 2: ["g2", "g0"]} if hf == 0 else {0: ["g0"], 1: ["g1"]})[ps]: flush_tag(tg)
            br = BR + (i % (PB_D + 1)) * 16
            nm = 4 * nb
            for k in range(nm):
                bi, sb = k // 4, k % 4
                d = st + (bi * 4 + sb) * 4
                need = [b_tok[i][sb]] if bi == 0 else []
                if t == 0:
                    c = "0" if ph == 2 else vr(BIAS + 4 * bi, 4)
                    if ph == 1: need = need + bias_tok[ps]
                else:
                    c = vr(d, 4)
                a.wait(vm=a_tok[i][bi] if sb == 0 else None, lg=need)
                a("%s %s, %s, %s, %s" % (MFMA, vr(d, 4), vr(AR + (i % DK) * 8 + 4 * bi, 4), vr(br + 4 * sb, 4), c))
                if rds and (nb == 1 or k % 2 == 0): rds.pop(0)()
                if k == nm - 1 and i + DK - 1 < N + 0 and (i + DK - 1) >= DK - 1:
                    pass
                fine(RATE)
            if i + DK - 1 < N: issue_a(i + DK - 1)
            if fft and i == DK:
                lg_save = list(a.lg)
                publish()
                a.lg = lg_save
            if ph == 1 and t == 2 and ps + 1 < npass: load_bias(ps + 1)
            if t == 17:
                if ph == 1: queue_gelu(ps, nb)
                else: queue_store(ps, nb)
                if stamps and ph == 1 and ps == npass - 1: a("s_memtime s[64:65]")
                if est and ph == 1 and ps == npass - 1: a("s_memrealtime s[92:93]")
                if est and ph == 2 and ps == 0: a("s_memrealtime s[94:95]")
                if epi and fft and hf == 0 and ph == 2 and ps == 0:
                    a("s_and_b32 s85, s2, 7")
                    a("s_lshl_b32 s85, s85, 8")
                    a("s_add_u32 s85, s85, %s" % hx(CNT_OFF + 8192))
                    a("v_mov_b32 v12, 0")
                    a.vmem("buffer_load_dword v13, v12, s[12:15], s85 offen sc1")
        while fill: fill.popleft()[1]()
        if stamps:
            a("s_memtime s[66:67]")
            a("s_waitcnt vmcnt(0) lgkmcnt(0)")
            a("s_memtime s[68:69]")
            a("s_memrealtime s[70:71]")
            a("s_waitcnt lgkmcnt(0)")
            for k, sr_ in enumerate((62, 64, 66, 68)):
                a("s_sub_u32 s33, s%d, s60" % sr_)
                a("v_mov_b32 v%d, s33" % (16 + k))
            a("s_lshl_b32 s48, s2, 3")
            a("s_add_u32 s48, s48, s22")
            a("s_lshl_b32 s48, s48, 4")
            a("s_add_u32 s48, s48, %s" % hx(STAMP_OFF))
            a("v_mov_b32 v20, 0")
            a("s_mov_b64 exec, 1")
            a("buffer_store_dwordx4 v[16:19], v20, s[12:15], s48 offen")
            a("v_mov_b32 v22, s58")
            a("v_mov_b32 v23, s70")
            a("s_add_u32 s48, s48, 0x80000")
            a("buffer_store_dwordx2 v[22:23], v20, s[12:15], s48 offen")
        if epi:
            epilogue(a, name, hf, XB, vL, est=est, SLP=SLP, G1=G1, uload=1, early=13 if fft else None)
        else:
            a("s_endpgm")

    ACC3 = NV
    NV2 = NV + 32
    assert NV2 <= 256, NV2
    NV2 = max(NV2, 244)
    body(0)
    a("%s_h1:" % name)
    body(1)
    a("%s_end:" % name)
    a("s_endpgm")
    n = a.fix_hazards()
    print("mlp4: nops inserted", n, "vgprs", NV2, "lines", len(a.lines))
    return kernel_header(name) + a.text() + kernel_desc(name, NV2, 100), MLP4_LDS
```

```python
import sys
import gen_mlp3, gen_mlp4
from gen_k1 import gen_k1
from gen_fft import gen_fft
from gen_k3 import gen_k3
kw = {}
for arg in sys.argv[2:]:
    k, v = arg.split("="); kw[k] = float(v) if '.' in v else int(v)
TL = kw.pop("TL", 0)
DBG = kw.pop("DBG", 0)
EPI = kw.get("epi", 0)
FFT = kw.get("fft", 0)
K3O = kw.pop("K3O", 0)
K1S = kw.pop("K1S", 0)
k1, l1 = gen_k1("k1_kernel", stamps=kw.pop("K1T", 0), stf=["", " sc1", " nt", " sc0 sc1"][K1S])
kf, lf = gen_fft("fft_kernel")
V4 = kw.pop("V4", 1)
km, lm = (gen_mlp4 if V4 else gen_mlp3).gen_mlp("mlp_kernel", **kw)
k3, l3 = gen_k3("k3_kernel", NPART=8, order=K3O)
hdr = """; parallel_sum(spectral_gfnet, dense_gelu): LN + 2D-FFT filter (MFMA DFT) + fused MLP. Generated by own scripts.
; @launch kernel=k1_kernel grid=(256,1,1) block=(512,1,1) lds=%d
%s; @launch kernel=mlp_kernel grid=(256,1,1) block=(512,1,1) lds=%d
%s.amdgcn_target "amdgcn-amd-amdhsa--gfx950"
""" % (l1, "" if FFT else "; @launch kernel=fft_kernel grid=(289,1,1) block=(256,1,1) lds=%d\n" % lf, lm, "" if EPI else "; @launch kernel=k3_kernel grid=(256,1,1) block=(576,1,1) lds=%d\n" % l3)
if EPI: k3 = ""
if FFT: kf = ""
def tl(txt, name, idx):
    from layout import STAMP_OFF
    from asmgen import hx
    pre = """    s_memrealtime s[96:97]
    s_load_dwordx2 s[98:99], s[0:1], 80
    s_mov_b32 s100, s2
    v_readfirstlane_b32 s101, v0
"""
    post = """    s_waitcnt vmcnt(0) lgkmcnt(0)
    s_memrealtime s[94:95]
    s_mov_b32 s88, s98
    s_and_b32 s89, s99, 0xffff
    s_mov_b32 s90, 0x10000000
    s_mov_b32 s91, 0x20000
    s_lshl_b32 s92, s100, 4
    s_lshr_b32 s101, s101, 6
    s_add_u32 s92, s92, s101
    s_lshl_b32 s92, s92, 3
    s_add_u32 s92, s92, %s
    s_waitcnt lgkmcnt(0)
    v_mov_b32 v2, s96
    v_mov_b32 v3, s94
    v_mov_b32 v1, 0
    s_mov_b64 exec, 1
    s_nop 4
    buffer_store_dwordx2 v[2:3], v1, s[88:91], s92 offen
    s_endpgm
""" % hx(STAMP_OFF + 0x400000 + idx * 0x10000)
    txt = txt.replace(name + ":\n", name + ":\n" + pre, 1)
    parts = txt.split("    s_endpgm\n")
    txt = post.join(parts)
    return txt.replace("next_free_sgpr 96", "next_free_sgpr 102").replace("next_free_sgpr 64", "next_free_sgpr 102").replace("next_free_sgpr 100", "next_free_sgpr 102")
def dbg(txt, name, idx):
    pre = """    s_memrealtime s[96:97]
    s_load_dwordx2 s[98:99], s[0:1], 72
    s_mov_b32 s100, s2
    v_readfirstlane_b32 s101, v0
"""
    post = """    s_waitcnt vmcnt(0) lgkmcnt(0)
    s_memrealtime s[94:95]
    s_mov_b32 s88, s98
    s_and_b32 s89, s99, 0xffff
    s_mov_b32 s90, 256
    s_mov_b32 s91, 0x20000
    s_lshr_b32 s92, s100, 5
    s_lshl_b32 s92, s92, 3
    s_and_b32 s100, s100, 31
    s_or_b32 s100, s100, s101
    s_cmp_lg_u32 s100, 0
    s_cselect_b32 s92, 0x1000, s92
    s_waitcnt lgkmcnt(0)
    v_mov_b32 v2, s96
    v_mov_b32 v3, s94
    v_mov_b32 v1, 0
    s_mov_b64 exec, 1
    s_nop 4
    buffer_store_dwordx2 v[2:3], v1, s[88:91], s92 offen
    s_endpgm
"""
    txt = txt.replace(name + ":\n", name + ":\n" + pre, 1)
    txt = post.join(txt.split("    s_endpgm\n"))
    return txt.replace("next_free_sgpr 100", "next_free_sgpr 102")
if DBG:
    if DBG & 1: k1 = dbg(k1, "k1_kernel", 0)
    if DBG & 2: km = dbg(km, "mlp_kernel", 1)
if TL:
    k1 = tl(k1, "k1_kernel", 0); kf = tl(kf, "fft_kernel", 1) if kf else ""; km = tl(km, "mlp_kernel", 1 if FFT else 2); k3 = tl(k3, "k3_kernel", 3) if k3 else ""
open(sys.argv[1], "w").write(hdr + k1 + kf + km + k3)
```

```python
import os
WS_BYTES = 268435456
BASE = int(os.environ.get("WSBASE", "0"), 0)
XNF_OFF = BASE + 0
ZF_OFF = BASE + 0x240000
WT_OFF = BASE + 0x480000
UT_OFF = BASE + 0x700000
CINV_OFF = BASE + 0x940000
CONST_OFF = BASE + 0xA00000
B1F_OFF = BASE + 0xA08000
CNT_OFF = BASE + 0xA10000
WMAX_OFF = BASE + 0x940000
W1T_OFF = BASE + 0xA40000
W2T_OFF = BASE + 0xF50000
PART_OFF = BASE + 0x1460000
FLAG_OFF = BASE + 0xA20000
STAMP_OFF = 0x8000000
```

```python
from asmgen import *
from layout import *

MAGIC576 = 7456541
INV576 = hx(f32bits(1.0 / 576.0))


def mod576(a, dst, src, tmp, smagic, s576):
    a("v_mul_hi_u32 v%d, v%d, s%d" % (tmp, src, smagic))
    a("v_mul_u32_u24 v%d, s%d, v%d" % (tmp, s576, tmp))
    a("v_sub_u32 v%d, v%d, v%d" % (dst, src, tmp))


def cinv_gen(a, base, s_db, vM, vG, T, S):
    D_, U0, DL, SH, SG, X = T, T + 1, T + 5, T + 6, T + 7, T + 8
    chunks = []
    def setup():
        a("s_lshl_b32 s%d, s%d, 4" % (S + 3, s_db))
        a("v_add_u32 v%d, s%d, v%d" % (D_, S + 3, vM))
        a("v_lshlrev_b32 v%d, 4, v%d" % (X, D_))
        mod576(a, X, X, X + 1, S, S + 1)
        a("v_cvt_f32_u32 v%d, v%d" % (X, X))
        a("v_mul_f32 v%d, s%d, v%d" % (DL, S + 2, X))
        a("v_lshlrev_b32 v%d, 1, v%d" % (X + 2, vG))
        for h in range(4):
            a("v_add_u32 v%d, %d, v%d" % (X, 8 * (h >> 1) + (h & 1), X + 2))
            a("v_mul_u32_u24 v%d, v%d, v%d" % (X, X, D_))
            mod576(a, X, X, X + 1, S, S + 1)
            a("v_cvt_f32_u32 v%d, v%d" % (X, X))
            a("v_mul_f32 v%d, s%d, v%d" % (U0 + h, S + 2, X))
        a("v_and_b32 v%d, 1, v%d" % (SH, D_))
        a("v_lshlrev_b32 v%d, 4, v%d" % (SH, SH))
        a("v_add_u32 v%d, 1, v%d" % (X, D_))
        a("v_bfe_u32 v%d, v%d, 1, 1" % (X, X))
        a("v_lshlrev_b32 v%d, 31, v%d" % (X, X))
        a("v_bfe_u32 v%d, v%d, 1, 1" % (X + 1, D_))
        a("v_lshl_or_b32 v%d, v%d, 15, v%d" % (SG, X + 1, X))
    chunks.append(setup)
    for t in range(9):
        def step(t=t):
            for h in range(4):
                if t:
                    a("v_fmamk_f32 v%d, v%d, %s, v%d" % (X + 8 + h, DL, hx(f32bits(float(t))), U0 + h))
            for h in range(4):
                u = X + 8 + h if t else U0 + h
                a("v_cos_f32 v%d, v%d" % (X + 2 * h, u))
                a("v_sin_f32 v%d, -v%d" % (X + 2 * h + 1, u))
            for h in range(4):
                a("v_cvt_pk_bf16_f32 v%d, v%d, v%d" % (base + 4 * t + h, X + 2 * h, X + 2 * h + 1))
            for h in range(4):
                a("v_alignbit_b32 v%d, v%d, v%d, v%d" % (base + 36 + 4 * t + h, base + 4 * t + h, base + 4 * t + h, SH))
            for h in range(4):
                a("v_xor_b32 v%d, v%d, v%d" % (base + 36 + 4 * t + h, SG, base + 36 + 4 * t + h))
            if t == 0:
                a("v_lshlrev_b32 v%d, 27, v%d" % (X, SH))
                a("v_or_b32 v%d, 0x3f803f80, v%d" % (X, X))
                a("v_cmp_eq_u32 vcc, 0, v%d" % vG)
                a("s_nop 1")
                a("v_cndmask_b32 v%d, v%d, v%d, vcc" % (base, base, X))
        chunks.append(step)
    return chunks


def final_math(a, nh, S_, Y, XV, B2, T, OUT):
    def rnd(r):
        a("v_cvt_pk_bf16_f32 v%d, v%d, v%d" % (T + 2, r, r + 1))
        a("v_lshlrev_b32 v%d, 16, v%d" % (r, T + 2))
        a("v_and_b32 v%d, 0xffff0000, v%d" % (r + 1, T + 2))
    for h in range(nh):
        s_ = S_ + 2 * h; y = Y + 2 * h
        rnd(s_)
        a("v_pk_add_f32 %s, %s, %s" % (vr(s_, 2), vr(s_, 2), vr(B2 + 2 * (h & 1), 2)))
        rnd(s_)
        rnd(y)
        a("v_lshlrev_b32 v%d, 16, v%d" % (T, XV + h))
        a("v_and_b32 v%d, 0xffff0000, v%d" % (T + 1, XV + h))
        a("v_pk_add_f32 %s, %s, %s" % (vr(y, 2), vr(y, 2), vr(T, 2)))
        rnd(y)
        a("v_pk_add_f32 %s, %s, %s" % (vr(y, 2), vr(y, 2), vr(s_, 2)))
        a("v_cvt_pk_bf16_f32 v%d, v%d, v%d" % (OUT + h, y, y + 1))


def epilogue(a, name, hf, UBASE, vLane16, NPART=8, est=0, SLP=4, G1=7, uload=0, early=None, mega=None):
    lab = "%s_e%d" % (name, hf)
    CA, CB = 16, 88
    ACC = 160
    BFR = 176
    T = 200
    M_, G_, VT0, VT1, VX0, VX1, VB = 220, 221, 222, 223, 224, 225, 226
    XV, B2R, XE, B2E = 228, 232, 234, 236
    PT = 16
    if est: a("s_memrealtime s[52:53]")
    a("s_load_dwordx2 s[40:41], s[0:1], 0")
    a("s_load_dwordx4 s[44:47], s[0:1], 56")
    a("s_load_dwordx2 s[42:43], s[0:1], 72")
    a("s_mov_b32 s64, %d" % MAGIC576)
    a("s_movk_i32 s65, 576")
    a("s_mov_b32 s66, %s" % INV576)
    a("v_lshrrev_b32 v%d, 4, v%d" % (T, vLane16))
    a("v_and_b32 v%d, 15, v%d" % (M_, T))
    a("v_lshrrev_b32 v%d, 4, v%d" % (G_, T))
    a("s_lshr_b32 s68, s20, 1")
    a("s_mul_i32 s68, s68, 9")
    a("s_add_u32 s69, s68, 8")
    a("s_add_u32 s68, s68, s22")
    a("s_and_b32 s70, s20, 1")
    a("s_lshl_b32 s71, s21, 1")
    a("s_add_u32 s70, s70, s71")
    a("v_bfe_u32 v%d, v%d, 2, 4" % (VT0, T))
    a("v_lshlrev_b32 v%d, 6, v%d" % (VT0, VT0))
    a("v_and_b32 v%d, 3, v%d" % (T + 1, T))
    a("v_lshl_add_u32 v%d, v%d, 3, v%d" % (VT0, T + 1, VT0))
    a("v_and_b32 v%d, 1, v%d" % (T + 1, G_))
    a("v_lshl_add_u32 v%d, v%d, 5, v%d" % (VT0, T + 1, VT0))
    a("v_add_u32 v%d, %s, v%d" % (VT0, hx(UBASE), VT0))
    a("v_xor_b32 v%d, 32, v%d" % (VT1, VT0))
    a("v_and_b32 v%d, 3, v%d" % (VX0, M_))
    a("v_bfe_u32 v%d, v%d, 2, 1" % (T + 1, M_))
    a("v_lshl_add_u32 v%d, v%d, 4, v%d" % (VX0, T + 1, VX0))
    a("v_bfe_u32 v%d, v%d, 3, 1" % (T + 1, M_))
    a("v_lshl_add_u32 v%d, v%d, 2, v%d" % (VX0, T + 1, VX0))
    a("s_mov_b32 s71, %d" % (32 * 1152))
    a("v_mul_lo_u32 v%d, v%d, s71" % (VX0, VX0))
    a("v_lshl_add_u32 v%d, v%d, 3, v%d" % (VX0, G_, VX0))
    a("v_add_u32 v%d, %d, v%d" % (VX1, 8 * 32 * 1152, VX0))
    a("v_lshlrev_b32 v%d, 3, v%d" % (VB, G_))
    a("s_lshr_b32 s72, s70, 1")
    a("s_and_b32 s73, s70, 1")
    a("s_lshl_b32 s73, s73, 10")
    a("s_add_u32 s72, s72, s73")
    a("s_mul_i32 s72, s72, 1152")
    a("s_lshl_b32 s73, s68, 5")
    a("s_lshl_b32 s75, s69, 5")
    a("s_add_u32 s74, s72, s75")
    a("s_and_b32 s78, s22, 1")
    a("s_mul_i32 s76, s78, %d" % (8 * 32 * 1152))
    a("s_add_u32 s74, s74, s76")
    a("s_add_u32 s72, s72, s73")
    a("s_mul_i32 s76, s70, 36")
    a("s_add_u32 s77, s76, s69")
    a("s_add_u32 s76, s76, s68")
    a("s_lshl_b32 s76, s76, 10")
    a("s_add_u32 s76, s76, %s" % hx(PART_OFF))
    a("s_lshl_b32 s77, s77, 10")
    a("s_lshl_b32 s78, s78, 3")
    a("s_add_u32 s77, s77, s78")
    a("s_add_u32 s77, s77, %s" % hx(PART_OFF))
    UR = 136
    if uload:
        a("v_lshrrev_b32 v240, 6, v%d" % vLane16)
        a("v_bfe_u32 v241, v%d, 8, 1" % vLane16)
        a("v_lshlrev_b32 v241, 5, v241")
        a("v_and_b32 v242, 48, v%d" % vLane16)
        a("v_xor_b32 v241, v241, v242")
        a("v_lshl_add_u32 v240, v240, 12, v241")
        if mega:
            a("s_and_b32 s83, s70, 1")
            a("s_lshl_b32 s83, s83, 11")
            a("s_lshl_b32 s84, s21, 6")
            a("s_add_u32 s83, s83, s84")
        else:
            a("s_lshl_b32 s83, s70, 6")
        a("s_lshl_b32 s84, s22, 16")
        a("s_add_u32 s83, s83, s84")
        a("s_add_u32 s83, s83, %s" % hx(UT_OFF))
        a("s_lshl_b32 s84, s22, 10")
        a("s_add_u32 s84, s84, %s" % hx(UBASE))
        a("v_add_u32 v241, s84, v%d" % vLane16)
        if hf == 0 and mega:
            pass
        elif hf == 0:
            a("s_cmp_lg_u32 s22, 0")
            a("s_cbranch_scc1 %s_fok" % lab)
            if early is not None:
                a("v_readfirstlane_b32 s80, v%d" % early)
                a("s_nop 3")
                a("s_cmp_ge_u32 s80, 289")
                a("s_cbranch_scc1 %s_fok" % lab)
            a("s_and_b32 s85, s2, 7")
            a("s_lshl_b32 s85, s85, 8")
            a("s_add_u32 s85, s85, %s" % hx(CNT_OFF + 8192))
            a("v_mov_b32 v238, 0")
            a("s_mov_b64 exec, 1")
            a("s_mov_b32 s81, 200000")
            a("%s_fpoll:" % lab)
            a("s_sub_u32 s81, s81, 1")
            a("s_cbranch_scc1 %s_fdone" % lab)
            a("buffer_load_dword v239, v238, s[12:15], s85 offen sc1")
            a("s_waitcnt vmcnt(0)")
            a("v_readfirstlane_b32 s80, v239")
            a("s_nop 3")
            a("s_cmp_ge_u32 s80, 289")
            a("s_cbranch_scc1 %s_fdone" % lab)
            a("s_sleep 8")
            a("s_branch %s_fpoll" % lab)
            a("%s_fdone:" % lab)
            a("s_mov_b64 exec, -1")
            a("%s_fok:" % lab)
    ch = cinv_gen(a, CA, 68, M_, G_, T, 64)
    for c in ch[:4]: c()
    a.wait_all(vm=True, lg=True)
    a("s_barrier")
    if est: a("s_memrealtime s[54:55]")
    for (s_, lo, hi, n) in ((4, 40, 41, 2048 * 1152), (8, 46, 47, 2048 * 1152), (16, 44, 45, 1152)):
        a("s_mov_b32 s%d, s%d" % (s_, lo))
        a("s_and_b32 s%d, s%d, 0xffff" % (s_ + 1, hi))
        a("s_mov_b32 s%d, %s" % (s_ + 2, hx(n)))
        a("s_mov_b32 s%d, 0x20000" % (s_ + 3))
    a("s_lshl_b32 s79, s21, 8")
    a("s_add_u32 s79, s79, %s" % hx(FLAG_OFF + 12288 if mega else CNT_OFF))
    a("v_mov_b32 v%d, 0" % 238)
    a("v_mov_b32 v%d, 1" % 239)
    if hf == 0:
        a("s_cmp_lg_u32 s22, 0")
        a("s_cbranch_scc1 %s_noat" % lab)
        if mega:
            a("s_lshl_b32 s80, s20, 2")
            a("s_add_u32 s80, s80, s79")
            mega[1](a, "s80")
            a("s_mov_b32 s85, %s" % hx(FLAG_OFF + 8192))
            a("v_lshrrev_b32 v249, 2, v%d" % vLane16)
            a("v_min_u32 v249, 128, v249")
            a("buffer_load_dwordx4 v[244:247], v%d, s[12:15], s85 offen sc1" % vLane16)
            a("buffer_load_dword v248, v249, s[12:15], s85 offen offset:1024 sc1")
            a("s_waitcnt vmcnt(0)")
            mega[0](a, lab + "_fa", 4, (0xffffffff, 0xffffffff), vLane16, 244, "s85", 32, pre=True)
            a("s_add_u32 s85, s85, 1024")
            mega[0](a, lab + "_fb", 1, (0xffffffff, 1), 249, 248, "s85", 32, pre=True)
            a("v_mov_b32 v12, %d" % (mega[3] + 60))
            a("v_mov_b32 v13, 1")
            a("ds_write_b32 v12, v13")
        else:
            a("s_mov_b64 exec, 1")
            a("buffer_atomic_add v%d, v%d, s[12:15], s79 offen sc1" % (239, 238))
            a("s_mov_b64 exec, -1")
        a("%s_noat:" % lab)
    nu = 5 if hf == 0 else 4
    def uloads():
        for i5 in range(nu):
            a("s_add_u32 s80, s83, %d" % (i5 * 8 * 65536))
            a("buffer_load_dwordx4 %s, v240, s[12:15], s80 offen sc1" % vr(UR + 4 * i5, 4))
    if uload and not mega: uloads()
    a("buffer_load_dwordx2 %s, v%d, s[4:7], s72 offen" % (vr(XV, 2), VX0))
    a("buffer_load_dwordx2 %s, v%d, s[4:7], s72 offen" % (vr(XV + 2, 2), VX1))
    a("buffer_load_dwordx2 %s, v%d, s[16:19], s73 offen" % (vr(B2R, 2), VB))
    PT = 88
    if mega:
        for c in ch[4:6]: c()
        mega[2](a, lab + "_uok", mega[3] + 60, "1")
        uloads()
        for c in ch[6:G1]: c()
    else:
        for c in ch[4:G1]: c()

    def mm(sbs, acc):
        toks = {}
        def rd(t):
            b = BFR + 8 * (t % 3)
            toks[t] = [a.lds("ds_read_b64_tr_b16 %s, v%d offset:%d" % (vr(b + 4 * k + 2 * i, 2), VT0 + sb, t * 2048 + i * 1024)) for k, sb in enumerate(sbs) for i in range(2)]
        rd(0); rd(1)
        for t in range(18):
            if t + 2 < 18: rd(t + 2)
            b = BFR + 8 * (t % 3)
            for k, sb in enumerate(sbs):
                a.wait(lg=toks[t][2 * k: 2 * k + 2])
                d = acc + 4 * k
                a("v_mfma_f32_16x16x32_bf16 %s, %s, %s, %s" % (vr(d, 4), vr(CA + 4 * t, 4), vr(b + 4 * k, 4), "0" if t == 0 else vr(d, 4)))

    def tail(extra, poll):
        if est: a("s_memrealtime s[56:57]")
        if uload:
            a("s_waitcnt vmcnt(%d)" % (0 if mega else 3))
            for i5 in range(nu):
                a("ds_write_b128 v241, %s offset:%d" % (vr(UR + 4 * i5, 4), 8192 * i5))
        if poll and mega:
            a("v_lshrrev_b32 v238, 2, v%d" % vLane16)
            mega[0](a, lab + "_pp", 1, (0xff, 0), 238, 239, "s79", SLP)
        elif poll:
            a("s_mov_b64 exec, 1")
            a("s_mov_b32 s81, 200000")
            a("%s_poll:" % lab)
            a("s_sub_u32 s81, s81, 1")
            a("s_cbranch_scc1 %s_pdone" % lab)
            a("buffer_load_dword v239, v238, s[12:15], s79 offen sc1")
            a("s_waitcnt vmcnt(0)")
            a("v_readfirstlane_b32 s80, v239")
            a("s_nop 3")
            a("s_cmp_ge_u32 s80, %d" % NPART)
            a("s_cbranch_scc1 %s_pdone" % lab)
            a("s_sleep %d" % SLP)
            a("s_branch %s_poll" % lab)
            a("%s_pdone:" % lab)
            a("s_mov_b64 exec, -1")
        if uload: a("s_waitcnt lgkmcnt(0)")
        a("s_barrier")
        if est: a("s_memrealtime s[60:61]")
        a.vm = []
        pt = []; pe = []
        for c in range(NPART):
            a("s_add_u32 s80, s76, %s" % hx(c * 64 * 36864))
            pt.append(a.vmem("buffer_load_dwordx4 %s, v%d, s[12:15], s80 offen sc1" % (vr(PT + 4 * c, 4), vLane16)))
        if extra is not None:
            for c in range(NPART):
                a("s_add_u32 s80, s77, %s" % hx(c * 64 * 36864))
                pe.append(a.vmem("buffer_load_dwordx2 %s, v%d, s[12:15], s80 offen sc1" % (vr(PT + 32 + 2 * c, 2), vLane16)))
            a.vmem("buffer_load_dwordx2 %s, v%d, s[4:7], s74 offen" % (vr(XE, 2), VX0))
            xe = a.vmem("buffer_load_dwordx2 %s, v%d, s[16:19], s75 offen" % (vr(B2E, 2), VB))
        for c in ch[G1:]: c()
        mm([0, 1], ACC)
        if extra is not None:
            for c in cinv_gen(a, CA, 69, M_, G_, T, 64): c()
            mm([extra], ACC + 8)
        S_ = 176; TT = 188; B2 = 196
        def psum(c, tok, src, n, dst):
            a.wait(vm=tok)
            for h in range(n):
                d_ = dst + 2 * h if c == 0 else TT + 2 * h
                a("v_lshlrev_b32 v%d, 16, v%d" % (d_, src + h))
                a("v_and_b32 v%d, 0xffff0000, v%d" % (d_ + 1, src + h))
            if c:
                for h in range(n):
                    a("v_pk_add_f32 %s, %s, %s" % (vr(dst + 2 * h, 2), vr(dst + 2 * h, 2), vr(TT + 2 * h, 2)))
        for c in range(NPART):
            psum(c, pt[c], PT + 4 * c, 4, S_)
        for h in range(2):
            a("v_lshlrev_b32 v%d, 16, v%d" % (B2 + 2 * h, B2R + h))
            a("v_and_b32 v%d, 0xffff0000, v%d" % (B2 + 2 * h + 1, B2R + h))
        final_math(a, 4, S_, ACC, XV, B2, TT, T)
        a("buffer_store_dwordx2 %s, v%d, s[8:11], s72 offen" % (vr(T, 2), VX0))
        a("buffer_store_dwordx2 %s, v%d, s[8:11], s72 offen" % (vr(T + 2, 2), VX1))
        if extra is not None:
            a("s_waitcnt vmcnt(2)")
            for c in range(NPART):
                psum(c, None, PT + 32 + 2 * c, 2, S_ + 8)
            for h in range(2):
                a("v_lshlrev_b32 v%d, 16, v%d" % (B2 + 2 * h, B2E + h))
                a("v_and_b32 v%d, 0xffff0000, v%d" % (B2 + 2 * h + 1, B2E + h))
            final_math(a, 2, S_ + 8, ACC + 8, XE, B2, TT, T + 4)
            a("buffer_store_dwordx2 %s, v%d, s[8:11], s74 offen" % (vr(T + 4, 2), VX0))
        if est:
            a("s_memrealtime s[62:63]")
            a("s_waitcnt lgkmcnt(0)")
            for k_, r_ in enumerate((100, 52, 54, 56, 60, 62, 88, 90, 92, 94, 96, 98) if mega else (58, 52, 54, 56, 60, 62, 88, 90, 92, 94)):
                a("v_mov_b32 v%d, s%d" % (100 + k_, r_))
            a("s_lshl_b32 s80, s2, 3")
            a("s_add_u32 s80, s80, s22")
            a("s_lshl_b32 s80, s80, 6")
            a("s_add_u32 s80, s80, %s" % hx(STAMP_OFF + 0x600000))
            a("v_mov_b32 v112, 0")
            a("s_mov_b64 exec, 1")
            a("buffer_store_dwordx4 v[100:103], v112, s[12:15], s80 offen")
            a("buffer_store_dwordx4 v[104:107], v112, s[12:15], s80 offen offset:16")
            a("buffer_store_dwordx4 v[108:111], v112, s[12:15], s80 offen offset:32")
        a("s_endpgm")

    if hf == 0:
        a("s_cmp_eq_u32 s22, 2")
        a("s_cbranch_scc1 %s_w2" % lab)
        a("s_cmp_eq_u32 s22, 3")
        a("s_cbranch_scc1 %s_w3" % lab)
        a("s_cmp_eq_u32 s22, 1")
        a("s_cbranch_scc1 %s_plain" % lab)
        tail(None, True)
        a("%s_w2:" % lab)
        tail(0, False)
        a("%s_w3:" % lab)
        tail(1, False)
        a("%s_plain:" % lab)
    tail(None, False)
```

```python
from asmgen import *
from layout import *

MF = "v_mfma_f32_16x16x32_f16"


class FFT:
    def __init__(self, a, vb, lane, s_w, lds_base, st, sync, old=False):
        self.old = old
        self.a = a; self.lane = lane; self.s_w = s_w; self.lds = lds_base; self.st = st; self.sync = sync
        self.FO = vb; self.F0 = vb + 16; self.F1 = vb + 32; self.G = vb + 48; self.AC = vb + 64
        self.TW = vb + 88; self.TI = vb + 104; self.T = vb + 120
        T = self.T
        self.L16, self.N, self.Gq, self.VA, self.VB, self.VST, self.VZ, self.VW, self.VM = T + 4, T + 5, T + 6, T + 7, T + 8, T + 9, T + 10, T + 11, T + 12
        self.WS, self.FS = T + 13, T + 14
        self.end = T + 16
        self.tok = {}

    def ld(self, r, n, v, s, off=0):
        return self.a.vmem("buffer_load_dword%s %s, v%d, s[12:15], %s offen offset:%d%s" % ("" if n == 1 else "x%d" % n, vr(r, n), v, s, off, "" if self.old else " sc1"))

    def addr(self):
        a = self.a; S = lambda i: "s%d" % (self.st + i)
        lane, N, Gq = self.lane, self.N, self.Gq
        a("v_lshlrev_b32 v%d, 4, v%d" % (self.L16, lane))
        a("v_and_b32 v%d, 15, v%d" % (N, lane))
        a("v_lshrrev_b32 v%d, 4, v%d" % (Gq, lane))
        if self.old:
            a("v_lshlrev_b32 v%d, 2, v%d" % (self.VM, lane))
            a("v_lshlrev_b32 v%d, 5, v%d" % (self.VW, lane))
            return
        a("s_mov_b32 %s, %d" % (S(0), 2 * 576 * 64))
        a("v_mul_lo_u32 v%d, v%d, %s" % (self.VZ, N, S(0)))
        a("v_lshl_add_u32 v%d, v%d, 4, v%d" % (self.VZ, Gq, self.VZ))
        a("v_mul_u32_u24 v%d, 1280, v%d" % (self.VM, lane))
        a("v_lshrrev_b32 v%d, 1, v%d" % (self.VW, N))
        a("v_lshl_add_u32 v%d, v%d, 5, v%d" % (self.VW, Gq, self.VW))
        a("v_mul_u32_u24 v%d, 18560, v%d" % (self.VW, self.VW))
        a("v_and_b32 v%d, 1, v%d" % (self.VST, N))
        a("v_lshl_add_u32 v%d, v%d, 5, v%d" % (self.VW, self.VST, self.VW))

    def const_loads(self):
        a = self.a; S = lambda i: "s%d" % (self.st + i)
        a("s_lshl_b32 %s, s%d, 12" % (S(0), self.s_w))
        a("s_add_u32 %s, %s, %s" % (S(0), S(0), hx(CONST_OFF)))
        self.tok["fo"] = [self.ld(self.FO + 4 * i, 4, self.L16, S(0), 1024 * i) for i in range(4)]
        a("s_mov_b32 %s, %s" % (S(0), hx(CONST_OFF + 16384)))
        self.tok["g"] = [self.ld(self.G + 4 * i, 4, self.L16, S(0), 1024 * i) for i in range(4)]
        a("s_lshr_b32 %s, s%d, 1" % (S(1), self.s_w))
        a("s_lshl_b32 %s, %s, 13" % (S(0), S(1)))
        a("s_add_u32 %s, %s, %s" % (S(0), S(0), hx(CONST_OFF)))
        a("s_add_u32 %s, %s, 4096" % (S(1), S(0)))
        self.tok["f"] = [self.ld(self.F0 + 4 * i, 4, self.L16, S(i >> 2), 1024 * (i & 3)) for i in range(8)]

    def data_loads(self, s_col, D, sc, key):
        a = self.a; S = lambda i: "s%d" % (self.st + i); C = lambda i: "s%d" % (sc + i)
        a("s_lshl_b32 %s, s%d, 13" % (C(0), s_col))
        a("s_cmp_eq_u32 s%d, 288" % s_col)
        a("s_cselect_b32 %s, 4096, %s" % (C(0), C(0)))
        a("s_cselect_b32 %s, 1, 0" % S(2))
        a("s_cmp_eq_u32 s%d, 0" % s_col)
        a("s_cselect_b32 %s, 1, %s" % (S(2), S(2)))
        a("s_add_u32 %s, %s, 4096" % (C(1), C(0)))
        a("s_lshr_b32 %s, %s, 6" % (S(3), C(0)))
        a("s_add_u32 %s, %s, %s" % (S(3), S(3), hx(ZF_OFF)))
        a("s_add_u32 %s, %s, 64" % (S(4), S(3)))
        a("s_cmp_lg_u32 %s, 0" % S(2))
        a("s_cselect_b32 %s, 0x20000000, %s" % (C(1), C(1)))
        a("s_cselect_b32 %s, 0x20000000, %s" % (S(4), S(4)))
        a("s_cselect_b32 %s, 0, 0x800000" % C(2))
        a("s_add_u32 %s, %s, %s" % (C(2), C(2), hx(f32bits(1 / 36.))))
        t = {}
        if self.old:
            a("s_lshl_b32 %s, s%d, 8" % (S(0), s_col))
            a("s_add_u32 %s, %s, %s" % (S(0), S(0), hx(WMAX_OFF)))
            t["m"] = [self.ld(D + 40, 1, self.VM, S(0)), self.ld(D + 41, 1, self.VM, S(0))]
            for ri in range(2):
                a("s_add_u32 %s, %s, %s" % (S(0), C(ri), hx(ZF_OFF)))
                for f in range(4):
                    t[(ri, f)] = self.ld(D + 16 * ri + 4 * f, 4, self.L16, S(0), 1024 * f)
            a("s_lshl_b32 %s, s%d, 13" % (S(0), s_col))
            a("s_lshl_b32 %s, s%d, 11" % (S(1), self.s_w))
            a("s_add_u32 %s, %s, %s" % (S(0), S(0), S(1)))
            a("s_add_u32 %s, %s, %s" % (S(0), S(0), hx(WT_OFF)))
            t["w"] = [self.ld(D + 32 + 4 * i, 4, self.VW, S(0), 16 * i) for i in range(2)]
            self.tok[key] = t
            return
        a("s_cmp_ge_u32 s%d, 2" % self.s_w)
        a("s_cselect_b32 %s, %s, %s" % (S(0), S(4), S(3)))
        a("s_and_b32 %s, s%d, 1" % (S(1), self.s_w))
        a("s_mul_i32 %s, %s, %d" % (S(1), S(1), 32 * 576 * 64))
        a("s_add_u32 %s, %s, %s" % (S(0), S(0), S(1)))
        a("s_add_u32 %s, %s, %d" % (S(1), S(0), 576 * 64))
        t["z"] = [self.ld(D + 4 * i, 4, self.VZ, S(i)) for i in range(2)]
        a("s_lshl_b32 %s, s%d, 6" % (S(0), s_col))
        a("s_mul_i32 %s, s%d, %d" % (S(1), self.s_w, 8 * 18560))
        a("s_add_u32 %s, %s, %s" % (S(0), S(0), S(1)))
        a("s_add_u32 %s, %s, %s" % (S(0), S(0), hx(WT_OFF)))
        t["w"] = [self.ld(D + 32 + 4 * i, 4, self.VW, S(0), 16 * i) for i in range(2)]
        self.tok[key] = t

    def twiddles(self):
        a = self.a; S = lambda i: "s%d" % (self.st + i)
        T, TW, TI, N, Gq = self.T, self.TW, self.TI, self.N, self.Gq
        a("s_lshl_b32 %s, s%d, 4" % (S(0), self.s_w))
        a("v_add_u32 v%d, %s, v%d" % (T, S(0), N))
        a("v_cvt_f32_u32 v%d, v%d" % (T, T))
        a("v_mul_f32 v%d, %s, v%d" % (T, hx(f32bits(1 / 2048.)), T))
        a("v_lshlrev_b32 v%d, 2, v%d" % (T + 1, Gq))
        a("v_cvt_f32_u32 v%d, v%d" % (T + 1, T + 1))
        for e in range(8):
            a("v_add_f32 v%d, %s, v%d" % (T + 2 + (e & 1), hx(f32bits(float(16 * (e >> 2) + (e & 3)))), T + 1))
            a("v_mul_f32 v%d, v%d, v%d" % (T + 2 + (e & 1), T, T + 2 + (e & 1)))
            a("v_cos_f32 v%d, v%d" % (TW + 2 * e, T + 2 + (e & 1)))
            a("v_sin_f32 v%d, v%d" % (TW + 2 * e + 1, T + 2 + (e & 1)))
        X = T
        a("v_lshl_add_u32 v%d, v%d, 2, %s" % (X, Gq, S(0)))
        a("v_cvt_f32_u32 v%d, v%d" % (X, X))
        a("v_cvt_f32_u32 v%d, v%d" % (X + 1, N))
        a("v_mul_f32 v%d, %s, v%d" % (X + 1, hx(f32bits(1 / 2048.)), X + 1))
        a("v_add_f32 v%d, %s, v%d" % (X + 2, hx(f32bits(16 / 2048.)), X + 1))
        for e in range(8):
            a("v_add_f32 v%d, %s, v%d" % (X + 3, hx(f32bits(float(e & 3))), X))
            a("v_mul_f32 v%d, v%d, v%d" % (X + 3, X + 3, X + 1 + (e >> 2)))
            a("v_cos_f32 v%d, v%d" % (TI + 2 * e, X + 3))
            a("v_sin_f32 v%d, v%d" % (TI + 2 * e + 1, X + 3))
        a("s_lshr_b32 %s, s%d, 1" % (S(0), self.s_w))
        a("s_and_b32 %s, s%d, 1" % (S(1), self.s_w))
        a("s_lshl_b32 %s, %s, 10" % (S(2), S(0)))
        a("s_lshl_b32 %s, %s, 3" % (S(3), S(1)))
        a("s_add_u32 %s, %s, %s" % (S(2), S(2), S(3)))
        a("s_add_u32 %s, %s, %d" % (S(2), S(2), self.lds))
        a("v_add_u32 v%d, %s, v%d" % (self.VA, S(2), self.L16))
        a("s_lshl_b32 %s, %s, 11" % (S(2), S(1)))
        a("s_add_u32 %s, %s, %d" % (S(2), S(2), self.lds))
        a("v_add_u32 v%d, %s, v%d" % (self.VB, S(2), self.L16))
        a("v_lshlrev_b32 v%d, 6, v%d" % (self.VST, N))
        a("v_lshl_add_u32 v%d, v%d, 4, v%d" % (self.VST, Gq, self.VST))
        a("s_lshl_b32 %s, %s, 10" % (S(1), S(1)))
        a("s_lshl_b32 %s, %s, 11" % (S(0), S(0)))
        a("s_add_u32 %s, %s, %s" % (S(0), S(0), S(1)))
        a("s_add_u32 %s, %s, %s" % (S(0), S(0), hx(UT_OFF)))
        a("v_add_u32 v%d, %s, v%d" % (self.VST, S(0), self.VST))

    def compute(self, Z, sc, key):
        a = self.a; S = lambda i: "s%d" % (self.st + i); C_ = lambda i: "s%d" % (sc + i)
        t = self.tok[key]
        AC, TW, TI, T, FO, F0, F1, G = self.AC, self.TW, self.TI, self.T, self.FO, self.F0, self.F1, self.G
        W = Z + 32; D = Z; WS_, FS = self.WS, self.FS
        M = T + 2
        if self.old:
            a.wait(vm=t["m"])
            a("v_max_u32 v%d, v%d, v%d" % (M, Z + 40, Z + 41))
        else:
            a.wait(vm=t["z"])
            a("s_lshl_b32 %s, s%d, 11" % (S(0), self.s_w))
            a("s_add_u32 %s, %s, %d" % (S(0), S(0), self.lds))
            a("v_add_u32 v%d, %s, v%d" % (T, S(0), self.L16))
            zw = [a.lds("ds_write_b128 v%d, %s offset:%d" % (T, vr(Z + 4 * i, 4), 1024 * i)) for i in range(2)]
            a.wait(vm=t["w"])
            for e in range(8):
                a("v_lshlrev_b32 v%d, 16, v%d" % (T + 1, W + e))
                a("v_and_b32 v%d, 0x7fff0000, v%d" % (T + 3, W + e))
                if e == 0: a("v_max_f32 v%d, |v%d|, v%d" % (M, T + 1, T + 3))
                else: a("v_max3_f32 v%d, |v%d|, v%d, v%d" % (M, T + 1, T + 3, M))
        for sh in (8, 4, 2, 1):
            a("v_max_u32_dpp v%d, v%d, v%d row_ror:%d row_mask:0xf bank_mask:0xf" % (M, M, M, sh))
        for i in range(4):
            a("v_readlane_b32 %s, v%d, %d" % (S(i & 1) if i < 2 else S(2), M, 16 * i))
            if i >= 1:
                a("s_max_u32 %s, %s, %s" % (S(0), S(0), S(1) if i == 1 else S(2)))
        if not self.old:
            a("v_mov_b32 v%d, %s" % (M, S(0)))
            a("s_lshl_b32 %s, s%d, 2" % (S(1), self.s_w))
            a("s_add_u32 %s, %s, %d" % (S(1), S(1), self.lds + 8192))
            a("v_mov_b32 v%d, %s" % (T + 1, S(1)))
            zw.append(a.lds("ds_write_b32 v%d, v%d" % (T + 1, M)))
            a.wait(lg=zw)
            self.sync()
            a("v_add_u32 v%d, %d, v%d" % (T, self.lds, self.L16))
            a("v_mov_b32 v%d, %d" % (T + 1, self.lds + 8192))
            mr = a.lds("ds_read_b128 %s, v%d" % (vr(AC, 4), T + 1))
            zr = {}
            for ri in range(2):
                for f in range(4):
                    zr[(ri, f)] = a.lds("ds_read_b128 %s, v%d offset:%d" % (vr(Z + 16 * ri + 4 * f, 4), T, (ri * 4 + f) * 1024))
            a.wait(lg=mr)
            a("v_max3_u32 v%d, v%d, v%d, v%d" % (M, AC, AC + 1, AC + 2))
            a("v_max_u32 v%d, v%d, v%d" % (M, M, AC + 3))
            a("v_readfirstlane_b32 %s, v%d" % (S(0), M))
        a("s_lshr_b32 %s, %s, 23" % (S(0), S(0)))
        a("s_max_u32 %s, %s, 1" % (S(0), S(0)))
        a("s_min_u32 %s, %s, 252" % (S(0), S(0)))
        a("s_sub_u32 %s, 253, %s" % (S(1), S(0)))
        a("s_lshl_b32 %s, %s, 23" % (S(1), S(1)))
        a("v_mov_b32 v%d, %s" % (WS_, S(1)))
        a("s_add_u32 %s, %s, 1" % (S(0), S(0)))
        a("s_lshl_b32 %s, %s, 23" % (S(0), S(0)))
        a("v_mov_b32 v%d, %s" % (FS, S(0)))
        a("v_mul_f32 v%d, %s, v%d" % (FS, C_(2), FS))
        Zr = lambda mb, tt: vr(Z + 4 * (2 * mb + tt), 4)
        Zi = lambda mb, tt: vr(Z + 16 + 4 * (2 * mb + tt), 4)
        C = lambda b, tt: vr(b + 4 * tt, 4)
        Sn = lambda b, tt: vr(b + 8 + 4 * tt, 4)
        acc = lambda i, m: AC + 8 * i + 4 * m
        def mf(d, A, B, first):
            a("%s %s, %s, %s, %s" % (MF, vr(d, 4), A, B, "0" if first else vr(d, 4)))
        a.wait(vm=self.tok["fo"])
        for tt in range(2):
            for mb in range(2):
                if self.old: a.wait(vm=t[(0, 2 * mb + tt)])
                else: a.wait(lg=zr[(0, 2 * mb + tt)])
                mf(acc(0, mb), Zr(mb, tt), C(FO, tt), tt == 0)
                mf(acc(2, mb), Zr(mb, tt), Sn(FO, tt), tt == 0)
        for tt in range(2):
            for mb in range(2):
                if self.old: a.wait(vm=t[(1, 2 * mb + tt)])
                else: a.wait(lg=zr[(1, 2 * mb + tt)])
                mf(acc(0, mb), Zi(mb, tt), Sn(FO, tt), False)
                mf(acc(1, mb), Zi(mb, tt), C(FO, tt), tt == 0)
        X = T
        def cmul(re, im, c, s, sign, outr, outi):
            a("v_mul_f32 v%d, v%d, v%d" % (outr, re, c))
            a("v_mul_f32 v%d, v%d, v%d" % (outi, im, c))
            a("v_fma_f32 v%d, %sv%d, v%d, v%d" % (outr, "-" if sign > 0 else "", im, s, outr))
            a("v_fma_f32 v%d, %sv%d, v%d, v%d" % (outi, "" if sign > 0 else "-", re, s, outi))
        R_, I_ = D + 8, D + 16
        def pack():
            for h in range(4):
                a("v_cvt_pk_f16_f32 v%d, v%d, v%d" % (D + h, R_ + 2 * h, R_ + 2 * h + 1))
                a("v_cvt_pk_f16_f32 v%d, v%d, v%d" % (D + 4 + h, I_ + 2 * h, I_ + 2 * h + 1))
        a.wait(vm=t["w"])
        for e in range(8):
            a("v_sub_f32 v%d, v%d, v%d" % (AC + 8 + e, AC + 8 + e, AC + 16 + e))
        for e in range(8):
            cmul(AC + e, AC + 8 + e, TW + 2 * e, TW + 2 * e + 1, -1, R_ + e, I_ + e)
        pack()
        Dr, Di = vr(D, 4), vr(D + 4, 4)
        C32 = lambda b: vr(G + 8 * b, 4)
        S32 = lambda b: vr(G + 8 * b + 4, 4)
        a.wait(vm=self.tok["g"])
        for b in range(2):
            mf(acc(0, b), C32(b), Dr, True)
            mf(acc(1, b), C32(b), Di, True)
            mf(acc(2, b), S32(b), Dr, True)
        for b in range(2):
            mf(acc(0, b), S32(b), Di, False)
        for e in range(8):
            a("v_lshlrev_b32 v%d, 16, v%d" % (D + 24 + e, W + e))
            a("v_and_b32 v%d, 0xffff0000, v%d" % (W + e, W + e))
            a("v_mul_f32 v%d, v%d, v%d" % (D + 24 + e, D + 24 + e, WS_))
            a("v_mul_f32 v%d, v%d, v%d" % (W + e, W + e, WS_))
        for e in range(8):
            a("v_sub_f32 v%d, v%d, v%d" % (AC + 8 + e, AC + 8 + e, AC + 16 + e))
        for e in range(8):
            cmul(AC + e, AC + 8 + e, D + 24 + e, W + e, +1, R_ + e, I_ + e)
        pack()
        for b in range(2):
            mf(acc(0, b), Di, C32(b), True)
            mf(acc(1, b), Dr, C32(b), True)
            mf(acc(2, b), Di, S32(b), True)
        for b in range(2):
            mf(acc(0, b), Dr, S32(b), False)
        for e in range(8):
            a("v_sub_f32 v%d, v%d, v%d" % (AC + 8 + e, AC + 8 + e, AC + 16 + e))
        for e in range(8):
            cmul(AC + 8 + e, AC + e, TI + 2 * e, TI + 2 * e + 1, +1, R_ + e, I_ + e)
        pack()
        if not self.old: self.sync()
        ww = []
        for ri in range(2):
            for nb in range(2):
                ww.append(a.lds("ds_write_b64 v%d, %s offset:%d" % (self.VA, vr(D + 4 * ri + 2 * nb, 2), (ri * 2 + nb) * 2048)))
        a.wait(lg=ww)
        self.sync()
        V = D + 8
        vt = {}
        for tt in range(2):
            for ri in range(2):
                vt[(ri, tt)] = a.lds("ds_read_b128 %s, v%d offset:%d" % (vr(V + 8 * ri + 4 * tt, 4), self.VB, ri * 4096 + tt * 1024))
        Vr = lambda tt: vr(V + 4 * tt, 4)
        Vi = lambda tt: vr(V + 8 + 4 * tt, 4)
        a.wait(vm=self.tok["f"])
        for tt in range(2):
            a.wait(lg=vt[(0, tt)])
            for m, Fb in enumerate((F0, F1)):
                mf(acc(1, m), C(Fb, tt), Vr(tt), tt == 0)
                mf(acc(0, m), Sn(Fb, tt), Vr(tt), tt == 0)
            a.wait(lg=vt[(1, tt)])
            for m, Fb in enumerate((F0, F1)):
                mf(acc(2, m), Sn(Fb, tt), Vi(tt), tt == 0)
                mf(acc(0, m), C(Fb, tt), Vi(tt), False)
        for e in range(8):
            a("v_sub_f32 v%d, v%d, v%d" % (AC + 8 + e, AC + 8 + e, AC + 16 + e))
        for e in range(8):
            a("v_mul_f32 v%d, v%d, v%d" % (AC + 8 + e, AC + 8 + e, FS))
            a("v_mul_f32 v%d, v%d, v%d" % (AC + e, AC + e, FS))
        for h in range(4):
            a("v_cvt_pk_bf16_f32 v%d, v%d, v%d" % (D + h, AC + 8 + 2 * h, AC + 9 + 2 * h))
            a("v_cvt_pk_bf16_f32 v%d, v%d, v%d" % (D + 4 + h, AC + 2 * h, AC + 1 + 2 * h))
        a.vmem("buffer_store_dwordx4 %s, v%d, s[12:15], %s offen sc1" % (vr(D, 4), self.VST, C_(0)))
        a.vmem("buffer_store_dwordx4 %s, v%d, s[12:15], %s offen sc1" % (vr(D + 4, 4), self.VST, C_(1)))
```

```python
from asmgen import *
from layout import *
from collections import deque
from gen_epi import epilogue, MAGIC576, INV576
from gen_fft2 import FFT
from gen_pro import *

C0 = -2.0 * 1.4426950408889634 * 0.7978845608028654
C1 = C0 * 0.044715
MFMA = "v_mfma_f32_16x16x32_bf16"
XB = 0
PB = 73728
A16 = PB
TS = PB + 36864
BIASB = 147456
SY = BIASB + 2304
FSC = BIASB + 2560
MEGA_LDS = 163840
SPIN = 100000


def srd(a, s, lo, hi, nbytes):
    a("s_mov_b32 s%d, s%d" % (s, lo))
    a("s_and_b32 s%d, s%d, 0xffff" % (s + 1, hi))
    a("s_mov_b32 s%d, %s" % (s + 2, hx(nbytes)))
    a("s_mov_b32 s%d, 0x20000" % (s + 3))


def poll_flags(a, lab, nd, execmask, va, vd, soff, slp, pre=None):
    a("s_mov_b32 exec_lo, %s" % hx(execmask[0]))
    a("s_mov_b32 exec_hi, %s" % hx(execmask[1]))
    a("s_mov_b32 s35, %d" % SPIN)
    if pre:
        a("s_branch %s_chk" % lab)
    a("%s_l:" % lab)
    a("s_sub_u32 s35, s35, 1")
    a("s_cbranch_scc1 %s_ok" % lab)
    a("buffer_load_dword%s %s, v%d, s[12:15], %s offen sc1" % ("" if nd == 1 else "x%d" % nd, vr(vd, nd), va, soff))
    a("s_waitcnt vmcnt(0)")
    a("%s_chk:" % lab)
    for i in range(nd):
        a("v_xor_b32 v%d, s3, v%d" % (vd + i, vd + i))
    for i in range(1, nd):
        a("v_or_b32 v%d, v%d, v%d" % (vd, vd, vd + i))
    a("v_cmp_ne_u32 vcc, 0, v%d" % vd)
    a("s_nop 1")
    a("s_cmp_eq_u64 vcc, 0")
    a("s_cbranch_scc1 %s_ok" % lab)
    a("s_sleep %d" % slp)
    a("s_branch %s_l" % lab)
    a("%s_ok:" % lab)
    a("s_mov_b64 exec, -1")


def lds_spin(a, lab, addr, target):
    a("v_mov_b32 v12, %d" % addr)
    a("%s:" % lab)
    a("ds_read_b32 v13, v12")
    a("s_waitcnt lgkmcnt(0)")
    a("v_readfirstlane_b32 s35, v13")
    a("s_nop 3")
    a("s_cmp_ge_u32 s35, %s" % target)
    a("s_cbranch_scc1 %s_d" % lab)
    a("s_sleep 1")
    a("s_branch %s" % lab)
    a("%s_d:" % lab)


def gather_publish(a, lab, cnt_addr, last, soff_expr, need_nonce=False):
    a("v_mov_b32 v12, %d" % cnt_addr)
    a("v_mov_b32 v13, 1")
    a("s_mov_b64 exec, 1")
    a("ds_add_rtn_u32 v13, v12, v13")
    a("s_waitcnt lgkmcnt(0)")
    a("v_readfirstlane_b32 s35, v13")
    a("s_mov_b64 exec, -1")
    a("s_nop 1")
    a("s_cmp_lg_u32 s35, %s" % last)
    a("s_cbranch_scc1 %s" % lab)
    if need_nonce:
        lds_spin(a, lab + "_n", SY + 8, "1")
        a("s_mov_b32 s3, s35")
    soff_expr()
    a("%s:" % lab)


def code_touch(a, lab_from, lab_to, nlines_max, uniq):
    a("s_getpc_b64 s[92:93]")
    a("%s:" % uniq)
    a("s_add_u32 s92, s92, %s-%s" % (lab_from, uniq))
    a("s_addc_u32 s93, s93, 0")
    for r in range((nlines_max + 63) // 64):
        a("v_lshlrev_b32 v12, 7, v9")
        if r: a("v_add_u32 v12, %d, v12" % (8192 * r))
        a("v_min_u32 v12, %s-%s, v12" % (lab_to, lab_from))
        a("global_load_dword v13, v12, s[92:93]")


def store_flag(a, soff):
    a("v_mov_b32 v12, 0")
    a("v_mov_b32 v13, s3")
    a("s_mov_b64 exec, 1")
    a("buffer_store_dword v13, v12, s[12:15], %s offen sc1" % soff)
    a("s_mov_b64 exec, -1")


def gen_mega(name, DK=8, PB_D=1, cmap=2, RATE=8.5, est=0, SLP=4, G1=9, fprio=1, stf=1, nogelu=0, nostore=0, prio=0, xc=0, b0e=1, aplain=0, DKA=10, bprio=1, ctouch=0, nofft=0, P3AT=8, two=0, fpos=0, P2=1):
    stamps = 0; epi = 1
    a = Asm()
    def pst(k):
        if est == 2:
            a("s_memrealtime s[98:99]")
            a("s_waitcnt lgkmcnt(0)")
            a("v_writelane_b32 v253, s98, %d" % k)
            if 20 <= k < 30:
                a("s_memtime s[98:99]")
                a("s_waitcnt lgkmcnt(0)")
                a("v_writelane_b32 v253, s98, %d" % (k + 30))
    AR = 16
    BR = AR + DK * 8
    ACC = [BR + (PB_D + 1) * 16, BR + (PB_D + 1) * 16 + 32]
    BIAS = ACC[1] + 32
    TMP = BIAS + 8
    PK = TMP + 4
    NV = PK + 8
    vL, vLP, vBias, vPw, vC1, vPw8 = 1, 2, 3, 4, 5, 6
    vXe, vXo, vXeH, vXoH, vLPH = 10, 11, 14, 15, 8
    LA = " sc1"
    a("s_cmp_ge_u32 s2, 256")
    a("s_cbranch_scc1 %s_end" % name)
    a("s_load_dwordx16 s[48:63], s[0:1], 0")
    a("s_load_dwordx2 s[84:85], s[0:1], 72")
    a("s_load_dwordx2 s[46:47], s[0:1], 80")
    a("s_memrealtime s[86:87]")
    if est: a("s_memrealtime s[100:101]")
    a("v_lshrrev_b32 v8, 6, v0")
    a("v_and_b32 v9, 63, v0")
    a("v_readfirstlane_b32 s22, v8")
    if cmap == 0:
        a("s_and_b32 s20, s2, 7")
        a("s_lshr_b32 s21, s2, 3")
    elif cmap == 2:
        a("s_and_b32 s20, s2, 1")
        a("s_lshl_b32 s20, s20, 2")
        a("s_bfe_u32 s33, s2, 0x20003")
        a("s_add_u32 s20, s20, s33")
        a("s_bfe_u32 s21, s2, 0x20001")
        a("s_lshl_b32 s21, s21, 3")
        a("s_lshr_b32 s33, s2, 5")
        a("s_add_u32 s21, s21, s33")
    else:
        a("s_and_b32 s20, s2, 3")
        a("s_lshl_b32 s20, s20, 1")
        a("s_bfe_u32 s33, s2, 0x10003")
        a("s_add_u32 s20, s20, s33")
        a("s_bfe_u32 s21, s2, 0x10002")
        a("s_lshl_b32 s21, s21, 4")
        a("s_lshr_b32 s33, s2, 4")
        a("s_add_u32 s21, s21, s33")
    a("s_and_b32 s38, s22, 3")
    a("s_lshr_b32 s39, s22, 2")
    a("s_add_u32 s23, s22, s21")
    a("s_and_b32 s23, s23, 7")
    a("s_mul_i32 s24, s20, %d" % (36 * 18432))
    a("s_mul_i32 s25, s22, 36864")
    a("s_add_u32 s25, s25, s24")
    a("s_add_u32 s26, s25, %d" % (16 * 18432))
    a("s_mul_i32 s27, s38, 18432")
    a("s_add_u32 s27, s27, s24")
    a("s_add_u32 s27, s27, %d" % (32 * 18432))
    a("s_lshl_b32 s37, s20, 6")
    a("s_lshl_b32 s33, s21, 1")
    a("s_add_u32 s37, s37, s33")
    a("s_mul_i32 s37, s37, 36864")
    a("s_add_u32 s37, s37, %s" % hx(PART_OFF))
    a("s_mov_b32 s28, s24")
    a("s_mov_b32 s40, s37")
    a("s_mov_b32 s41, s24")
    a("s_lshl_b32 s42, s21, 1")
    a("s_mul_i32 s33, s42, 3641")
    a("s_lshr_b32 s33, s33, 16")
    a("s_mul_i32 s33, s33, 18")
    a("s_sub_u32 s42, s42, s33")
    a("v_lshlrev_b32 v%d, 4, v9" % vL)
    a("v_add_u32 v%d, %d, v%d" % (vLP, PB, vL))
    a("v_lshrrev_b32 v16, 4, v9")
    a("s_lshl_b32 s33, s22, 7")
    a("s_add_u32 s33, s33, %d" % BIASB)
    a("v_lshl_add_u32 v%d, v16, 4, s33" % vBias)
    a("s_lshl_b32 s33, s38, 6")
    a("s_add_u32 s33, s33, %d" % (BIASB + 2048))
    a("v_lshl_add_u32 v7, v16, 4, s33")
    a("s_lshl_b32 s33, s22, 10")
    a("v_add_u32 v%d, s33, v%d" % (vPw, vLP))
    a("s_lshr_b32 s33, s38, 1")
    a("s_lshl_b32 s33, s33, 10")
    a("s_and_b32 s34, s38, 1")
    a("s_lshl_b32 s34, s34, 3")
    a("s_add_u32 s33, s33, s34")
    a("s_add_u32 s33, s33, 16384")
    a("v_add_u32 v%d, s33, v%d" % (vPw8, vLP))
    a("v_mov_b32 v%d, %s" % (vC1, hx(f32bits(C1))))
    if two:
        a("v_add_u32 v%d, 0x10000, v%d" % (vLPH, vLP))
        a("v_mov_b32 v%d, v%d" % (vXe, vL)); a("v_mov_b32 v%d, v%d" % (vXo, vL))
        a("v_add_u32 v%d, 0x10000, v%d" % (vXeH, vL)); a("v_add_u32 v%d, 0x10000, v%d" % (vXoH, vL))
        a("s_lshl_b32 s36, s21, 2")
        a("s_add_u32 s36, s36, s38")
        a("s_mul_i32 s36, s36, 18432")
        a("s_add_u32 s36, s36, %s" % hx(XNF_OFF))
        a("s_mul_i32 s29, s38, 18432")
        a("s_mul_i32 s56, s20, 2304")
        a("s_waitcnt lgkmcnt(0)")
        a("s_mul_i32 s56, s20, 2304")
        a("s_add_u32 s56, s56, %s" % hx(B1F_OFF))
        srd(a, 12, 46, 47, WS_BYTES)
        a("s_cmp_lg_u32 s39, 0")
        a("s_cbranch_scc1 %s_h1" % name)
    else:
        vN, vG = 248, 249
        a("v_and_b32 v%d, 15, v9" % vN)
        a("v_lshrrev_b32 v%d, 4, v9" % vG)
        a("v_xor_b32 v16, v%d, v%d" % (vG, vN))
        a("v_lshl_add_u32 v17, v%d, 4, v16" % vG)
        a("v_lshlrev_b32 v%d, 4, v17" % vXe)
        a("v_xor_b32 v%d, 64, v%d" % (vXo, vXe))
        a("v_add_u32 v%d, 0x10000, v%d" % (vXeH, vXe))
        a("v_add_u32 v%d, 0x10000, v%d" % (vXoH, vXo))
        a("v_add_u32 v%d, 0x10000, v%d" % (vLPH, vLP))
        vX, vXB0, vA0 = 250, 251, 252
        a("s_mov_b32 s33, %d" % (1152 if xc else 32 * 1152))
        a("v_mul_lo_u32 v%d, v%d, s33" % (vX, vG))
        a("v_lshl_add_u32 v%d, v%d, 3, v%d" % (vX, vN, vX))
        a("s_lshl_b32 s28, s22, 3")
        a("s_lshl_b32 s28, s28, 5")
        a("s_add_u32 s28, s28, s21")
        a("s_mul_i32 s28, s28, 1152")
        a("s_add_u32 s29, s28, %d" % (4 * 32 * 1152))
        if xc:
            a("s_lshl_b32 s28, s21, 3")
            a("s_add_u32 s28, s28, s22")
            a("s_mul_i32 s28, s28, %d" % (8 * 1152))
            a("s_add_u32 s29, s28, %d" % (4 * 1152))
        a("v_and_b32 v16, 3, v%d" % vN)
        a("v_lshrrev_b32 v17, 3, v%d" % vN)
        a("v_lshl_add_u32 v18, v17, 2, v16")
        a("v_lshlrev_b32 v19, 4, v16")
        a("v_lshl_add_u32 v19, v17, 6, v19")
        a("v_bfe_u32 v20, v%d, 2, 1" % vN)
        a("v_lshlrev_b32 v20, 3, v20")
        a("v_lshl_add_u32 v19, v19, 4, v20")
        a("s_lshr_b32 s33, s38, 1")
        a("s_lshl_b32 s33, s33, 2")
        a("v_add_u32 v21, s33, v%d" % vG)
        a("v_xor_b32 v21, v21, v18")
        a("v_lshl_add_u32 v21, v21, 4, v19")
        a("s_lshl_b32 s33, s39, 1")
        a("s_and_b32 s34, s38, 1")
        a("s_add_u32 s33, s33, s34")
        a("s_mul_i32 s33, s33, 18432")
        a("v_add_u32 v%d, s33, v21" % vXB0)
        a("s_lshl_b32 s34, s34, 3")
        a("v_add_u32 v21, s34, v%d" % vG)
        a("v_xor_b32 v21, v21, v18")
        a("v_lshl_add_u32 v21, v21, 4, v19")
        a("s_lshr_b32 s33, s38, 1")
        a("s_mul_i32 s33, s33, 18432")
        a("s_add_u32 s33, s33, %d" % A16)
        a("v_add_u32 v%d, s33, v21" % vA0)
        a("s_and_b32 s43, s20, 1")
        a("s_cmp_eq_u32 s43, s39")
        a("s_cselect_b32 s45, 1, 0")
        a("s_lshl_b32 s36, s22, 12")
        a("s_add_u32 s36, s36, %d" % TS)
        a("s_lshl_b32 s32, s22, 5")
        a("s_add_u32 s32, s32, s21")
        a("s_mov_b32 s88, %d" % MAGIC576)
        a("s_movk_i32 s89, 576")
        a("s_mov_b32 s90, %s" % INV576)
        a("s_waitcnt lgkmcnt(0)")
        srd(a, 12, 46, 47, WS_BYTES)
        srd(a, 4, 48, 49, 2048 * 1152)
        srd(a, 64, 56, 57, 576 * 9216)
        srd(a, 68, 60, 61, 4608 * 1152)
        srd(a, 72, 50, 51, 2048 * 578)
        srd(a, 76, 52, 53, 2048 * 578)
        srd(a, 16, 58, 59, 9216)
        srd(a, 80, 84, 85, 256)
        XR0, XR1, T1, T2, WL, B1R, CF0, CF1 = 16, 34, 52, 68, 84, 94, 96, 168
        a("s_cmp_lg_u32 s22, 0")
        a("s_cbranch_scc1 %s_n0" % name)
        a("s_or_b32 s86, s86, 1")
        a("v_mov_b32 v246, s86")
        a("v_mov_b32 v247, 0")
        a("v_lshrrev_b32 v12, 2, v%d" % vL)
        a("v_add_u32 v12, %d, v12" % SY)
        a("s_mov_b64 exec, 0xffff")
        a("ds_write_b32 v12, v247")
        a("s_mov_b64 exec, -1")
        a("s_waitcnt lgkmcnt(0)")
        a("%s_n0:" % name)
        if b0e: a("s_barrier")
        a("s_cmp_ge_u32 s32, 162")
        a("s_cbranch_scc1 %s_nt1" % name)
        tile_issue(a, 32, 20, 9, 244, T1, 64, 68, 92)
        a("%s_nt1:" % name)
        a.vm = []
        xt = []
        for b_, XR in enumerate((XR0, XR1)):
            for j in range(9):
                xt.append(a.vmem("buffer_load_dwordx2 %s, v%d, s[4:7], s%d offen offset:%d" % (vr(XR + 2 * j, 2), vX, 28 + b_, j * 128)))
        a("v_min_u32 v12, 287, v0")
        a("v_lshlrev_b32 v12, 2, v12")
        a("s_mul_i32 s33, s20, 1152")
        bt = a.vmem("buffer_load_dword v%d, v12, s[16:19], s33 offen" % B1R)
        a("s_cmp_lg_u32 s22, 7")
        a("s_cbranch_scc1 %s_na" % name)
        a("s_or_b32 s86, s86, 1")
        a("v_mov_b32 v246, s86")
        a("v_mov_b32 v247, 0")
        a("s_mov_b64 exec, 1")
        a("buffer_atomic_cmpswap v[246:247], v247, s[80:83], 0 offen sc0 sc1")
        a("s_mov_b64 exec, -1")
        a("%s_na:" % name)
        pst(1)
        if not b0e: a("s_barrier")
        pst(2)
        a("s_lshr_b32 s37, s20, 1")
        a("s_mul_i32 s37, s37, 9")
        a("s_add_u32 s62, s37, 8")
        a("s_add_u32 s37, s37, s22")
        cf_gen(a, CF0, 37, vN, vG, 168, 180, 88)
        a("s_cmp_ge_u32 s2, 128")
        a("s_cbranch_scc1 %s_nw" % name)
        a("s_lshr_b32 s33, s2, 5")
        a("s_lshl_b32 s33, s33, 2")
        a("s_add_u32 s33, s33, s38")
        a("s_lshl_b32 s34, s39, 4")
        a("s_add_u32 s33, s33, s34")
        a("s_lshl_b32 s33, s33, 6")
        a("s_and_b32 s34, s2, 31")
        a("s_lshl_b32 s34, s34, 1")
        a("s_add_u32 s33, s33, s34")
        a("s_mul_i32 s33, s33, 578")
        a("v_lshlrev_b32 v12, 2, v9")
        for arr in range(2):
            for it in range(5):
                if it == 4: a("s_mov_b32 exec_hi, 1")
                a("buffer_load_dword v%d, v12, s[%d:%d], s33 offen offset:%d" % (WL + arr * 5 + it, 72 + 4 * arr, 75 + 4 * arr, 256 * it))
                if it == 4: a("s_mov_b32 exec_hi, -1")
        a("%s_nw:" % name)
        pst(3)
        a("s_cmp_ge_u32 s2, 128")
        a("s_cbranch_scc1 %s_v19" % name)
        a("s_waitcnt vmcnt(29)")
        a("s_branch %s_v29" % name)
        a("%s_v19:" % name)
        a("s_waitcnt vmcnt(19)")
        a("%s_v29:" % name)
        pst(4)
        XF, A0_, TT = 168, 204, 214
        a("s_cmp_ge_u32 s32, 162")
        a("s_cbranch_scc1 %s_nt1b" % name)
        tile_finish(a, 9, T1, 244, 36, 96, vL)
        a("s_cmp_ge_u32 s2, 128")
        a("s_cbranch_scc1 %s_w4" % name)
        a("s_waitcnt vmcnt(14)")
        a("s_branch %s_nt1c" % name)
        a("%s_w4:" % name)
        a("s_waitcnt vmcnt(4)")
        a("s_branch %s_nt1c" % name)
        a("%s_nt1b:" % name)
        a("s_cmp_ge_u32 s2, 128")
        a("s_cbranch_scc1 %s_w0" % name)
        a("s_waitcnt vmcnt(10)")
        a("s_branch %s_w1" % name)
        a("%s_w0:" % name)
        a("s_waitcnt vmcnt(0)")
        a("%s_w1:" % name)
        a("s_cmp_lg_u32 s22, 7")
        a("s_cbranch_scc1 %s_n1" % name)
        a("v_readfirstlane_b32 s3, v246")
        a("s_nop 3")
        a("s_cmp_eq_u32 s3, 0")
        a("s_cselect_b32 s3, s86, s3")
        a("v_mov_b32 v12, %d" % (SY + 8))
        a("v_mov_b32 v13, s3")
        a("ds_write_b32 v12, v13")
        a("%s_n1:" % name)
        a("%s_nt1c:" % name)
        a.vm = []; a.lg = []
        T3 = 224
        a("s_cmp_eq_u32 s39, 0")
        a("s_cbranch_scc1 %s_nt2" % name)
        a("s_lshl_b32 s63, s38, 5")
        a("s_add_u32 s63, s63, s21")
        a("s_add_u32 s63, s63, 162")
        tile_issue(a, 63, 20, 9, 240, T2, 64, 68, 48)
        a("s_add_u32 s63, s63, 128")
        a("s_cmp_ge_u32 s63, 324")
        a("s_cbranch_scc1 %s_nt2" % name)
        tile_issue(a, 63, 20, 9, 240, T3, 64, 68, 53)
        a("%s_nt2:" % name)
        a.vm = []
        pst(5)
        ln_batch(a, XR0, XF, A0_, TT, vXB0, vA0, 90, 45, name + "_l0")
        a.lg = []
        pst(6)
        a("s_cmp_eq_u32 s39, 0")
        a("s_cbranch_scc1 %s_d0" % name)
        a("s_cmp_ge_u32 s63, 324")
        a("s_cbranch_scc1 %s_d4" % name)
        a("s_waitcnt vmcnt(8)")
        a("s_branch %s_dd" % name)
        a("%s_d4:" % name)
        a("s_waitcnt vmcnt(4)")
        a("s_branch %s_dd" % name)
        a("%s_d0:" % name)
        a("s_waitcnt vmcnt(0)")
        a("%s_dd:" % name)
        pst(7)
        def f1():
            a("s_lshl_b32 s33, s20, 8")
            a("s_lshl_b32 s34, s21, 2")
            a("s_add_u32 s33, s33, s34")
            a("s_add_u32 s33, s33, %s" % hx(FLAG_OFF))
            store_flag(a, "s33")
        a("s_cmp_lt_u32 s21, 2")
        a("s_cselect_b32 s87, 5, 4")
        a("s_cmp_ge_u32 s32, 162")
        a("s_cbranch_scc1 %s_g1" % name)
        gather_publish(a, name + "_g1", SY, "s87", f1, True)
        a("s_cmp_eq_u32 s39, 0")
        a("s_cbranch_scc1 %s_nt2b" % name)
        a("s_waitcnt vmcnt(0)")
        tile_finish(a, 9, T2, 240, 36, 52, vL)
        a("s_cmp_ge_u32 s63, 324")
        a("s_cbranch_scc1 %s_nt2b" % name)
        tile_finish(a, 9, T3, 240, 36, 57, vL)
        a("%s_nt2b:" % name)
        a("s_cmp_ge_u32 s2, 128")
        a("s_cbranch_scc1 %s_nwb" % name)
        a("v_lshlrev_b32 v12, 2, v9")
        a("v_add_u32 v12, s36, v12")
        for arr in range(2):
            for it in range(5):
                if it == 4: a("s_mov_b32 exec_hi, 1")
                a("ds_write_b32 v12, v%d offset:%d" % (WL + arr * 5 + it, arr * 1160 + 256 * it))
                if it == 4: a("s_mov_b32 exec_hi, -1")
        a("%s_nwb:" % name)
        a.vm = []; a.lg = []
        pst(8)
        a("v_min_u32 v12, 287, v0")
        a("v_lshlrev_b32 v12, 3, v12")
        a("v_add_u32 v12, %d, v12" % BIASB)
        a("v_lshlrev_b32 v52, 16, v%d" % B1R)
        a("v_and_b32 v53, 0xffff0000, v%d" % B1R)
        a("ds_write_b64 v12, v[52:53]")
        a("v_xor_b32 v%d, 128, v%d" % (vXB0, vXB0))
        a("v_xor_b32 v%d, 64, v%d" % (vA0, vA0))
        ln_batch(a, XR1, XF, A0_, TT, vXB0, vA0, 90, 45, name + "_l1")
        a.lg = []
        if est == 1: a("s_memrealtime s[98:99]")
        pst(9)
        a("s_cmp_lg_u32 s22, 7")
        a("s_cbranch_scc1 %s_n7" % name)
        cf_gen(a, CF1, 62, vN, vG, 16, 28, 88)
        a("%s_n7:" % name)
        a("s_cmp_eq_u32 s39, 0")
        a("s_cbranch_scc1 %s_g5" % name)
        a("s_waitcnt vmcnt(0)")
        def f5():
            a("s_lshl_b32 s33, s20, 8")
            a("s_lshl_b32 s34, s21, 2")
            a("s_add_u32 s33, s33, s34")
            a("s_add_u32 s33, s33, %s" % hx(FLAG_OFF + 2048))
            store_flag(a, "s33")
        gather_publish(a, name + "_g5", SY + 28, "3", f5, True)
        a("s_cmp_lg_u32 s22, 0")
        a("s_cbranch_scc1 %s_n2" % name)
        lds_spin(a, name + "_nn", SY + 8, "1")
        a("s_mov_b32 s3, s35")
        a("s_lshl_b32 s33, s20, 8")
        a("s_add_u32 s33, s33, %s" % hx(FLAG_OFF))
        a("v_lshlrev_b32 v16, 2, v9")
        poll_flags(a, name + "_p1", 1, (0xffffffff, 0), 16, 17, "s33", 3)
        a("%s_n2:" % name)
        a("s_waitcnt lgkmcnt(0)")
        pst(10)
        a("s_barrier")
        pst(11)
        if est: a("s_memrealtime s[96:97]")
        a("v_mov_b32 v12, %d" % (SY + 8))
        a("ds_read_b32 v13, v12")
        a("s_cmp_lg_u32 s39, 0")
        a("s_cbranch_scc1 %s_h1" % name)

    def body(hf):
        a.vm = []; a.lg = []
        if hf == 0:
            DK = DKA
            AR = 16; BR = AR + DK * 8
            ACC = [BR + 32, BR + 64]; ACC3 = BR + 96
            BIAS = ACC3 + 32; TMP = BIAS + 8; PK = TMP + 4
            assert PK + 8 <= 244, PK
        else:
            DK = 8
            AR = 16; BR = 80; ACC3 = 112
            ACC = [144, 212]; BIAS = 192; TMP = 200; PK = 204
        if prio and hf == prio - 1: a("s_setprio 1")
        npass = 3 if hf == 0 else 2
        G = [[0, 1, 2, 3], [8, 9, 10, 11], [16, 17], [4, 5, 6, 7], [12, 13, 14, 15]]
        grp_of = {t: g for g, ts in enumerate(G) for t in ts}
        steps = []
        for ps in range(npass):
            for t in range(18):
                steps.append((1, ps, 2 if ps < 2 else 1, t))
        NP1 = 18 * npass
        O = G[0] + G[3] + G[1] + G[2] + G[4]
        W2 = {0: ([2, 2, 1], [2, 2]), 1: ([2, 2, 2], [2, 1]), 2: ([2, 2, 2, 1], [2])}[P2][hf]
        nA = sum(1 for w_ in {0: ([2, 2, 1], [2, 2]), 1: ([2, 2, 2], [2, 1]), 2: ([2, 2, 2, 1], [2])}[P2][0] if w_ == 2)
        def p2_base(ps):
            if W2[ps] == 2:
                a("s_add_u32 s33, s38, %d" % (4 * (ps + (nA if hf else 0))))
                a("s_mov_b32 s34, 0")
            else:
                a("s_lshr_b32 s33, s38, 1")
                a("s_add_u32 s33, s33, 16")
                a("s_and_b32 s34, s38, 1")
            a("s_add_u32 s33, s33, s42")
            a("s_sub_u32 s35, s33, 18")
            a("s_cselect_b32 s33, s33, s35")
            a("s_lshl_b32 s33, s33, 1")
            a("s_add_u32 s33, s33, s34")
            a("s_mul_i32 s23, s33, 18432")
            a("s_add_u32 s23, s23, s41")
            a("s_lshl_b32 s33, s33, 10")
            a("s_add_u32 s%d, s33, s40" % (64 + ps))
        seq = [(ps_, O) for ps_ in range(len(W2))]
        for ps, ts in seq:
            for t in ts:
                steps.append((2, ps, W2[ps], t))
        N = len(steps)
        MID = hf == 1 and (not two or fpos == 1)
        first_i = {}; last_i = {}
        for i_, st_ in enumerate(steps):
            first_i.setdefault(st_[:2], i_); last_i[st_[:2]] = i_
        a_tok = {}; b_tok = {}
        sbase = {"key": None, "t0": None}

        def issue_a(i):
            ph, ps, nb, t = steps[i]
            base = (W1T_OFF if ph == 1 else W2T_OFF)
            sb_ = [25, 26, 27][ps] if ph == 1 else 23
            if ph == 2 and sbase["key"] != (ph, ps): p2_base(ps)
            new = sbase["key"] != (ph, ps) or not (sbase["t0"] <= t < sbase["t0"] + 4)
            if new:
                sbase["key"] = (ph, ps); sbase["t0"] = t
            toks = []
            for bi in range(nb):
                sreg = 30 + bi
                if new:
                    a("s_add_u32 s%d, s%d, %s" % (sreg, sb_, hx(base + bi * 18432 + t * 1024)))
                toks.append(a.vmem("buffer_load_dwordx4 %s, v%d, s[12:15], s%d offen offset:%d%s" % (vr(AR + (i % DK) * 8 + 4 * bi, 4), vL, sreg, (t - sbase["t0"]) * 1024, "" if (aplain or two) else LA)))
            a_tok[i] = toks

        def b_items(i):
            ph, ps, nb, t = steps[i]
            b_tok[i] = []
            out = []
            for sb in range(4):
                def rd(sb=sb):
                    off = (sb * 18 + t) * 1024
                    hi_ = off >= 65536
                    if hi_: off -= 65536
                    if ph == 1: v = [[vXe, vXo], [vXeH, vXoH]][hi_][t & 1]
                    else: v = vLPH if hi_ else vLP
                    b_tok[i].append(a.lds("ds_read_b128 %s, v%d offset:%d" % (vr(BR + (i % (PB_D + 1)) * 16 + 4 * sb, 4), v, off)))
                out.append(rd)
            return out

        lab = "%s_r%d" % (name, hf)
        if two:
            a("v_mov_b32 v12, 0")
            a("s_mov_b32 s33, %s" % hx(CNT_OFF))
            nt = a.vmem("buffer_load_dword v250, v12, s[12:15], s33 offen")
            if hf == 0:
                XS = 96
                xt = []
                for k in range(18):
                    if k % 4 == 0: a("s_add_u32 s33, s36, %d" % (1024 * k))
                    xt.append(a.vmem("buffer_load_dwordx4 %s, v%d, s[12:15], s33 offen offset:%d" % (vr(XS + 4 * k, 4), vL, 1024 * (k % 4))))
                a("s_mul_i32 s33, s38, 576")
                a("s_add_u32 s34, s33, s56")
                xt.append(a.vmem("buffer_load_dwordx4 %s, v%d, s[12:15], s34 offen" % (vr(XS + 72, 4), vL)))
                for i in range(DK - 1): issue_a(i)
                a("v_lshrrev_b32 v12, 2, v%d" % vL)
                a("v_add_u32 v12, %d, v12" % SY)
                a("v_mov_b32 v13, 0")
                a("s_mov_b64 exec, 0xffff")
                a("ds_write_b32 v12, v13")
                a("s_mov_b64 exec, -1")
                a("v_add_u32 v12, s29, v%d" % vL)
                ws_ = []
                for k in range(18):
                    a.wait(vm=xt[k])
                    ws_.append(a.lds("ds_write_b128 v12, %s offset:%d" % (vr(XS + 4 * k, 4), 1024 * k)))
                a("s_add_u32 s33, s33, %d" % BIASB)
                a("v_add_u32 v12, s33, v%d" % vL)
                a.wait(vm=xt[18])
                a("s_mov_b32 exec_hi, 15")
                a("ds_write_b128 v12, %s" % vr(XS + 72, 4))
                a("s_mov_b32 exec_hi, -1")
                a("v_readfirstlane_b32 s3, v250")
                a.wait_all(vm=False, lg=True)
                a("s_barrier")
                if est: a("s_memrealtime s[88:89]")
        else:
            a("s_waitcnt lgkmcnt(0)")
            a("v_readfirstlane_b32 s3, v13")
            for i in range(DK - 1): issue_a(i)
            AFr, ACr = (168 if hf == 0 else 72), 240
            AC2 = 248 if est == 2 else 252
            a("v_add_u32 v12, %d, v%d" % (A16, vXe))
            a("v_add_u32 v13, %d, v%d" % (A16, vXo))
            a("v_lshlrev_b32 v244, 6, v%d" % vN)
            a("v_lshl_add_u32 v244, v%d, 4, v244" % vG)
            a("s_lshl_b32 s33, s21, 1")
            a("s_add_u32 s33, s33, s43")
            a("s_mul_i32 s33, s33, %d" % (576 * 64))
            a("s_add_u32 s33, s33, %s" % hx(ZF_OFF))
            def mm(cf, s_blk):
                toks = {}
                def rd(t):
                    af = AFr + 8 * (t % 3)
                    toks[t] = [a.lds("ds_read_b128 %s, v%d offset:%d" % (vr(af + 4 * mb, 4), 12 + (t & 1), (mb * 18 + t) * 1024)) for mb in range(2)]
                rd(0); rd(1)
                for t in range(18):
                    if t + 2 < 18: rd(t + 2)
                    af = AFr + 8 * (t % 3)
                    for mb in range(2):
                        a.wait(lg=toks[t][mb])
                        d = ACr if mb == 0 else AC2
                        a("v_mfma_f32_16x16x32_f16 %s, %s, %s, %s" % (vr(d, 4), vr(af + 4 * mb, 4), vr(cf + 4 * t, 4), "0" if t == 0 else vr(d, 4)))
                for mb in range(2):
                    d = ACr if mb == 0 else AC2
                    for i in range(4):
                        a("v_mul_f32 v%d, %s, v%d" % (d + i, hx(f32bits(2.0 ** -5)), d + i))
                    for h in range(2):
                        a("v_cvt_pk_f16_f32 v%d, v%d, v%d" % (AFr + 2 * mb + h, d + 2 * h, d + 2 * h + 1))
                a("s_lshl_b32 s34, s%d, 10" % s_blk)
                a("s_add_u32 s34, s34, s33")
                a.vmem("buffer_store_dwordx4 %s, v244, s[12:15], s34 offen sc1" % vr(AFr, 4))
            mm(96, 37)
            vm1 = list(a.vm)
            pst(12)
            if hf == 1:
                a("s_cmp_lg_u32 s22, 7")
                a("s_cbranch_scc1 %s_n7" % lab)
                a("s_nop 1")
                mm(168, 62)
                a("%s_n7:" % lab)
                a("s_cmp_lg_u32 s22, 6")
                a("s_cbranch_scc1 %s_nc" % lab)
                a("s_sub_u32 s32, s2, 128")
                a("s_cmp_ge_u32 s32, 20")
                a("s_cbranch_scc1 %s_nc" % lab)
                fft_const(a, 32, vN, vG, vL, 96, 48)
                a("%s_nc:" % lab)
            a("s_cmp_ge_u32 s2, 128")
            a("s_cbranch_scc1 %s_nw" % lab)
            a("s_mul_i32 s33, s2, 18560")
            a("s_add_u32 s33, s33, %s" % hx(WT_OFF))
            a("s_mul_i32 s34, s2, 1280")
            a("s_add_u32 s34, s34, %s" % hx(WMAX_OFF))
            for it in range(2 if hf == 0 else 1):
                if it == 1:
                    a("s_cmp_ge_u32 s22, 2")
                    a("s_cbranch_scc1 %s_nw" % lab)
                a("v_add_u32 v96, %d, v0" % (512 * it))
                a("v_and_b32 v97, 1, v96")
                a("v_lshrrev_b32 v98, 1, v96")
                a("v_min_u32 v98, 288, v98")
                a("v_mul_u32_u24 v99, 578, v97")
                a("v_lshl_add_u32 v99, v98, 1, v99")
                a("v_add_u32 v99, %d, v99" % TS)
                for e in range(8):
                    a("ds_read_u16 v%d, v99 offset:%d" % (112 + e, e * 4096))
                    a("ds_read_u16 v%d, v99 offset:%d" % (120 + e, e * 4096 + 1160))
                a("v_lshlrev_b32 v100, 6, v98")
                a("v_lshl_add_u32 v100, v97, 5, v100")
                a("v_lshlrev_b32 v101, 2, v98")
                a("s_waitcnt lgkmcnt(0)")
                for e in range(8):
                    a("v_lshl_or_b32 v%d, v%d, 16, v%d" % (104 + e, 120 + e, 112 + e))
                a("buffer_store_dwordx4 v[104:107], v100, s[12:15], s33 offen sc1")
                a("buffer_store_dwordx4 v[108:111], v100, s[12:15], s33 offen offset:16 sc1")
            a("%s_nw:" % lab)
            a.vm = vm1; a.lg = []
            pst(13)
            a("v_mov_b32 v12, %d" % (SY + 36))
            a("v_mov_b32 v13, 1")
            a("s_mov_b64 exec, 1")
            a("ds_add_u32 v12, v13")
            a("s_mov_b64 exec, -1")
            pst(14)
            if est: a("s_memrealtime s[88:89]")
        def f2():
            a("s_lshl_b32 s33, s2, 2")
            a("s_add_u32 s33, s33, %s" % hx(FLAG_OFF + 32768))
            a("v_lshlrev_b32 v12, 10, v9")
            a("v_mov_b32 v13, s3")
            a("s_mov_b64 exec, 0xffff")
            a("buffer_store_dword v13, v12, s[12:15], s33 offen sc1")
            a("s_mov_b64 exec, -1")
        nsync = [0]
        def fsync():
            n = nsync[0]; nsync[0] += 1
            a("s_add_u32 s87, s87, 4")
            a("v_mov_b32 v12, %d" % (SY + 16))
            a("v_mov_b32 v13, 1")
            a("s_mov_b64 exec, 1")
            a("ds_add_u32 v12, v13")
            a("s_mov_b64 exec, -1")
            lds_spin(a, "%s_fs%d" % (lab, n), SY + 16, "s87")
            a.lg = []
        def f2_check():
            a("s_cmp_lg_u32 s22, 4")
            a("s_cbranch_scc1 %s_np2" % lab)
            poll_flags(a, lab + "_p2", 4, (0xffffffff, 0xffffffff), vL, 244, "s85", 8, pre=True)
            a("v_mov_b32 v12, %d" % (SY + 12))
            a("v_mov_b32 v13, 1")
            a("ds_write_b32 v12, v13")
            a("%s_np2:" % lab)
            lds_spin(a, lab + "_w2", SY + 12, "1")
            a.lg = []
        def do_fft(flush):
            pst(15)
            if ctouch: code_touch(a, lab + "_f2", name + "_e1start", 128, lab + "_ct")
            ff = FFT(a, 16, 9, 38, FSC, 72, fsync, old=bool(two))
            D1 = ff.end; D2 = 192
            assert D1 + 42 <= 192 + 2, D1
            a("s_mov_b32 s87, 0")
            ff.addr()
            ff.data_loads(2, D1, 78, "c1")
            ff.const_loads()
            pst(17)
            flush()
            if fprio: a("s_setprio 2")
            pst(18)
            ff.twiddles()
            a("s_cmp_lt_u32 s2, 223")
            a("s_cbranch_scc1 %s_f1" % lab)
            vm_s = list(a.vm); tk = dict(ff.tok)
            a("s_add_u32 s82, s2, 33")
            ff.data_loads(82, D2 + 2, 64, "c2")
            ff.compute(D1, 78, "c1")
            fsync()
            ff.compute(D2 + 2, 64, "c2")
            a("s_add_u32 s87, s87, 0")
            a("s_branch %s_f2" % lab)
            a("%s_f1:" % lab)
            a.vm = vm_s; ff.tok = tk
            ff.compute(D1, 78, "c1")
            a("%s_f2:" % lab)
            if fprio: a("s_setprio %d" % (1 if bprio else 0))
            a("s_nop 1")
            a.lg = []
            pst(16)
        def publish2():
            gather_publish(a, lab + "_g2", SY + 4, "7", f2)
        def publish3():
            def f3():
                a("s_lshl_b32 s33, s2, 2")
                a("s_add_u32 s33, s33, %s" % hx(FLAG_OFF + 8192))
                store_flag(a, "s33")
                a("s_cmp_lt_u32 s2, 223")
                a("s_cbranch_scc1 %s_g3" % lab)
                a("s_add_u32 s33, s33, 132")
                store_flag(a, "s33")
            gather_publish(a, lab + "_g3", SY + 20, "3", f3)
        def check5():
            if hf == 0:
                a("s_cmp_lg_u32 s22, 0")
                a("s_cbranch_scc1 %s_n5" % lab)
                a("s_lshl_b32 s33, s20, 8")
                a("s_add_u32 s33, s33, %s" % hx(FLAG_OFF + 2048))
                a("v_lshrrev_b32 v244, 2, v%d" % vL)
                poll_flags(a, lab + "_p5", 1, (0xffffffff, 0), 244, 245, "s33", 6)
                a("v_mov_b32 v12, %d" % (SY + 32))
                a("v_mov_b32 v13, 1")
                a("ds_write_b32 v12, v13")
                a("%s_n5:" % lab)
            lds_spin(a, lab + "_w5", SY + 32, "1")
            a.lg = []
        if two and hf == 1:
            def bar():
                a.wait(vm=nt)
                a("v_readfirstlane_b32 s3, v250")
                a("s_barrier")
                if est: a("s_memrealtime s[88:89]")
            if fpos == 0:
                do_fft(bar)
            else:
                bar()
            for i in range(DK - 1): issue_a(i)
        if est: a("s_memrealtime s[90:91]")

        fill = deque()
        bucket = {"tok": 0.0}
        def cost_of(lines):
            c = 0
            for l in lines:
                op = l.split()[0]
                c += 8 if op in TRANS else (4 if op.startswith(("buffer", "ds_")) else (1 if op.startswith("s_") else 4))
            return c
        def fine(rate):
            bucket["tok"] += rate
            while fill and bucket["tok"] >= 4:
                n0 = len(a.lines)
                tag, f = fill.popleft(); f()
                bucket["tok"] -= cost_of(a.lines[n0:])
            if not fill: bucket["tok"] = 0.0
        def flush_tag(tag):
            while any(t == tag for t, _ in fill):
                fill.popleft()[1]()
        pw = {}

        def gelu_group(tag, regs, outs):
            T = [TMP + k for k in range(4)]
            seq = []
            for k in range(4): seq.append("v_mul_f32 v%d, v%d, v%d" % (T[k], regs[k], regs[k]))
            for k in range(4): seq.append("v_fmaak_f32 v%d, v%d, v%d, %s" % (T[k], T[k], vC1, hx(f32bits(C0))))
            for k in range(4): seq.append("v_mul_f32 v%d, v%d, v%d" % (T[k], regs[k], T[k]))
            for k in range(4): seq.append("v_exp_f32 v%d, v%d" % (T[k], T[k]))
            for k in range(4): seq.append("v_add_f32 v%d, 1.0, v%d" % (T[k], T[k]))
            for k in range(4): seq.append("v_rcp_f32 v%d, v%d" % (T[k], T[k]))
            for k in range(4): seq.append("v_mul_f32 v%d, v%d, v%d" % (T[k], regs[k], T[k]))
            seq.append("v_cvt_pk_bf16_f32 v%d, v%d, v%d" % (outs[0], T[0], T[1]))
            seq.append("v_cvt_pk_bf16_f32 v%d, v%d, v%d" % (outs[1], T[2], T[3]))
            if nogelu: seq = seq[-2:]
            for s_ in seq: fill.append((tag, lambda s_=s_: a(s_)))

        def accset(ph, ps):
            if ph == 1: return [ACC[0], ACC[1], ACC[0]][ps]
            return [ACC3, ACC[1], ACC[0], ACC3][ps] if hf == 0 else [ACC3, ACC[0]][ps]

        def queue_gelu(ps, nb):
            st = accset(1, ps); tag = "g%d" % ps
            pw[ps] = []
            for sb in range(4):
                pk = PK + 4 * (sb & 1)
                for bi in range(nb):
                    b = st + (bi * 4 + sb) * 4
                    gelu_group(tag, [b, b + 1, b + 2, b + 3], [pk + 2 * bi, pk + 2 * bi + 1])
                def wr(sb=sb, pk=pk):
                    if ps == 0 and sb == 0 and not two:
                        lds_spin(a, lab + "_pre", SY + 36, "8")
                        a.lg = []
                    if nb == 2:
                        pw[ps].append(a.lds("ds_write_b128 v%d, %s offset:%d" % (vPw, vr(pk, 4), sb * 18432 + ps * 8192)))
                    else:
                        pw[ps].append(a.lds("ds_write_b64 v%d, %s offset:%d" % (vPw8, vr(pk, 2), sb * 18432)))
                fill.append((tag, wr))
            for _ in range(3): fill.append((tag, lambda: a("s_nop 0")))
            def sig():
                a.wait(lg=pw[ps])
                a("v_mov_b32 v12, %d" % (SY + 40 + 4 * (ps + 3 * hf)))
                a("v_mov_b32 v13, 1")
                a("s_mov_b64 exec, 1")
                a.lds("ds_add_u32 v12, v13")
                a("s_mov_b64 exec, -1")
            fill.append((tag, sig))

        def queue_store(ps, nb):
            st = accset(2, ps); tag = "s%d" % ps
            fl = ["", " sc1", " sc0 sc1", " nt", " sc1 nt"][stf]
            k = 0
            for bi in range(nb):
                for rg in range(2):
                    pk = PK + 4 * (k & 1); k += 1
                    for s2 in range(2):
                        b = st + (bi * 4 + 2 * rg + s2) * 4
                        for h in range(2):
                            fill.append((tag, lambda pk=pk, s2=s2, b=b, h=h: a("v_cvt_pk_bf16_f32 v%d, v%d, v%d" % (pk + 2 * s2 + h, b + 2 * h, b + 2 * h + 1))))
                    def stv(pk=pk, bi=bi, rg=rg):
                        a("s_add_u32 s34, s%d, %d" % (64 + ps, rg * 36864))
                        a.vmem("buffer_store_dwordx4 %s, v%d, s[12:15], s34 offen offset:%d%s" % (vr(pk, 4), vL, bi * 1024, fl))
                    if not nostore: fill.append((tag, stv))

        bias_tok = {}
        def load_bias(ps):
            if ps < 2:
                bias_tok[ps] = [a.lds("ds_read_b128 %s, v%d offset:%d" % (vr(BIAS + 4 * bi, 4), vBias, 1024 * ps + 64 * bi)) for bi in range(2)]
            else:
                bias_tok[ps] = [a.lds("ds_read_b128 %s, v7" % vr(BIAS, 4))]

        seen_g = set()
        def sync(g):
            if g in seen_g: return
            seen_g.add(g)
            own = g - 3 * hf
            if 0 <= own < npass and (g < 3) == (hf == 0): flush_tag("g%d" % own)
            pst(30 + 2 * g)
            lds_spin(a, "%s_pg%d" % (lab, g), SY + 40 + 4 * g, "4")
            pst(31 + 2 * g)
            a.lg = []

        def hook(f):
            lg_save = list(a.lg)
            f()
            a.lg = lg_save

        load_bias(0)
        for i in range(PB_D):
            for r_ in b_items(i): r_()
        for i in range(N):
            ph, ps, nb, t = steps[i]
            j = i + PB_D
            rds = []
            if MID and NP1 <= j < NP1 + PB_D:
                pass
            elif j < N:
                if steps[j][0] == 2: sync(grp_of[steps[j][3]])
                rds = b_items(j)
            st = accset(ph, ps)
            first = first_i[(ph, ps)] == i
            if first:
                if ph == 1 and ps == 2: flush_tag("g0")
                if ph == 2:
                    for tg in ({0: [], 1: ["g1"], 2: ["g2", "g0"], 3: ["s0"]} if hf == 0 else {0: [], 1: ["g0"]})[ps]: flush_tag(tg)
            br = BR + (i % (PB_D + 1)) * 16
            nm = 4 * nb
            for k in range(nm):
                bi, sb = k // 4, k % 4
                d = st + (bi * 4 + sb) * 4
                need = [b_tok[i][sb]] if bi == 0 else []
                if first:
                    c = "0" if ph == 2 else vr(BIAS + 4 * bi, 4)
                    if ph == 1: need = need + bias_tok[ps]
                else:
                    c = vr(d, 4)
                a.wait(vm=a_tok[i][bi] if sb == 0 else None, lg=need)
                a("%s %s, %s, %s, %s" % (MFMA, vr(d, 4), vr(AR + (i % DK) * 8 + 4 * bi, 4), vr(br + 4 * sb, 4), c))
                if rds and (nb == 1 or k % 2 == 0): rds.pop(0)()
                fine(RATE)
            if i + DK - 1 == NP1 and hf == 0 and not two:
                check5()
            if i + DK - 1 < N and not (MID and NP1 <= i + DK - 1 < NP1 + DK - 1): issue_a(i + DK - 1)
            if i == DK and not two: hook(publish2)
            if hf == 1 and i == (NP1 if MID else 0) + P3AT: hook(publish3)
            if hf == 1 and i == NP1 - 8 and not two:
                a("s_and_b32 s85, s2, 15")
                a("s_lshl_b32 s85, s85, 10")
                a("s_add_u32 s85, s85, %s" % hx(FLAG_OFF + 32768))
                a.vmem("buffer_load_dwordx4 v[244:247], v%d, s[12:15], s85 offen sc1" % vL)
            if ph == 1 and t == 2 and ps + 1 < npass: load_bias(ps + 1)
            if last_i[(ph, ps)] == i:
                lg_s = list(a.lg); pst(20 + 3 * (ph - 1) + ps); a.lg = [] if est == 2 else lg_s
                if ph == 1: queue_gelu(ps, nb)
                else: queue_store(ps, nb)
                if est and ph == 1 and ps == npass - 1: a("s_memrealtime s[92:93]")
                if MID and i == NP1 - 1:
                    flush_tag("g0")
                    if not two:
                        a.wait_all(vm=True, lg=False)
                        f2_check()
                    do_fft(lambda: flush_tag("g1"))
                    if not two: check5()
                    for i2 in range(NP1, NP1 + DK - 1): issue_a(i2)
                    for i2 in range(NP1, NP1 + PB_D):
                        sync(grp_of[steps[i2][3]])
                        for r_ in b_items(i2): r_()
                if est and ph == 2 and ps == 0: a("s_memrealtime s[94:95]")
        while fill: fill.popleft()[1]()
        if est == 2:
            a("v_writelane_b32 v253, s100, 0")
            a("s_lshl_b32 s33, s2, 3")
            a("s_add_u32 s33, s33, s22")
            a("s_lshl_b32 s33, s33, 8")
            a("s_add_u32 s33, s33, %s" % hx(STAMP_OFF + 0x700000))
            a("v_lshrrev_b32 v12, 2, v%d" % vL)
            a("buffer_store_dword v253, v12, s[12:15], s33 offen")

        a("%s_e%dstart:" % (name, hf))
        epilogue(a, name, hf, XB, vL, est=est, SLP=SLP, G1=G1, uload=1, mega=(poll_flags, store_flag, lds_spin, SY))

    body(0)
    a("%s_h1:" % name)
    body(1)
    a("%s_end:" % name)
    a("s_endpgm")
    n = a.fix_hazards()
    print("mega: nops inserted", n, "lines", len(a.lines))
    return kernel_header(name) + a.text() + kernel_desc(name, 256, 102), MEGA_LDS
```

```python
from asmgen import *
from layout import *
from gen_epi import mod576, MAGIC576, INV576


def cf_gen(a, base, s_blk, vN, vG, U0, T, SM):
    K, IM, X, Y, M16 = T, T + 1, T + 2, T + 3, T + 4
    a("s_lshl_b32 s%d, s%d, 4" % (SM + 3, s_blk))
    a("v_add_u32 v%d, s%d, v%d" % (X, SM + 3, vN))
    a("v_lshrrev_b32 v%d, 1, v%d" % (K, X))
    a("v_and_b32 v%d, 1, v%d" % (IM, X))
    a("v_cmp_eq_u32 vcc, 1, v%d" % X)
    a("v_mov_b32 v%d, 288" % Y)
    a("v_lshlrev_b32 v%d, 2, v%d" % (T + 5, IM))
    a("v_cndmask_b32 v%d, v%d, v%d, vcc" % (K, K, Y))
    a("v_cndmask_b32 v%d, v%d, 0, vcc" % (IM, IM))
    a("v_mul_u32_u24 v%d, 144, v%d" % (IM, IM))
    a("v_and_b32 v%d, 1, v%d" % (X, K))
    a("v_mul_u32_u24 v%d, 0x8000, v%d" % (X, X))
    a("v_lshl_or_b32 v%d, v%d, 16, v%d" % (U0 + 10, X, X))
    a("v_and_b32 v%d, 3, v%d" % (X, K))
    a("v_add_u32 v%d, v%d, v%d" % (X, X, T + 5))
    a("v_mov_b32 v%d, 0x6c" % Y)
    a("v_lshrrev_b32 v%d, v%d, v%d" % (X, X, Y))
    a("v_and_b32 v%d, 1, v%d" % (X, X))
    a("v_mul_u32_u24 v%d, 0x8000, v%d" % (X, X))
    a("v_lshl_or_b32 v%d, v%d, 16, v%d" % (U0 + 9, X, X))
    a("v_lshlrev_b32 v%d, 4, v%d" % (X, K))
    mod576(a, M16, X, Y, SM, SM + 1)
    a("v_mul_u32_u24 v%d, v%d, v%d" % (X, K, vG))
    a("v_lshlrev_b32 v%d, 2, v%d" % (X, X))
    mod576(a, X, X, Y, SM, SM + 1)
    a("v_add_u32 v%d, v%d, v%d" % (X, X, IM))
    a("v_cvt_f32_u32 v%d, v%d" % (X, X))
    a("v_cvt_f32_u32 v%d, v%d" % (K, K))
    a("v_cvt_f32_u32 v%d, v%d" % (M16, M16))
    a("v_mul_f32 v%d, s%d, v%d" % (U0 + 8, SM + 2, M16))
    a("v_add_f32 v%d, v%d, v%d" % (U0 + 8, U0 + 8, U0 + 8))
    a("v_add_f32 v%d, v%d, v%d" % (Y, X, M16))
    for e in range(8):
        src = X if e < 4 else Y
        if e & 3:
            a("v_fmamk_f32 v%d, v%d, %s, v%d" % (T + 6, K, hx(f32bits(float(e & 3))), src))
            a("v_mul_f32 v%d, s%d, v%d" % (U0 + e, SM + 2, T + 6))
        else:
            a("v_mul_f32 v%d, s%d, v%d" % (U0 + e, SM + 2, src))
    for t in range(5):
        ne = 8 if t < 4 else 4
        for e in range(ne):
            if t:
                a("v_fmamk_f32 v%d, v%d, %s, v%d" % (T + 8 + e, U0 + 8, hx(f32bits(float(t))), U0 + e))
        for e in range(ne):
            a("v_cos_f32 v%d, v%d" % (T + e, T + 8 + e if t else U0 + e))
        for h in range(ne // 2):
            a("v_cvt_pk_f16_f32 v%d, v%d, v%d" % (base + 4 * t + h, T + 2 * h, T + 2 * h + 1))
    for r in range(18):
        a("v_xor_b32_dpp v%d, v%d, v%d quad_perm:[0,1,3,2] row_mask:0xf bank_mask:0xf" % (base + 18 + r, base + r, U0 + 9))
    for r in range(36):
        a("v_xor_b32 v%d, v%d, v%d" % (base + 36 + r, U0 + 10, base + r))


def ln_batch(a, XR, XF, A0, TT, vXB, vA16, s_inv, s_do16, lab):
    for i in range(18):
        a("v_lshlrev_b32 v%d, 16, v%d" % (XF + 2 * i, XR + i))
        a("v_and_b32 v%d, 0xffff0000, v%d" % (XF + 2 * i + 1, XR + i))
    a("v_pk_add_f32 %s, %s, %s" % (vr(A0, 2), vr(XF, 2), vr(XF + 2, 2)))
    a("v_pk_add_f32 %s, %s, %s" % (vr(A0 + 2, 2), vr(XF + 4, 2), vr(XF + 6, 2)))
    for i in range(4, 18):
        d = A0 + 2 * (i & 1)
        a("v_pk_add_f32 %s, %s, %s" % (vr(d, 2), vr(d, 2), vr(XF + 2 * i, 2)))
    a("v_pk_add_f32 %s, %s, %s" % (vr(A0, 2), vr(A0, 2), vr(A0 + 2, 2)))
    a("v_add_f32 v%d, v%d, v%d" % (A0, A0, A0 + 1))
    def rowsum(r):
        for sh in (8, 4, 2, 1):
            a("v_add_f32_dpp v%d, v%d, v%d row_ror:%d row_mask:0xf bank_mask:0xf" % (r, r, r, sh))
    rowsum(A0)
    a("v_mul_f32 v%d, s%d, v%d" % (A0, s_inv, A0))
    a("v_sub_f32 v%d, 0, v%d" % (A0 + 2, A0))
    a("v_sub_f32 v%d, 0, v%d" % (A0 + 3, A0))
    a("v_cvt_pk_bf16_f32 v%d, v%d, v%d" % (A0 + 1, A0 + 2, A0 + 2))
    a("v_lshlrev_b32 v%d, 16, v%d" % (A0 + 4, A0 + 1))
    a("v_lshlrev_b32 v%d, 16, v%d" % (A0 + 5, A0 + 1))
    for i in range(18):
        t = TT + 2 * (i & 3)
        d = A0 + 6 + 2 * (i & 1)
        a("v_pk_add_f32 %s, %s, %s" % (vr(t, 2), vr(XF + 2 * i, 2), vr(A0 + 2, 2)))
        if i < 2:
            a("v_pk_mul_f32 %s, %s, %s" % (vr(d, 2), vr(t, 2), vr(t, 2)))
        else:
            a("v_pk_fma_f32 %s, %s, %s, %s" % (vr(d, 2), vr(t, 2), vr(t, 2), vr(d, 2)))
    a("v_pk_add_f32 %s, %s, %s" % (vr(A0 + 6, 2), vr(A0 + 6, 2), vr(A0 + 8, 2)))
    a("v_add_f32 v%d, v%d, v%d" % (A0 + 6, A0 + 6, A0 + 7))
    rowsum(A0 + 6)
    V = A0 + 6
    a("v_mul_f32 v%d, s%d, v%d" % (V, s_inv, V))
    a("v_cvt_pk_bf16_f32 v%d, v%d, v%d" % (V, V, V))
    a("v_lshlrev_b32 v%d, 16, v%d" % (V, V))
    a("v_add_f32 v%d, %s, v%d" % (V, hx(f32bits(1e-5)), V))
    a("v_cvt_pk_bf16_f32 v%d, v%d, v%d" % (V, V, V))
    a("v_lshlrev_b32 v%d, 16, v%d" % (V, V))
    a("v_sqrt_f32 v%d, v%d" % (V, V))
    a("v_cvt_pk_bf16_f32 v%d, v%d, v%d" % (V, V, V))
    a("v_lshlrev_b32 v%d, 16, v%d" % (V, V))
    a("v_rcp_f32 v%d, v%d" % (V, V))
    a("v_mov_b32 v%d, v%d" % (V + 1, V))
    for j in range(9):
        pr = (2 * j, 2 * j + 1)
        for i in pr:
            x = XF + 2 * i
            a("v_pk_add_f32 %s, %s, %s" % (vr(x, 2), vr(x, 2), vr(A0 + 4, 2)))
        for i in pr:
            x = XF + 2 * i
            a("v_cvt_pk_bf16_f32 v%d, v%d, v%d" % (XR + i, x, x + 1))
        for i in pr:
            x = XF + 2 * i
            a("v_lshlrev_b32 v%d, 16, v%d" % (x, XR + i))
            a("v_and_b32 v%d, 0xffff0000, v%d" % (x + 1, XR + i))
        for i in pr:
            x = XF + 2 * i
            a("v_pk_mul_f32 %s, %s, %s" % (vr(x, 2), vr(x, 2), vr(V, 2)))
        for i in pr:
            x = XF + 2 * i
            a("v_cvt_pk_bf16_f32 v%d, v%d, v%d" % (XR + i, x, x + 1))
        a.lds("ds_write_b64 v%d, %s offset:%d" % (vXB, vr(XR + 2 * j, 2), j * 2048))
    a("s_cmp_eq_u32 s%d, 0" % s_do16)
    a("s_cbranch_scc1 %s" % lab)
    for j in range(9):
        x = XF + 4 * j
        for k, i in enumerate((2 * j, 2 * j + 1)):
            a("v_lshlrev_b32 v%d, 16, v%d" % (x + 2 * k, XR + i))
            a("v_and_b32 v%d, 0xffff0000, v%d" % (x + 2 * k + 1, XR + i))
        a("v_cvt_pk_f16_f32 v%d, v%d, v%d" % (x, x, x + 1))
        a("v_cvt_pk_f16_f32 v%d, v%d, v%d" % (x + 1, x + 2, x + 3))
        a("ds_write_b64 v%d, %s offset:%d" % (vA16, vr(x, 2), j * 2048))
    a("%s:" % lab)


def tile_issue(a, s_tile, s_chunk, lane, vt, vd, sw1, sw2, s0):
    S = lambda i: "s%d" % (s0 + i)
    lab = a.label(); lab2 = a.label()
    a("v_lshrrev_b32 v%d, 3, v%d" % (vt, lane))
    a("v_and_b32 v%d, 6, v%d" % (vt + 1, vt))
    a("v_xor_b32 v%d, v%d, v%d" % (vt + 1, vt + 1, lane))
    a("v_and_b32 v%d, 7, v%d" % (vt + 1, vt + 1))
    a("v_lshlrev_b32 v%d, 4, v%d" % (vt + 1, vt + 1))
    a("s_sub_u32 %s, s%d, 162" % (S(2), s_tile))
    a("s_cselect_b32 %s, s%d, %s" % (S(2), s_tile, S(2)))
    a("s_mul_i32 %s, %s, 7282" % (S(0), S(2)))
    a("s_lshr_b32 %s, %s, 16" % (S(0), S(0)))
    a("s_mul_i32 %s, %s, 9" % (S(1), S(0)))
    a("s_sub_u32 %s, %s, %s" % (S(1), S(2), S(1)))
    a("s_mul_i32 %s, %s, %d" % (S(4), S(1), 4 * 18432))
    a("s_lshl_b32 %s, %s, 10" % (S(2), S(0)))
    a("s_add_u32 %s, %s, %s" % (S(4), S(4), S(2)))
    a("s_mul_i32 %s, s%d, %d" % (S(2), s_chunk, 36 * 18432))
    a("s_add_u32 %s, %s, %s" % (S(4), S(4), S(2)))
    a("s_lshl_b32 %s, %s, 7" % (S(1), S(1)))
    a("s_cmp_ge_u32 s%d, 162" % s_tile)
    a("s_cbranch_scc1 %s" % lab)
    a("s_add_u32 %s, %s, %s" % (S(4), S(4), hx(W1T_OFF)))
    a("s_mul_i32 %s, %s, %d" % (S(0), S(0), 32 * 9216))
    a("s_add_u32 %s, %s, %s" % (S(0), S(0), S(1)))
    a("s_mul_i32 %s, s%d, 1152" % (S(1), s_chunk))
    a("s_add_u32 %s, %s, %s" % (S(0), S(0), S(1)))
    a("s_movk_i32 %s, 9216" % S(1))
    a("v_mad_u32_u24 v%d, v%d, %s, v%d" % (vt, vt, S(1), vt + 1))
    for k in range(4):
        a("s_add_u32 %s, %s, %d" % (S(2), S(0), 8 * 9216 * k))
        a("buffer_load_dwordx4 %s, v%d, s[%d:%d], %s offen" % (vr(vd + 4 * k, 4), vt, sw1, sw1 + 3, S(2)))
    a("s_branch %s" % lab2)
    a("%s:" % lab)
    a("s_add_u32 %s, %s, %s" % (S(4), S(4), hx(W2T_OFF)))
    a("s_mul_i32 %s, %s, %d" % (S(0), S(0), 32 * 1152))
    a("s_add_u32 %s, %s, %s" % (S(0), S(0), S(1)))
    a("s_mul_i32 %s, s%d, %d" % (S(1), s_chunk, 576 * 1152))
    a("s_add_u32 %s, %s, %s" % (S(0), S(0), S(1)))
    a("s_movk_i32 %s, 1152" % S(1))
    a("v_mad_u32_u24 v%d, v%d, %s, v%d" % (vt, vt, S(1), vt + 1))
    for k in range(4):
        a("s_add_u32 %s, %s, %d" % (S(2), S(0), 8 * 1152 * k))
        a("buffer_load_dwordx4 %s, v%d, s[%d:%d], %s offen" % (vr(vd + 4 * k, 4), vt, sw2, sw2 + 3, S(2)))
    a("%s:" % lab2)
    toks = [object() for _ in range(4)]
    a.vm.extend(toks)
    return toks


def tile_finish(a, lane, vd, vt, s_lds, s_dst, vL):
    a("v_add_u32 v%d, s%d, v%d" % (vt + 1, s_lds, vL))
    wt_ = [a.lds("ds_write_b128 v%d, %s offset:%d" % (vt + 1, vr(vd + 4 * k, 4), 1024 * k)) for k in range(4)]
    a("v_bfe_u32 v%d, v%d, 2, 4" % (vt, lane))
    a("v_bfe_u32 v%d, v%d, 1, 2" % (vt + 1, vt))
    a("v_lshlrev_b32 v%d, 5, v%d" % (vt + 1, vt + 1))
    a("v_lshl_add_u32 v%d, v%d, 7, v%d" % (vt, vt, vt + 1))
    a("v_and_b32 v%d, 3, v%d" % (vt + 1, lane))
    a("v_lshl_add_u32 v%d, v%d, 3, v%d" % (vt, vt + 1, vt))
    a("v_add_u32 v%d, s%d, v%d" % (vt, s_lds, vt))
    a.wait(lg=wt_)
    rt = []
    for b in range(4):
        if b: a("v_xor_b32 v%d, %d, v%d" % (vt, (b ^ (b - 1)) * 32, vt))
        rt.append([a.lds("ds_read_b64_tr_b16 %s, v%d offset:%d" % (vr(vd + 4 * b + 2 * i, 2), vt, 2048 * i)) for i in range(2)])
    out = []
    for b in range(4):
        a.wait(lg=rt[b])
        if b: a("s_add_u32 s%d, s%d, 18432" % (s_dst, s_dst))
        out.append(a.vmem("buffer_store_dwordx4 %s, v%d, s[12:15], s%d offen sc1" % (vr(vd + 4 * b, 4), vL, s_dst)))
    return out


def fft_const(a, s_cf, vM, vG, vL, T, S):
    s = lambda i: "s%d" % (S + i)
    a("s_lshr_b32 %s, s%d, 2" % (s(1), s_cf))
    a("s_bfe_u32 %s, s%d, 0x10001" % (s(2), s_cf))
    a("s_and_b32 %s, s%d, 1" % (s(3), s_cf))
    a("s_cmp_lt_u32 s%d, 16" % s_cf)
    a("s_cselect_b32 %s, 1, 0" % s(0))
    a("s_cselect_b32 %s, %s, %s" % (s(1), s(1), s(2)))
    a("s_cselect_b32 %s, %s, %s" % (s(2), s(2), s(3)))
    a("s_cselect_b32 %s, %s, 0" % (s(3), s(3)))
    a("s_cselect_b32 %s, 63, 31" % s(4))
    a("s_lshl_b32 %s, %s, 23" % (s(0), s(0)))
    a("s_sub_u32 %s, %s, %s" % (s(5), hx(f32bits(1 / 32.)), s(0)))
    a("s_sub_u32 %s, %s, %s" % (s(6), hx(f32bits(0.25)), s(0)))
    a("s_cmp_eq_u32 %s, 0" % s(2))
    a("s_cselect_b32 %s, 0, %s" % (s(7), hx(f32bits(0.75))))
    a("s_lshl_b32 %s, %s, 4" % (s(1), s(1)))
    a("v_add_u32 v%d, %s, v%d" % (T, s(1), vM))
    a("s_lshl_b32 %s, %s, 5" % (s(3), s(3)))
    a("v_lshl_add_u32 v%d, v%d, 2, %s" % (T + 1, vG, s(3)))
    a("v_mov_b32 v%d, %s" % (T + 2, s(7)))
    for e in range(8):
        off = 16 * (e >> 2) + (e & 3)
        a("v_add_u32 v%d, %d, v%d" % (T + 3, off, T + 1))
        a("v_mul_u32_u24 v%d, v%d, v%d" % (T + 3, T + 3, T))
        a("v_and_b32 v%d, %s, v%d" % (T + 3, s(4), T + 3))
        a("v_cvt_f32_u32 v%d, v%d" % (T + 3, T + 3))
        a("v_fma_f32 v%d, v%d, %s, v%d" % (T + 3, T + 3, s(5), T + 2))
        a("v_cos_f32 v%d, v%d" % (T + 3, T + 3))
        a("v_mul_f32 v%d, %s, v%d" % (T + 4 + e, s(6), T + 3))
    for h in range(4):
        a("v_cvt_pk_f16_f32 v%d, v%d, v%d" % (T + 12 + h, T + 4 + 2 * h, T + 5 + 2 * h))
    a("s_lshl_b32 %s, s%d, 10" % (s(0), s_cf))
    a("s_add_u32 %s, %s, %s" % (s(0), s(0), hx(CONST_OFF)))
    a("buffer_store_dwordx4 %s, v%d, s[12:15], %s offen sc1" % (vr(T + 12, 4), vL, s(0)))
```

```python
import sys
from gen_mega import gen_mega
kw = {}
for arg in sys.argv[2:]:
    k, v = arg.split("="); kw[k] = float(v) if '.' in v else int(v)
km, lm = gen_mega("fused_kernel", **kw)
hdr = """; parallel_sum(spectral_gfnet, dense_gelu): single fused kernel (LN + MFMA DFT/FFT filter + fused MLP). Generated by own scripts.
; @launch kernel=fused_kernel grid=(256,1,1) block=(512,1,1) lds=%d
.amdgcn_target "amdgcn-amd-amdhsa--gfx950"
""" % lm
open(sys.argv[1], "w").write(hdr + km)
```

```python
import sys
from gen_mega import gen_mega
kw = {}
for arg in sys.argv[2:]:
    k, v = arg.split("="); kw[k] = float(v) if '.' in v else int(v)
STD = kw.pop("STD", 0)
name = "parallel_sum__spectral_gfnet__dense_activation_gelu__prompt_kernel" if STD else "fused_kernel"
km, lm = gen_mega(name, **kw)
km = km.replace(name + "_", "L_") if STD else km
hdr = """; parallel_sum(spectral_gfnet, dense_gelu): single fused kernel (LN + MFMA DFT/FFT filter + fused MLP). Generated by own scripts.
; @launch %sgrid=(256,1,1) block=(512,1,1) lds=%d
.amdgcn_target "amdgcn-amd-amdhsa--gfx950"
""" % ("" if STD else "kernel=fused_kernel ", lm)
open(sys.argv[1], "w").write(hdr + km)
```

```python
from asmgen import *
from layout import *
from collections import deque
from gen_epi import epilogue, MAGIC576, INV576
from gen_fft2 import FFT
from gen_pro import *

C0 = -2.0 * 1.4426950408889634 * 0.7978845608028654
C1 = C0 * 0.044715
MFMA = "v_mfma_f32_16x16x32_bf16"
XB = 0
PB = 73728
A16 = PB
TS = PB + 36864
BIASB = 147456
SY = BIASB + 2304
FSC = BIASB + 2560
MEGA_LDS = 163840
SPIN = 100000


def srd(a, s, lo, hi, nbytes):
    a("s_mov_b32 s%d, s%d" % (s, lo))
    a("s_and_b32 s%d, s%d, 0xffff" % (s + 1, hi))
    a("s_mov_b32 s%d, %s" % (s + 2, hx(nbytes)))
    a("s_mov_b32 s%d, 0x20000" % (s + 3))


def poll_flags(a, lab, nd, execmask, va, vd, soff, slp, pre=None):
    a("s_mov_b32 exec_lo, %s" % hx(execmask[0]))
    a("s_mov_b32 exec_hi, %s" % hx(execmask[1]))
    a("s_mov_b32 s35, %d" % SPIN)
    if pre:
        a("s_branch %s_chk" % lab)
    a("%s_l:" % lab)
    a("s_sub_u32 s35, s35, 1")
    a("s_cbranch_scc1 %s_ok" % lab)
    a("buffer_load_dword%s %s, v%d, s[12:15], %s offen sc1" % ("" if nd == 1 else "x%d" % nd, vr(vd, nd), va, soff))
    a("s_waitcnt vmcnt(0)")
    a("%s_chk:" % lab)
    for i in range(nd):
        a("v_xor_b32 v%d, s3, v%d" % (vd + i, vd + i))
    for i in range(1, nd):
        a("v_or_b32 v%d, v%d, v%d" % (vd, vd, vd + i))
    a("v_cmp_ne_u32 vcc, 0, v%d" % vd)
    a("s_nop 1")
    a("s_cmp_eq_u64 vcc, 0")
    a("s_cbranch_scc1 %s_ok" % lab)
    a("s_sleep %d" % slp)
    a("s_branch %s_l" % lab)
    a("%s_ok:" % lab)
    a("s_mov_b64 exec, -1")


def lds_spin(a, lab, addr, target):
    a("v_mov_b32 v12, %d" % addr)
    a("%s:" % lab)
    a("ds_read_b32 v13, v12")
    a("s_waitcnt lgkmcnt(0)")
    a("v_readfirstlane_b32 s35, v13")
    a("s_nop 3")
    a("s_cmp_ge_u32 s35, %s" % target)
    a("s_cbranch_scc1 %s_d" % lab)
    a("s_sleep 1")
    a("s_branch %s" % lab)
    a("%s_d:" % lab)


def gather_publish(a, lab, cnt_addr, last, soff_expr, need_nonce=False):
    a("v_mov_b32 v12, %d" % cnt_addr)
    a("v_mov_b32 v13, 1")
    a("s_mov_b64 exec, 1")
    a("ds_add_rtn_u32 v13, v12, v13")
    a("s_waitcnt lgkmcnt(0)")
    a("v_readfirstlane_b32 s35, v13")
    a("s_mov_b64 exec, -1")
    a("s_nop 1")
    a("s_cmp_lg_u32 s35, %s" % last)
    a("s_cbranch_scc1 %s" % lab)
    if need_nonce:
        lds_spin(a, lab + "_n", SY + 8, "1")
        a("s_mov_b32 s3, s35")
    soff_expr()
    a("%s:" % lab)


def code_touch(a, lab_from, lab_to, nlines_max, uniq):
    a("s_getpc_b64 s[92:93]")
    a("%s:" % uniq)
    a("s_add_u32 s92, s92, %s-%s" % (lab_from, uniq))
    a("s_addc_u32 s93, s93, 0")
    for r in range((nlines_max + 63) // 64):
        a("v_lshlrev_b32 v12, 7, v9")
        if r: a("v_add_u32 v12, %d, v12" % (8192 * r))
        a("v_min_u32 v12, %s-%s, v12" % (lab_to, lab_from))
        a("global_load_dword v13, v12, s[92:93]")


def store_flag(a, soff):
    a("v_mov_b32 v12, 0")
    a("v_mov_b32 v13, s3")
    a("s_mov_b64 exec, 1")
    a("buffer_store_dword v13, v12, s[12:15], %s offen sc1" % soff)
    a("s_mov_b64 exec, -1")


def gen_mega(name, DK=8, PB_D=1, cmap=2, RATE=8.5, est=0, SLP=4, G1=9, fprio=1, stf=1, nogelu=0, nostore=0, prio=0, xc=0, b0e=1, aplain=0, DKA=10, bprio=1, ctouch=0, nofft=0, P3AT=8, two=0, fpos=0, P2=1):
    stamps = 0; epi = 1
    a = Asm()
    def pst(k):
        if est == 2:
            a("s_memrealtime s[98:99]")
            a("s_waitcnt lgkmcnt(0)")
            a("v_writelane_b32 v253, s98, %d" % k)
            if 20 <= k < 30:
                a("s_memtime s[98:99]")
                a("s_waitcnt lgkmcnt(0)")
                a("v_writelane_b32 v253, s98, %d" % (k + 30))
    AR = 16
    BR = AR + DK * 8
    ACC = [BR + (PB_D + 1) * 16, BR + (PB_D + 1) * 16 + 32]
    BIAS = ACC[1] + 32
    TMP = BIAS + 8
    PK = TMP + 4
    NV = PK + 8
    vL, vLP, vBias, vPw, vC1, vPw8 = 1, 2, 3, 4, 5, 6
    vXe, vXo, vXeH, vXoH, vLPH = 10, 11, 14, 15, 8
    LA = " sc1"
    a("s_cmp_ge_u32 s2, 256")
    a("s_cbranch_scc1 %s_end" % name)
    a("s_load_dwordx16 s[48:63], s[0:1], 0")
    a("s_load_dwordx2 s[84:85], s[0:1], 72")
    a("s_load_dwordx2 s[46:47], s[0:1], 80")
    a("s_memrealtime s[86:87]")
    if est: a("s_memrealtime s[100:101]")
    a("v_lshrrev_b32 v8, 6, v0")
    a("v_and_b32 v9, 63, v0")
    a("v_readfirstlane_b32 s22, v8")
    if ctouch:
        a("s_nop 3")
        a("s_cmp_lg_u32 s22, 6")
        a("s_cbranch_scc1 %s_nct" % name)
        code_touch(a, name + "_nct", name + "_end", 720, name + "_ct")
        a("%s_nct:" % name)
    if cmap == 0:
        a("s_and_b32 s20, s2, 7")
        a("s_lshr_b32 s21, s2, 3")
    elif cmap == 2:
        a("s_and_b32 s20, s2, 1")
        a("s_lshl_b32 s20, s20, 2")
        a("s_bfe_u32 s33, s2, 0x20003")
        a("s_add_u32 s20, s20, s33")
        a("s_bfe_u32 s21, s2, 0x20001")
        a("s_lshl_b32 s21, s21, 3")
        a("s_lshr_b32 s33, s2, 5")
        a("s_add_u32 s21, s21, s33")
    else:
        a("s_and_b32 s20, s2, 3")
        a("s_lshl_b32 s20, s20, 1")
        a("s_bfe_u32 s33, s2, 0x10003")
        a("s_add_u32 s20, s20, s33")
        a("s_bfe_u32 s21, s2, 0x10002")
        a("s_lshl_b32 s21, s21, 4")
        a("s_lshr_b32 s33, s2, 4")
        a("s_add_u32 s21, s21, s33")
    a("s_and_b32 s38, s22, 3")
    a("s_lshr_b32 s39, s22, 2")
    a("s_add_u32 s23, s22, s21")
    a("s_and_b32 s23, s23, 7")
    a("s_mul_i32 s24, s20, %d" % (36 * 18432))
    a("s_mul_i32 s25, s22, 36864")
    a("s_add_u32 s25, s25, s24")
    a("s_add_u32 s26, s25, %d" % (16 * 18432))
    a("s_mul_i32 s27, s38, 18432")
    a("s_add_u32 s27, s27, s24")
    a("s_add_u32 s27, s27, %d" % (32 * 18432))
    a("s_lshl_b32 s37, s20, 6")
    a("s_lshl_b32 s33, s21, 1")
    a("s_add_u32 s37, s37, s33")
    a("s_mul_i32 s37, s37, 36864")
    a("s_add_u32 s37, s37, %s" % hx(PART_OFF))
    a("s_mov_b32 s28, s24")
    a("s_mov_b32 s40, s37")
    a("s_mov_b32 s41, s24")
    a("s_lshl_b32 s42, s21, 1")
    a("s_mul_i32 s33, s42, 3641")
    a("s_lshr_b32 s33, s33, 16")
    a("s_mul_i32 s33, s33, 18")
    a("s_sub_u32 s42, s42, s33")
    a("v_lshlrev_b32 v%d, 4, v9" % vL)
    a("v_add_u32 v%d, %d, v%d" % (vLP, PB, vL))
    a("v_lshrrev_b32 v16, 4, v9")
    a("s_lshl_b32 s33, s22, 7")
    a("s_add_u32 s33, s33, %d" % BIASB)
    a("v_lshl_add_u32 v%d, v16, 4, s33" % vBias)
    a("s_lshl_b32 s33, s38, 6")
    a("s_add_u32 s33, s33, %d" % (BIASB + 2048))
    a("v_lshl_add_u32 v7, v16, 4, s33")
    a("s_lshl_b32 s33, s22, 10")
    a("v_add_u32 v%d, s33, v%d" % (vPw, vLP))
    a("s_lshr_b32 s33, s38, 1")
    a("s_lshl_b32 s33, s33, 10")
    a("s_and_b32 s34, s38, 1")
    a("s_lshl_b32 s34, s34, 3")
    a("s_add_u32 s33, s33, s34")
    a("s_add_u32 s33, s33, 16384")
    a("v_add_u32 v%d, s33, v%d" % (vPw8, vLP))
    a("v_mov_b32 v%d, %s" % (vC1, hx(f32bits(C1))))
    if two:
        a("v_add_u32 v%d, 0x10000, v%d" % (vLPH, vLP))
        a("v_mov_b32 v%d, v%d" % (vXe, vL)); a("v_mov_b32 v%d, v%d" % (vXo, vL))
        a("v_add_u32 v%d, 0x10000, v%d" % (vXeH, vL)); a("v_add_u32 v%d, 0x10000, v%d" % (vXoH, vL))
        a("s_lshl_b32 s36, s21, 2")
        a("s_add_u32 s36, s36, s38")
        a("s_mul_i32 s36, s36, 18432")
        a("s_add_u32 s36, s36, %s" % hx(XNF_OFF))
        a("s_mul_i32 s29, s38, 18432")
        a("s_mul_i32 s56, s20, 2304")
        a("s_waitcnt lgkmcnt(0)")
        a("s_mul_i32 s56, s20, 2304")
        a("s_add_u32 s56, s56, %s" % hx(B1F_OFF))
        srd(a, 12, 46, 47, WS_BYTES)
        a("s_cmp_lg_u32 s39, 0")
        a("s_cbranch_scc1 %s_h1" % name)
    else:
        vN, vG = 248, 249
        a("v_and_b32 v%d, 15, v9" % vN)
        a("v_lshrrev_b32 v%d, 4, v9" % vG)
        a("v_xor_b32 v16, v%d, v%d" % (vG, vN))
        a("v_lshl_add_u32 v17, v%d, 4, v16" % vG)
        a("v_lshlrev_b32 v%d, 4, v17" % vXe)
        a("v_xor_b32 v%d, 64, v%d" % (vXo, vXe))
        a("v_add_u32 v%d, 0x10000, v%d" % (vXeH, vXe))
        a("v_add_u32 v%d, 0x10000, v%d" % (vXoH, vXo))
        a("v_add_u32 v%d, 0x10000, v%d" % (vLPH, vLP))
        vX, vXB0, vA0 = 250, 251, 252
        a("s_mov_b32 s33, %d" % (1152 if xc else 32 * 1152))
        a("v_mul_lo_u32 v%d, v%d, s33" % (vX, vG))
        a("v_lshl_add_u32 v%d, v%d, 3, v%d" % (vX, vN, vX))
        a("s_lshl_b32 s28, s22, 3")
        a("s_lshl_b32 s28, s28, 5")
        a("s_add_u32 s28, s28, s21")
        a("s_mul_i32 s28, s28, 1152")
        a("s_add_u32 s29, s28, %d" % (4 * 32 * 1152))
        if xc:
            a("s_lshl_b32 s28, s21, 3")
            a("s_add_u32 s28, s28, s22")
            a("s_mul_i32 s28, s28, %d" % (8 * 1152))
            a("s_add_u32 s29, s28, %d" % (4 * 1152))
        a("v_and_b32 v16, 3, v%d" % vN)
        a("v_lshrrev_b32 v17, 3, v%d" % vN)
        a("v_lshl_add_u32 v18, v17, 2, v16")
        a("v_lshlrev_b32 v19, 4, v16")
        a("v_lshl_add_u32 v19, v17, 6, v19")
        a("v_bfe_u32 v20, v%d, 2, 1" % vN)
        a("v_lshlrev_b32 v20, 3, v20")
        a("v_lshl_add_u32 v19, v19, 4, v20")
        a("s_lshr_b32 s33, s38, 1")
        a("s_lshl_b32 s33, s33, 2")
        a("v_add_u32 v21, s33, v%d" % vG)
        a("v_xor_b32 v21, v21, v18")
        a("v_lshl_add_u32 v21, v21, 4, v19")
        a("s_lshl_b32 s33, s39, 1")
        a("s_and_b32 s34, s38, 1")
        a("s_add_u32 s33, s33, s34")
        a("s_mul_i32 s33, s33, 18432")
        a("v_add_u32 v%d, s33, v21" % vXB0)
        a("s_lshl_b32 s34, s34, 3")
        a("v_add_u32 v21, s34, v%d" % vG)
        a("v_xor_b32 v21, v21, v18")
        a("v_lshl_add_u32 v21, v21, 4, v19")
        a("s_lshr_b32 s33, s38, 1")
        a("s_mul_i32 s33, s33, 18432")
        a("s_add_u32 s33, s33, %d" % A16)
        a("v_add_u32 v%d, s33, v21" % vA0)
        a("s_and_b32 s43, s20, 1")
        a("s_cmp_eq_u32 s43, s39")
        a("s_cselect_b32 s45, 1, 0")
        a("s_lshl_b32 s36, s22, 12")
        a("s_add_u32 s36, s36, %d" % TS)
        a("s_lshl_b32 s32, s22, 5")
        a("s_add_u32 s32, s32, s21")
        a("s_mov_b32 s88, %d" % MAGIC576)
        a("s_movk_i32 s89, 576")
        a("s_mov_b32 s90, %s" % INV576)
        a("s_waitcnt lgkmcnt(0)")
        pst(40)
        srd(a, 12, 46, 47, WS_BYTES)
        srd(a, 4, 48, 49, 2048 * 1152)
        srd(a, 64, 56, 57, 576 * 9216)
        srd(a, 68, 60, 61, 4608 * 1152)
        srd(a, 72, 50, 51, 2048 * 578)
        srd(a, 76, 52, 53, 2048 * 578)
        srd(a, 16, 58, 59, 9216)
        srd(a, 80, 84, 85, 256)
        XR0, XR1, T1, T2, WL, B1R, CF0, CF1 = 16, 34, 52, 68, 84, 94, 96, 168
        a("s_cmp_lg_u32 s22, 0")
        a("s_cbranch_scc1 %s_n0" % name)
        a("s_or_b32 s86, s86, 1")
        a("v_mov_b32 v246, s86")
        a("v_mov_b32 v247, 0")
        a("v_lshrrev_b32 v12, 2, v%d" % vL)
        a("v_add_u32 v12, %d, v12" % SY)
        a("s_mov_b64 exec, 0xffff")
        a("ds_write_b32 v12, v247")
        a("s_mov_b64 exec, -1")
        a("s_waitcnt lgkmcnt(0)")
        a("%s_n0:" % name)
        if b0e: a("s_barrier")
        pst(41)
        a("s_cmp_ge_u32 s32, 162")
        a("s_cbranch_scc1 %s_nt1" % name)
        tile_issue(a, 32, 20, 9, 244, T1, 64, 68, 92)
        a("%s_nt1:" % name)
        a.vm = []
        pst(42)
        xt = []
        for b_, XR in enumerate((XR0, XR1)):
            for j in range(9):
                xt.append(a.vmem("buffer_load_dwordx2 %s, v%d, s[4:7], s%d offen offset:%d" % (vr(XR + 2 * j, 2), vX, 28 + b_, j * 128)))
        a("v_min_u32 v12, 287, v0")
        a("v_lshlrev_b32 v12, 2, v12")
        a("s_mul_i32 s33, s20, 1152")
        bt = a.vmem("buffer_load_dword v%d, v12, s[16:19], s33 offen" % B1R)
        a("s_cmp_lg_u32 s22, 7")
        a("s_cbranch_scc1 %s_na" % name)
        a("s_or_b32 s86, s86, 1")
        a("v_mov_b32 v246, s86")
        a("v_mov_b32 v247, 0")
        a("s_mov_b64 exec, 1")
        a("buffer_atomic_cmpswap v[246:247], v247, s[80:83], 0 offen sc0 sc1")
        a("s_mov_b64 exec, -1")
        a("%s_na:" % name)
        pst(1)
        if not b0e: a("s_barrier")
        pst(2)
        a("s_lshr_b32 s37, s20, 1")
        a("s_mul_i32 s37, s37, 9")
        a("s_add_u32 s62, s37, 8")
        a("s_add_u32 s37, s37, s22")
        cf_gen(a, CF0, 37, vN, vG, 168, 180, 88)
        a("s_cmp_ge_u32 s2, 128")
        a("s_cbranch_scc1 %s_nw" % name)
        a("s_lshr_b32 s33, s2, 5")
        a("s_lshl_b32 s33, s33, 2")
        a("s_add_u32 s33, s33, s38")
        a("s_lshl_b32 s34, s39, 4")
        a("s_add_u32 s33, s33, s34")
        a("s_lshl_b32 s33, s33, 6")
        a("s_and_b32 s34, s2, 31")
        a("s_lshl_b32 s34, s34, 1")
        a("s_add_u32 s33, s33, s34")
        a("s_mul_i32 s33, s33, 578")
        a("v_lshlrev_b32 v12, 2, v9")
        for arr in range(2):
            for it in range(5):
                if it == 4: a("s_mov_b32 exec_hi, 1")
                a("buffer_load_dword v%d, v12, s[%d:%d], s33 offen offset:%d" % (WL + arr * 5 + it, 72 + 4 * arr, 75 + 4 * arr, 256 * it))
                if it == 4: a("s_mov_b32 exec_hi, -1")
        a("%s_nw:" % name)
        pst(3)
        a("s_cmp_ge_u32 s2, 128")
        a("s_cbranch_scc1 %s_v19" % name)
        a("s_waitcnt vmcnt(29)")
        a("s_branch %s_v29" % name)
        a("%s_v19:" % name)
        a("s_waitcnt vmcnt(19)")
        a("%s_v29:" % name)
        pst(4)
        XF, A0_, TT = 168, 204, 214
        a("s_cmp_ge_u32 s32, 162")
        a("s_cbranch_scc1 %s_nt1b" % name)
        tile_finish(a, 9, T1, 244, 36, 96, vL)
        a("s_cmp_ge_u32 s2, 128")
        a("s_cbranch_scc1 %s_w4" % name)
        a("s_waitcnt vmcnt(14)")
        a("s_branch %s_nt1c" % name)
        a("%s_w4:" % name)
        a("s_waitcnt vmcnt(4)")
        a("s_branch %s_nt1c" % name)
        a("%s_nt1b:" % name)
        a("s_cmp_ge_u32 s2, 128")
        a("s_cbranch_scc1 %s_w0" % name)
        a("s_waitcnt vmcnt(10)")
        a("s_branch %s_w1" % name)
        a("%s_w0:" % name)
        a("s_waitcnt vmcnt(0)")
        a("%s_w1:" % name)
        a("s_cmp_lg_u32 s22, 7")
        a("s_cbranch_scc1 %s_n1" % name)
        a("v_readfirstlane_b32 s3, v246")
        a("s_nop 3")
        a("s_cmp_eq_u32 s3, 0")
        a("s_cselect_b32 s3, s86, s3")
        a("v_mov_b32 v12, %d" % (SY + 8))
        a("v_mov_b32 v13, s3")
        a("ds_write_b32 v12, v13")
        a("%s_n1:" % name)
        a("%s_nt1c:" % name)
        a.vm = []; a.lg = []
        T3 = 224
        a("s_cmp_eq_u32 s39, 0")
        a("s_cbranch_scc1 %s_nt2" % name)
        a("s_lshl_b32 s63, s38, 5")
        a("s_add_u32 s63, s63, s21")
        a("s_add_u32 s63, s63, 162")
        tile_issue(a, 63, 20, 9, 240, T2, 64, 68, 48)
        a("s_add_u32 s63, s63, 128")
        a("s_cmp_ge_u32 s63, 324")
        a("s_cbranch_scc1 %s_nt2" % name)
        tile_issue(a, 63, 20, 9, 240, T3, 64, 68, 53)
        a("%s_nt2:" % name)
        a.vm = []
        pst(5)
        ln_batch(a, XR0, XF, A0_, TT, vXB0, vA0, 90, 45, name + "_l0")
        a.lg = []
        pst(6)
        a("s_cmp_eq_u32 s39, 0")
        a("s_cbranch_scc1 %s_d0" % name)
        a("s_cmp_ge_u32 s63, 324")
        a("s_cbranch_scc1 %s_d4" % name)
        a("s_waitcnt vmcnt(8)")
        a("s_branch %s_dd" % name)
        a("%s_d4:" % name)
        a("s_waitcnt vmcnt(4)")
        a("s_branch %s_dd" % name)
        a("%s_d0:" % name)
        a("s_waitcnt vmcnt(0)")
        a("%s_dd:" % name)
        pst(7)
        def f1():
            a("s_lshl_b32 s33, s20, 8")
            a("s_lshl_b32 s34, s21, 2")
            a("s_add_u32 s33, s33, s34")
            a("s_add_u32 s33, s33, %s" % hx(FLAG_OFF))
            store_flag(a, "s33")
        a("s_cmp_lt_u32 s21, 2")
        a("s_cselect_b32 s87, 5, 4")
        a("s_cmp_ge_u32 s32, 162")
        a("s_cbranch_scc1 %s_g1" % name)
        gather_publish(a, name + "_g1", SY, "s87", f1, True)
        a("s_cmp_eq_u32 s39, 0")
        a("s_cbranch_scc1 %s_nt2b" % name)
        a("s_waitcnt vmcnt(0)")
        tile_finish(a, 9, T2, 240, 36, 52, vL)
        a("s_cmp_ge_u32 s63, 324")
        a("s_cbranch_scc1 %s_nt2b" % name)
        tile_finish(a, 9, T3, 240, 36, 57, vL)
        a("%s_nt2b:" % name)
        a("s_cmp_ge_u32 s2, 128")
        a("s_cbranch_scc1 %s_nwb" % name)
        a("v_lshlrev_b32 v12, 2, v9")
        a("v_add_u32 v12, s36, v12")
        for arr in range(2):
            for it in range(5):
                if it == 4: a("s_mov_b32 exec_hi, 1")
                a("ds_write_b32 v12, v%d offset:%d" % (WL + arr * 5 + it, arr * 1160 + 256 * it))
                if it == 4: a("s_mov_b32 exec_hi, -1")
        a("%s_nwb:" % name)
        a.vm = []; a.lg = []
        pst(8)
        a("v_min_u32 v12, 287, v0")
        a("v_lshlrev_b32 v12, 3, v12")
        a("v_add_u32 v12, %d, v12" % BIASB)
        a("v_lshlrev_b32 v52, 16, v%d" % B1R)
        a("v_and_b32 v53, 0xffff0000, v%d" % B1R)
        a("ds_write_b64 v12, v[52:53]")
        a("v_xor_b32 v%d, 128, v%d" % (vXB0, vXB0))
        a("v_xor_b32 v%d, 64, v%d" % (vA0, vA0))
        ln_batch(a, XR1, XF, A0_, TT, vXB0, vA0, 90, 45, name + "_l1")
        a.lg = []
        if est == 1: a("s_memrealtime s[98:99]")
        pst(9)
        a("s_cmp_lg_u32 s22, 7")
        a("s_cbranch_scc1 %s_n7" % name)
        cf_gen(a, CF1, 62, vN, vG, 16, 28, 88)
        a("%s_n7:" % name)
        a("s_cmp_eq_u32 s39, 0")
        a("s_cbranch_scc1 %s_g5" % name)
        a("s_waitcnt vmcnt(0)")
        def f5():
            a("s_lshl_b32 s33, s20, 8")
            a("s_lshl_b32 s34, s21, 2")
            a("s_add_u32 s33, s33, s34")
            a("s_add_u32 s33, s33, %s" % hx(FLAG_OFF + 2048))
            store_flag(a, "s33")
        gather_publish(a, name + "_g5", SY + 28, "3", f5, True)
        a("s_cmp_lg_u32 s22, 0")
        a("s_cbranch_scc1 %s_n2" % name)
        lds_spin(a, name + "_nn", SY + 8, "1")
        a("s_mov_b32 s3, s35")
        a("s_lshl_b32 s33, s20, 8")
        a("s_add_u32 s33, s33, %s" % hx(FLAG_OFF))
        a("v_lshlrev_b32 v16, 2, v9")
        poll_flags(a, name + "_p1", 1, (0xffffffff, 0), 16, 17, "s33", 3)
        a("%s_n2:" % name)
        a("s_waitcnt lgkmcnt(0)")
        pst(10)
        a("s_barrier")
        pst(11)
        if est: a("s_memrealtime s[96:97]")
        a("v_mov_b32 v12, %d" % (SY + 8))
        a("ds_read_b32 v13, v12")
        a("s_cmp_lg_u32 s39, 0")
        a("s_cbranch_scc1 %s_h1" % name)

    def body(hf):
        a.vm = []; a.lg = []
        if hf == 0:
            DK = DKA
            AR = 16; BR = AR + DK * 8
            ACC = [BR + 32, BR + 64]; ACC3 = BR + 96
            BIAS = ACC3 + 32; TMP = BIAS + 8; PK = TMP + 4
            assert PK + 8 <= 244, PK
        else:
            DK = 8
            AR = 16; BR = 80; ACC3 = 112
            ACC = [144, 212]; BIAS = 192; TMP = 200; PK = 204
        if prio and hf == prio - 1: a("s_setprio 1")
        npass = 3 if hf == 0 else 2
        G = [[0, 1, 2, 3], [8, 9, 10, 11], [16, 17], [4, 5, 6, 7], [12, 13, 14, 15]]
        grp_of = {t: g for g, ts in enumerate(G) for t in ts}
        steps = []
        for ps in range(npass):
            for t in range(18):
                steps.append((1, ps, 2 if ps < 2 else 1, t))
        NP1 = 18 * npass
        O = G[0] + G[3] + G[1] + G[2] + G[4]
        W2 = {0: ([2, 2, 1], [2, 2]), 1: ([2, 2, 2], [2, 1]), 2: ([2, 2, 2, 1], [2])}[P2][hf]
        nA = sum(1 for w_ in {0: ([2, 2, 1], [2, 2]), 1: ([2, 2, 2], [2, 1]), 2: ([2, 2, 2, 1], [2])}[P2][0] if w_ == 2)
        def p2_base(ps):
            if W2[ps] == 2:
                a("s_add_u32 s33, s38, %d" % (4 * (ps + (nA if hf else 0))))
                a("s_mov_b32 s34, 0")
            else:
                a("s_lshr_b32 s33, s38, 1")
                a("s_add_u32 s33, s33, 16")
                a("s_and_b32 s34, s38, 1")
            a("s_add_u32 s33, s33, s42")
            a("s_sub_u32 s35, s33, 18")
            a("s_cselect_b32 s33, s33, s35")
            a("s_lshl_b32 s33, s33, 1")
            a("s_add_u32 s33, s33, s34")
            a("s_mul_i32 s23, s33, 18432")
            a("s_add_u32 s23, s23, s41")
            a("s_lshl_b32 s33, s33, 10")
            a("s_add_u32 s%d, s33, s40" % (64 + ps))
        seq = [(ps_, O) for ps_ in range(len(W2))]
        for ps, ts in seq:
            for t in ts:
                steps.append((2, ps, W2[ps], t))
        N = len(steps)
        MID = hf == 1 and (not two or fpos == 1)
        first_i = {}; last_i = {}
        for i_, st_ in enumerate(steps):
            first_i.setdefault(st_[:2], i_); last_i[st_[:2]] = i_
        a_tok = {}; b_tok = {}
        sbase = {"key": None, "t0": None}

        def issue_a(i):
            ph, ps, nb, t = steps[i]
            base = (W1T_OFF if ph == 1 else W2T_OFF)
            sb_ = [25, 26, 27][ps] if ph == 1 else 23
            if ph == 2 and sbase["key"] != (ph, ps): p2_base(ps)
            new = sbase["key"] != (ph, ps) or not (sbase["t0"] <= t < sbase["t0"] + 4)
            if new:
                sbase["key"] = (ph, ps); sbase["t0"] = t
            toks = []
            for bi in range(nb):
                sreg = 30 + bi
                if new:
                    a("s_add_u32 s%d, s%d, %s" % (sreg, sb_, hx(base + bi * 18432 + t * 1024)))
                toks.append(a.vmem("buffer_load_dwordx4 %s, v%d, s[12:15], s%d offen offset:%d%s" % (vr(AR + (i % DK) * 8 + 4 * bi, 4), vL, sreg, (t - sbase["t0"]) * 1024, "" if (aplain or two) else LA)))
            a_tok[i] = toks

        def b_items(i):
            ph, ps, nb, t = steps[i]
            b_tok[i] = []
            out = []
            for sb in range(4):
                def rd(sb=sb):
                    off = (sb * 18 + t) * 1024
                    hi_ = off >= 65536
                    if hi_: off -= 65536
                    if ph == 1: v = [[vXe, vXo], [vXeH, vXoH]][hi_][t & 1]
                    else: v = vLPH if hi_ else vLP
                    b_tok[i].append(a.lds("ds_read_b128 %s, v%d offset:%d" % (vr(BR + (i % (PB_D + 1)) * 16 + 4 * sb, 4), v, off)))
                out.append(rd)
            return out

        lab = "%s_r%d" % (name, hf)
        if two:
            a("v_mov_b32 v12, 0")
            a("s_mov_b32 s33, %s" % hx(CNT_OFF))
            nt = a.vmem("buffer_load_dword v250, v12, s[12:15], s33 offen")
            if hf == 0:
                XS = 96
                xt = []
                for k in range(18):
                    if k % 4 == 0: a("s_add_u32 s33, s36, %d" % (1024 * k))
                    xt.append(a.vmem("buffer_load_dwordx4 %s, v%d, s[12:15], s33 offen offset:%d" % (vr(XS + 4 * k, 4), vL, 1024 * (k % 4))))
                a("s_mul_i32 s33, s38, 576")
                a("s_add_u32 s34, s33, s56")
                xt.append(a.vmem("buffer_load_dwordx4 %s, v%d, s[12:15], s34 offen" % (vr(XS + 72, 4), vL)))
                for i in range(DK - 1): issue_a(i)
                a("v_lshrrev_b32 v12, 2, v%d" % vL)
                a("v_add_u32 v12, %d, v12" % SY)
                a("v_mov_b32 v13, 0")
                a("s_mov_b64 exec, 0xffff")
                a("ds_write_b32 v12, v13")
                a("s_mov_b64 exec, -1")
                a("v_add_u32 v12, s29, v%d" % vL)
                ws_ = []
                for k in range(18):
                    a.wait(vm=xt[k])
                    ws_.append(a.lds("ds_write_b128 v12, %s offset:%d" % (vr(XS + 4 * k, 4), 1024 * k)))
                a("s_add_u32 s33, s33, %d" % BIASB)
                a("v_add_u32 v12, s33, v%d" % vL)
                a.wait(vm=xt[18])
                a("s_mov_b32 exec_hi, 15")
                a("ds_write_b128 v12, %s" % vr(XS + 72, 4))
                a("s_mov_b32 exec_hi, -1")
                a("v_readfirstlane_b32 s3, v250")
                a.wait_all(vm=False, lg=True)
                a("s_barrier")
                if est: a("s_memrealtime s[88:89]")
        else:
            a("s_waitcnt lgkmcnt(0)")
            a("v_readfirstlane_b32 s3, v13")
            for i in range(DK - 1): issue_a(i)
            AFr, ACr = (168 if hf == 0 else 72), 240
            AC2 = 248 if est == 2 else 252
            a("v_add_u32 v12, %d, v%d" % (A16, vXe))
            a("v_add_u32 v13, %d, v%d" % (A16, vXo))
            a("v_lshlrev_b32 v244, 6, v%d" % vN)
            a("v_lshl_add_u32 v244, v%d, 4, v244" % vG)
            a("s_lshl_b32 s33, s21, 1")
            a("s_add_u32 s33, s33, s43")
            a("s_mul_i32 s33, s33, %d" % (576 * 64))
            a("s_add_u32 s33, s33, %s" % hx(ZF_OFF))
            def mm(cf, s_blk):
                toks = {}
                def rd(t):
                    af = AFr + 8 * (t % 3)
                    toks[t] = [a.lds("ds_read_b128 %s, v%d offset:%d" % (vr(af + 4 * mb, 4), 12 + (t & 1), (mb * 18 + t) * 1024)) for mb in range(2)]
                rd(0); rd(1)
                for t in range(18):
                    if t + 2 < 18: rd(t + 2)
                    af = AFr + 8 * (t % 3)
                    for mb in range(2):
                        a.wait(lg=toks[t][mb])
                        d = ACr if mb == 0 else AC2
                        a("v_mfma_f32_16x16x32_f16 %s, %s, %s, %s" % (vr(d, 4), vr(af + 4 * mb, 4), vr(cf + 4 * t, 4), "0" if t == 0 else vr(d, 4)))
                for mb in range(2):
                    d = ACr if mb == 0 else AC2
                    for i in range(4):
                        a("v_mul_f32 v%d, %s, v%d" % (d + i, hx(f32bits(2.0 ** -5)), d + i))
                    for h in range(2):
                        a("v_cvt_pk_f16_f32 v%d, v%d, v%d" % (AFr + 2 * mb + h, d + 2 * h, d + 2 * h + 1))
                a("s_lshl_b32 s34, s%d, 10" % s_blk)
                a("s_add_u32 s34, s34, s33")
                a.vmem("buffer_store_dwordx4 %s, v244, s[12:15], s34 offen sc1" % vr(AFr, 4))
            mm(96, 37)
            vm1 = list(a.vm)
            pst(12)
            if hf == 1:
                a("s_cmp_lg_u32 s22, 7")
                a("s_cbranch_scc1 %s_n7" % lab)
                a("s_nop 1")
                mm(168, 62)
                a("%s_n7:" % lab)
                a("s_cmp_lg_u32 s22, 6")
                a("s_cbranch_scc1 %s_nc" % lab)
                a("s_sub_u32 s32, s2, 128")
                a("s_cmp_ge_u32 s32, 20")
                a("s_cbranch_scc1 %s_nc" % lab)
                fft_const(a, 32, vN, vG, vL, 96, 48)
                a("%s_nc:" % lab)
            a("s_cmp_ge_u32 s2, 128")
            a("s_cbranch_scc1 %s_nw" % lab)
            a("s_mul_i32 s33, s2, 18560")
            a("s_add_u32 s33, s33, %s" % hx(WT_OFF))
            a("s_mul_i32 s34, s2, 1280")
            a("s_add_u32 s34, s34, %s" % hx(WMAX_OFF))
            for it in range(2 if hf == 0 else 1):
                if it == 1:
                    a("s_cmp_ge_u32 s22, 2")
                    a("s_cbranch_scc1 %s_nw" % lab)
                a("v_add_u32 v96, %d, v0" % (512 * it))
                a("v_and_b32 v97, 1, v96")
                a("v_lshrrev_b32 v98, 1, v96")
                a("v_min_u32 v98, 288, v98")
                a("v_mul_u32_u24 v99, 578, v97")
                a("v_lshl_add_u32 v99, v98, 1, v99")
                a("v_add_u32 v99, %d, v99" % TS)
                for e in range(8):
                    a("ds_read_u16 v%d, v99 offset:%d" % (112 + e, e * 4096))
                    a("ds_read_u16 v%d, v99 offset:%d" % (120 + e, e * 4096 + 1160))
                a("v_lshlrev_b32 v100, 6, v98")
                a("v_lshl_add_u32 v100, v97, 5, v100")
                a("v_lshlrev_b32 v101, 2, v98")
                a("s_waitcnt lgkmcnt(0)")
                for e in range(8):
                    a("v_lshl_or_b32 v%d, v%d, 16, v%d" % (104 + e, 120 + e, 112 + e))
                a("buffer_store_dwordx4 v[104:107], v100, s[12:15], s33 offen sc1")
                a("buffer_store_dwordx4 v[108:111], v100, s[12:15], s33 offen offset:16 sc1")
            a("%s_nw:" % lab)
            a.vm = vm1; a.lg = []
            pst(13)
            a("v_mov_b32 v12, %d" % (SY + 36))
            a("v_mov_b32 v13, 1")
            a("s_mov_b64 exec, 1")
            a("ds_add_u32 v12, v13")
            a("s_mov_b64 exec, -1")
            pst(14)
            if est: a("s_memrealtime s[88:89]")
        def f2():
            a("s_lshl_b32 s33, s2, 2")
            a("s_add_u32 s33, s33, %s" % hx(FLAG_OFF + 32768))
            a("v_lshlrev_b32 v12, 10, v9")
            a("v_mov_b32 v13, s3")
            a("s_mov_b64 exec, 0xffff")
            a("buffer_store_dword v13, v12, s[12:15], s33 offen sc1")
            a("s_mov_b64 exec, -1")
        nsync = [0]
        def fsync():
            n = nsync[0]; nsync[0] += 1
            a("s_add_u32 s87, s87, 4")
            a("v_mov_b32 v12, %d" % (SY + 16))
            a("v_mov_b32 v13, 1")
            a("s_mov_b64 exec, 1")
            a("ds_add_u32 v12, v13")
            a("s_mov_b64 exec, -1")
            lds_spin(a, "%s_fs%d" % (lab, n), SY + 16, "s87")
            a.lg = []
        def f2_check():
            a("s_cmp_lg_u32 s22, 4")
            a("s_cbranch_scc1 %s_np2" % lab)
            poll_flags(a, lab + "_p2", 4, (0xffffffff, 0xffffffff), vL, 244, "s85", 8, pre=True)
            a("v_mov_b32 v12, %d" % (SY + 12))
            a("v_mov_b32 v13, 1")
            a("ds_write_b32 v12, v13")
            a("%s_np2:" % lab)
            lds_spin(a, lab + "_w2", SY + 12, "1")
            a.lg = []
        def do_fft(flush):
            pst(15)
            ff = FFT(a, 16, 9, 38, FSC, 72, fsync, old=bool(two))
            D1 = ff.end; D2 = 192
            assert D1 + 42 <= 192 + 2, D1
            a("s_mov_b32 s87, 0")
            ff.addr()
            ff.data_loads(2, D1, 78, "c1")
            ff.const_loads()
            pst(17)
            flush()
            if fprio: a("s_setprio 2")
            pst(18)
            ff.twiddles()
            a("s_cmp_lt_u32 s2, 223")
            a("s_cbranch_scc1 %s_f1" % lab)
            vm_s = list(a.vm); tk = dict(ff.tok)
            a("s_add_u32 s82, s2, 33")
            ff.data_loads(82, D2 + 2, 64, "c2")
            ff.compute(D1, 78, "c1")
            fsync()
            ff.compute(D2 + 2, 64, "c2")
            a("s_add_u32 s87, s87, 0")
            a("s_branch %s_f2" % lab)
            a("%s_f1:" % lab)
            a.vm = vm_s; ff.tok = tk
            ff.compute(D1, 78, "c1")
            a("%s_f2:" % lab)
            if fprio: a("s_setprio %d" % (1 if bprio else 0))
            a("s_nop 1")
            a.lg = []
            pst(16)
        def publish2():
            gather_publish(a, lab + "_g2", SY + 4, "7", f2)
        def publish3():
            def f3():
                a("s_lshl_b32 s33, s2, 2")
                a("s_add_u32 s33, s33, %s" % hx(FLAG_OFF + 8192))
                store_flag(a, "s33")
                a("s_cmp_lt_u32 s2, 223")
                a("s_cbranch_scc1 %s_g3" % lab)
                a("s_add_u32 s33, s33, 132")
                store_flag(a, "s33")
            gather_publish(a, lab + "_g3", SY + 20, "3", f3)
        def check5():
            if hf == 0:
                a("s_cmp_lg_u32 s22, 0")
                a("s_cbranch_scc1 %s_n5" % lab)
                a("s_lshl_b32 s33, s20, 8")
                a("s_add_u32 s33, s33, %s" % hx(FLAG_OFF + 2048))
                a("v_lshrrev_b32 v244, 2, v%d" % vL)
                poll_flags(a, lab + "_p5", 1, (0xffffffff, 0), 244, 245, "s33", 6)
                a("v_mov_b32 v12, %d" % (SY + 32))
                a("v_mov_b32 v13, 1")
                a("ds_write_b32 v12, v13")
                a("%s_n5:" % lab)
            lds_spin(a, lab + "_w5", SY + 32, "1")
            a.lg = []
        if two and hf == 1:
            def bar():
                a.wait(vm=nt)
                a("v_readfirstlane_b32 s3, v250")
                a("s_barrier")
                if est: a("s_memrealtime s[88:89]")
            if fpos == 0:
                do_fft(bar)
            else:
                bar()
            for i in range(DK - 1): issue_a(i)
        if est: a("s_memrealtime s[90:91]")

        fill = deque()
        bucket = {"tok": 0.0}
        def cost_of(lines):
            c = 0
            for l in lines:
                op = l.split()[0]
                c += 8 if op in TRANS else (4 if op.startswith(("buffer", "ds_")) else (1 if op.startswith("s_") else 4))
            return c
        def fine(rate):
            bucket["tok"] += rate
            while fill and bucket["tok"] >= 4:
                n0 = len(a.lines)
                tag, f = fill.popleft(); f()
                bucket["tok"] -= cost_of(a.lines[n0:])
            if not fill: bucket["tok"] = 0.0
        def flush_tag(tag):
            while any(t == tag for t, _ in fill):
                fill.popleft()[1]()
        pw = {}

        def gelu_group(tag, regs, outs):
            T = [TMP + k for k in range(4)]
            seq = []
            for k in range(4): seq.append("v_mul_f32 v%d, v%d, v%d" % (T[k], regs[k], regs[k]))
            for k in range(4): seq.append("v_fmaak_f32 v%d, v%d, v%d, %s" % (T[k], T[k], vC1, hx(f32bits(C0))))
            for k in range(4): seq.append("v_mul_f32 v%d, v%d, v%d" % (T[k], regs[k], T[k]))
            for k in range(4): seq.append("v_exp_f32 v%d, v%d" % (T[k], T[k]))
            for k in range(4): seq.append("v_add_f32 v%d, 1.0, v%d" % (T[k], T[k]))
            for k in range(4): seq.append("v_rcp_f32 v%d, v%d" % (T[k], T[k]))
            for k in range(4): seq.append("v_mul_f32 v%d, v%d, v%d" % (T[k], regs[k], T[k]))
            seq.append("v_cvt_pk_bf16_f32 v%d, v%d, v%d" % (outs[0], T[0], T[1]))
            seq.append("v_cvt_pk_bf16_f32 v%d, v%d, v%d" % (outs[1], T[2], T[3]))
            if nogelu: seq = seq[-2:]
            for s_ in seq: fill.append((tag, lambda s_=s_: a(s_)))

        def accset(ph, ps):
            if ph == 1: return [ACC[0], ACC[1], ACC[0]][ps]
            return [ACC3, ACC[1], ACC[0], ACC3][ps] if hf == 0 else [ACC3, ACC[0]][ps]

        def queue_gelu(ps, nb):
            st = accset(1, ps); tag = "g%d" % ps
            pw[ps] = []
            for sb in range(4):
                pk = PK + 4 * (sb & 1)
                for bi in range(nb):
                    b = st + (bi * 4 + sb) * 4
                    gelu_group(tag, [b, b + 1, b + 2, b + 3], [pk + 2 * bi, pk + 2 * bi + 1])
                def wr(sb=sb, pk=pk):
                    if ps == 0 and sb == 0 and not two:
                        lds_spin(a, lab + "_pre", SY + 36, "8")
                        a.lg = []
                    if nb == 2:
                        pw[ps].append(a.lds("ds_write_b128 v%d, %s offset:%d" % (vPw, vr(pk, 4), sb * 18432 + ps * 8192)))
                    else:
                        pw[ps].append(a.lds("ds_write_b64 v%d, %s offset:%d" % (vPw8, vr(pk, 2), sb * 18432)))
                fill.append((tag, wr))
            for _ in range(3): fill.append((tag, lambda: a("s_nop 0")))
            def sig():
                a.wait(lg=pw[ps])
                a("v_mov_b32 v12, %d" % (SY + 40 + 4 * (ps + 3 * hf)))
                a("v_mov_b32 v13, 1")
                a("s_mov_b64 exec, 1")
                a.lds("ds_add_u32 v12, v13")
                a("s_mov_b64 exec, -1")
            fill.append((tag, sig))

        def queue_store(ps, nb):
            st = accset(2, ps); tag = "s%d" % ps
            fl = ["", " sc1", " sc0 sc1", " nt", " sc1 nt"][stf]
            k = 0
            for bi in range(nb):
                for rg in range(2):
                    pk = PK + 4 * (k & 1); k += 1
                    for s2 in range(2):
                        b = st + (bi * 4 + 2 * rg + s2) * 4
                        for h in range(2):
                            fill.append((tag, lambda pk=pk, s2=s2, b=b, h=h: a("v_cvt_pk_bf16_f32 v%d, v%d, v%d" % (pk + 2 * s2 + h, b + 2 * h, b + 2 * h + 1))))
                    def stv(pk=pk, bi=bi, rg=rg):
                        a("s_add_u32 s34, s%d, %d" % (64 + ps, rg * 36864))
                        a.vmem("buffer_store_dwordx4 %s, v%d, s[12:15], s34 offen offset:%d%s" % (vr(pk, 4), vL, bi * 1024, fl))
                    if not nostore: fill.append((tag, stv))

        bias_tok = {}
        def load_bias(ps):
            if ps < 2:
                bias_tok[ps] = [a.lds("ds_read_b128 %s, v%d offset:%d" % (vr(BIAS + 4 * bi, 4), vBias, 1024 * ps + 64 * bi)) for bi in range(2)]
            else:
                bias_tok[ps] = [a.lds("ds_read_b128 %s, v7" % vr(BIAS, 4))]

        seen_g = set()
        def sync(g):
            if g in seen_g: return
            seen_g.add(g)
            own = g - 3 * hf
            if 0 <= own < npass and (g < 3) == (hf == 0): flush_tag("g%d" % own)
            pst(30 + 2 * g)
            lds_spin(a, "%s_pg%d" % (lab, g), SY + 40 + 4 * g, "4")
            pst(31 + 2 * g)
            a.lg = []

        def hook(f):
            lg_save = list(a.lg)
            f()
            a.lg = lg_save

        load_bias(0)
        for i in range(PB_D):
            for r_ in b_items(i): r_()
        for i in range(N):
            ph, ps, nb, t = steps[i]
            j = i + PB_D
            rds = []
            if MID and NP1 <= j < NP1 + PB_D:
                pass
            elif j < N:
                if steps[j][0] == 2: sync(grp_of[steps[j][3]])
                rds = b_items(j)
            st = accset(ph, ps)
            first = first_i[(ph, ps)] == i
            if first:
                if ph == 1 and ps == 2: flush_tag("g0")
                if ph == 2:
                    for tg in ({0: [], 1: ["g1"], 2: ["g2", "g0"], 3: ["s0"]} if hf == 0 else {0: [], 1: ["g0"]})[ps]: flush_tag(tg)
            br = BR + (i % (PB_D + 1)) * 16
            nm = 4 * nb
            for k in range(nm):
                bi, sb = k // 4, k % 4
                d = st + (bi * 4 + sb) * 4
                need = [b_tok[i][sb]] if bi == 0 else []
                if first:
                    c = "0" if ph == 2 else vr(BIAS + 4 * bi, 4)
                    if ph == 1: need = need + bias_tok[ps]
                else:
                    c = vr(d, 4)
                a.wait(vm=a_tok[i][bi] if sb == 0 else None, lg=need)
                a("%s %s, %s, %s, %s" % (MFMA, vr(d, 4), vr(AR + (i % DK) * 8 + 4 * bi, 4), vr(br + 4 * sb, 4), c))
                if rds and (nb == 1 or k % 2 == 0): rds.pop(0)()
                fine(RATE)
            if i + DK - 1 == NP1 and hf == 0 and not two:
                check5()
            if i + DK - 1 < N and not (MID and NP1 <= i + DK - 1 < NP1 + DK - 1): issue_a(i + DK - 1)
            if i == DK and not two: hook(publish2)
            if hf == 1 and i == (NP1 if MID else 0) + P3AT: hook(publish3)
            if hf == 1 and i == NP1 - 8 and not two:
                a("s_and_b32 s85, s2, 15")
                a("s_lshl_b32 s85, s85, 10")
                a("s_add_u32 s85, s85, %s" % hx(FLAG_OFF + 32768))
                a.vmem("buffer_load_dwordx4 v[244:247], v%d, s[12:15], s85 offen sc1" % vL)
            if ph == 1 and t == 2 and ps + 1 < npass: load_bias(ps + 1)
            if last_i[(ph, ps)] == i:
                lg_s = list(a.lg); pst(20 + 3 * (ph - 1) + ps); a.lg = [] if est == 2 else lg_s
                if ph == 1: queue_gelu(ps, nb)
                else: queue_store(ps, nb)
                if est and ph == 1 and ps == npass - 1: a("s_memrealtime s[92:93]")
                if MID and i == NP1 - 1:
                    flush_tag("g0")
                    if not two:
                        a.wait_all(vm=True, lg=False)
                        f2_check()
                    do_fft(lambda: flush_tag("g1"))
                    if not two: check5()
                    for i2 in range(NP1, NP1 + DK - 1): issue_a(i2)
                    for i2 in range(NP1, NP1 + PB_D):
                        sync(grp_of[steps[i2][3]])
                        for r_ in b_items(i2): r_()
                if est and ph == 2 and ps == 0: a("s_memrealtime s[94:95]")
        while fill: fill.popleft()[1]()
        if est == 2:
            a("v_writelane_b32 v253, s100, 0")
            a("s_lshl_b32 s33, s2, 3")
            a("s_add_u32 s33, s33, s22")
            a("s_lshl_b32 s33, s33, 8")
            a("s_add_u32 s33, s33, %s" % hx(STAMP_OFF + 0x700000))
            a("v_lshrrev_b32 v12, 2, v%d" % vL)
            a("buffer_store_dword v253, v12, s[12:15], s33 offen")

        a("%s_e%dstart:" % (name, hf))
        epilogue(a, name, hf, XB, vL, est=est, SLP=SLP, G1=G1, uload=1, mega=(poll_flags, store_flag, lds_spin, SY))

    body(0)
    a("%s_h1:" % name)
    body(1)
    a("%s_end:" % name)
    a("s_endpgm")
    n = a.fix_hazards()
    print("mega: nops inserted", n, "lines", len(a.lines))
    return kernel_header(name) + a.text() + kernel_desc(name, 256, 102), MEGA_LDS
```

```python
from asmgen import *
from layout import *

MAGIC576 = 7456541
INV576 = hx(f32bits(1.0 / 576.0))


def mod576(a, dst, src, tmp, smagic, s576):
    a("v_mul_hi_u32 v%d, v%d, s%d" % (tmp, src, smagic))
    a("v_mul_u32_u24 v%d, s%d, v%d" % (tmp, s576, tmp))
    a("v_sub_u32 v%d, v%d, v%d" % (dst, src, tmp))


def cinv_gen(a, base, s_db, vM, vG, T, S):
    D_, U0, DL, SH, SG, X = T, T + 1, T + 5, T + 6, T + 7, T + 8
    chunks = []
    def setup():
        a("s_lshl_b32 s%d, s%d, 4" % (S + 3, s_db))
        a("v_add_u32 v%d, s%d, v%d" % (D_, S + 3, vM))
        a("v_lshlrev_b32 v%d, 4, v%d" % (X, D_))
        mod576(a, X, X, X + 1, S, S + 1)
        a("v_cvt_f32_u32 v%d, v%d" % (X, X))
        a("v_mul_f32 v%d, s%d, v%d" % (DL, S + 2, X))
        a("v_lshlrev_b32 v%d, 1, v%d" % (X + 2, vG))
        for h in range(4):
            a("v_add_u32 v%d, %d, v%d" % (X, 8 * (h >> 1) + (h & 1), X + 2))
            a("v_mul_u32_u24 v%d, v%d, v%d" % (X, X, D_))
            mod576(a, X, X, X + 1, S, S + 1)
            a("v_cvt_f32_u32 v%d, v%d" % (X, X))
            a("v_mul_f32 v%d, s%d, v%d" % (U0 + h, S + 2, X))
        a("v_and_b32 v%d, 1, v%d" % (SH, D_))
        a("v_lshlrev_b32 v%d, 4, v%d" % (SH, SH))
        a("v_add_u32 v%d, 1, v%d" % (X, D_))
        a("v_bfe_u32 v%d, v%d, 1, 1" % (X, X))
        a("v_lshlrev_b32 v%d, 31, v%d" % (X, X))
        a("v_bfe_u32 v%d, v%d, 1, 1" % (X + 1, D_))
        a("v_lshl_or_b32 v%d, v%d, 15, v%d" % (SG, X + 1, X))
    chunks.append(setup)
    for t in range(9):
        def step(t=t):
            for h in range(4):
                if t:
                    a("v_fmamk_f32 v%d, v%d, %s, v%d" % (X + 8 + h, DL, hx(f32bits(float(t))), U0 + h))
            for h in range(4):
                u = X + 8 + h if t else U0 + h
                a("v_cos_f32 v%d, v%d" % (X + 2 * h, u))
                a("v_sin_f32 v%d, -v%d" % (X + 2 * h + 1, u))
            for h in range(4):
                a("v_cvt_pk_bf16_f32 v%d, v%d, v%d" % (base + 4 * t + h, X + 2 * h, X + 2 * h + 1))
            for h in range(4):
                a("v_alignbit_b32 v%d, v%d, v%d, v%d" % (base + 36 + 4 * t + h, base + 4 * t + h, base + 4 * t + h, SH))
            for h in range(4):
                a("v_xor_b32 v%d, v%d, v%d" % (base + 36 + 4 * t + h, SG, base + 36 + 4 * t + h))
            if t == 0:
                a("v_lshlrev_b32 v%d, 27, v%d" % (X, SH))
                a("v_or_b32 v%d, 0x3f803f80, v%d" % (X, X))
                a("v_cmp_eq_u32 vcc, 0, v%d" % vG)
                a("s_nop 1")
                a("v_cndmask_b32 v%d, v%d, v%d, vcc" % (base, base, X))
        chunks.append(step)
    return chunks


def final_math(a, nh, S_, Y, XV, B2, T, OUT):
    def rnd(r):
        a("v_cvt_pk_bf16_f32 v%d, v%d, v%d" % (T + 2, r, r + 1))
        a("v_lshlrev_b32 v%d, 16, v%d" % (r, T + 2))
        a("v_and_b32 v%d, 0xffff0000, v%d" % (r + 1, T + 2))
    for h in range(nh):
        s_ = S_ + 2 * h; y = Y + 2 * h
        rnd(s_)
        a("v_pk_add_f32 %s, %s, %s" % (vr(s_, 2), vr(s_, 2), vr(B2 + 2 * (h & 1), 2)))
        rnd(s_)
        rnd(y)
        a("v_lshlrev_b32 v%d, 16, v%d" % (T, XV + h))
        a("v_and_b32 v%d, 0xffff0000, v%d" % (T + 1, XV + h))
        a("v_pk_add_f32 %s, %s, %s" % (vr(y, 2), vr(y, 2), vr(T, 2)))
        rnd(y)
        a("v_pk_add_f32 %s, %s, %s" % (vr(y, 2), vr(y, 2), vr(s_, 2)))
        a("v_cvt_pk_bf16_f32 v%d, v%d, v%d" % (OUT + h, y, y + 1))


def epilogue(a, name, hf, UBASE, vLane16, NPART=8, est=0, SLP=4, G1=7, uload=0, early=None, mega=None):
    lab = "%s_e%d" % (name, hf)
    CA, CB = 16, 88
    ACC = 160
    BFR = 176
    T = 200
    M_, G_, VT0, VT1, VX0, VX1, VB = 220, 221, 222, 223, 224, 225, 226
    XV, B2R, XE, B2E = 228, 232, 234, 236
    PT = 16
    if est: a("s_memrealtime s[52:53]")
    a("s_load_dwordx2 s[40:41], s[0:1], 0")
    a("s_load_dwordx4 s[44:47], s[0:1], 56")
    a("s_load_dwordx2 s[42:43], s[0:1], 72")
    a("s_mov_b32 s64, %d" % MAGIC576)
    a("s_movk_i32 s65, 576")
    a("s_mov_b32 s66, %s" % INV576)
    a("v_lshrrev_b32 v%d, 4, v%d" % (T, vLane16))
    a("v_and_b32 v%d, 15, v%d" % (M_, T))
    a("v_lshrrev_b32 v%d, 4, v%d" % (G_, T))
    a("s_lshr_b32 s68, s20, 1")
    a("s_mul_i32 s68, s68, 9")
    a("s_add_u32 s69, s68, 8")
    a("s_add_u32 s68, s68, s22")
    a("s_and_b32 s70, s20, 1")
    a("s_lshl_b32 s71, s21, 1")
    a("s_add_u32 s70, s70, s71")
    a("v_bfe_u32 v%d, v%d, 2, 4" % (VT0, T))
    a("v_lshlrev_b32 v%d, 6, v%d" % (VT0, VT0))
    a("v_and_b32 v%d, 3, v%d" % (T + 1, T))
    a("v_lshl_add_u32 v%d, v%d, 3, v%d" % (VT0, T + 1, VT0))
    a("v_and_b32 v%d, 1, v%d" % (T + 1, G_))
    a("v_lshl_add_u32 v%d, v%d, 5, v%d" % (VT0, T + 1, VT0))
    a("v_add_u32 v%d, %s, v%d" % (VT0, hx(UBASE), VT0))
    a("v_xor_b32 v%d, 32, v%d" % (VT1, VT0))
    a("v_and_b32 v%d, 3, v%d" % (VX0, M_))
    a("v_bfe_u32 v%d, v%d, 2, 1" % (T + 1, M_))
    a("v_lshl_add_u32 v%d, v%d, 4, v%d" % (VX0, T + 1, VX0))
    a("v_bfe_u32 v%d, v%d, 3, 1" % (T + 1, M_))
    a("v_lshl_add_u32 v%d, v%d, 2, v%d" % (VX0, T + 1, VX0))
    a("s_mov_b32 s71, %d" % (32 * 1152))
    a("v_mul_lo_u32 v%d, v%d, s71" % (VX0, VX0))
    a("v_lshl_add_u32 v%d, v%d, 3, v%d" % (VX0, G_, VX0))
    a("v_add_u32 v%d, %d, v%d" % (VX1, 8 * 32 * 1152, VX0))
    a("v_lshlrev_b32 v%d, 3, v%d" % (VB, G_))
    a("s_lshr_b32 s72, s70, 1")
    a("s_and_b32 s73, s70, 1")
    a("s_lshl_b32 s73, s73, 10")
    a("s_add_u32 s72, s72, s73")
    a("s_mul_i32 s72, s72, 1152")
    a("s_lshl_b32 s73, s68, 5")
    a("s_lshl_b32 s75, s69, 5")
    a("s_add_u32 s74, s72, s75")
    a("s_and_b32 s78, s22, 1")
    a("s_mul_i32 s76, s78, %d" % (8 * 32 * 1152))
    a("s_add_u32 s74, s74, s76")
    a("s_add_u32 s72, s72, s73")
    a("s_mul_i32 s76, s70, 36")
    a("s_add_u32 s77, s76, s69")
    a("s_add_u32 s76, s76, s68")
    a("s_lshl_b32 s76, s76, 10")
    a("s_add_u32 s76, s76, %s" % hx(PART_OFF))
    a("s_lshl_b32 s77, s77, 10")
    a("s_lshl_b32 s78, s78, 3")
    a("s_add_u32 s77, s77, s78")
    a("s_add_u32 s77, s77, %s" % hx(PART_OFF))
    UR = 136
    if uload:
        a("v_lshrrev_b32 v240, 6, v%d" % vLane16)
        a("v_bfe_u32 v241, v%d, 8, 1" % vLane16)
        a("v_lshlrev_b32 v241, 5, v241")
        a("v_and_b32 v242, 48, v%d" % vLane16)
        a("v_xor_b32 v241, v241, v242")
        a("v_lshl_add_u32 v240, v240, 12, v241")
        if mega:
            a("s_and_b32 s83, s70, 1")
            a("s_lshl_b32 s83, s83, 11")
            a("s_lshl_b32 s84, s21, 6")
            a("s_add_u32 s83, s83, s84")
        else:
            a("s_lshl_b32 s83, s70, 6")
        a("s_lshl_b32 s84, s22, 16")
        a("s_add_u32 s83, s83, s84")
        a("s_add_u32 s83, s83, %s" % hx(UT_OFF))
        a("s_lshl_b32 s84, s22, 10")
        a("s_add_u32 s84, s84, %s" % hx(UBASE))
        a("v_add_u32 v241, s84, v%d" % vLane16)
        if hf == 0 and mega:
            a("s_cmp_lg_u32 s22, 0")
            a("s_cbranch_scc1 %s_fok" % lab)
            a("s_mov_b32 s85, %s" % hx(FLAG_OFF + 8192))
            a("v_lshlrev_b32 v252, 1, v%d" % vLane16)
            mega[0](a, lab + "_fa", 4, (0xffffffff, 0xffffffff), 252, 244, "s85", 32)
            a("s_add_u32 s85, s85, 2048")
            a("v_lshrrev_b32 v252, 1, v%d" % vLane16)
            mega[0](a, lab + "_fb", 1, (0xffffffff, 1), 252, 244, "s85", 32)
            a("v_mov_b32 v12, %d" % (mega[3] + 60))
            a("v_mov_b32 v13, 1")
            a("ds_write_b32 v12, v13")
            a("%s_fok:" % lab)
        elif hf == 0:
            a("s_cmp_lg_u32 s22, 0")
            a("s_cbranch_scc1 %s_fok" % lab)
            if early is not None:
                a("v_readfirstlane_b32 s80, v%d" % early)
                a("s_nop 3")
                a("s_cmp_ge_u32 s80, 289")
                a("s_cbranch_scc1 %s_fok" % lab)
            a("s_and_b32 s85, s2, 7")
            a("s_lshl_b32 s85, s85, 8")
            a("s_add_u32 s85, s85, %s" % hx(CNT_OFF + 8192))
            a("v_mov_b32 v238, 0")
            a("s_mov_b64 exec, 1")
            a("s_mov_b32 s81, 200000")
            a("%s_fpoll:" % lab)
            a("s_sub_u32 s81, s81, 1")
            a("s_cbranch_scc1 %s_fdone" % lab)
            a("buffer_load_dword v239, v238, s[12:15], s85 offen sc1")
            a("s_waitcnt vmcnt(0)")
            a("v_readfirstlane_b32 s80, v239")
            a("s_nop 3")
            a("s_cmp_ge_u32 s80, 289")
            a("s_cbranch_scc1 %s_fdone" % lab)
            a("s_sleep 8")
            a("s_branch %s_fpoll" % lab)
            a("%s_fdone:" % lab)
            a("s_mov_b64 exec, -1")
            a("%s_fok:" % lab)
    ch = cinv_gen(a, CA, 68, M_, G_, T, 64)
    nu = 5 if hf == 0 else 4
    def uloads():
        for i5 in range(nu):
            a("s_add_u32 s80, s83, %d" % (i5 * 8 * 65536))
            a("buffer_load_dwordx4 %s, v240, s[12:15], s80 offen sc1" % vr(UR + 4 * i5, 4))
    if mega:
        for c in ch[:2]: c()
        mega[2](a, lab + "_uok", mega[3] + 60, "1")
        uloads()
        for c in ch[2:4]: c()
    else:
        for c in ch[:4]: c()
    a.wait_all(vm=True, lg=True)
    if mega:
        for i5 in range(nu):
            a("ds_write_b128 v241, %s offset:%d" % (vr(UR + 4 * i5, 4), 8192 * i5))
    a("s_barrier")
    if est: a("s_memrealtime s[54:55]")
    for (s_, lo, hi, n) in ((4, 40, 41, 2048 * 1152), (8, 46, 47, 2048 * 1152), (16, 44, 45, 1152)):
        a("s_mov_b32 s%d, s%d" % (s_, lo))
        a("s_and_b32 s%d, s%d, 0xffff" % (s_ + 1, hi))
        a("s_mov_b32 s%d, %s" % (s_ + 2, hx(n)))
        a("s_mov_b32 s%d, 0x20000" % (s_ + 3))
    a("s_lshl_b32 s79, s21, 8")
    a("s_add_u32 s79, s79, %s" % hx(FLAG_OFF + 12288 if mega else CNT_OFF))
    a("v_mov_b32 v%d, 0" % 238)
    a("v_mov_b32 v%d, 1" % 239)
    if hf == 0:
        a("s_cmp_lg_u32 s22, 0")
        a("s_cbranch_scc1 %s_noat" % lab)
        if mega:
            a("s_lshl_b32 s80, s20, 3")
            a("s_add_u32 s80, s80, s79")
            mega[1](a, "s80")
        else:
            a("s_mov_b64 exec, 1")
            a("buffer_atomic_add v%d, v%d, s[12:15], s79 offen sc1" % (239, 238))
            a("s_mov_b64 exec, -1")
        a("%s_noat:" % lab)
    if uload and not mega: uloads()
    a("buffer_load_dwordx2 %s, v%d, s[4:7], s72 offen" % (vr(XV, 2), VX0))
    a("buffer_load_dwordx2 %s, v%d, s[4:7], s72 offen" % (vr(XV + 2, 2), VX1))
    a("buffer_load_dwordx2 %s, v%d, s[16:19], s73 offen" % (vr(B2R, 2), VB))
    PT = 88
    for c in ch[4:G1]: c()

    def mm(sbs, acc):
        toks = {}
        def rd(t):
            b = BFR + 8 * (t % 3)
            toks[t] = [a.lds("ds_read_b64_tr_b16 %s, v%d offset:%d" % (vr(b + 4 * k + 2 * i, 2), VT0 + sb, t * 2048 + i * 1024)) for k, sb in enumerate(sbs) for i in range(2)]
        rd(0); rd(1)
        for t in range(18):
            if t + 2 < 18: rd(t + 2)
            b = BFR + 8 * (t % 3)
            for k, sb in enumerate(sbs):
                a.wait(lg=toks[t][2 * k: 2 * k + 2])
                d = acc + 4 * k
                a("v_mfma_f32_16x16x32_bf16 %s, %s, %s, %s" % (vr(d, 4), vr(CA + 4 * t, 4), vr(b + 4 * k, 4), "0" if t == 0 else vr(d, 4)))

    def tail(extra, poll):
        if est: a("s_memrealtime s[56:57]")
        if uload and not mega:
            a("s_waitcnt vmcnt(3)")
            for i5 in range(nu):
                a("ds_write_b128 v241, %s offset:%d" % (vr(UR + 4 * i5, 4), 8192 * i5))
        if poll and mega:
            a("v_lshrrev_b32 v243, 1, v%d" % vLane16)
            mega[0](a, lab + "_pp", 1, (0xff, 0), 243, 238, "s79", SLP)
        elif poll:
            a("s_mov_b64 exec, 1")
            a("s_mov_b32 s81, 200000")
            a("%s_poll:" % lab)
            a("s_sub_u32 s81, s81, 1")
            a("s_cbranch_scc1 %s_pdone" % lab)
            a("buffer_load_dword v239, v238, s[12:15], s79 offen sc1")
            a("s_waitcnt vmcnt(0)")
            a("v_readfirstlane_b32 s80, v239")
            a("s_nop 3")
            a("s_cmp_ge_u32 s80, %d" % NPART)
            a("s_cbranch_scc1 %s_pdone" % lab)
            a("s_sleep %d" % SLP)
            a("s_branch %s_poll" % lab)
            a("%s_pdone:" % lab)
            a("s_mov_b64 exec, -1")
        if uload: a("s_waitcnt lgkmcnt(0)")
        a("s_barrier")
        if est: a("s_memrealtime s[60:61]")
        a.vm = []
        pt = []; pe = []
        for c in range(NPART):
            a("s_add_u32 s80, s76, %s" % hx(c * 64 * 36864))
            pt.append(a.vmem("buffer_load_dwordx4 %s, v%d, s[12:15], s80 offen sc1" % (vr(PT + 4 * c, 4), vLane16)))
        if extra is not None:
            for c in range(NPART):
                a("s_add_u32 s80, s77, %s" % hx(c * 64 * 36864))
                pe.append(a.vmem("buffer_load_dwordx2 %s, v%d, s[12:15], s80 offen sc1" % (vr(PT + 32 + 2 * c, 2), vLane16)))
            a.vmem("buffer_load_dwordx2 %s, v%d, s[4:7], s74 offen" % (vr(XE, 2), VX0))
            xe = a.vmem("buffer_load_dwordx2 %s, v%d, s[16:19], s75 offen" % (vr(B2E, 2), VB))
        for c in ch[G1:]: c()
        mm([0, 1], ACC)
        if extra is not None:
            for c in cinv_gen(a, CA, 69, M_, G_, T, 64): c()
            mm([extra], ACC + 8)
        S_ = 176; TT = 188; B2 = 196
        def psum(c, tok, src, n, dst):
            a.wait(vm=tok)
            for h in range(n):
                d_ = dst + 2 * h if c == 0 else TT + 2 * h
                a("v_lshlrev_b32 v%d, 16, v%d" % (d_, src + h))
                a("v_and_b32 v%d, 0xffff0000, v%d" % (d_ + 1, src + h))
            if c:
                for h in range(n):
                    a("v_pk_add_f32 %s, %s, %s" % (vr(dst + 2 * h, 2), vr(dst + 2 * h, 2), vr(TT + 2 * h, 2)))
        for c in range(NPART):
            psum(c, pt[c], PT + 4 * c, 4, S_)
        for h in range(2):
            a("v_lshlrev_b32 v%d, 16, v%d" % (B2 + 2 * h, B2R + h))
            a("v_and_b32 v%d, 0xffff0000, v%d" % (B2 + 2 * h + 1, B2R + h))
        final_math(a, 4, S_, ACC, XV, B2, TT, T)
        a("buffer_store_dwordx2 %s, v%d, s[8:11], s72 offen" % (vr(T, 2), VX0))
        a("buffer_store_dwordx2 %s, v%d, s[8:11], s72 offen" % (vr(T + 2, 2), VX1))
        if extra is not None:
            a("s_waitcnt vmcnt(2)")
            for c in range(NPART):
                psum(c, None, PT + 32 + 2 * c, 2, S_ + 8)
            for h in range(2):
                a("v_lshlrev_b32 v%d, 16, v%d" % (B2 + 2 * h, B2E + h))
                a("v_and_b32 v%d, 0xffff0000, v%d" % (B2 + 2 * h + 1, B2E + h))
            final_math(a, 2, S_ + 8, ACC + 8, XE, B2, TT, T + 4)
            a("buffer_store_dwordx2 %s, v%d, s[8:11], s74 offen" % (vr(T + 4, 2), VX0))
        if est:
            a("s_memrealtime s[62:63]")
            a("s_waitcnt lgkmcnt(0)")
            for k_, r_ in enumerate((100, 52, 54, 56, 60, 62, 88, 90, 92, 94, 96, 96) if mega else (58, 52, 54, 56, 60, 62, 88, 90, 92, 94)):
                a("v_mov_b32 v%d, s%d" % (100 + k_, r_))
            a("s_lshl_b32 s80, s2, 3")
            a("s_add_u32 s80, s80, s22")
            a("s_lshl_b32 s80, s80, 6")
            a("s_add_u32 s80, s80, %s" % hx(STAMP_OFF + 0x600000))
            a("v_mov_b32 v112, 0")
            a("s_mov_b64 exec, 1")
            a("buffer_store_dwordx4 v[100:103], v112, s[12:15], s80 offen")
            a("buffer_store_dwordx4 v[104:107], v112, s[12:15], s80 offen offset:16")
            a("buffer_store_dwordx4 v[108:111], v112, s[12:15], s80 offen offset:32")
        a("s_endpgm")

    if hf == 0:
        a("s_cmp_eq_u32 s22, 2")
        a("s_cbranch_scc1 %s_w2" % lab)
        a("s_cmp_eq_u32 s22, 3")
        a("s_cbranch_scc1 %s_w3" % lab)
        a("s_cmp_eq_u32 s22, 1")
        a("s_cbranch_scc1 %s_plain" % lab)
        tail(None, True)
        a("%s_w2:" % lab)
        tail(0, False)
        a("%s_w3:" % lab)
        tail(1, False)
        a("%s_plain:" % lab)
    tail(None, False)
```

```python
from asmgen import *
from layout import *
from collections import deque
from gen_epi import epilogue, MAGIC576, INV576
from gen_fft2 import FFT
from gen_pro import *

C0 = -2.0 * 1.4426950408889634 * 0.7978845608028654
C1 = C0 * 0.044715
MFMA = "v_mfma_f32_16x16x32_bf16"
XB = 0
PB = 73728
A16 = PB
TS = PB + 36864
BIASB = 147456
SY = BIASB + 2304
FSC = BIASB + 2560
MEGA_LDS = 163840
SPIN = 100000
TBS = 98


def srd(a, s, lo, hi, nbytes):
    a("s_mov_b32 s%d, s%d" % (s, lo))
    a("s_and_b32 s%d, s%d, 0xffff" % (s + 1, hi))
    a("s_mov_b32 s%d, %s" % (s + 2, hx(nbytes)))
    a("s_mov_b32 s%d, 0x20000" % (s + 3))


WIN = 1500


def poll_flags(a, lab, nf, execmask, va, vd, soff, slp, pre=None):
    a("s_mov_b32 exec_lo, %s" % hx(execmask[0]))
    a("s_mov_b32 exec_hi, %s" % hx(execmask[1]))
    a("s_mov_b32 s35, %d" % SPIN)
    a("%s_l:" % lab)
    a("s_sub_u32 s35, s35, 1")
    a("s_cbranch_scc1 %s_ok" % lab)
    if nf == 1:
        a("buffer_load_dwordx2 %s, v%d, s[12:15], %s offen sc1" % (vr(vd, 2), va, soff))
    else:
        for k in range(nf // 2):
            a("buffer_load_dwordx4 %s, v%d, s[12:15], %s offen offset:%d sc1" % (vr(vd + 4 * k, 4), va, soff, 16 * k))
    a("v_mov_b32 v13, s%d" % (TBS + 1))
    a("s_waitcnt vmcnt(0)")
    for i in range(nf):
        a("v_subrev_co_u32 v%d, vcc, s%d, v%d" % (vd + 2 * i, TBS, vd + 2 * i))
        a("v_subb_co_u32 v%d, vcc, v%d, v13, vcc" % (vd + 2 * i + 1, vd + 2 * i + 1))
        a("v_lshrrev_b32 v%d, 12, v%d" % (vd + 2 * i, vd + 2 * i))
        a("v_or_b32 v%d, v%d, v%d" % (vd + 2 * i, vd + 2 * i, vd + 2 * i + 1))
        if i: a("v_or_b32 v%d, v%d, v%d" % (vd, vd, vd + 2 * i))
    a("v_cmp_ne_u32 vcc, 0, v%d" % vd)
    a("s_nop 1")
    a("s_cmp_eq_u64 vcc, 0")
    a("s_cbranch_scc1 %s_ok" % lab)
    a("s_sleep %d" % slp)
    a("s_branch %s_l" % lab)
    a("%s_ok:" % lab)
    a("s_mov_b64 exec, -1")


def lds_spin(a, lab, addr, target):
    a("v_mov_b32 v12, %d" % addr)
    a("%s:" % lab)
    a("ds_read_b32 v13, v12")
    a("s_waitcnt lgkmcnt(0)")
    a("v_readfirstlane_b32 s35, v13")
    a("s_nop 3")
    a("s_cmp_ge_u32 s35, %s" % target)
    a("s_cbranch_scc1 %s_d" % lab)
    a("s_sleep 1")
    a("s_branch %s" % lab)
    a("%s_d:" % lab)


def gather_publish(a, lab, cnt_addr, last, soff_expr, need_nonce=False):
    a("v_mov_b32 v12, %d" % cnt_addr)
    a("v_mov_b32 v13, 1")
    a("s_mov_b64 exec, 1")
    a("ds_add_rtn_u32 v13, v12, v13")
    a("s_waitcnt lgkmcnt(0)")
    a("v_readfirstlane_b32 s35, v13")
    a("s_mov_b64 exec, -1")
    a("s_nop 1")
    a("s_cmp_lg_u32 s35, %s" % last)
    a("s_cbranch_scc1 %s" % lab)
    soff_expr()
    a("%s:" % lab)


def code_touch(a, lab_from, lab_to, nlines_max, uniq):
    a("s_getpc_b64 s[92:93]")
    a("%s:" % uniq)
    a("s_add_u32 s92, s92, %s-%s" % (lab_from, uniq))
    a("s_addc_u32 s93, s93, 0")
    for r in range((nlines_max + 63) // 64):
        a("v_lshlrev_b32 v12, 7, v9")
        if r: a("v_add_u32 v12, %d, v12" % (8192 * r))
        a("v_min_u32 v12, %s-%s, v12" % (lab_to, lab_from))
        a("global_load_dword v13, v12, s[92:93]")


def store_flag(a, soff):
    a("v_mov_b32 v12, s100")
    a("v_mov_b32 v13, s101")
    a("s_mov_b64 exec, 1")
    a("buffer_store_dwordx2 v[12:13], v1, s[12:15], %s offen sc1" % soff)
    a("s_mov_b64 exec, -1")


def gen_mega(name, DK=8, PB_D=1, cmap=2, RATE=8.5, est=0, SLP=4, G1=6, fprio=1, stf=1, nogelu=0, nostore=0, prio=0, xc=0, b0e=1, aplain=0, DKA=10, bprio=1, ctouch=0, nofft=0, P3AT=1, two=0, fpos=0, P2=3, AORD=1, KSP=1, FE=0):
    stamps = 0; epi = 1
    a = Asm()
    def pst(k):
        if est == 2:
            a("s_memrealtime vcc")
            a("s_waitcnt lgkmcnt(0)")
            a("v_writelane_b32 v253, vcc_lo, %d" % k)
            if 20 <= k < 30:
                a("s_memtime vcc")
                a("s_waitcnt lgkmcnt(0)")
                a("v_writelane_b32 v253, vcc_lo, %d" % (k + 30))
    AR = 16
    BR = AR + DK * 8
    ACC = [BR + (PB_D + 1) * 16, BR + (PB_D + 1) * 16 + 32]
    BIAS = ACC[1] + 32
    TMP = BIAS + 8
    PK = TMP + 4
    NV = PK + 8
    vL, vLP, vBias, vPw, vC1, vPw8 = 1, 2, 3, 4, 5, 6
    vXe, vXo, vXeH, vXoH, vLPH = 10, 11, 14, 15, 8
    LA = " sc1"
    a("s_cmp_ge_u32 s2, 256")
    a("s_cbranch_scc1 %s_end" % name)
    a("s_load_dwordx16 s[48:63], s[0:1], 0")
    a("s_load_dwordx2 s[46:47], s[0:1], 80")
    a("s_memrealtime s[100:101]")
    a("v_lshrrev_b32 v8, 6, v0")
    a("v_and_b32 v9, 63, v0")
    a("v_readfirstlane_b32 s22, v8")
    if ctouch:
        a("s_nop 3")
        a("s_cmp_lg_u32 s22, 6")
        a("s_cbranch_scc1 %s_nct" % name)
        code_touch(a, name + "_nct", name + "_end", 720, name + "_ct")
        a("%s_nct:" % name)
    if cmap == 0:
        a("s_and_b32 s20, s2, 7")
        a("s_lshr_b32 s21, s2, 3")
    elif cmap == 2:
        a("s_and_b32 s20, s2, 1")
        a("s_lshl_b32 s20, s20, 2")
        a("s_bfe_u32 s33, s2, 0x20003")
        a("s_add_u32 s20, s20, s33")
        a("s_bfe_u32 s21, s2, 0x20001")
        a("s_lshl_b32 s21, s21, 3")
        a("s_lshr_b32 s33, s2, 5")
        a("s_add_u32 s21, s21, s33")
    else:
        a("s_and_b32 s20, s2, 3")
        a("s_lshl_b32 s20, s20, 1")
        a("s_bfe_u32 s33, s2, 0x10003")
        a("s_add_u32 s20, s20, s33")
        a("s_bfe_u32 s21, s2, 0x10002")
        a("s_lshl_b32 s21, s21, 4")
        a("s_lshr_b32 s33, s2, 4")
        a("s_add_u32 s21, s21, s33")
    a("s_and_b32 s38, s22, 3")
    a("s_lshr_b32 s39, s22, 2")
    a("s_add_u32 s23, s22, s21")
    a("s_and_b32 s23, s23, 7")
    a("s_mul_i32 s24, s20, %d" % (36 * 18432))
    a("s_mul_i32 s25, s22, 36864")
    a("s_add_u32 s25, s25, s24")
    a("s_add_u32 s26, s25, %d" % (16 * 18432))
    a("s_mul_i32 s27, s38, 18432")
    a("s_add_u32 s27, s27, s24")
    a("s_add_u32 s27, s27, %d" % (32 * 18432))
    a("s_lshl_b32 s37, s20, 6")
    a("s_lshl_b32 s33, s21, 1")
    a("s_add_u32 s37, s37, s33")
    a("s_mul_i32 s37, s37, 36864")
    a("s_add_u32 s37, s37, %s" % hx(PART_OFF))
    a("s_mov_b32 s28, s24")
    a("s_mov_b32 s40, s37")
    a("s_mov_b32 s41, s24")
    a("s_lshl_b32 s42, s21, 1")
    a("s_mul_i32 s33, s42, 3641")
    a("s_lshr_b32 s33, s33, 16")
    a("s_mul_i32 s33, s33, 18")
    a("s_sub_u32 s42, s42, s33")
    a("v_lshlrev_b32 v%d, 4, v9" % vL)
    a("v_add_u32 v%d, %d, v%d" % (vLP, PB, vL))
    a("v_lshrrev_b32 v16, 4, v9")
    a("s_lshl_b32 s33, s22, 7")
    a("s_add_u32 s33, s33, %d" % BIASB)
    a("v_lshl_add_u32 v%d, v16, 4, s33" % vBias)
    a("s_lshl_b32 s33, s38, 6")
    a("s_add_u32 s33, s33, %d" % (BIASB + 2048))
    a("v_lshl_add_u32 v7, v16, 4, s33")
    a("s_lshl_b32 s33, s22, 10")
    a("v_add_u32 v%d, s33, v%d" % (vPw, vLP))
    a("s_lshr_b32 s33, s38, 1")
    a("s_lshl_b32 s33, s33, 10")
    a("s_and_b32 s34, s38, 1")
    a("s_lshl_b32 s34, s34, 3")
    a("s_add_u32 s33, s33, s34")
    a("s_add_u32 s33, s33, 16384")
    a("v_add_u32 v%d, s33, v%d" % (vPw8, vLP))
    a("v_mov_b32 v%d, %s" % (vC1, hx(f32bits(C1))))
    if two:
        a("v_add_u32 v%d, 0x10000, v%d" % (vLPH, vLP))
        a("v_mov_b32 v%d, v%d" % (vXe, vL)); a("v_mov_b32 v%d, v%d" % (vXo, vL))
        a("v_add_u32 v%d, 0x10000, v%d" % (vXeH, vL)); a("v_add_u32 v%d, 0x10000, v%d" % (vXoH, vL))
        a("s_lshl_b32 s36, s21, 2")
        a("s_add_u32 s36, s36, s38")
        a("s_mul_i32 s36, s36, 18432")
        a("s_add_u32 s36, s36, %s" % hx(XNF_OFF))
        a("s_mul_i32 s29, s38, 18432")
        a("s_mul_i32 s56, s20, 2304")
        a("s_waitcnt lgkmcnt(0)")
        a("s_sub_u32 s98, s100, 2048")
        a("s_subb_u32 s99, s101, 0")
        a("s_mul_i32 s56, s20, 2304")
        a("s_add_u32 s56, s56, %s" % hx(B1F_OFF))
        srd(a, 12, 46, 47, WS_BYTES)
        a("s_cmp_lg_u32 s39, 0")
        a("s_cbranch_scc1 %s_h1" % name)
    else:
        vN, vG = 248, 249
        a("v_and_b32 v%d, 15, v9" % vN)
        a("v_lshrrev_b32 v%d, 4, v9" % vG)
        a("v_xor_b32 v16, v%d, v%d" % (vG, vN))
        a("v_lshl_add_u32 v17, v%d, 4, v16" % vG)
        a("v_lshlrev_b32 v%d, 4, v17" % vXe)
        a("v_xor_b32 v%d, 64, v%d" % (vXo, vXe))
        a("v_add_u32 v%d, 0x10000, v%d" % (vXeH, vXe))
        a("v_add_u32 v%d, 0x10000, v%d" % (vXoH, vXo))
        a("v_add_u32 v%d, 0x10000, v%d" % (vLPH, vLP))
        vX, vXB0, vA0 = 250, 251, 252
        a("s_mov_b32 s33, %d" % (1152 if xc else 32 * 1152))
        a("v_mul_lo_u32 v%d, v%d, s33" % (vX, vG))
        a("v_lshl_add_u32 v%d, v%d, 3, v%d" % (vX, vN, vX))
        a("s_lshl_b32 s28, s22, 3")
        a("s_lshl_b32 s28, s28, 5")
        a("s_add_u32 s28, s28, s21")
        a("s_mul_i32 s28, s28, 1152")
        a("s_add_u32 s29, s28, %d" % (4 * 32 * 1152))
        if xc:
            a("s_lshl_b32 s28, s21, 3")
            a("s_add_u32 s28, s28, s22")
            a("s_mul_i32 s28, s28, %d" % (8 * 1152))
            a("s_add_u32 s29, s28, %d" % (4 * 1152))
        a("v_and_b32 v16, 3, v%d" % vN)
        a("v_lshrrev_b32 v17, 3, v%d" % vN)
        a("v_lshl_add_u32 v18, v17, 2, v16")
        a("v_lshlrev_b32 v19, 4, v16")
        a("v_lshl_add_u32 v19, v17, 6, v19")
        a("v_bfe_u32 v20, v%d, 2, 1" % vN)
        a("v_lshlrev_b32 v20, 3, v20")
        a("v_lshl_add_u32 v19, v19, 4, v20")
        a("s_lshr_b32 s33, s38, 1")
        a("s_lshl_b32 s33, s33, 2")
        a("v_add_u32 v21, s33, v%d" % vG)
        a("v_xor_b32 v21, v21, v18")
        a("v_lshl_add_u32 v21, v21, 4, v19")
        a("s_lshl_b32 s33, s39, 1")
        a("s_and_b32 s34, s38, 1")
        a("s_add_u32 s33, s33, s34")
        a("s_mul_i32 s33, s33, 18432")
        a("v_add_u32 v%d, s33, v21" % vXB0)
        a("s_lshl_b32 s34, s34, 3")
        a("v_add_u32 v21, s34, v%d" % vG)
        a("v_xor_b32 v21, v21, v18")
        a("v_lshl_add_u32 v21, v21, 4, v19")
        a("s_lshr_b32 s33, s38, 1")
        a("s_mul_i32 s33, s33, 18432")
        a("s_add_u32 s33, s33, %d" % A16)
        a("v_add_u32 v%d, s33, v21" % vA0)
        a("s_and_b32 s43, s20, 1")
        a("s_cmp_eq_u32 s43, s39")
        a("s_cselect_b32 s45, 1, 0")
        a("s_lshl_b32 s36, s22, 12")
        a("s_add_u32 s36, s36, %d" % TS)
        a("s_lshl_b32 s32, s22, 5")
        a("s_add_u32 s32, s32, s21")
        a("s_mov_b32 s88, %d" % MAGIC576)
        a("s_movk_i32 s89, 576")
        a("s_mov_b32 s90, %s" % INV576)
        a("s_waitcnt lgkmcnt(0)")
        a("s_sub_u32 s98, s100, 2048")
        a("s_subb_u32 s99, s101, 0")
        pst(40)
        srd(a, 12, 46, 47, WS_BYTES)
        srd(a, 4, 48, 49, 2048 * 1152)
        srd(a, 64, 56, 57, 576 * 9216)
        srd(a, 68, 60, 61, 4608 * 1152)
        srd(a, 72, 50, 51, 2048 * 578)
        srd(a, 76, 52, 53, 2048 * 578)
        srd(a, 16, 58, 59, 9216)
        XR0, XR1, T1, T2, WL, B1R, CF0, CF1 = 16, 34, 52, 68, 84, 94, 96, 168
        a("s_cmp_lg_u32 s22, 0")
        a("s_cbranch_scc1 %s_n0" % name)
        a("s_or_b32 s86, s86, 1")
        a("v_mov_b32 v246, s86")
        a("v_mov_b32 v247, 0")
        a("v_lshrrev_b32 v12, 2, v%d" % vL)
        a("v_add_u32 v12, %d, v12" % SY)
        a("s_mov_b64 exec, 0xffff")
        a("ds_write_b32 v12, v247")
        a("s_mov_b64 exec, -1")
        a("s_waitcnt lgkmcnt(0)")
        a("%s_n0:" % name)
        if b0e: a("s_barrier")
        pst(41)
        a("s_cmp_lg_u32 s39, 0")
        a("s_cbranch_scc1 %s_nt1" % name)
        tile_issue(a, 32, 20, 9, 244, T1, 64, 68, 92)
        a("s_add_u32 s32, s32, 128")
        a("s_cmp_ge_u32 s32, 162")
        a("s_cbranch_scc1 %s_nt1" % name)
        tile_issue(a, 32, 20, 9, 244, T2, 64, 68, 48)
        a("%s_nt1:" % name)
        a.vm = []
        pst(42)
        xt = []
        for b_, XR in enumerate((XR0, XR1)):
            for j in range(9):
                xt.append(a.vmem("buffer_load_dwordx2 %s, v%d, s[4:7], s%d offen offset:%d" % (vr(XR + 2 * j, 2), vX, 28 + b_, j * 128)))
        a("v_min_u32 v12, 287, v0")
        a("v_lshlrev_b32 v12, 2, v12")
        a("s_mul_i32 s33, s20, 1152")
        bt = a.vmem("buffer_load_dword v%d, v12, s[16:19], s33 offen" % B1R)
        pst(1)
        if not b0e: a("s_barrier")
        pst(2)
        XF, A0_, TT = 168, 204, 214
        a("s_cmp_lg_u32 s39, 0")
        a("s_cbranch_scc1 %s_nt1b" % name)
        a("s_waitcnt vmcnt(19)")
        tile_finish(a, 9, T1, 244, 36, 96, vL)
        a("s_cmp_ge_u32 s32, 162")
        a("s_cbranch_scc1 %s_nt1b" % name)
        tile_finish(a, 9, T2, 244, 36, 52, vL)
        a("%s_nt1b:" % name)
        a.vm = []; a.lg = []
        pst(3)
        a("s_lshr_b32 s37, s20, 1")
        a("s_mul_i32 s37, s37, 9")
        a("s_add_u32 s62, s37, 8")
        a("s_add_u32 s37, s37, s22")
        cf_gen(a, CF0, 37, vN, vG, 168, 180, 88)
        pst(4)
        a("s_cmp_lg_u32 s39, 0")
        a("s_cbranch_scc1 %s_w1" % name)
        a("s_cmp_ge_u32 s32, 162")
        a("s_cbranch_scc1 %s_w3" % name)
        a("s_waitcnt vmcnt(8)")
        a("s_branch %s_w2" % name)
        a("%s_w3:" % name)
        a("s_waitcnt vmcnt(4)")
        a("s_branch %s_w2" % name)
        a("%s_w1:" % name)
        a("s_waitcnt vmcnt(0)")
        a("%s_w2:" % name)
        pst(5)
        ln_batch(a, XR0, XF, A0_, TT, vXB0, vA0, 90, 45, name + "_l0")
        a.lg = []
        pst(6)
        a("s_waitcnt vmcnt(0)")
        pst(7)
        def f1():
            a("s_lshl_b32 s33, s20, 8")
            a("s_lshl_b32 s34, s21, 3")
            a("s_add_u32 s33, s33, s34")
            a("s_add_u32 s33, s33, %s" % hx(FLAG_OFF))
            store_flag(a, "s33")
        a("s_cmp_lg_u32 s39, 0")
        a("s_cbranch_scc1 %s_g1" % name)
        gather_publish(a, name + "_g1", SY, "3", f1, True)
        a("s_cmp_ge_u32 s2, 128")
        a("s_cbranch_scc1 %s_nw" % name)
        a("s_lshr_b32 s33, s2, 5")
        a("s_lshl_b32 s33, s33, 2")
        a("s_add_u32 s33, s33, s38")
        a("s_lshl_b32 s34, s39, 4")
        a("s_add_u32 s33, s33, s34")
        a("s_lshl_b32 s33, s33, 6")
        a("s_and_b32 s34, s2, 31")
        a("s_lshl_b32 s34, s34, 1")
        a("s_add_u32 s33, s33, s34")
        a("s_mul_i32 s33, s33, 578")
        a("v_lshlrev_b32 v12, 2, v9")
        for arr in range(2):
            for it in range(5):
                if it == 4: a("s_mov_b32 exec_hi, 1")
                a("buffer_load_dword v%d, v12, s[%d:%d], s33 offen offset:%d" % (WL + arr * 5 + it, 72 + 4 * arr, 75 + 4 * arr, 256 * it))
                if it == 4: a("s_mov_b32 exec_hi, -1")
        a("%s_nw:" % name)
        T3 = 224
        a("s_cmp_eq_u32 s39, 0")
        a("s_cbranch_scc1 %s_nt2" % name)
        a("s_lshl_b32 s63, s38, 5")
        a("s_add_u32 s63, s63, s21")
        a("s_add_u32 s63, s63, 162")
        tile_issue(a, 63, 20, 9, 240, T2, 64, 68, 48)
        a("s_add_u32 s63, s63, 128")
        a("s_cmp_ge_u32 s63, 324")
        a("s_cbranch_scc1 %s_nt2" % name)
        tile_issue(a, 63, 20, 9, 240, T3, 64, 68, 53)
        a("%s_nt2:" % name)
        a.vm = []; a.lg = []
        pst(8)
        a("v_min_u32 v12, 287, v0")
        a("v_lshlrev_b32 v12, 3, v12")
        a("v_add_u32 v12, %d, v12" % BIASB)
        a("v_lshlrev_b32 v52, 16, v%d" % B1R)
        a("v_and_b32 v53, 0xffff0000, v%d" % B1R)
        a("ds_write_b64 v12, v[52:53]")
        a("v_xor_b32 v%d, 128, v%d" % (vXB0, vXB0))
        a("v_xor_b32 v%d, 64, v%d" % (vA0, vA0))
        ln_batch(a, XR1, XF, A0_, TT, vXB0, vA0, 90, 45, name + "_l1")
        a.lg = []
        a("s_waitcnt vmcnt(0)")
        a("s_cmp_eq_u32 s39, 0")
        a("s_cbranch_scc1 %s_nt2b" % name)
        a("s_waitcnt vmcnt(0)")
        tile_finish(a, 9, T2, 240, 36, 52, vL)
        a("s_cmp_ge_u32 s63, 324")
        a("s_cbranch_scc1 %s_nt2b" % name)
        tile_finish(a, 9, T3, 240, 36, 57, vL)
        a("%s_nt2b:" % name)
        a("s_cmp_ge_u32 s2, 128")
        a("s_cbranch_scc1 %s_nwb" % name)
        a("v_lshlrev_b32 v12, 2, v9")
        a("v_add_u32 v12, s36, v12")
        for arr in range(2):
            for it in range(5):
                if it == 4: a("s_mov_b32 exec_hi, 1")
                a("ds_write_b32 v12, v%d offset:%d" % (WL + arr * 5 + it, arr * 1160 + 256 * it))
                if it == 4: a("s_mov_b32 exec_hi, -1")
        a("%s_nwb:" % name)
        a.vm = []; a.lg = []
        pst(9)
        a("s_cmp_lg_u32 s22, 7")
        a("s_cbranch_scc1 %s_n7" % name)
        cf_gen(a, CF1, 62, vN, vG, 16, 28, 88)
        a("%s_n7:" % name)
        a("s_cmp_lg_u32 s22, 0")
        a("s_cbranch_scc1 %s_n2" % name)
        a("s_lshl_b32 s33, s20, 8")
        a("s_add_u32 s33, s33, %s" % hx(FLAG_OFF))
        a("v_lshlrev_b32 v16, 3, v9")
        poll_flags(a, name + "_p1", 1, (0xffffffff, 0), 16, 18, "s33", 3)
        a("%s_n2:" % name)
        a("s_waitcnt lgkmcnt(0)")
        pst(10)
        a("s_barrier")
        pst(11)
        if est: a("s_memrealtime s[96:97]")
        a("s_cmp_lg_u32 s39, 0")
        a("s_cbranch_scc1 %s_h1" % name)

    def body(hf):
        a.vm = []; a.lg = []
        if hf == 0:
            DK = DKA
            AR = 16; BR = AR + DK * 8
            ACC = [BR + 32, BR + 64]; ACC3 = BR + 96
            BIAS = ACC3 + 32; TMP = BIAS + 8; PK = TMP + 4
            assert PK + 8 <= 244, PK
        else:
            DK = 8
            AR = 16; BR = 80; ACC3 = 112
            ACC = [212, 144] if FE else [144, 212]; BIAS = 192; TMP = 200; PK = 204
        if prio and hf == prio - 1: a("s_setprio 1")
        npass = 3 if hf == 0 else 2
        G = [[0, 1, 2, 3], [8, 9, 10, 11], [16, 17], [4, 5, 6, 7], [12, 13, 14, 15]]
        grp_of = {t: g for g, ts in enumerate(G) for t in ts}
        steps = []
        P1O = ([2, 0, 1] if AORD else [0, 1, 2]) if hf == 0 else [0, 1]
        for ps in P1O:
            for t in range(18):
                steps.append((1, ps, 2 if ps < 2 else 1, t))
        NP1 = 18 * npass
        O = G[2] + G[0] + G[3] + G[1] + G[4] if FE else G[2] + G[0] + G[3] + G[4] + G[1] if AORD else G[0] + G[3] + G[1] + G[2] + G[4]
        W2 = {0: ([2, 2, 1], [2, 2]), 1: ([2, 2, 2], [2, 1]), 2: ([2, 2, 2, 1], [2]), 3: ([2, 2, 2, 1], [2, 1])}[P2][hf]
        nA = sum(1 for w_ in {0: ([2, 2, 1], [2, 2]), 1: ([2, 2, 2], [2, 1]), 2: ([2, 2, 2, 1], [2]), 3: ([2, 2, 2, 1], [2, 1])}[P2][0] if w_ == 2)
        def p2_base(ps):
            if W2[ps] == 2:
                a("s_add_u32 s33, s38, %d" % (4 * (ps + (nA if hf else 0))))
                a("s_mov_b32 s34, 0")
            else:
                a("s_lshr_b32 s33, s38, 1")
                a("s_add_u32 s33, s33, 16")
                a("s_and_b32 s34, s38, 1")
            a("s_add_u32 s33, s33, s42")
            a("s_sub_u32 s35, s33, 18")
            a("s_cselect_b32 s33, s33, s35")
            a("s_lshl_b32 s33, s33, 1")
            a("s_add_u32 s33, s33, s34")
            a("s_mul_i32 s23, s33, 18432")
            a("s_add_u32 s23, s23, s41")
            a("s_lshl_b32 s33, s33, 10")
            a("s_add_u32 s%d, s33, s40" % (64 + ps))
        seq = [(ps_, O) for ps_ in range(len(W2))]
        if KSP and hf == 0:
            seq = [(0, O[:10]), (1, O[:10]), (0, O[10:]), (1, O[10:])] + seq[2:]
        for ps, ts in seq:
            for t in ts:
                steps.append((2, ps, W2[ps], t))
        N = len(steps)
        FP = 18 if FE else NP1
        MID = hf == 1 and (not two or fpos == 1)
        first_i = {}; last_i = {}
        for i_, st_ in enumerate(steps):
            first_i.setdefault(st_[:2], i_); last_i[st_[:2]] = i_
        a_tok = {}; b_tok = {}
        sbase = {"key": None, "t0": None}

        def issue_a(i):
            ph, ps, nb, t = steps[i]
            base = (W1T_OFF if ph == 1 else W2T_OFF)
            sb_ = [25, 26, 27][ps] if ph == 1 else 23
            if ph == 2 and sbase["key"] != (ph, ps): p2_base(ps)
            new = sbase["key"] != (ph, ps) or not (sbase["t0"] <= t < sbase["t0"] + 4)
            if new:
                sbase["key"] = (ph, ps); sbase["t0"] = t
            toks = []
            for bi in range(nb):
                sreg = 30 + bi
                if new:
                    a("s_add_u32 s%d, s%d, %s" % (sreg, sb_, hx(base + bi * 18432 + t * 1024)))
                toks.append(a.vmem("buffer_load_dwordx4 %s, v%d, s[12:15], s%d offen offset:%d%s" % (vr(AR + (i % DK) * 8 + 4 * bi, 4), vL, sreg, (t - sbase["t0"]) * 1024, "" if (aplain or two) else LA)))
            a_tok[i] = toks

        def b_items(i):
            ph, ps, nb, t = steps[i]
            b_tok[i] = []
            out = []
            for sb in range(4):
                def rd(sb=sb):
                    off = (sb * 18 + t) * 1024
                    hi_ = off >= 65536
                    if hi_: off -= 65536
                    if ph == 1: v = [[vXe, vXo], [vXeH, vXoH]][hi_][t & 1]
                    else: v = vLPH if hi_ else vLP
                    b_tok[i].append(a.lds("ds_read_b128 %s, v%d offset:%d" % (vr(BR + (i % (PB_D + 1)) * 16 + 4 * sb, 4), v, off)))
                out.append(rd)
            return out

        lab = "%s_r%d" % (name, hf)
        if two:
            a("v_mov_b32 v12, 0")
            a("s_mov_b32 s33, %s" % hx(CNT_OFF))
            nt = a.vmem("buffer_load_dword v250, v12, s[12:15], s33 offen")
            if hf == 0:
                XS = 96
                xt = []
                for k in range(18):
                    if k % 4 == 0: a("s_add_u32 s33, s36, %d" % (1024 * k))
                    xt.append(a.vmem("buffer_load_dwordx4 %s, v%d, s[12:15], s33 offen offset:%d" % (vr(XS + 4 * k, 4), vL, 1024 * (k % 4))))
                a("s_mul_i32 s33, s38, 576")
                a("s_add_u32 s34, s33, s56")
                xt.append(a.vmem("buffer_load_dwordx4 %s, v%d, s[12:15], s34 offen" % (vr(XS + 72, 4), vL)))
                for i in range(DK - 1): issue_a(i)
                a("v_lshrrev_b32 v12, 2, v%d" % vL)
                a("v_add_u32 v12, %d, v12" % SY)
                a("v_mov_b32 v13, 0")
                a("s_mov_b64 exec, 0xffff")
                a("ds_write_b32 v12, v13")
                a("s_mov_b64 exec, -1")
                a("v_add_u32 v12, s29, v%d" % vL)
                ws_ = []
                for k in range(18):
                    a.wait(vm=xt[k])
                    ws_.append(a.lds("ds_write_b128 v12, %s offset:%d" % (vr(XS + 4 * k, 4), 1024 * k)))
                a("s_add_u32 s33, s33, %d" % BIASB)
                a("v_add_u32 v12, s33, v%d" % vL)
                a.wait(vm=xt[18])
                a("s_mov_b32 exec_hi, 15")
                a("ds_write_b128 v12, %s" % vr(XS + 72, 4))
                a("s_mov_b32 exec_hi, -1")
                a("v_readfirstlane_b32 s3, v250")
                a.wait_all(vm=False, lg=True)
                a("s_barrier")
                if est: a("s_memrealtime s[88:89]")
        else:
            for i in range(DK - 1): issue_a(i)
            AFr, ACr = (168 if hf == 0 else 72), 240
            AC2 = 248 if est == 2 else 252
            a("v_add_u32 v12, %d, v%d" % (A16, vXe))
            a("v_add_u32 v13, %d, v%d" % (A16, vXo))
            a("v_lshlrev_b32 v244, 6, v%d" % vN)
            a("v_lshl_add_u32 v244, v%d, 4, v244" % vG)
            a("s_lshl_b32 s33, s21, 1")
            a("s_add_u32 s33, s33, s43")
            a("s_mul_i32 s33, s33, %d" % (576 * 64))
            a("s_add_u32 s33, s33, %s" % hx(ZF_OFF))
            def mm(cf, s_blk):
                toks = {}
                def rd(t):
                    af = AFr + 8 * (t % 3)
                    toks[t] = [a.lds("ds_read_b128 %s, v%d offset:%d" % (vr(af + 4 * mb, 4), 12 + (t & 1), (mb * 18 + t) * 1024)) for mb in range(2)]
                rd(0); rd(1)
                for t in range(18):
                    if t + 2 < 18: rd(t + 2)
                    af = AFr + 8 * (t % 3)
                    for mb in range(2):
                        a.wait(lg=toks[t][mb])
                        d = ACr if mb == 0 else AC2
                        a("v_mfma_f32_16x16x32_f16 %s, %s, %s, %s" % (vr(d, 4), vr(af + 4 * mb, 4), vr(cf + 4 * t, 4), "0" if t == 0 else vr(d, 4)))
                for mb in range(2):
                    d = ACr if mb == 0 else AC2
                    for i in range(4):
                        a("v_mul_f32 v%d, %s, v%d" % (d + i, hx(f32bits(2.0 ** -5)), d + i))
                    for h in range(2):
                        a("v_cvt_pk_f16_f32 v%d, v%d, v%d" % (AFr + 2 * mb + h, d + 2 * h, d + 2 * h + 1))
                a("s_lshl_b32 s34, s%d, 10" % s_blk)
                a("s_add_u32 s34, s34, s33")
                a.vmem("buffer_store_dwordx4 %s, v244, s[12:15], s34 offen sc1" % vr(AFr, 4))
            mm(96, 37)
            vm1 = list(a.vm)
            pst(12)
            if hf == 1:
                a("s_cmp_lg_u32 s22, 7")
                a("s_cbranch_scc1 %s_n7" % lab)
                a("s_nop 1")
                mm(168, 62)
                a("%s_n7:" % lab)
                a("s_cmp_lg_u32 s22, 6")
                a("s_cbranch_scc1 %s_nc" % lab)
                a("s_sub_u32 s32, s2, 128")
                a("s_cmp_ge_u32 s32, 20")
                a("s_cbranch_scc1 %s_nc" % lab)
                fft_const(a, 32, vN, vG, vL, 96, 48)
                a("%s_nc:" % lab)
            a("s_cmp_ge_u32 s2, 128")
            a("s_cbranch_scc1 %s_nw" % lab)
            a("s_mul_i32 s33, s2, 18560")
            a("s_add_u32 s33, s33, %s" % hx(WT_OFF))
            a("s_mul_i32 s34, s2, 1280")
            a("s_add_u32 s34, s34, %s" % hx(WMAX_OFF))
            for it in range(2 if hf == 0 else 1):
                if it == 1:
                    a("s_cmp_ge_u32 s22, 2")
                    a("s_cbranch_scc1 %s_nw" % lab)
                a("v_add_u32 v96, %d, v0" % (512 * it))
                a("v_and_b32 v97, 1, v96")
                a("v_lshrrev_b32 v98, 1, v96")
                a("v_min_u32 v98, 288, v98")
                a("v_mul_u32_u24 v99, 578, v97")
                a("v_lshl_add_u32 v99, v98, 1, v99")
                a("v_add_u32 v99, %d, v99" % TS)
                for e in range(8):
                    a("ds_read_u16 v%d, v99 offset:%d" % (112 + e, e * 4096))
                    a("ds_read_u16 v%d, v99 offset:%d" % (120 + e, e * 4096 + 1160))
                a("v_lshlrev_b32 v100, 6, v98")
                a("v_lshl_add_u32 v100, v97, 5, v100")
                a("v_lshlrev_b32 v101, 2, v98")
                a("s_waitcnt lgkmcnt(0)")
                for e in range(8):
                    a("v_lshl_or_b32 v%d, v%d, 16, v%d" % (104 + e, 120 + e, 112 + e))
                a("buffer_store_dwordx4 v[104:107], v100, s[12:15], s33 offen sc1")
                a("buffer_store_dwordx4 v[108:111], v100, s[12:15], s33 offen offset:16 sc1")
            a("%s_nw:" % lab)
            a.vm = vm1; a.lg = []
            pst(13)
            a("v_mov_b32 v12, %d" % (SY + 36))
            a("v_mov_b32 v13, 1")
            a("s_mov_b64 exec, 1")
            a("ds_add_u32 v12, v13")
            a("s_mov_b64 exec, -1")
            pst(14)
            if est: a("s_memrealtime s[88:89]")
        def f2():
            a("s_lshl_b32 s33, s2, 3")
            a("s_add_u32 s33, s33, %s" % hx(FLAG_OFF + 32768))
            a("v_lshlrev_b32 v254, 11, v9")
            a("v_mov_b32 v12, s100")
            a("v_mov_b32 v13, s101")
            a("s_mov_b64 exec, 0xffff")
            a("buffer_store_dwordx2 v[12:13], v254, s[12:15], s33 offen sc1")
            a("s_mov_b64 exec, -1")
            a("s_lshl_b32 s33, s20, 8")
            a("s_lshl_b32 s34, s21, 3")
            a("s_add_u32 s33, s33, s34")
            a("s_add_u32 s33, s33, %s" % hx(FLAG_OFF + 2048))
            store_flag(a, "s33")
        nsync = [0]
        def fsync():
            n = nsync[0]; nsync[0] += 1
            a("s_add_u32 s87, s87, 4")
            a("v_mov_b32 v12, %d" % (SY + 16))
            a("v_mov_b32 v13, 1")
            a("s_mov_b64 exec, 1")
            a("ds_add_u32 v12, v13")
            a("s_mov_b64 exec, -1")
            lds_spin(a, "%s_fs%d" % (lab, n), SY + 16, "s87")
            a.lg = []
        def f2_check():
            a("s_cmp_lg_u32 s22, 4")
            a("s_cbranch_scc1 %s_np2" % lab)
            a("s_and_b32 s85, s2, 15")
            a("s_lshl_b32 s85, s85, 11")
            a("s_add_u32 s85, s85, %s" % hx(FLAG_OFF + 32768))
            a("v_lshlrev_b32 v254, 5, v9")
            poll_flags(a, lab + "_p2", 4, (0xffffffff, 0xffffffff), 254, 244, "s85", 16)
            a("v_mov_b32 v12, %d" % (SY + 12))
            a("v_mov_b32 v13, 1")
            a("ds_write_b32 v12, v13")
            a("%s_np2:" % lab)
            lds_spin(a, lab + "_w2", SY + 12, "1")
            a.lg = []
        def do_fft(flush):
            pst(15)
            ff = FFT(a, 16, 9, 38, FSC, 72, fsync, old=bool(two))
            D1 = ff.end; D2 = 192
            assert D1 + 42 <= 192 + 2, D1
            a("s_mov_b32 s87, 0")
            ff.addr()
            ff.data_loads(2, D1, 78, "c1")
            ff.const_loads()
            pst(17)
            flush()
            if fprio: a("s_setprio 2")
            pst(18)
            ff.twiddles()
            a("s_cmp_lt_u32 s2, 223")
            a("s_cbranch_scc1 %s_f1" % lab)
            vm_s = list(a.vm); tk = dict(ff.tok)
            a("s_add_u32 s82, s2, 33")
            ff.data_loads(82, D2 + 2, 64, "c2")
            ff.compute(D1, 78, "c1")
            fsync()
            ff.compute(D2 + 2, 64, "c2")
            a("s_add_u32 s87, s87, 0")
            a("s_branch %s_f2" % lab)
            a("%s_f1:" % lab)
            a.vm = vm_s; ff.tok = tk
            ff.compute(D1, 78, "c1")
            a("%s_f2:" % lab)
            if fprio: a("s_setprio %d" % (1 if bprio else 0))
            a("s_nop 1")
            a.lg = []
            pst(16)
        def publish2():
            gather_publish(a, lab + "_g2", SY + 4, "7", f2)
        def publish3():
            def f3():
                a("s_lshl_b32 s33, s2, 3")
                a("s_add_u32 s33, s33, %s" % hx(FLAG_OFF + 8192))
                store_flag(a, "s33")
                a("s_cmp_lt_u32 s2, 223")
                a("s_cbranch_scc1 %s_g3" % lab)
                a("s_add_u32 s33, s33, 264")
                store_flag(a, "s33")
            gather_publish(a, lab + "_g3", SY + 20, "3", f3)
        def check5():
            if hf == 0:
                a("s_cmp_lg_u32 s22, 0")
                a("s_cbranch_scc1 %s_n5" % lab)
                a("s_lshl_b32 s33, s20, 8")
                a("s_add_u32 s33, s33, %s" % hx(FLAG_OFF + 2048))
                a("v_lshrrev_b32 v244, 1, v%d" % vL)
                poll_flags(a, lab + "_p5", 1, (0xffffffff, 0), 244, 246, "s33", 8)
                a("v_mov_b32 v12, %d" % (SY + 32))
                a("v_mov_b32 v13, 1")
                a("ds_write_b32 v12, v13")
                a("%s_n5:" % lab)
            lds_spin(a, lab + "_w5", SY + 32, "1")
            a.lg = []
        if two and hf == 1:
            def bar():
                a.wait(vm=nt)
                a("v_readfirstlane_b32 s3, v250")
                a("s_barrier")
                if est: a("s_memrealtime s[88:89]")
            if fpos == 0:
                do_fft(bar)
            else:
                bar()
            for i in range(DK - 1): issue_a(i)
        if est: a("s_memrealtime s[90:91]")

        fill = deque()
        bucket = {"tok": 0.0}
        def cost_of(lines):
            c = 0
            for l in lines:
                op = l.split()[0]
                c += 8 if op in TRANS else (4 if op.startswith(("buffer", "ds_")) else (1 if op.startswith("s_") else 4))
            return c
        def fine(rate):
            bucket["tok"] += rate
            while fill and bucket["tok"] >= 4:
                n0 = len(a.lines)
                tag, f = fill.popleft(); f()
                bucket["tok"] -= cost_of(a.lines[n0:])
            if not fill: bucket["tok"] = 0.0
        def flush_tag(tag):
            while any(t == tag for t, _ in fill):
                fill.popleft()[1]()
        pw = {}

        def gelu_group(tag, regs, outs):
            T = [TMP + k for k in range(4)]
            seq = []
            for k in range(4): seq.append("v_mul_f32 v%d, v%d, v%d" % (T[k], regs[k], regs[k]))
            for k in range(4): seq.append("v_fmaak_f32 v%d, v%d, v%d, %s" % (T[k], T[k], vC1, hx(f32bits(C0))))
            for k in range(4): seq.append("v_mul_f32 v%d, v%d, v%d" % (T[k], regs[k], T[k]))
            for k in range(4): seq.append("v_exp_f32 v%d, v%d" % (T[k], T[k]))
            for k in range(4): seq.append("v_add_f32 v%d, 1.0, v%d" % (T[k], T[k]))
            for k in range(4): seq.append("v_rcp_f32 v%d, v%d" % (T[k], T[k]))
            for k in range(4): seq.append("v_mul_f32 v%d, v%d, v%d" % (T[k], regs[k], T[k]))
            seq.append("v_cvt_pk_bf16_f32 v%d, v%d, v%d" % (outs[0], T[0], T[1]))
            seq.append("v_cvt_pk_bf16_f32 v%d, v%d, v%d" % (outs[1], T[2], T[3]))
            if nogelu: seq = seq[-2:]
            for s_ in seq: fill.append((tag, lambda s_=s_: a(s_)))

        def accset(ph, ps):
            if ph == 1 and AORD and hf == 0: return [ACC[1], ACC[0], ACC[0]][ps]
            if ph == 1: return [ACC[0], ACC[1], ACC[0]][ps]
            if AORD and hf == 0: return [ACC3, ACC[1], ACC[0], ACC3][ps]
            return [ACC3, ACC[1], ACC[0], ACC3][ps] if hf == 0 else [ACC3, ACC[0]][ps]

        def queue_gelu(ps, nb):
            st = accset(1, ps); tag = "g%d" % ps
            pw[ps] = []
            for sb in range(4):
                pk = PK + 4 * (sb & 1)
                for bi in range(nb):
                    b = st + (bi * 4 + sb) * 4
                    gelu_group(tag, [b, b + 1, b + 2, b + 3], [pk + 2 * bi, pk + 2 * bi + 1])
                def wr(sb=sb, pk=pk):
                    if ps == P1O[0] and sb == 0 and not two:
                        lds_spin(a, lab + "_pre", SY + 36, "8")
                        a.lg = []
                    if nb == 2:
                        pw[ps].append(a.lds("ds_write_b128 v%d, %s offset:%d" % (vPw, vr(pk, 4), sb * 18432 + ps * 8192)))
                    else:
                        pw[ps].append(a.lds("ds_write_b64 v%d, %s offset:%d" % (vPw8, vr(pk, 2), sb * 18432)))
                fill.append((tag, wr))
            for _ in range(3): fill.append((tag, lambda: a("s_nop 0")))
            def sig():
                a.wait(lg=pw[ps])
                a("v_mov_b32 v12, %d" % (SY + 40 + 4 * (ps + 3 * hf)))
                a("v_mov_b32 v13, 1")
                a("s_mov_b64 exec, 1")
                a.lds("ds_add_u32 v12, v13")
                a("s_mov_b64 exec, -1")
            fill.append((tag, sig))

        def queue_store(ps, nb):
            st = accset(2, ps); tag = "s%d" % ps
            fl = ["", " sc1", " sc0 sc1", " nt", " sc1 nt"][stf]
            k = 0
            for bi in range(nb):
                for rg in range(2):
                    pk = PK + 4 * (k & 1); k += 1
                    for s2 in range(2):
                        b = st + (bi * 4 + 2 * rg + s2) * 4
                        for h in range(2):
                            fill.append((tag, lambda pk=pk, s2=s2, b=b, h=h: a("v_cvt_pk_bf16_f32 v%d, v%d, v%d" % (pk + 2 * s2 + h, b + 2 * h, b + 2 * h + 1))))
                    def stv(pk=pk, bi=bi, rg=rg):
                        a("s_add_u32 s34, s%d, %d" % (64 + ps, rg * 36864))
                        a.vmem("buffer_store_dwordx4 %s, v%d, s[12:15], s34 offen offset:%d%s" % (vr(pk, 4), vL, bi * 1024, fl))
                    if not nostore: fill.append((tag, stv))

        bias_tok = {}
        def load_bias(ps):
            if ps < 2:
                bias_tok[ps] = [a.lds("ds_read_b128 %s, v%d offset:%d" % (vr(BIAS + 4 * bi, 4), vBias, 1024 * ps + 64 * bi)) for bi in range(2)]
            else:
                bias_tok[ps] = [a.lds("ds_read_b128 %s, v7" % vr(BIAS, 4))]

        seen_g = set()
        def sync(g):
            if g in seen_g: return
            seen_g.add(g)
            own = g - 3 * hf
            if 0 <= own < npass and (g < 3) == (hf == 0): flush_tag("g%d" % own)
            pst(30 + 2 * g)
            lds_spin(a, "%s_pg%d" % (lab, g), SY + 40 + 4 * g, "4")
            pst(31 + 2 * g)
            a.lg = []

        def hook(f):
            lg_save = list(a.lg)
            f()
            a.lg = lg_save

        load_bias(P1O[0])
        for i in range(PB_D):
            for r_ in b_items(i): r_()
        for i in range(N):
            ph, ps, nb, t = steps[i]
            j = i + PB_D
            rds = []
            if MID and FP <= j < FP + PB_D:
                pass
            elif j < N:
                if steps[j][0] == 2: sync(grp_of[steps[j][3]])
                rds = b_items(j)
            st = accset(ph, ps)
            first = first_i[(ph, ps)] == i
            if first and P2 == 3 and ph == 2 and nb == 1:
                while fill: fill.popleft()[1]()
                a("s_cmp_ge_u32 s2, 223")
                a("s_cbranch_scc%d %s_opt" % (0 if hf == 1 else 1, lab))
                a("s_waitcnt vmcnt(4) lgkmcnt(0)")
                a("s_branch %s_e%dstart" % (name, hf))
                a("%s_opt:" % lab)
            if first:
                if ph == 1 and ps == 2 and not AORD: flush_tag("g0")
                if ph == 1 and ps == 1 and AORD and hf == 0: flush_tag("g2")
                if ph == 2:
                    for tg in ({0: [], 1: (["g0"] if AORD else ["g1", "g0"]), 2: ["g2", "g0", "g1"], 3: ["s0"]} if hf == 0 else {0: [], 1: ["g0"]})[ps]: flush_tag(tg)
            br = BR + (i % (PB_D + 1)) * 16
            nm = 4 * nb
            for k in range(nm):
                bi, sb = k // 4, k % 4
                d = st + (bi * 4 + sb) * 4
                need = [b_tok[i][sb]] if bi == 0 else []
                if first:
                    c = "0" if ph == 2 else vr(BIAS + 4 * bi, 4)
                    if ph == 1: need = need + bias_tok[ps]
                else:
                    c = vr(d, 4)
                a.wait(vm=a_tok[i][bi] if sb == 0 else None, lg=need)
                a("%s %s, %s, %s, %s" % (MFMA, vr(d, 4), vr(AR + (i % DK) * 8 + 4 * bi, 4), vr(br + 4 * sb, 4), c))
                if rds and (nb == 1 or k % 2 == 0): rds.pop(0)()
                fine(RATE)
            if i + DK - 1 == NP1 and (hf == 0 or FE) and not two:
                check5()
            if i + DK - 1 < N and not (MID and FP <= i + DK - 1 < FP + DK - 1): issue_a(i + DK - 1)
            if i == DK and not two: hook(publish2)
            if hf == 1 and i == (FP if MID else 0) + P3AT: hook(publish3)
            if hf == 1 and i == FP - (2 if FE else 6) and not two: hook(f2_check)
            if ph == 1 and t == 2 and P1O.index(ps) + 1 < npass and not (FE and MID): load_bias(P1O[P1O.index(ps) + 1])
            if last_i[(ph, ps)] == i:
                lg_s = list(a.lg); pst(20 + 3 * (ph - 1) + ps); a.lg = [] if est == 2 else lg_s
                if ph == 1: queue_gelu(ps, nb)
                else: queue_store(ps, nb)
                if est and i == NP1 - 1: a("s_memrealtime s[92:93]")
                if MID and i == FP - 1:
                    if not FE: flush_tag("g0")
                    do_fft(lambda: flush_tag("g0" if FE else "g1"))
                    if not two and not FE: check5()
                    for i2 in range(FP, FP + DK - 1): issue_a(i2)
                    if FE: load_bias(1)
                    for i2 in range(FP, FP + PB_D):
                        if not FE: sync(grp_of[steps[i2][3]])
                        for r_ in b_items(i2): r_()
                if est and ph == 2 and ps == 0: a("s_memrealtime s[94:95]")
        while fill: fill.popleft()[1]()
        if est == 2:
            a("v_writelane_b32 v253, s100, 0")
            a("s_lshl_b32 s33, s2, 3")
            a("s_add_u32 s33, s33, s22")
            a("s_lshl_b32 s33, s33, 8")
            a("s_add_u32 s33, s33, %s" % hx(STAMP_OFF + 0x700000))
            a("v_lshrrev_b32 v12, 2, v%d" % vL)
            a("buffer_store_dword v253, v12, s[12:15], s33 offen")

        a("%s_e%dstart:" % (name, hf))
        epilogue(a, name, hf, XB, vL, est=est, SLP=SLP, G1=G1, uload=1, mega=(poll_flags, store_flag, lds_spin, SY))

    body(0)
    a("%s_h1:" % name)
    body(1)
    a("%s_end:" % name)
    a("s_endpgm")
    n = a.fix_hazards()
    print("mega: nops inserted", n, "lines", len(a.lines))
    return kernel_header(name) + a.text() + kernel_desc(name, 256, 102), MEGA_LDS
```

```python
from asmgen import *
from layout import *

MAGIC576 = 7456541
INV576 = hx(f32bits(1.0 / 576.0))


def mod576(a, dst, src, tmp, smagic, s576):
    a("v_mul_hi_u32 v%d, v%d, s%d" % (tmp, src, smagic))
    a("v_mul_u32_u24 v%d, s%d, v%d" % (tmp, s576, tmp))
    a("v_sub_u32 v%d, v%d, v%d" % (dst, src, tmp))


def cinv_gen(a, base, s_db, vM, vG, T, S):
    D_, U0, DL, SH, SG, X = T, T + 1, T + 5, T + 6, T + 7, T + 8
    chunks = []
    def setup():
        a("s_lshl_b32 s%d, s%d, 4" % (S + 3, s_db))
        a("v_add_u32 v%d, s%d, v%d" % (D_, S + 3, vM))
        a("v_lshlrev_b32 v%d, 4, v%d" % (X, D_))
        mod576(a, X, X, X + 1, S, S + 1)
        a("v_cvt_f32_u32 v%d, v%d" % (X, X))
        a("v_mul_f32 v%d, s%d, v%d" % (DL, S + 2, X))
        a("v_lshlrev_b32 v%d, 1, v%d" % (X + 2, vG))
        for h in range(4):
            a("v_add_u32 v%d, %d, v%d" % (X, 8 * (h >> 1) + (h & 1), X + 2))
            a("v_mul_u32_u24 v%d, v%d, v%d" % (X, X, D_))
            mod576(a, X, X, X + 1, S, S + 1)
            a("v_cvt_f32_u32 v%d, v%d" % (X, X))
            a("v_mul_f32 v%d, s%d, v%d" % (U0 + h, S + 2, X))
        a("v_and_b32 v%d, 1, v%d" % (SH, D_))
        a("v_lshlrev_b32 v%d, 4, v%d" % (SH, SH))
        a("v_add_u32 v%d, 1, v%d" % (X, D_))
        a("v_bfe_u32 v%d, v%d, 1, 1" % (X, X))
        a("v_lshlrev_b32 v%d, 31, v%d" % (X, X))
        a("v_bfe_u32 v%d, v%d, 1, 1" % (X + 1, D_))
        a("v_lshl_or_b32 v%d, v%d, 15, v%d" % (SG, X + 1, X))
    chunks.append(setup)
    for t in range(9):
        def step(t=t):
            for h in range(4):
                if t:
                    a("v_fmamk_f32 v%d, v%d, %s, v%d" % (X + 8 + h, DL, hx(f32bits(float(t))), U0 + h))
            for h in range(4):
                u = X + 8 + h if t else U0 + h
                a("v_cos_f32 v%d, v%d" % (X + 2 * h, u))
                a("v_sin_f32 v%d, -v%d" % (X + 2 * h + 1, u))
            for h in range(4):
                a("v_cvt_pk_bf16_f32 v%d, v%d, v%d" % (base + 4 * t + h, X + 2 * h, X + 2 * h + 1))
            for h in range(4):
                a("v_alignbit_b32 v%d, v%d, v%d, v%d" % (base + 36 + 4 * t + h, base + 4 * t + h, base + 4 * t + h, SH))
            for h in range(4):
                a("v_xor_b32 v%d, v%d, v%d" % (base + 36 + 4 * t + h, SG, base + 36 + 4 * t + h))
            if t == 0:
                a("v_lshlrev_b32 v%d, 27, v%d" % (X, SH))
                a("v_or_b32 v%d, 0x3f803f80, v%d" % (X, X))
                a("v_cmp_eq_u32 vcc, 0, v%d" % vG)
                a("s_nop 1")
                a("v_cndmask_b32 v%d, v%d, v%d, vcc" % (base, base, X))
        chunks.append(step)
    return chunks


def final_math(a, nh, S_, Y, XV, B2, T, OUT):
    def rnd(r):
        a("v_cvt_pk_bf16_f32 v%d, v%d, v%d" % (T + 2, r, r + 1))
        a("v_lshlrev_b32 v%d, 16, v%d" % (r, T + 2))
        a("v_and_b32 v%d, 0xffff0000, v%d" % (r + 1, T + 2))
    for h in range(nh):
        s_ = S_ + 2 * h; y = Y + 2 * h
        rnd(s_)
        a("v_pk_add_f32 %s, %s, %s" % (vr(s_, 2), vr(s_, 2), vr(B2 + 2 * (h & 1), 2)))
        rnd(s_)
        rnd(y)
        a("v_lshlrev_b32 v%d, 16, v%d" % (T, XV + h))
        a("v_and_b32 v%d, 0xffff0000, v%d" % (T + 1, XV + h))
        a("v_pk_add_f32 %s, %s, %s" % (vr(y, 2), vr(y, 2), vr(T, 2)))
        rnd(y)
        a("v_pk_add_f32 %s, %s, %s" % (vr(y, 2), vr(y, 2), vr(s_, 2)))
        a("v_cvt_pk_bf16_f32 v%d, v%d, v%d" % (OUT + h, y, y + 1))


def epilogue(a, name, hf, UBASE, vLane16, NPART=8, est=0, SLP=4, G1=7, uload=0, early=None, mega=None):
    lab = "%s_e%d" % (name, hf)
    CA, CB = 16, 88
    ACC = 160
    BFR = 176
    T = 200
    M_, G_, VT0, VT1, VX0, VX1, VB = 220, 221, 222, 223, 224, 225, 226
    XV, B2R, XE, B2E = 228, 232, 234, 236
    PT = 16
    if est: a("s_memrealtime s[52:53]")
    a("s_load_dwordx2 s[40:41], s[0:1], 0")
    a("s_load_dwordx4 s[44:47], s[0:1], 56")
    a("s_load_dwordx2 s[42:43], s[0:1], 72")
    a("s_mov_b32 s64, %d" % MAGIC576)
    a("s_movk_i32 s65, 576")
    a("s_mov_b32 s66, %s" % INV576)
    a("v_lshrrev_b32 v%d, 4, v%d" % (T, vLane16))
    a("v_and_b32 v%d, 15, v%d" % (M_, T))
    a("v_lshrrev_b32 v%d, 4, v%d" % (G_, T))
    a("s_lshr_b32 s68, s20, 1")
    a("s_mul_i32 s68, s68, 9")
    a("s_add_u32 s69, s68, 8")
    a("s_add_u32 s68, s68, s22")
    a("s_and_b32 s70, s20, 1")
    a("s_lshl_b32 s71, s21, 1")
    a("s_add_u32 s70, s70, s71")
    a("v_bfe_u32 v%d, v%d, 2, 4" % (VT0, T))
    a("v_lshlrev_b32 v%d, 6, v%d" % (VT0, VT0))
    a("v_and_b32 v%d, 3, v%d" % (T + 1, T))
    a("v_lshl_add_u32 v%d, v%d, 3, v%d" % (VT0, T + 1, VT0))
    a("v_and_b32 v%d, 1, v%d" % (T + 1, G_))
    a("v_lshl_add_u32 v%d, v%d, 5, v%d" % (VT0, T + 1, VT0))
    a("v_add_u32 v%d, %s, v%d" % (VT0, hx(UBASE), VT0))
    a("v_xor_b32 v%d, 32, v%d" % (VT1, VT0))
    a("v_and_b32 v%d, 3, v%d" % (VX0, M_))
    a("v_bfe_u32 v%d, v%d, 2, 1" % (T + 1, M_))
    a("v_lshl_add_u32 v%d, v%d, 4, v%d" % (VX0, T + 1, VX0))
    a("v_bfe_u32 v%d, v%d, 3, 1" % (T + 1, M_))
    a("v_lshl_add_u32 v%d, v%d, 2, v%d" % (VX0, T + 1, VX0))
    a("s_mov_b32 s71, %d" % (32 * 1152))
    a("v_mul_lo_u32 v%d, v%d, s71" % (VX0, VX0))
    a("v_lshl_add_u32 v%d, v%d, 3, v%d" % (VX0, G_, VX0))
    a("v_add_u32 v%d, %d, v%d" % (VX1, 8 * 32 * 1152, VX0))
    a("v_lshlrev_b32 v%d, 3, v%d" % (VB, G_))
    a("s_lshr_b32 s72, s70, 1")
    a("s_and_b32 s73, s70, 1")
    a("s_lshl_b32 s73, s73, 10")
    a("s_add_u32 s72, s72, s73")
    a("s_mul_i32 s72, s72, 1152")
    a("s_lshl_b32 s73, s68, 5")
    a("s_lshl_b32 s75, s69, 5")
    a("s_add_u32 s74, s72, s75")
    a("s_and_b32 s78, s22, 1")
    a("s_mul_i32 s76, s78, %d" % (8 * 32 * 1152))
    a("s_add_u32 s74, s74, s76")
    a("s_add_u32 s72, s72, s73")
    a("s_mul_i32 s76, s70, 36")
    a("s_add_u32 s77, s76, s69")
    a("s_add_u32 s76, s76, s68")
    a("s_lshl_b32 s76, s76, 10")
    a("s_add_u32 s76, s76, %s" % hx(PART_OFF))
    a("s_lshl_b32 s77, s77, 10")
    a("s_lshl_b32 s78, s78, 3")
    a("s_add_u32 s77, s77, s78")
    a("s_add_u32 s77, s77, %s" % hx(PART_OFF))
    UR = 136
    if uload:
        a("v_lshrrev_b32 v240, 6, v%d" % vLane16)
        a("v_bfe_u32 v241, v%d, 8, 1" % vLane16)
        a("v_lshlrev_b32 v241, 5, v241")
        a("v_and_b32 v242, 48, v%d" % vLane16)
        a("v_xor_b32 v241, v241, v242")
        a("v_lshl_add_u32 v240, v240, 12, v241")
        if mega:
            a("s_and_b32 s83, s70, 1")
            a("s_lshl_b32 s83, s83, 11")
            a("s_lshl_b32 s84, s21, 6")
            a("s_add_u32 s83, s83, s84")
        else:
            a("s_lshl_b32 s83, s70, 6")
        a("s_lshl_b32 s84, s22, 16")
        a("s_add_u32 s83, s83, s84")
        a("s_add_u32 s83, s83, %s" % hx(UT_OFF))
        a("s_lshl_b32 s84, s22, 10")
        a("s_add_u32 s84, s84, %s" % hx(UBASE))
        a("v_add_u32 v241, s84, v%d" % vLane16)
        if hf == 0 and mega:
            a("s_cmp_lg_u32 s22, 0")
            a("s_cbranch_scc1 %s_fok" % lab)
            a("s_mov_b32 s85, %s" % hx(FLAG_OFF + 8192))
            a("v_lshlrev_b32 v252, 1, v%d" % vLane16)
            mega[0](a, lab + "_fa", 4, (0xffffffff, 0xffffffff), 252, 244, "s85", 32)
            a("s_add_u32 s85, s85, 2048")
            a("v_lshrrev_b32 v252, 1, v%d" % vLane16)
            mega[0](a, lab + "_fb", 1, (0xffffffff, 1), 252, 244, "s85", 32)
            a("v_mov_b32 v12, %d" % (mega[3] + 60))
            a("v_mov_b32 v13, 1")
            a("ds_write_b32 v12, v13")
            a("%s_fok:" % lab)
        elif hf == 0:
            a("s_cmp_lg_u32 s22, 0")
            a("s_cbranch_scc1 %s_fok" % lab)
            if early is not None:
                a("v_readfirstlane_b32 s80, v%d" % early)
                a("s_nop 3")
                a("s_cmp_ge_u32 s80, 289")
                a("s_cbranch_scc1 %s_fok" % lab)
            a("s_and_b32 s85, s2, 7")
            a("s_lshl_b32 s85, s85, 8")
            a("s_add_u32 s85, s85, %s" % hx(CNT_OFF + 8192))
            a("v_mov_b32 v238, 0")
            a("s_mov_b64 exec, 1")
            a("s_mov_b32 s81, 200000")
            a("%s_fpoll:" % lab)
            a("s_sub_u32 s81, s81, 1")
            a("s_cbranch_scc1 %s_fdone" % lab)
            a("buffer_load_dword v239, v238, s[12:15], s85 offen sc1")
            a("s_waitcnt vmcnt(0)")
            a("v_readfirstlane_b32 s80, v239")
            a("s_nop 3")
            a("s_cmp_ge_u32 s80, 289")
            a("s_cbranch_scc1 %s_fdone" % lab)
            a("s_sleep 8")
            a("s_branch %s_fpoll" % lab)
            a("%s_fdone:" % lab)
            a("s_mov_b64 exec, -1")
            a("%s_fok:" % lab)
    ch = cinv_gen(a, CA, 68, M_, G_, T, 64)
    nu = 5 if hf == 0 else 4
    def uloads():
        for i5 in range(nu):
            a("s_add_u32 s80, s83, %d" % (i5 * 8 * 65536))
            a("buffer_load_dwordx4 %s, v240, s[12:15], s80 offen sc1" % vr(UR + 4 * i5, 4))
    if mega:
        for c in ch[:2]: c()
        mega[2](a, lab + "_uok", mega[3] + 60, "1")
        uloads()
        for c in ch[2:4]: c()
    else:
        for c in ch[:4]: c()
    a.wait_all(vm=True, lg=True)
    if mega:
        for i5 in range(nu):
            a("ds_write_b128 v241, %s offset:%d" % (vr(UR + 4 * i5, 4), 8192 * i5))
    a("s_barrier")
    if est: a("s_memrealtime s[54:55]")
    for (s_, lo, hi, n) in ((4, 40, 41, 2048 * 1152), (8, 46, 47, 2048 * 1152), (16, 44, 45, 1152)):
        a("s_mov_b32 s%d, s%d" % (s_, lo))
        a("s_and_b32 s%d, s%d, 0xffff" % (s_ + 1, hi))
        a("s_mov_b32 s%d, %s" % (s_ + 2, hx(n)))
        a("s_mov_b32 s%d, 0x20000" % (s_ + 3))
    a("s_lshl_b32 s79, s21, 8")
    a("s_add_u32 s79, s79, %s" % hx(FLAG_OFF + 12288 if mega else CNT_OFF))
    a("v_mov_b32 v%d, 0" % 238)
    a("v_mov_b32 v%d, 1" % 239)
    if hf == 0:
        a("s_cmp_lg_u32 s22, 0")
        a("s_cbranch_scc1 %s_noat" % lab)
        if mega:
            a("s_lshl_b32 s80, s20, 3")
            a("s_add_u32 s80, s80, s79")
            mega[1](a, "s80")
        else:
            a("s_mov_b64 exec, 1")
            a("buffer_atomic_add v%d, v%d, s[12:15], s79 offen sc1" % (239, 238))
            a("s_mov_b64 exec, -1")
        a("%s_noat:" % lab)
    if uload and not mega: uloads()
    a("buffer_load_dwordx2 %s, v%d, s[4:7], s72 offen" % (vr(XV, 2), VX0))
    a("buffer_load_dwordx2 %s, v%d, s[4:7], s72 offen" % (vr(XV + 2, 2), VX1))
    a("buffer_load_dwordx2 %s, v%d, s[16:19], s73 offen" % (vr(B2R, 2), VB))
    PT = 88
    for c in ch[4:G1]: c()

    def mm(sbs, acc):
        toks = {}
        def rd(t):
            b = BFR + 8 * (t % 3)
            toks[t] = [a.lds("ds_read_b64_tr_b16 %s, v%d offset:%d" % (vr(b + 4 * k + 2 * i, 2), VT0 + sb, t * 2048 + i * 1024)) for k, sb in enumerate(sbs) for i in range(2)]
        rd(0); rd(1)
        for t in range(18):
            if t + 2 < 18: rd(t + 2)
            b = BFR + 8 * (t % 3)
            for k, sb in enumerate(sbs):
                a.wait(lg=toks[t][2 * k: 2 * k + 2])
                d = acc + 4 * k
                a("v_mfma_f32_16x16x32_bf16 %s, %s, %s, %s" % (vr(d, 4), vr(CA + 4 * t, 4), vr(b + 4 * k, 4), "0" if t == 0 else vr(d, 4)))

    def tail(extra, poll):
        if est: a("s_memrealtime s[56:57]")
        if uload and not mega:
            a("s_waitcnt vmcnt(3)")
            for i5 in range(nu):
                a("ds_write_b128 v241, %s offset:%d" % (vr(UR + 4 * i5, 4), 8192 * i5))
        if poll and mega:
            a("v_lshrrev_b32 v243, 1, v%d" % vLane16)
            mega[0](a, lab + "_pp", 1, (0xff, 0), 243, 238, "s79", SLP)
        elif poll:
            a("s_mov_b64 exec, 1")
            a("s_mov_b32 s81, 200000")
            a("%s_poll:" % lab)
            a("s_sub_u32 s81, s81, 1")
            a("s_cbranch_scc1 %s_pdone" % lab)
            a("buffer_load_dword v239, v238, s[12:15], s79 offen sc1")
            a("s_waitcnt vmcnt(0)")
            a("v_readfirstlane_b32 s80, v239")
            a("s_nop 3")
            a("s_cmp_ge_u32 s80, %d" % NPART)
            a("s_cbranch_scc1 %s_pdone" % lab)
            a("s_sleep %d" % SLP)
            a("s_branch %s_poll" % lab)
            a("%s_pdone:" % lab)
            a("s_mov_b64 exec, -1")
        if uload: a("s_waitcnt lgkmcnt(0)")
        a("s_barrier")
        if est: a("s_memrealtime s[60:61]")
        a.vm = []
        pt = []; pe = []
        for c in range(NPART):
            a("s_add_u32 s80, s76, %s" % hx(c * 64 * 36864))
            pt.append(a.vmem("buffer_load_dwordx4 %s, v%d, s[12:15], s80 offen sc1" % (vr(PT + 4 * c, 4), vLane16)))
        if extra is not None:
            for c in range(NPART):
                a("s_add_u32 s80, s77, %s" % hx(c * 64 * 36864))
                pe.append(a.vmem("buffer_load_dwordx2 %s, v%d, s[12:15], s80 offen sc1" % (vr(PT + 32 + 2 * c, 2), vLane16)))
            a.vmem("buffer_load_dwordx2 %s, v%d, s[4:7], s74 offen" % (vr(XE, 2), VX0))
            xe = a.vmem("buffer_load_dwordx2 %s, v%d, s[16:19], s75 offen" % (vr(B2E, 2), VB))
        for c in ch[G1:]: c()
        mm([0, 1], ACC)
        if extra is not None:
            for c in cinv_gen(a, CA, 69, M_, G_, T, 64): c()
            mm([extra], ACC + 8)
        S_ = 176; TT = 188; B2 = 196
        def psum(c, tok, src, n, dst):
            a.wait(vm=tok)
            for h in range(n):
                d_ = dst + 2 * h if c == 0 else TT + 2 * h
                a("v_lshlrev_b32 v%d, 16, v%d" % (d_, src + h))
                a("v_and_b32 v%d, 0xffff0000, v%d" % (d_ + 1, src + h))
            if c:
                for h in range(n):
                    a("v_pk_add_f32 %s, %s, %s" % (vr(dst + 2 * h, 2), vr(dst + 2 * h, 2), vr(TT + 2 * h, 2)))
        for c in range(NPART):
            psum(c, pt[c], PT + 4 * c, 4, S_)
        for h in range(2):
            a("v_lshlrev_b32 v%d, 16, v%d" % (B2 + 2 * h, B2R + h))
            a("v_and_b32 v%d, 0xffff0000, v%d" % (B2 + 2 * h + 1, B2R + h))
        final_math(a, 4, S_, ACC, XV, B2, TT, T)
        a("buffer_store_dwordx2 %s, v%d, s[8:11], s72 offen" % (vr(T, 2), VX0))
        a("buffer_store_dwordx2 %s, v%d, s[8:11], s72 offen" % (vr(T + 2, 2), VX1))
        if extra is not None:
            a("s_waitcnt vmcnt(2)")
            for c in range(NPART):
                psum(c, None, PT + 32 + 2 * c, 2, S_ + 8)
            for h in range(2):
                a("v_lshlrev_b32 v%d, 16, v%d" % (B2 + 2 * h, B2E + h))
                a("v_and_b32 v%d, 0xffff0000, v%d" % (B2 + 2 * h + 1, B2E + h))
            final_math(a, 2, S_ + 8, ACC + 8, XE, B2, TT, T + 4)
            a("buffer_store_dwordx2 %s, v%d, s[8:11], s74 offen" % (vr(T + 4, 2), VX0))
        if est:
            a("s_memrealtime s[62:63]")
            a("s_waitcnt lgkmcnt(0)")
            for k_, r_ in enumerate((100, 52, 54, 56, 60, 62, 88, 90, 92, 94, 96, 96) if mega else (58, 52, 54, 56, 60, 62, 88, 90, 92, 94)):
                a("v_mov_b32 v%d, s%d" % (100 + k_, r_))
            a("s_lshl_b32 s80, s2, 3")
            a("s_add_u32 s80, s80, s22")
            a("s_lshl_b32 s80, s80, 6")
            a("s_add_u32 s80, s80, %s" % hx(STAMP_OFF + 0x600000))
            a("v_mov_b32 v112, 0")
            if est == 3:
                a("s_load_dwordx2 s[44:45], s[0:1], 72")
                a("s_waitcnt lgkmcnt(0)")
                a("s_mov_b32 s12, s44")
                a("s_and_b32 s13, s45, 0xffff")
                a("s_mov_b32 s14, 256")
                for k_ in range(1, 12):
                    a("v_sub_u32 v%d, v%d, v100" % (100 + k_, 100 + k_))
                a("s_lshl_b32 s80, s2, 3")
                a("s_add_u32 s80, s80, s22")
                a("s_cmp_eq_u32 s80, %d" % (37 * 8))
                a("s_cselect_b32 s80, 0, 0x1000")
            a("s_mov_b64 exec, 1")
            a("buffer_store_dwordx4 v[100:103], v112, s[12:15], s80 offen")
            a("buffer_store_dwordx4 v[104:107], v112, s[12:15], s80 offen offset:16")
            a("buffer_store_dwordx4 v[108:111], v112, s[12:15], s80 offen offset:32")
        a("s_endpgm")

    if hf == 0:
        a("s_cmp_eq_u32 s22, 2")
        a("s_cbranch_scc1 %s_w2" % lab)
        a("s_cmp_eq_u32 s22, 3")
        a("s_cbranch_scc1 %s_w3" % lab)
        a("s_cmp_eq_u32 s22, 1")
        a("s_cbranch_scc1 %s_plain" % lab)
        tail(None, True)
        a("%s_w2:" % lab)
        tail(0, False)
        a("%s_w3:" % lab)
        tail(1, False)
        a("%s_plain:" % lab)
    tail(None, False)
```

```python
from asmgen import *
from layout import *
from collections import deque
from gen_epi import epilogue, MAGIC576, INV576
from gen_fft2 import FFT
from gen_pro import *

C0 = -2.0 * 1.4426950408889634 * 0.7978845608028654
C1 = C0 * 0.044715
MFMA = "v_mfma_f32_16x16x32_bf16"
XB = 0
PB = 73728
A16 = PB
TS = PB + 36864
BIASB = 147456
SY = BIASB + 2304
FSC = BIASB + 2560
MEGA_LDS = 163840
SPIN = 100000
TBS = 98


def srd(a, s, lo, hi, nbytes):
    a("s_mov_b32 s%d, s%d" % (s, lo))
    a("s_and_b32 s%d, s%d, 0xffff" % (s + 1, hi))
    a("s_mov_b32 s%d, %s" % (s + 2, hx(nbytes)))
    a("s_mov_b32 s%d, 0x20000" % (s + 3))


WIN = 1500


def poll_flags(a, lab, nf, execmask, va, vd, soff, slp, pre=None):
    a("s_mov_b32 exec_lo, %s" % hx(execmask[0]))
    a("s_mov_b32 exec_hi, %s" % hx(execmask[1]))
    a("s_mov_b32 s35, %d" % SPIN)
    a("%s_l:" % lab)
    a("s_sub_u32 s35, s35, 1")
    a("s_cbranch_scc1 %s_ok" % lab)
    if nf == 1:
        a("buffer_load_dwordx2 %s, v%d, s[12:15], %s offen sc1" % (vr(vd, 2), va, soff))
    else:
        for k in range(nf // 2):
            a("buffer_load_dwordx4 %s, v%d, s[12:15], %s offen offset:%d sc1" % (vr(vd + 4 * k, 4), va, soff, 16 * k))
    a("v_mov_b32 v13, s%d" % (TBS + 1))
    a("s_waitcnt vmcnt(0)")
    for i in range(nf):
        a("v_subrev_co_u32 v%d, vcc, s%d, v%d" % (vd + 2 * i, TBS, vd + 2 * i))
        a("v_subb_co_u32 v%d, vcc, v%d, v13, vcc" % (vd + 2 * i + 1, vd + 2 * i + 1))
        a("v_lshrrev_b32 v%d, 12, v%d" % (vd + 2 * i, vd + 2 * i))
        a("v_or_b32 v%d, v%d, v%d" % (vd + 2 * i, vd + 2 * i, vd + 2 * i + 1))
        if i: a("v_or_b32 v%d, v%d, v%d" % (vd, vd, vd + 2 * i))
    a("v_cmp_ne_u32 vcc, 0, v%d" % vd)
    a("s_nop 1")
    a("s_cmp_eq_u64 vcc, 0")
    a("s_cbranch_scc1 %s_ok" % lab)
    a("s_sleep %d" % slp)
    a("s_branch %s_l" % lab)
    a("%s_ok:" % lab)
    a("s_mov_b64 exec, -1")


def lds_spin(a, lab, addr, target):
    a("v_mov_b32 v12, %d" % addr)
    a("%s:" % lab)
    a("ds_read_b32 v13, v12")
    a("s_waitcnt lgkmcnt(0)")
    a("v_readfirstlane_b32 s35, v13")
    a("s_nop 3")
    a("s_cmp_ge_u32 s35, %s" % target)
    a("s_cbranch_scc1 %s_d" % lab)
    a("s_sleep 1")
    a("s_branch %s" % lab)
    a("%s_d:" % lab)


def gather_publish(a, lab, cnt_addr, last, soff_expr, need_nonce=False):
    a("v_mov_b32 v12, %d" % cnt_addr)
    a("v_mov_b32 v13, 1")
    a("s_mov_b64 exec, 1")
    a("ds_add_rtn_u32 v13, v12, v13")
    a("s_waitcnt lgkmcnt(0)")
    a("v_readfirstlane_b32 s35, v13")
    a("s_mov_b64 exec, -1")
    a("s_nop 1")
    a("s_cmp_lg_u32 s35, %s" % last)
    a("s_cbranch_scc1 %s" % lab)
    soff_expr()
    a("%s:" % lab)


def code_touch(a, lab_from, lab_to, nlines_max, uniq):
    a("s_getpc_b64 s[92:93]")
    a("%s:" % uniq)
    a("s_add_u32 s92, s92, %s-%s" % (lab_from, uniq))
    a("s_addc_u32 s93, s93, 0")
    for r in range((nlines_max + 63) // 64):
        a("v_lshlrev_b32 v12, 7, v9")
        if r: a("v_add_u32 v12, %d, v12" % (8192 * r))
        a("v_min_u32 v12, %s-%s, v12" % (lab_to, lab_from))
        a("global_load_dword v13, v12, s[92:93]")


def store_flag(a, soff):
    a("v_mov_b32 v12, s100")
    a("v_mov_b32 v13, s101")
    a("s_mov_b64 exec, 1")
    a("buffer_store_dwordx2 v[12:13], v1, s[12:15], %s offen sc1" % soff)
    a("s_mov_b64 exec, -1")


def gen_mega(name, DK=8, PB_D=1, cmap=2, RATE=8.5, est=0, SLP=4, G1=9, fprio=1, stf=1, nogelu=0, nostore=0, prio=0, xc=0, b0e=1, aplain=0, DKA=10, bprio=1, ctouch=0, nofft=0, P3AT=1, two=0, fpos=0, P2=3, AORD=1, KSP=1, FE=0, LNF=0, CH=0):
    stamps = 0; epi = 1
    a = Asm()
    def pst(k):
        if est == 2:
            a("s_memrealtime vcc")
            a("s_waitcnt lgkmcnt(0)")
            a("v_writelane_b32 v253, vcc_lo, %d" % k)
            if 20 <= k < 30:
                a("s_memtime vcc")
                a("s_waitcnt lgkmcnt(0)")
                a("v_writelane_b32 v253, vcc_lo, %d" % (k + 30))
    AR = 16
    BR = AR + DK * 8
    ACC = [BR + (PB_D + 1) * 16, BR + (PB_D + 1) * 16 + 32]
    BIAS = ACC[1] + 32
    TMP = BIAS + 8
    PK = TMP + 4
    NV = PK + 8
    vL, vLP, vBias, vPw, vC1, vPw8 = 1, 2, 3, 4, 5, 6
    vXe, vXo, vXeH, vXoH, vLPH = 10, 11, 14, 15, 8
    LA = " sc1"
    a("s_cmp_ge_u32 s2, 256")
    a("s_cbranch_scc1 %s_end" % name)
    a("s_load_dwordx16 s[48:63], s[0:1], 0")
    a("s_load_dwordx2 s[46:47], s[0:1], 80")
    a("s_memrealtime s[100:101]")
    a("v_lshrrev_b32 v8, 6, v0")
    a("v_and_b32 v9, 63, v0")
    a("v_readfirstlane_b32 s22, v8")
    if ctouch:
        a("s_nop 3")
        a("s_cmp_lg_u32 s22, 6")
        a("s_cbranch_scc1 %s_nct" % name)
        code_touch(a, name + "_nct", name + "_end", 720, name + "_ct")
        a("%s_nct:" % name)
    if cmap == 0:
        a("s_and_b32 s20, s2, 7")
        a("s_lshr_b32 s21, s2, 3")
    elif cmap == 2:
        a("s_and_b32 s20, s2, 1")
        a("s_lshl_b32 s20, s20, 2")
        a("s_bfe_u32 s33, s2, 0x20003")
        a("s_add_u32 s20, s20, s33")
        a("s_bfe_u32 s21, s2, 0x20001")
        a("s_lshl_b32 s21, s21, 3")
        a("s_lshr_b32 s33, s2, 5")
        a("s_add_u32 s21, s21, s33")
    else:
        a("s_and_b32 s20, s2, 3")
        a("s_lshl_b32 s20, s20, 1")
        a("s_bfe_u32 s33, s2, 0x10003")
        a("s_add_u32 s20, s20, s33")
        a("s_bfe_u32 s21, s2, 0x10002")
        a("s_lshl_b32 s21, s21, 4")
        a("s_lshr_b32 s33, s2, 4")
        a("s_add_u32 s21, s21, s33")
    a("s_and_b32 s38, s22, 3")
    a("s_lshr_b32 s39, s22, 2")
    a("s_add_u32 s23, s22, s21")
    a("s_and_b32 s23, s23, 7")
    a("s_mul_i32 s24, s20, %d" % (36 * 18432))
    a("s_mul_i32 s25, s22, 36864")
    a("s_add_u32 s25, s25, s24")
    a("s_add_u32 s26, s25, %d" % (16 * 18432))
    a("s_mul_i32 s27, s38, 18432")
    a("s_add_u32 s27, s27, s24")
    a("s_add_u32 s27, s27, %d" % (32 * 18432))
    a("s_lshl_b32 s37, s20, 6")
    a("s_lshl_b32 s33, s21, 1")
    a("s_add_u32 s37, s37, s33")
    a("s_mul_i32 s37, s37, 36864")
    a("s_add_u32 s37, s37, %s" % hx(PART_OFF))
    a("s_mov_b32 s28, s24")
    a("s_mov_b32 s40, s37")
    a("s_mov_b32 s41, s24")
    a("s_lshl_b32 s42, s21, 1")
    a("s_mul_i32 s33, s42, 3641")
    a("s_lshr_b32 s33, s33, 16")
    a("s_mul_i32 s33, s33, 18")
    a("s_sub_u32 s42, s42, s33")
    a("v_lshlrev_b32 v%d, 4, v9" % vL)
    a("v_add_u32 v%d, %d, v%d" % (vLP, PB, vL))
    a("v_lshrrev_b32 v16, 4, v9")
    a("s_lshl_b32 s33, s22, 7")
    a("s_add_u32 s33, s33, %d" % BIASB)
    a("v_lshl_add_u32 v%d, v16, 4, s33" % vBias)
    a("s_lshl_b32 s33, s38, 6")
    a("s_add_u32 s33, s33, %d" % (BIASB + 2048))
    a("v_lshl_add_u32 v7, v16, 4, s33")
    a("s_lshl_b32 s33, s22, 10")
    a("v_add_u32 v%d, s33, v%d" % (vPw, vLP))
    a("s_lshr_b32 s33, s38, 1")
    a("s_lshl_b32 s33, s33, 10")
    a("s_and_b32 s34, s38, 1")
    a("s_lshl_b32 s34, s34, 3")
    a("s_add_u32 s33, s33, s34")
    a("s_add_u32 s33, s33, 16384")
    a("v_add_u32 v%d, s33, v%d" % (vPw8, vLP))
    a("v_mov_b32 v%d, %s" % (vC1, hx(f32bits(C1))))
    if two:
        a("v_add_u32 v%d, 0x10000, v%d" % (vLPH, vLP))
        a("v_mov_b32 v%d, v%d" % (vXe, vL)); a("v_mov_b32 v%d, v%d" % (vXo, vL))
        a("v_add_u32 v%d, 0x10000, v%d" % (vXeH, vL)); a("v_add_u32 v%d, 0x10000, v%d" % (vXoH, vL))
        a("s_lshl_b32 s36, s21, 2")
        a("s_add_u32 s36, s36, s38")
        a("s_mul_i32 s36, s36, 18432")
        a("s_add_u32 s36, s36, %s" % hx(XNF_OFF))
        a("s_mul_i32 s29, s38, 18432")
        a("s_mul_i32 s56, s20, 2304")
        a("s_waitcnt lgkmcnt(0)")
        a("s_sub_u32 s98, s100, 2048")
        a("s_subb_u32 s99, s101, 0")
        a("s_mul_i32 s56, s20, 2304")
        a("s_add_u32 s56, s56, %s" % hx(B1F_OFF))
        srd(a, 12, 46, 47, WS_BYTES)
        a("s_cmp_lg_u32 s39, 0")
        a("s_cbranch_scc1 %s_h1" % name)
    else:
        vN, vG = 248, 249
        a("v_and_b32 v%d, 15, v9" % vN)
        a("v_lshrrev_b32 v%d, 4, v9" % vG)
        a("v_xor_b32 v16, v%d, v%d" % (vG, vN))
        a("v_lshl_add_u32 v17, v%d, 4, v16" % vG)
        a("v_lshlrev_b32 v%d, 4, v17" % vXe)
        a("v_xor_b32 v%d, 64, v%d" % (vXo, vXe))
        a("v_add_u32 v%d, 0x10000, v%d" % (vXeH, vXe))
        a("v_add_u32 v%d, 0x10000, v%d" % (vXoH, vXo))
        a("v_add_u32 v%d, 0x10000, v%d" % (vLPH, vLP))
        vX, vXB0, vA0 = 250, 251, 252
        a("s_mov_b32 s33, %d" % (1152 if xc else 32 * 1152))
        a("v_mul_lo_u32 v%d, v%d, s33" % (vX, vG))
        a("v_lshl_add_u32 v%d, v%d, 3, v%d" % (vX, vN, vX))
        a("s_lshl_b32 s28, s22, 3")
        a("s_lshl_b32 s28, s28, 5")
        a("s_add_u32 s28, s28, s21")
        a("s_mul_i32 s28, s28, 1152")
        a("s_add_u32 s29, s28, %d" % (4 * 32 * 1152))
        if xc:
            a("s_lshl_b32 s28, s21, 3")
            a("s_add_u32 s28, s28, s22")
            a("s_mul_i32 s28, s28, %d" % (8 * 1152))
            a("s_add_u32 s29, s28, %d" % (4 * 1152))
        a("v_and_b32 v16, 3, v%d" % vN)
        a("v_lshrrev_b32 v17, 3, v%d" % vN)
        a("v_lshl_add_u32 v18, v17, 2, v16")
        a("v_lshlrev_b32 v19, 4, v16")
        a("v_lshl_add_u32 v19, v17, 6, v19")
        a("v_bfe_u32 v20, v%d, 2, 1" % vN)
        a("v_lshlrev_b32 v20, 3, v20")
        a("v_lshl_add_u32 v19, v19, 4, v20")
        a("s_lshr_b32 s33, s38, 1")
        a("s_lshl_b32 s33, s33, 2")
        a("v_add_u32 v21, s33, v%d" % vG)
        a("v_xor_b32 v21, v21, v18")
        a("v_lshl_add_u32 v21, v21, 4, v19")
        a("s_lshl_b32 s33, s39, 1")
        a("s_and_b32 s34, s38, 1")
        a("s_add_u32 s33, s33, s34")
        a("s_mul_i32 s33, s33, 18432")
        a("v_add_u32 v%d, s33, v21" % vXB0)
        a("s_lshl_b32 s34, s34, 3")
        a("v_add_u32 v21, s34, v%d" % vG)
        a("v_xor_b32 v21, v21, v18")
        a("v_lshl_add_u32 v21, v21, 4, v19")
        a("s_lshr_b32 s33, s38, 1")
        a("s_mul_i32 s33, s33, 18432")
        a("s_add_u32 s33, s33, %d" % A16)
        a("v_add_u32 v%d, s33, v21" % vA0)
        a("s_and_b32 s43, s20, 1")
        a("s_cmp_eq_u32 s43, s39")
        a("s_cselect_b32 s45, 1, 0")
        a("s_lshl_b32 s36, s22, 12")
        a("s_add_u32 s36, s36, %d" % TS)
        a("s_lshl_b32 s32, s22, 5")
        a("s_add_u32 s32, s32, s21")
        a("s_mov_b32 s88, %d" % MAGIC576)
        a("s_movk_i32 s89, 576")
        a("s_mov_b32 s90, %s" % INV576)
        a("s_waitcnt lgkmcnt(0)")
        a("s_sub_u32 s98, s100, 2048")
        a("s_subb_u32 s99, s101, 0")
        pst(40)
        srd(a, 12, 46, 47, WS_BYTES)
        srd(a, 4, 48, 49, 2048 * 1152)
        srd(a, 64, 56, 57, 576 * 9216)
        srd(a, 68, 60, 61, 4608 * 1152)
        srd(a, 72, 50, 51, 2048 * 578)
        srd(a, 76, 52, 53, 2048 * 578)
        srd(a, 16, 58, 59, 9216)
        XR0, XR1, T1, T2, WL, B1R, CF0, CF1 = 16, 34, 52, 68, 84, 94, 96, 168
        a("s_cmp_lg_u32 s22, 0")
        a("s_cbranch_scc1 %s_n0" % name)
        a("s_or_b32 s86, s86, 1")
        a("v_mov_b32 v246, s86")
        a("v_mov_b32 v247, 0")
        a("v_lshrrev_b32 v12, 2, v%d" % vL)
        a("v_add_u32 v12, %d, v12" % SY)
        a("s_mov_b64 exec, 0xffff")
        a("ds_write_b32 v12, v247")
        a("s_mov_b64 exec, -1")
        a("s_waitcnt lgkmcnt(0)")
        a("%s_n0:" % name)
        if b0e: a("s_barrier")
        pst(41)
        a("s_cmp_lg_u32 s39, 0")
        a("s_cbranch_scc1 %s_nt1" % name)
        tile_issue(a, 32, 20, 9, 244, T1, 64, 68, 92)
        a("s_add_u32 s32, s32, 128")
        a("s_cmp_ge_u32 s32, 162")
        a("s_cbranch_scc1 %s_nt1" % name)
        tile_issue(a, 32, 20, 9, 244, T2, 64, 68, 48)
        a("%s_nt1:" % name)
        a.vm = []
        pst(42)
        xt = []
        for b_, XR in enumerate((XR0, XR1)):
            for j in range(9):
                xt.append(a.vmem("buffer_load_dwordx2 %s, v%d, s[4:7], s%d offen offset:%d" % (vr(XR + 2 * j, 2), vX, 28 + b_, j * 128)))
        a("v_min_u32 v12, 287, v0")
        a("v_lshlrev_b32 v12, 2, v12")
        a("s_mul_i32 s33, s20, 1152")
        bt = a.vmem("buffer_load_dword v%d, v12, s[16:19], s33 offen" % B1R)
        pst(1)
        if not b0e: a("s_barrier")
        pst(2)
        XF, A0_, TT = 168, 204, 214
        a("s_cmp_lg_u32 s39, 0")
        a("s_cbranch_scc1 %s_nt1b" % name)
        a("s_waitcnt vmcnt(19)")
        tile_finish(a, 9, T1, 244, 36, 96, vL)
        a("s_cmp_ge_u32 s32, 162")
        a("s_cbranch_scc1 %s_nt1b" % name)
        tile_finish(a, 9, T2, 244, 36, 52, vL)
        a("%s_nt1b:" % name)
        a.vm = []; a.lg = []
        pst(3)
        a("s_lshr_b32 s37, s20, 1")
        a("s_mul_i32 s37, s37, 9")
        a("s_add_u32 s62, s37, 8")
        a("s_add_u32 s37, s37, s22")
        cf_gen(a, CF0, 37, vN, vG, 168, 180, 88)
        pst(4)
        a("s_cmp_lg_u32 s39, 0")
        a("s_cbranch_scc1 %s_w1" % name)
        a("s_cmp_ge_u32 s32, 162")
        a("s_cbranch_scc1 %s_w3" % name)
        a("s_waitcnt vmcnt(8)")
        a("s_branch %s_w2" % name)
        a("%s_w3:" % name)
        a("s_waitcnt vmcnt(4)")
        a("s_branch %s_w2" % name)
        a("%s_w1:" % name)
        a("s_waitcnt vmcnt(0)")
        a("%s_w2:" % name)
        pst(5)
        ln_batch(a, XR0, XF, A0_, TT, vXB0, vA0, 90, 45, name + "_l0", LNF)
        a.lg = []
        pst(6)
        a("s_waitcnt vmcnt(0)")
        pst(7)
        def f1():
            a("s_lshl_b32 s33, s20, 8")
            a("s_lshl_b32 s34, s21, 3")
            a("s_add_u32 s33, s33, s34")
            a("s_add_u32 s33, s33, %s" % hx(FLAG_OFF))
            store_flag(a, "s33")
        a("s_cmp_lg_u32 s39, 0")
        a("s_cbranch_scc1 %s_g1" % name)
        gather_publish(a, name + "_g1", SY, "3", f1, True)
        a("s_cmp_ge_u32 s2, 128")
        a("s_cbranch_scc1 %s_nw" % name)
        a("s_lshr_b32 s33, s2, 5")
        a("s_lshl_b32 s33, s33, 2")
        a("s_add_u32 s33, s33, s38")
        a("s_lshl_b32 s34, s39, 4")
        a("s_add_u32 s33, s33, s34")
        a("s_lshl_b32 s33, s33, 6")
        a("s_and_b32 s34, s2, 31")
        a("s_lshl_b32 s34, s34, 1")
        a("s_add_u32 s33, s33, s34")
        a("s_mul_i32 s33, s33, 578")
        a("v_lshlrev_b32 v12, 2, v9")
        for arr in range(2):
            for it in range(5):
                if it == 4: a("s_mov_b32 exec_hi, 1")
                a("buffer_load_dword v%d, v12, s[%d:%d], s33 offen offset:%d" % (WL + arr * 5 + it, 72 + 4 * arr, 75 + 4 * arr, 256 * it))
                if it == 4: a("s_mov_b32 exec_hi, -1")
        a("%s_nw:" % name)
        T3 = 224
        a("s_cmp_eq_u32 s39, 0")
        a("s_cbranch_scc1 %s_nt2" % name)
        a("s_lshl_b32 s63, s38, 5")
        a("s_add_u32 s63, s63, s21")
        a("s_add_u32 s63, s63, 162")
        tile_issue(a, 63, 20, 9, 240, T2, 64, 68, 48)
        a("s_add_u32 s63, s63, 128")
        a("s_cmp_ge_u32 s63, 324")
        a("s_cbranch_scc1 %s_nt2" % name)
        tile_issue(a, 63, 20, 9, 240, T3, 64, 68, 53)
        a("%s_nt2:" % name)
        a.vm = []; a.lg = []
        pst(8)
        a("v_min_u32 v12, 287, v0")
        a("v_lshlrev_b32 v12, 3, v12")
        a("v_add_u32 v12, %d, v12" % BIASB)
        a("v_lshlrev_b32 v52, 16, v%d" % B1R)
        a("v_and_b32 v53, 0xffff0000, v%d" % B1R)
        a("ds_write_b64 v12, v[52:53]")
        a("v_xor_b32 v%d, 128, v%d" % (vXB0, vXB0))
        a("v_xor_b32 v%d, 64, v%d" % (vA0, vA0))
        ln_batch(a, XR1, XF, A0_, TT, vXB0, vA0, 90, 45, name + "_l1", LNF)
        a.lg = []
        a("s_waitcnt vmcnt(0)")
        a("s_cmp_eq_u32 s39, 0")
        a("s_cbranch_scc1 %s_nt2b" % name)
        a("s_waitcnt vmcnt(0)")
        tile_finish(a, 9, T2, 240, 36, 52, vL)
        a("s_cmp_ge_u32 s63, 324")
        a("s_cbranch_scc1 %s_nt2b" % name)
        tile_finish(a, 9, T3, 240, 36, 57, vL)
        a("%s_nt2b:" % name)
        a("s_cmp_ge_u32 s2, 128")
        a("s_cbranch_scc1 %s_nwb" % name)
        a("v_lshlrev_b32 v12, 2, v9")
        a("v_add_u32 v12, s36, v12")
        for arr in range(2):
            for it in range(5):
                if it == 4: a("s_mov_b32 exec_hi, 1")
                a("ds_write_b32 v12, v%d offset:%d" % (WL + arr * 5 + it, arr * 1160 + 256 * it))
                if it == 4: a("s_mov_b32 exec_hi, -1")
        a("%s_nwb:" % name)
        a.vm = []; a.lg = []
        pst(9)
        a("s_cmp_lg_u32 s22, 7")
        a("s_cbranch_scc1 %s_n7" % name)
        cf_gen(a, CF1, 62, vN, vG, 16, 28, 88)
        a("%s_n7:" % name)
        a("s_cmp_lg_u32 s22, 0")
        a("s_cbranch_scc1 %s_n2" % name)
        a("s_lshl_b32 s33, s20, 8")
        a("s_add_u32 s33, s33, %s" % hx(FLAG_OFF))
        a("v_lshlrev_b32 v16, 3, v9")
        poll_flags(a, name + "_p1", 1, (0xffffffff, 0), 16, 18, "s33", 3)
        a("%s_n2:" % name)
        a("s_waitcnt lgkmcnt(0)")
        pst(10)
        a("s_barrier")
        pst(11)
        if est: a("s_memrealtime s[96:97]")
        a("s_cmp_lg_u32 s39, 0")
        a("s_cbranch_scc1 %s_h1" % name)

    def body(hf):
        a.vm = []; a.lg = []
        if hf == 0:
            DK = DKA
            AR = 16; BR = AR + DK * 8
            ACC = [BR + 32, BR + 64]; ACC3 = BR + 96
            BIAS = ACC3 + 32; TMP = BIAS + 8; PK = TMP + 4
            assert PK + 8 <= 244, PK
        else:
            DK = 8
            AR = 16; BR = 80; ACC3 = 112
            ACC = [212, 144] if FE else [144, 212]; BIAS = 192; TMP = 200; PK = 204
        if prio and hf == prio - 1: a("s_setprio 1")
        npass = 3 if hf == 0 else 2
        G = [[0, 1, 2, 3], [8, 9, 10, 11], [16, 17], [4, 5, 6, 7], [12, 13, 14, 15]]
        grp_of = {t: g for g, ts in enumerate(G) for t in ts}
        steps = []
        P1O = ([2, 0, 1] if AORD else [0, 1, 2]) if hf == 0 else [0, 1]
        for ps in P1O:
            for t in range(18):
                steps.append((1, ps, 2 if ps < 2 else 1, t))
        NP1 = 18 * npass
        O = G[2] + G[0] + G[3] + G[1] + G[4] if FE else G[2] + G[0] + G[3] + G[4] + G[1] if AORD else G[0] + G[3] + G[1] + G[2] + G[4]
        W2 = {0: ([2, 2, 1], [2, 2]), 1: ([2, 2, 2], [2, 1]), 2: ([2, 2, 2, 1], [2]), 3: ([2, 2, 2, 1], [2, 1])}[P2][hf]
        nA = sum(1 for w_ in {0: ([2, 2, 1], [2, 2]), 1: ([2, 2, 2], [2, 1]), 2: ([2, 2, 2, 1], [2]), 3: ([2, 2, 2, 1], [2, 1])}[P2][0] if w_ == 2)
        def p2_base(ps):
            if W2[ps] == 2:
                a("s_add_u32 s33, s38, %d" % (4 * (ps + (nA if hf else 0))))
                a("s_mov_b32 s34, 0")
            else:
                a("s_lshr_b32 s33, s38, 1")
                a("s_add_u32 s33, s33, 16")
                a("s_and_b32 s34, s38, 1")
            a("s_add_u32 s33, s33, s42")
            a("s_sub_u32 s35, s33, 18")
            a("s_cselect_b32 s33, s33, s35")
            a("s_lshl_b32 s33, s33, 1")
            a("s_add_u32 s33, s33, s34")
            a("s_mul_i32 s23, s33, 18432")
            a("s_add_u32 s23, s23, s41")
            a("s_lshl_b32 s33, s33, 10")
            a("s_add_u32 s%d, s33, s40" % (64 + ps))
        seq = [(ps_, O) for ps_ in range(len(W2))]
        if KSP and hf == 0:
            seq = [(0, O[:10]), (1, O[:10]), (0, O[10:]), (1, O[10:])] + seq[2:]
        for ps, ts in seq:
            for t in ts:
                steps.append((2, ps, W2[ps], t))
        N = len(steps)
        FP = 18 if FE else NP1
        MID = hf == 1 and (not two or fpos == 1)
        first_i = {}; last_i = {}
        for i_, st_ in enumerate(steps):
            first_i.setdefault(st_[:2], i_); last_i[st_[:2]] = i_
        a_tok = {}; b_tok = {}
        sbase = {"key": None, "t0": None}

        def issue_a(i):
            ph, ps, nb, t = steps[i]
            base = (W1T_OFF if ph == 1 else W2T_OFF)
            sb_ = [25, 26, 27][ps] if ph == 1 else 23
            if ph == 2 and sbase["key"] != (ph, ps): p2_base(ps)
            new = sbase["key"] != (ph, ps) or not (sbase["t0"] <= t < sbase["t0"] + 4)
            if new:
                sbase["key"] = (ph, ps); sbase["t0"] = t
            toks = []
            for bi in range(nb):
                sreg = 30 + bi
                if new:
                    a("s_add_u32 s%d, s%d, %s" % (sreg, sb_, hx(base + bi * 18432 + t * 1024)))
                toks.append(a.vmem("buffer_load_dwordx4 %s, v%d, s[12:15], s%d offen offset:%d%s" % (vr(AR + (i % DK) * 8 + 4 * bi, 4), vL, sreg, (t - sbase["t0"]) * 1024, "" if (aplain or two) else LA)))
            a_tok[i] = toks

        def b_items(i):
            ph, ps, nb, t = steps[i]
            b_tok[i] = []
            out = []
            for sb in range(4):
                def rd(sb=sb):
                    off = (sb * 18 + t) * 1024
                    hi_ = off >= 65536
                    if hi_: off -= 65536
                    if ph == 1: v = [[vXe, vXo], [vXeH, vXoH]][hi_][t & 1]
                    else: v = vLPH if hi_ else vLP
                    b_tok[i].append(a.lds("ds_read_b128 %s, v%d offset:%d" % (vr(BR + (i % 2) * 16 + 4 * sb, 4), v, off)))
                out.append(rd)
            return out

        lab = "%s_r%d" % (name, hf)
        if two:
            a("v_mov_b32 v12, 0")
            a("s_mov_b32 s33, %s" % hx(CNT_OFF))
            nt = a.vmem("buffer_load_dword v250, v12, s[12:15], s33 offen")
            if hf == 0:
                XS = 96
                xt = []
                for k in range(18):
                    if k % 4 == 0: a("s_add_u32 s33, s36, %d" % (1024 * k))
                    xt.append(a.vmem("buffer_load_dwordx4 %s, v%d, s[12:15], s33 offen offset:%d" % (vr(XS + 4 * k, 4), vL, 1024 * (k % 4))))
                a("s_mul_i32 s33, s38, 576")
                a("s_add_u32 s34, s33, s56")
                xt.append(a.vmem("buffer_load_dwordx4 %s, v%d, s[12:15], s34 offen" % (vr(XS + 72, 4), vL)))
                for i in range(DK - 1): issue_a(i)
                a("v_lshrrev_b32 v12, 2, v%d" % vL)
                a("v_add_u32 v12, %d, v12" % SY)
                a("v_mov_b32 v13, 0")
                a("s_mov_b64 exec, 0xffff")
                a("ds_write_b32 v12, v13")
                a("s_mov_b64 exec, -1")
                a("v_add_u32 v12, s29, v%d" % vL)
                ws_ = []
                for k in range(18):
                    a.wait(vm=xt[k])
                    ws_.append(a.lds("ds_write_b128 v12, %s offset:%d" % (vr(XS + 4 * k, 4), 1024 * k)))
                a("s_add_u32 s33, s33, %d" % BIASB)
                a("v_add_u32 v12, s33, v%d" % vL)
                a.wait(vm=xt[18])
                a("s_mov_b32 exec_hi, 15")
                a("ds_write_b128 v12, %s" % vr(XS + 72, 4))
                a("s_mov_b32 exec_hi, -1")
                a("v_readfirstlane_b32 s3, v250")
                a.wait_all(vm=False, lg=True)
                a("s_barrier")
                if est: a("s_memrealtime s[88:89]")
        else:
            for i in range(DK - 1): issue_a(i)
            AFr, ACr = (168 if hf == 0 else 72), 240
            AC2 = 248 if est == 2 else 252
            a("v_add_u32 v12, %d, v%d" % (A16, vXe))
            a("v_add_u32 v13, %d, v%d" % (A16, vXo))
            a("v_lshlrev_b32 v244, 6, v%d" % vN)
            a("v_lshl_add_u32 v244, v%d, 4, v244" % vG)
            a("s_lshl_b32 s33, s21, 1")
            a("s_add_u32 s33, s33, s43")
            a("s_mul_i32 s33, s33, %d" % (576 * 64))
            a("s_add_u32 s33, s33, %s" % hx(ZF_OFF))
            def mm(cf, s_blk):
                toks = {}
                def rd(t):
                    af = AFr + 8 * (t % 3)
                    toks[t] = [a.lds("ds_read_b128 %s, v%d offset:%d" % (vr(af + 4 * mb, 4), 12 + (t & 1), (mb * 18 + t) * 1024)) for mb in range(2)]
                rd(0); rd(1)
                for t in range(18):
                    if t + 2 < 18: rd(t + 2)
                    af = AFr + 8 * (t % 3)
                    for mb in range(2):
                        a.wait(lg=toks[t][mb])
                        d = ACr if mb == 0 else AC2
                        a("v_mfma_f32_16x16x32_f16 %s, %s, %s, %s" % (vr(d, 4), vr(af + 4 * mb, 4), vr(cf + 4 * t, 4), "0" if t == 0 else vr(d, 4)))
                for mb in range(2):
                    d = ACr if mb == 0 else AC2
                    for i in range(4):
                        a("v_mul_f32 v%d, %s, v%d" % (d + i, hx(f32bits(2.0 ** -5)), d + i))
                    for h in range(2):
                        a("v_cvt_pk_f16_f32 v%d, v%d, v%d" % (AFr + 2 * mb + h, d + 2 * h, d + 2 * h + 1))
                a("s_lshl_b32 s34, s%d, 10" % s_blk)
                a("s_add_u32 s34, s34, s33")
                a.vmem("buffer_store_dwordx4 %s, v244, s[12:15], s34 offen sc1" % vr(AFr, 4))
            mm(96, 37)
            vm1 = list(a.vm)
            pst(12)
            if hf == 1:
                a("s_cmp_lg_u32 s22, 7")
                a("s_cbranch_scc1 %s_n7" % lab)
                a("s_nop 1")
                mm(168, 62)
                a("%s_n7:" % lab)
                a("s_cmp_lg_u32 s22, 6")
                a("s_cbranch_scc1 %s_nc" % lab)
                a("s_sub_u32 s32, s2, 128")
                a("s_cmp_ge_u32 s32, 20")
                a("s_cbranch_scc1 %s_nc" % lab)
                fft_const(a, 32, vN, vG, vL, 96, 48)
                a("%s_nc:" % lab)
            a("s_cmp_ge_u32 s2, 128")
            a("s_cbranch_scc1 %s_nw" % lab)
            a("s_mul_i32 s33, s2, 18560")
            a("s_add_u32 s33, s33, %s" % hx(WT_OFF))
            a("s_mul_i32 s34, s2, 1280")
            a("s_add_u32 s34, s34, %s" % hx(WMAX_OFF))
            for it in range(2 if hf == 0 else 1):
                if it == 1:
                    a("s_cmp_ge_u32 s22, 2")
                    a("s_cbranch_scc1 %s_nw" % lab)
                a("v_add_u32 v96, %d, v0" % (512 * it))
                a("v_and_b32 v97, 1, v96")
                a("v_lshrrev_b32 v98, 1, v96")
                a("v_min_u32 v98, 288, v98")
                a("v_mul_u32_u24 v99, 578, v97")
                a("v_lshl_add_u32 v99, v98, 1, v99")
                a("v_add_u32 v99, %d, v99" % TS)
                for e in range(8):
                    a("ds_read_u16 v%d, v99 offset:%d" % (112 + e, e * 4096))
                    a("ds_read_u16 v%d, v99 offset:%d" % (120 + e, e * 4096 + 1160))
                a("v_lshlrev_b32 v100, 6, v98")
                a("v_lshl_add_u32 v100, v97, 5, v100")
                a("v_lshlrev_b32 v101, 2, v98")
                a("s_waitcnt lgkmcnt(0)")
                for e in range(8):
                    a("v_lshl_or_b32 v%d, v%d, 16, v%d" % (104 + e, 120 + e, 112 + e))
                a("buffer_store_dwordx4 v[104:107], v100, s[12:15], s33 offen sc1")
                a("buffer_store_dwordx4 v[108:111], v100, s[12:15], s33 offen offset:16 sc1")
            a("%s_nw:" % lab)
            a.vm = vm1; a.lg = []
            pst(13)
            a("v_mov_b32 v12, %d" % (SY + 36))
            a("v_mov_b32 v13, 1")
            a("s_mov_b64 exec, 1")
            a("ds_add_u32 v12, v13")
            a("s_mov_b64 exec, -1")
            pst(14)
            if est: a("s_memrealtime s[88:89]")
        def f2():
            a("s_lshl_b32 s33, s2, 3")
            a("s_add_u32 s33, s33, %s" % hx(FLAG_OFF + 32768))
            a("v_lshlrev_b32 v254, 11, v9")
            a("v_mov_b32 v12, s100")
            a("v_mov_b32 v13, s101")
            a("s_mov_b64 exec, 0xffff")
            a("buffer_store_dwordx2 v[12:13], v254, s[12:15], s33 offen sc1")
            a("s_mov_b64 exec, -1")
            a("s_lshl_b32 s33, s20, 8")
            a("s_lshl_b32 s34, s21, 3")
            a("s_add_u32 s33, s33, s34")
            a("s_add_u32 s33, s33, %s" % hx(FLAG_OFF + 2048))
            store_flag(a, "s33")
        nsync = [0]
        def fsync():
            n = nsync[0]; nsync[0] += 1
            a("s_add_u32 s87, s87, 4")
            a("v_mov_b32 v12, %d" % (SY + 16))
            a("v_mov_b32 v13, 1")
            a("s_mov_b64 exec, 1")
            a("ds_add_u32 v12, v13")
            a("s_mov_b64 exec, -1")
            lds_spin(a, "%s_fs%d" % (lab, n), SY + 16, "s87")
            a.lg = []
        def f2_check():
            a("s_cmp_lg_u32 s22, 4")
            a("s_cbranch_scc1 %s_np2" % lab)
            a("s_and_b32 s85, s2, 15")
            a("s_lshl_b32 s85, s85, 11")
            a("s_add_u32 s85, s85, %s" % hx(FLAG_OFF + 32768))
            a("v_lshlrev_b32 v254, 5, v9")
            poll_flags(a, lab + "_p2", 4, (0xffffffff, 0xffffffff), 254, 244, "s85", 16)
            a("v_mov_b32 v12, %d" % (SY + 12))
            a("v_mov_b32 v13, 1")
            a("ds_write_b32 v12, v13")
            a("%s_np2:" % lab)
            lds_spin(a, lab + "_w2", SY + 12, "1")
            a.lg = []
        def do_fft(flush):
            pst(15)
            ff = FFT(a, 16, 9, 38, FSC, 72, fsync, old=bool(two))
            D1 = ff.end; D2 = 192
            assert D1 + 42 <= 192 + 2, D1
            a("s_mov_b32 s87, 0")
            ff.addr()
            ff.data_loads(2, D1, 78, "c1")
            ff.const_loads()
            pst(17)
            flush()
            if fprio: a("s_setprio 2")
            pst(18)
            ff.twiddles()
            a("s_cmp_lt_u32 s2, 223")
            a("s_cbranch_scc1 %s_f1" % lab)
            vm_s = list(a.vm); tk = dict(ff.tok)
            a("s_add_u32 s82, s2, 33")
            ff.data_loads(82, D2 + 2, 64, "c2")
            ff.compute(D1, 78, "c1")
            fsync()
            ff.compute(D2 + 2, 64, "c2")
            a("s_add_u32 s87, s87, 0")
            a("s_branch %s_f2" % lab)
            a("%s_f1:" % lab)
            a.vm = vm_s; ff.tok = tk
            ff.compute(D1, 78, "c1")
            a("%s_f2:" % lab)
            if fprio: a("s_setprio %d" % (1 if bprio else 0))
            a("s_nop 1")
            a.lg = []
            pst(16)
        def publish2():
            gather_publish(a, lab + "_g2", SY + 4, "7", f2)
        def publish3():
            def f3():
                a("s_lshl_b32 s33, s2, 3")
                a("s_add_u32 s33, s33, %s" % hx(FLAG_OFF + 8192))
                store_flag(a, "s33")
                a("s_cmp_lt_u32 s2, 223")
                a("s_cbranch_scc1 %s_g3" % lab)
                a("s_add_u32 s33, s33, 264")
                store_flag(a, "s33")
            gather_publish(a, lab + "_g3", SY + 20, "3", f3)
        def check5():
            if hf == 0:
                a("s_cmp_lg_u32 s22, 0")
                a("s_cbranch_scc1 %s_n5" % lab)
                a("s_lshl_b32 s33, s20, 8")
                a("s_add_u32 s33, s33, %s" % hx(FLAG_OFF + 2048))
                a("v_lshrrev_b32 v244, 1, v%d" % vL)
                poll_flags(a, lab + "_p5", 1, (0xffffffff, 0), 244, 246, "s33", 8)
                a("v_mov_b32 v12, %d" % (SY + 32))
                a("v_mov_b32 v13, 1")
                a("ds_write_b32 v12, v13")
                a("%s_n5:" % lab)
            lds_spin(a, lab + "_w5", SY + 32, "1")
            a.lg = []
        if two and hf == 1:
            def bar():
                a.wait(vm=nt)
                a("v_readfirstlane_b32 s3, v250")
                a("s_barrier")
                if est: a("s_memrealtime s[88:89]")
            if fpos == 0:
                do_fft(bar)
            else:
                bar()
            for i in range(DK - 1): issue_a(i)
        if est: a("s_memrealtime s[90:91]")

        fill = deque()
        bucket = {"tok": 0.0}
        def cost_of(lines):
            c = 0
            for l in lines:
                op = l.split()[0]
                c += 8 if op in TRANS else (4 if op.startswith(("buffer", "ds_")) else (1 if op.startswith("s_") else 4))
            return c
        def fine(rate):
            bucket["tok"] += rate
            while fill and bucket["tok"] >= 4:
                n0 = len(a.lines)
                tag, f = fill.popleft(); f()
                bucket["tok"] -= cost_of(a.lines[n0:])
            if not fill: bucket["tok"] = 0.0
        def flush_tag(tag):
            while any(t == tag for t, _ in fill):
                fill.popleft()[1]()
        pw = {}

        def gelu_group(tag, regs, outs):
            T = [TMP + k for k in range(4)]
            seq = []
            for k in range(4): seq.append("v_mul_f32 v%d, v%d, v%d" % (T[k], regs[k], regs[k]))
            for k in range(4): seq.append("v_fmaak_f32 v%d, v%d, v%d, %s" % (T[k], T[k], vC1, hx(f32bits(C0))))
            for k in range(4): seq.append("v_mul_f32 v%d, v%d, v%d" % (T[k], regs[k], T[k]))
            for k in range(4): seq.append("v_exp_f32 v%d, v%d" % (T[k], T[k]))
            for k in range(4): seq.append("v_add_f32 v%d, 1.0, v%d" % (T[k], T[k]))
            for k in range(4): seq.append("v_rcp_f32 v%d, v%d" % (T[k], T[k]))
            for k in range(4): seq.append("v_mul_f32 v%d, v%d, v%d" % (T[k], regs[k], T[k]))
            seq.append("v_cvt_pk_bf16_f32 v%d, v%d, v%d" % (outs[0], T[0], T[1]))
            seq.append("v_cvt_pk_bf16_f32 v%d, v%d, v%d" % (outs[1], T[2], T[3]))
            if nogelu: seq = seq[-2:]
            for s_ in seq: fill.append((tag, lambda s_=s_: a(s_)))

        def accset(ph, ps):
            if ph == 1 and AORD and hf == 0: return [ACC[1], ACC[0], ACC[0]][ps]
            if ph == 1: return [ACC[0], ACC[1], ACC[0]][ps]
            if AORD and hf == 0: return [ACC3, ACC[1], ACC[0], ACC3][ps]
            return [ACC3, ACC[1], ACC[0], ACC3][ps] if hf == 0 else [ACC3, ACC[0]][ps]

        def queue_gelu(ps, nb):
            st = accset(1, ps); tag = "g%d" % ps
            pw[ps] = []
            for sb in range(4):
                pk = PK + 4 * (sb & 1)
                for bi in range(nb):
                    b = st + (bi * 4 + sb) * 4
                    gelu_group(tag, [b, b + 1, b + 2, b + 3], [pk + 2 * bi, pk + 2 * bi + 1])
                def wr(sb=sb, pk=pk):
                    if ps == P1O[0] and sb == 0 and not two:
                        lds_spin(a, lab + "_pre", SY + 36, "8")
                        a.lg = []
                    if nb == 2:
                        pw[ps].append(a.lds("ds_write_b128 v%d, %s offset:%d" % (vPw, vr(pk, 4), sb * 18432 + ps * 8192)))
                    else:
                        pw[ps].append(a.lds("ds_write_b64 v%d, %s offset:%d" % (vPw8, vr(pk, 2), sb * 18432)))
                fill.append((tag, wr))
            for _ in range(3): fill.append((tag, lambda: a("s_nop 0")))
            def sig():
                a.wait(lg=pw[ps])
                a("v_mov_b32 v12, %d" % (SY + 40 + 4 * (ps + 3 * hf)))
                a("v_mov_b32 v13, 1")
                a("s_mov_b64 exec, 1")
                a.lds("ds_add_u32 v12, v13")
                a("s_mov_b64 exec, -1")
            fill.append((tag, sig))

        def queue_store(ps, nb):
            st = accset(2, ps); tag = "s%d" % ps
            fl = ["", " sc1", " sc0 sc1", " nt", " sc1 nt"][stf]
            k = 0
            for bi in range(nb):
                for rg in range(2):
                    pk = PK + 4 * (k & 1); k += 1
                    for s2 in range(2):
                        b = st + (bi * 4 + 2 * rg + s2) * 4
                        for h in range(2):
                            fill.append((tag, lambda pk=pk, s2=s2, b=b, h=h: a("v_cvt_pk_bf16_f32 v%d, v%d, v%d" % (pk + 2 * s2 + h, b + 2 * h, b + 2 * h + 1))))
                    def stv(pk=pk, bi=bi, rg=rg):
                        a("s_add_u32 s34, s%d, %d" % (64 + ps, rg * 36864))
                        a.vmem("buffer_store_dwordx4 %s, v%d, s[12:15], s34 offen offset:%d%s" % (vr(pk, 4), vL, bi * 1024, fl))
                    if not nostore: fill.append((tag, stv))

        bias_tok = {}
        def load_bias(ps):
            if ps < 2:
                bias_tok[ps] = [a.lds("ds_read_b128 %s, v%d offset:%d" % (vr(BIAS + 4 * bi, 4), vBias, 1024 * ps + 64 * bi)) for bi in range(2)]
            else:
                bias_tok[ps] = [a.lds("ds_read_b128 %s, v7" % vr(BIAS, 4))]

        seen_g = set()
        def sync(g):
            if g in seen_g: return
            seen_g.add(g)
            own = g - 3 * hf
            if 0 <= own < npass and (g < 3) == (hf == 0): flush_tag("g%d" % own)
            pst(30 + 2 * g)
            lds_spin(a, "%s_pg%d" % (lab, g), SY + 40 + 4 * g, "4")
            pst(31 + 2 * g)
            a.lg = []

        def hook(f):
            lg_save = list(a.lg)
            f()
            a.lg = lg_save

        load_bias(P1O[0])
        PBX = 2 if CH else PB_D
        for i in range(PBX):
            for r_ in b_items(i): r_()
        pend = {}
        for i in range(N):
            ph, ps, nb, t = steps[i]
            if CH and i % 2 == 0:
                continue_pair = True
            st = accset(ph, ps)
            first = first_i[(ph, ps)] == i
            if not CH:
                j = i + PB_D
                rds = []
                if MID and FP <= j < FP + PB_D:
                    pass
                elif j < N:
                    if steps[j][0] == 2: sync(grp_of[steps[j][3]])
                    rds = b_items(j)
            elif i % 2 == 0:
                j = i + 2
                rd2 = None
                if j < N and not (MID and j == FP):
                    if steps[j][0] == 2: sync(grp_of[steps[j][3]])
                    rd2 = [b_items(j), b_items(j + 1)]
            if first and P2 == 3 and ph == 2 and nb == 1:
                while fill: fill.popleft()[1]()
                a("s_cmp_ge_u32 s2, 223")
                a("s_cbranch_scc%d %s_opt" % (0 if hf == 1 else 1, lab))
                a("s_waitcnt vmcnt(4) lgkmcnt(0)")
                a("s_branch %s_e%dstart" % (name, hf))
                a("%s_opt:" % lab)
            if first:
                if ph == 1 and ps == 2 and not AORD: flush_tag("g0")
                if ph == 1 and ps == 1 and AORD and hf == 0: flush_tag("g2")
                if ph == 2:
                    for tg in ({0: [], 1: (["g0"] if AORD else ["g1", "g0"]), 2: ["g2", "g0", "g1"], 3: ["s0"]} if hf == 0 else {0: [], 1: ["g0"]})[ps]: flush_tag(tg)
            def emit_mfma(ii, bi, sb, frst):
                d = st + (bi * 4 + sb) * 4
                need = [b_tok[ii][sb]] if bi == 0 else []
                if frst:
                    c = "0" if ph == 2 else vr(BIAS + 4 * bi, 4)
                    if ph == 1: need = need + bias_tok[ps]
                else:
                    c = vr(d, 4)
                a.wait(vm=a_tok[ii][bi] if sb == 0 else None, lg=need)
                a("%s %s, %s, %s, %s" % (MFMA, vr(d, 4), vr(AR + (ii % DK) * 8 + 4 * bi, 4), vr(BR + (ii % 2) * 16 + 4 * sb, 4), c))
            if not CH:
                nm = 4 * nb
                for k in range(nm):
                    emit_mfma(i, k // 4, k % 4, first)
                    if rds and (nb == 1 or k % 2 == 0): rds.pop(0)()
                    fine(RATE)
            elif i % 2 == 0:
                assert steps[i + 1][:2] == (ph, ps)
                for sb in range(4):
                    for bi in range(nb):
                        emit_mfma(i, bi, sb, first)
                        fine(RATE)
                        emit_mfma(i + 1, bi, sb, False)
                        if bi == nb - 1 and rd2:
                            rd2[0][sb](); rd2[1][sb]()
                        fine(RATE)
            if i + DK - 1 == NP1 and (hf == 0 or FE) and not two:
                check5()
            if i + DK - 1 < N and not (MID and FP <= i + DK - 1 < FP + DK - 1): issue_a(i + DK - 1)
            if i == DK and not two: hook(publish2)
            if hf == 1 and i == (FP if MID else 0) + P3AT: hook(publish3)
            if hf == 1 and i == FP - (2 if FE else 6) and not two: hook(f2_check)
            if ph == 1 and t == 2 and P1O.index(ps) + 1 < npass and not (FE and MID): load_bias(P1O[P1O.index(ps) + 1])
            if last_i[(ph, ps)] == i:
                lg_s = list(a.lg); pst(20 + 3 * (ph - 1) + ps); a.lg = [] if est == 2 else lg_s
                if ph == 1: queue_gelu(ps, nb)
                else: queue_store(ps, nb)
                if est and i == NP1 - 1: a("s_memrealtime s[92:93]")
                if MID and i == FP - 1:
                    if not FE: flush_tag("g0")
                    do_fft(lambda: flush_tag("g0" if FE else "g1"))
                    if not two and not FE: check5()
                    for i2 in range(FP, FP + DK - 1): issue_a(i2)
                    if FE: load_bias(1)
                    for i2 in range(FP, FP + PBX):
                        if not FE: sync(grp_of[steps[i2][3]])
                        for r_ in b_items(i2): r_()
                if est and ph == 2 and ps == 0: a("s_memrealtime s[94:95]")
        while fill: fill.popleft()[1]()
        if est == 2:
            a("v_writelane_b32 v253, s100, 0")
            a("s_lshl_b32 s33, s2, 3")
            a("s_add_u32 s33, s33, s22")
            a("s_lshl_b32 s33, s33, 8")
            a("s_add_u32 s33, s33, %s" % hx(STAMP_OFF + 0x700000))
            a("v_lshrrev_b32 v12, 2, v%d" % vL)
            a("buffer_store_dword v253, v12, s[12:15], s33 offen")

        a("%s_e%dstart:" % (name, hf))
        epilogue(a, name, hf, XB, vL, est=est, SLP=SLP, G1=G1, uload=1, mega=(poll_flags, store_flag, lds_spin, SY))

    body(0)
    a("%s_h1:" % name)
    body(1)
    a("%s_end:" % name)
    a("s_endpgm")
    n = a.fix_hazards()
    print("mega: nops inserted", n, "lines", len(a.lines))
    return kernel_header(name) + a.text() + kernel_desc(name, 256, 102), MEGA_LDS
```

```python
from asmgen import *
from layout import *
from gen_epi import mod576, MAGIC576, INV576


def cf_gen(a, base, s_blk, vN, vG, U0, T, SM):
    K, IM, X, Y, M16 = T, T + 1, T + 2, T + 3, T + 4
    a("s_lshl_b32 s%d, s%d, 4" % (SM + 3, s_blk))
    a("v_add_u32 v%d, s%d, v%d" % (X, SM + 3, vN))
    a("v_lshrrev_b32 v%d, 1, v%d" % (K, X))
    a("v_and_b32 v%d, 1, v%d" % (IM, X))
    a("v_cmp_eq_u32 vcc, 1, v%d" % X)
    a("v_mov_b32 v%d, 288" % Y)
    a("v_lshlrev_b32 v%d, 2, v%d" % (T + 5, IM))
    a("v_cndmask_b32 v%d, v%d, v%d, vcc" % (K, K, Y))
    a("v_cndmask_b32 v%d, v%d, 0, vcc" % (IM, IM))
    a("v_mul_u32_u24 v%d, 144, v%d" % (IM, IM))
    a("v_and_b32 v%d, 1, v%d" % (X, K))
    a("v_mul_u32_u24 v%d, 0x8000, v%d" % (X, X))
    a("v_lshl_or_b32 v%d, v%d, 16, v%d" % (U0 + 10, X, X))
    a("v_and_b32 v%d, 3, v%d" % (X, K))
    a("v_add_u32 v%d, v%d, v%d" % (X, X, T + 5))
    a("v_mov_b32 v%d, 0x6c" % Y)
    a("v_lshrrev_b32 v%d, v%d, v%d" % (X, X, Y))
    a("v_and_b32 v%d, 1, v%d" % (X, X))
    a("v_mul_u32_u24 v%d, 0x8000, v%d" % (X, X))
    a("v_lshl_or_b32 v%d, v%d, 16, v%d" % (U0 + 9, X, X))
    a("v_lshlrev_b32 v%d, 4, v%d" % (X, K))
    mod576(a, M16, X, Y, SM, SM + 1)
    a("v_mul_u32_u24 v%d, v%d, v%d" % (X, K, vG))
    a("v_lshlrev_b32 v%d, 2, v%d" % (X, X))
    mod576(a, X, X, Y, SM, SM + 1)
    a("v_add_u32 v%d, v%d, v%d" % (X, X, IM))
    a("v_cvt_f32_u32 v%d, v%d" % (X, X))
    a("v_cvt_f32_u32 v%d, v%d" % (K, K))
    a("v_cvt_f32_u32 v%d, v%d" % (M16, M16))
    a("v_mul_f32 v%d, s%d, v%d" % (U0 + 8, SM + 2, M16))
    a("v_add_f32 v%d, v%d, v%d" % (U0 + 8, U0 + 8, U0 + 8))
    a("v_add_f32 v%d, v%d, v%d" % (Y, X, M16))
    for e in range(8):
        src = X if e < 4 else Y
        if e & 3:
            a("v_fmamk_f32 v%d, v%d, %s, v%d" % (T + 6, K, hx(f32bits(float(e & 3))), src))
            a("v_mul_f32 v%d, s%d, v%d" % (U0 + e, SM + 2, T + 6))
        else:
            a("v_mul_f32 v%d, s%d, v%d" % (U0 + e, SM + 2, src))
    for t in range(5):
        ne = 8 if t < 4 else 4
        for e in range(ne):
            if t:
                a("v_fmamk_f32 v%d, v%d, %s, v%d" % (T + 8 + e, U0 + 8, hx(f32bits(float(t))), U0 + e))
        for e in range(ne):
            a("v_cos_f32 v%d, v%d" % (T + e, T + 8 + e if t else U0 + e))
        for h in range(ne // 2):
            a("v_cvt_pk_f16_f32 v%d, v%d, v%d" % (base + 4 * t + h, T + 2 * h, T + 2 * h + 1))
    for r in range(18):
        a("v_xor_b32_dpp v%d, v%d, v%d quad_perm:[0,1,3,2] row_mask:0xf bank_mask:0xf" % (base + 18 + r, base + r, U0 + 9))
    for r in range(36):
        a("v_xor_b32 v%d, v%d, v%d" % (base + 36 + r, U0 + 10, base + r))


def ln_batch(a, XR, XF, A0, TT, vXB, vA16, s_inv, s_do16, lab, fast=0):
    for i in range(18):
        a("v_lshlrev_b32 v%d, 16, v%d" % (XF + 2 * i, XR + i))
        a("v_and_b32 v%d, 0xffff0000, v%d" % (XF + 2 * i + 1, XR + i))
    a("v_pk_add_f32 %s, %s, %s" % (vr(A0, 2), vr(XF, 2), vr(XF + 2, 2)))
    a("v_pk_add_f32 %s, %s, %s" % (vr(A0 + 2, 2), vr(XF + 4, 2), vr(XF + 6, 2)))
    for i in range(4, 18):
        d = A0 + 2 * (i & 1)
        a("v_pk_add_f32 %s, %s, %s" % (vr(d, 2), vr(d, 2), vr(XF + 2 * i, 2)))
    a("v_pk_add_f32 %s, %s, %s" % (vr(A0, 2), vr(A0, 2), vr(A0 + 2, 2)))
    a("v_add_f32 v%d, v%d, v%d" % (A0, A0, A0 + 1))
    def rowsum(r):
        for sh in (8, 4, 2, 1):
            a("v_add_f32_dpp v%d, v%d, v%d row_ror:%d row_mask:0xf bank_mask:0xf" % (r, r, r, sh))
    rowsum(A0)
    a("v_mul_f32 v%d, s%d, v%d" % (A0, s_inv, A0))
    a("v_sub_f32 v%d, 0, v%d" % (A0 + 2, A0))
    a("v_sub_f32 v%d, 0, v%d" % (A0 + 3, A0))
    a("v_cvt_pk_bf16_f32 v%d, v%d, v%d" % (A0 + 1, A0 + 2, A0 + 2))
    a("v_lshlrev_b32 v%d, 16, v%d" % (A0 + 4, A0 + 1))
    a("v_lshlrev_b32 v%d, 16, v%d" % (A0 + 5, A0 + 1))
    for i in range(18):
        t = TT + 2 * (i & 3)
        d = A0 + 6 + 2 * (i & 1)
        a("v_pk_add_f32 %s, %s, %s" % (vr(t, 2), vr(XF + 2 * i, 2), vr(A0 + 2, 2)))
        if i < 2:
            a("v_pk_mul_f32 %s, %s, %s" % (vr(d, 2), vr(t, 2), vr(t, 2)))
        else:
            a("v_pk_fma_f32 %s, %s, %s, %s" % (vr(d, 2), vr(t, 2), vr(t, 2), vr(d, 2)))
    a("v_pk_add_f32 %s, %s, %s" % (vr(A0 + 6, 2), vr(A0 + 6, 2), vr(A0 + 8, 2)))
    a("v_add_f32 v%d, v%d, v%d" % (A0 + 6, A0 + 6, A0 + 7))
    rowsum(A0 + 6)
    V = A0 + 6
    a("v_mul_f32 v%d, s%d, v%d" % (V, s_inv, V))
    a("v_cvt_pk_bf16_f32 v%d, v%d, v%d" % (V, V, V))
    a("v_lshlrev_b32 v%d, 16, v%d" % (V, V))
    a("v_add_f32 v%d, %s, v%d" % (V, hx(f32bits(1e-5)), V))
    a("v_cvt_pk_bf16_f32 v%d, v%d, v%d" % (V, V, V))
    a("v_lshlrev_b32 v%d, 16, v%d" % (V, V))
    a("v_sqrt_f32 v%d, v%d" % (V, V))
    a("v_cvt_pk_bf16_f32 v%d, v%d, v%d" % (V, V, V))
    a("v_lshlrev_b32 v%d, 16, v%d" % (V, V))
    a("v_rcp_f32 v%d, v%d" % (V, V))
    a("v_mov_b32 v%d, v%d" % (V + 1, V))
    if fast:
        a("v_pk_mul_f32 %s, %s, %s" % (vr(A0 + 4, 2), vr(A0 + 4, 2), vr(V, 2)))
        for j in range(9):
            for i in (2 * j, 2 * j + 1):
                x = XF + 2 * i
                a("v_pk_fma_f32 %s, %s, %s, %s" % (vr(x, 2), vr(x, 2), vr(V, 2), vr(A0 + 4, 2)))
            for i in (2 * j, 2 * j + 1):
                x = XF + 2 * i
                a("v_cvt_pk_bf16_f32 v%d, v%d, v%d" % (XR + i, x, x + 1))
            a.lds("ds_write_b64 v%d, %s offset:%d" % (vXB, vr(XR + 2 * j, 2), j * 2048))
    for j in range(0 if fast else 9):
        pr = (2 * j, 2 * j + 1)
        for i in pr:
            x = XF + 2 * i
            a("v_pk_add_f32 %s, %s, %s" % (vr(x, 2), vr(x, 2), vr(A0 + 4, 2)))
        for i in pr:
            x = XF + 2 * i
            a("v_cvt_pk_bf16_f32 v%d, v%d, v%d" % (XR + i, x, x + 1))
        for i in pr:
            x = XF + 2 * i
            a("v_lshlrev_b32 v%d, 16, v%d" % (x, XR + i))
            a("v_and_b32 v%d, 0xffff0000, v%d" % (x + 1, XR + i))
        for i in pr:
            x = XF + 2 * i
            a("v_pk_mul_f32 %s, %s, %s" % (vr(x, 2), vr(x, 2), vr(V, 2)))
        for i in pr:
            x = XF + 2 * i
            a("v_cvt_pk_bf16_f32 v%d, v%d, v%d" % (XR + i, x, x + 1))
        a.lds("ds_write_b64 v%d, %s offset:%d" % (vXB, vr(XR + 2 * j, 2), j * 2048))
    a("s_cmp_eq_u32 s%d, 0" % s_do16)
    a("s_cbranch_scc1 %s" % lab)
    for j in range(9):
        x = XF + 4 * j
        for k, i in enumerate((2 * j, 2 * j + 1)):
            a("v_lshlrev_b32 v%d, 16, v%d" % (x + 2 * k, XR + i))
            a("v_and_b32 v%d, 0xffff0000, v%d" % (x + 2 * k + 1, XR + i))
        a("v_cvt_pk_f16_f32 v%d, v%d, v%d" % (x, x, x + 1))
        a("v_cvt_pk_f16_f32 v%d, v%d, v%d" % (x + 1, x + 2, x + 3))
        a("ds_write_b64 v%d, %s offset:%d" % (vA16, vr(x, 2), j * 2048))
    a("%s:" % lab)


def tile_issue(a, s_tile, s_chunk, lane, vt, vd, sw1, sw2, s0):
    S = lambda i: "s%d" % (s0 + i)
    lab = a.label(); lab2 = a.label()
    a("v_lshrrev_b32 v%d, 3, v%d" % (vt, lane))
    a("v_and_b32 v%d, 6, v%d" % (vt + 1, vt))
    a("v_xor_b32 v%d, v%d, v%d" % (vt + 1, vt + 1, lane))
    a("v_and_b32 v%d, 7, v%d" % (vt + 1, vt + 1))
    a("v_lshlrev_b32 v%d, 4, v%d" % (vt + 1, vt + 1))
    a("s_sub_u32 %s, s%d, 162" % (S(2), s_tile))
    a("s_cselect_b32 %s, s%d, %s" % (S(2), s_tile, S(2)))
    a("s_mul_i32 %s, %s, 7282" % (S(0), S(2)))
    a("s_lshr_b32 %s, %s, 16" % (S(0), S(0)))
    a("s_mul_i32 %s, %s, 9" % (S(1), S(0)))
    a("s_sub_u32 %s, %s, %s" % (S(1), S(2), S(1)))
    a("s_mul_i32 %s, %s, %d" % (S(4), S(1), 4 * 18432))
    a("s_lshl_b32 %s, %s, 10" % (S(2), S(0)))
    a("s_add_u32 %s, %s, %s" % (S(4), S(4), S(2)))
    a("s_mul_i32 %s, s%d, %d" % (S(2), s_chunk, 36 * 18432))
    a("s_add_u32 %s, %s, %s" % (S(4), S(4), S(2)))
    a("s_lshl_b32 %s, %s, 7" % (S(1), S(1)))
    a("s_cmp_ge_u32 s%d, 162" % s_tile)
    a("s_cbranch_scc1 %s" % lab)
    a("s_add_u32 %s, %s, %s" % (S(4), S(4), hx(W1T_OFF)))
    a("s_mul_i32 %s, %s, %d" % (S(0), S(0), 32 * 9216))
    a("s_add_u32 %s, %s, %s" % (S(0), S(0), S(1)))
    a("s_mul_i32 %s, s%d, 1152" % (S(1), s_chunk))
    a("s_add_u32 %s, %s, %s" % (S(0), S(0), S(1)))
    a("s_movk_i32 %s, 9216" % S(1))
    a("v_mad_u32_u24 v%d, v%d, %s, v%d" % (vt, vt, S(1), vt + 1))
    for k in range(4):
        a("s_add_u32 %s, %s, %d" % (S(2), S(0), 8 * 9216 * k))
        a("buffer_load_dwordx4 %s, v%d, s[%d:%d], %s offen" % (vr(vd + 4 * k, 4), vt, sw1, sw1 + 3, S(2)))
    a("s_branch %s" % lab2)
    a("%s:" % lab)
    a("s_add_u32 %s, %s, %s" % (S(4), S(4), hx(W2T_OFF)))
    a("s_mul_i32 %s, %s, %d" % (S(0), S(0), 32 * 1152))
    a("s_add_u32 %s, %s, %s" % (S(0), S(0), S(1)))
    a("s_mul_i32 %s, s%d, %d" % (S(1), s_chunk, 576 * 1152))
    a("s_add_u32 %s, %s, %s" % (S(0), S(0), S(1)))
    a("s_movk_i32 %s, 1152" % S(1))
    a("v_mad_u32_u24 v%d, v%d, %s, v%d" % (vt, vt, S(1), vt + 1))
    for k in range(4):
        a("s_add_u32 %s, %s, %d" % (S(2), S(0), 8 * 1152 * k))
        a("buffer_load_dwordx4 %s, v%d, s[%d:%d], %s offen" % (vr(vd + 4 * k, 4), vt, sw2, sw2 + 3, S(2)))
    a("%s:" % lab2)
    toks = [object() for _ in range(4)]
    a.vm.extend(toks)
    return toks


def tile_finish(a, lane, vd, vt, s_lds, s_dst, vL):
    a("v_add_u32 v%d, s%d, v%d" % (vt + 1, s_lds, vL))
    wt_ = [a.lds("ds_write_b128 v%d, %s offset:%d" % (vt + 1, vr(vd + 4 * k, 4), 1024 * k)) for k in range(4)]
    a("v_bfe_u32 v%d, v%d, 2, 4" % (vt, lane))
    a("v_bfe_u32 v%d, v%d, 1, 2" % (vt + 1, vt))
    a("v_lshlrev_b32 v%d, 5, v%d" % (vt + 1, vt + 1))
    a("v_lshl_add_u32 v%d, v%d, 7, v%d" % (vt, vt, vt + 1))
    a("v_and_b32 v%d, 3, v%d" % (vt + 1, lane))
    a("v_lshl_add_u32 v%d, v%d, 3, v%d" % (vt, vt + 1, vt))
    a("v_add_u32 v%d, s%d, v%d" % (vt, s_lds, vt))
    a.wait(lg=wt_)
    rt = []
    for b in range(4):
        if b: a("v_xor_b32 v%d, %d, v%d" % (vt, (b ^ (b - 1)) * 32, vt))
        rt.append([a.lds("ds_read_b64_tr_b16 %s, v%d offset:%d" % (vr(vd + 4 * b + 2 * i, 2), vt, 2048 * i)) for i in range(2)])
    out = []
    for b in range(4):
        a.wait(lg=rt[b])
        if b: a("s_add_u32 s%d, s%d, 18432" % (s_dst, s_dst))
        out.append(a.vmem("buffer_store_dwordx4 %s, v%d, s[12:15], s%d offen sc1" % (vr(vd + 4 * b, 4), vL, s_dst)))
    return out


def fft_const(a, s_cf, vM, vG, vL, T, S):
    s = lambda i: "s%d" % (S + i)
    a("s_lshr_b32 %s, s%d, 2" % (s(1), s_cf))
    a("s_bfe_u32 %s, s%d, 0x10001" % (s(2), s_cf))
    a("s_and_b32 %s, s%d, 1" % (s(3), s_cf))
    a("s_cmp_lt_u32 s%d, 16" % s_cf)
    a("s_cselect_b32 %s, 1, 0" % s(0))
    a("s_cselect_b32 %s, %s, %s" % (s(1), s(1), s(2)))
    a("s_cselect_b32 %s, %s, %s" % (s(2), s(2), s(3)))
    a("s_cselect_b32 %s, %s, 0" % (s(3), s(3)))
    a("s_cselect_b32 %s, 63, 31" % s(4))
    a("s_lshl_b32 %s, %s, 23" % (s(0), s(0)))
    a("s_sub_u32 %s, %s, %s" % (s(5), hx(f32bits(1 / 32.)), s(0)))
    a("s_sub_u32 %s, %s, %s" % (s(6), hx(f32bits(0.25)), s(0)))
    a("s_cmp_eq_u32 %s, 0" % s(2))
    a("s_cselect_b32 %s, 0, %s" % (s(7), hx(f32bits(0.75))))
    a("s_lshl_b32 %s, %s, 4" % (s(1), s(1)))
    a("v_add_u32 v%d, %s, v%d" % (T, s(1), vM))
    a("s_lshl_b32 %s, %s, 5" % (s(3), s(3)))
    a("v_lshl_add_u32 v%d, v%d, 2, %s" % (T + 1, vG, s(3)))
    a("v_mov_b32 v%d, %s" % (T + 2, s(7)))
    for e in range(8):
        off = 16 * (e >> 2) + (e & 3)
        a("v_add_u32 v%d, %d, v%d" % (T + 3, off, T + 1))
        a("v_mul_u32_u24 v%d, v%d, v%d" % (T + 3, T + 3, T))
        a("v_and_b32 v%d, %s, v%d" % (T + 3, s(4), T + 3))
        a("v_cvt_f32_u32 v%d, v%d" % (T + 3, T + 3))
        a("v_fma_f32 v%d, v%d, %s, v%d" % (T + 3, T + 3, s(5), T + 2))
        a("v_cos_f32 v%d, v%d" % (T + 3, T + 3))
        a("v_mul_f32 v%d, %s, v%d" % (T + 4 + e, s(6), T + 3))
    for h in range(4):
        a("v_cvt_pk_f16_f32 v%d, v%d, v%d" % (T + 12 + h, T + 4 + 2 * h, T + 5 + 2 * h))
    a("s_lshl_b32 %s, s%d, 10" % (s(0), s_cf))
    a("s_add_u32 %s, %s, %s" % (s(0), s(0), hx(CONST_OFF)))
    a("buffer_store_dwordx4 %s, v%d, s[12:15], %s offen sc1" % (vr(T + 12, 4), vL, s(0)))
```

```python
from asmgen import *
from layout import *
from gen_epi import cinv_gen, final_math, MAGIC576, INV576


def epilogue_shared(a, name, UBASE, vLane16, poll_flags, store_flag, lds_spin, SY, NPART=8, est=0, SLP=4, G1=9):
    lab = "%s_ep" % name
    a.vm = []; a.lg = []
    CA = 16
    ACC = 160
    BFR = 176
    T = 200
    M_, G_, VT0, VT1, VX0, VX1, VB, VTX = 220, 221, 222, 223, 224, 225, 226, 227
    XV, B2R, XE, B2E = 228, 232, 234, 236
    PT = 88
    UR = 136
    if est: a("s_memrealtime s[52:53]")
    a("s_load_dwordx2 s[40:41], s[0:1], 0")
    a("s_load_dwordx4 s[44:47], s[0:1], 56")
    a("s_mov_b32 s64, %d" % MAGIC576)
    a("s_movk_i32 s65, 576")
    a("s_mov_b32 s66, %s" % INV576)
    a("s_cmp_lg_u32 s22, 0")
    a("s_cbranch_scc1 %s_fok" % lab)
    a("s_mov_b32 s85, %s" % hx(FLAG_OFF + 8192))
    a("v_lshlrev_b32 v252, 1, v%d" % vLane16)
    poll_flags(a, lab + "_fa", 4, (0xffffffff, 0xffffffff), 252, 244, "s85", 32)
    a("s_add_u32 s85, s85, 2048")
    a("v_lshrrev_b32 v252, 1, v%d" % vLane16)
    poll_flags(a, lab + "_fb", 1, (0xffffffff, 1), 252, 244, "s85", 32)
    a("v_mov_b32 v12, %d" % (SY + 60))
    a("v_mov_b32 v13, 1")
    a("ds_write_b32 v12, v13")
    a("%s_fok:" % lab)
    a("v_lshrrev_b32 v%d, 4, v%d" % (T, vLane16))
    a("v_and_b32 v%d, 15, v%d" % (M_, T))
    a("v_lshrrev_b32 v%d, 4, v%d" % (G_, T))
    a("s_lshr_b32 s68, s20, 1")
    a("s_mul_i32 s68, s68, 9")
    a("s_add_u32 s69, s68, 8")
    a("s_add_u32 s68, s68, s22")
    a("s_and_b32 s70, s20, 1")
    a("s_lshl_b32 s71, s21, 1")
    a("s_add_u32 s70, s70, s71")
    a("v_bfe_u32 v%d, v%d, 2, 4" % (VT0, T))
    a("v_lshlrev_b32 v%d, 6, v%d" % (VT0, VT0))
    a("v_and_b32 v%d, 3, v%d" % (T + 1, T))
    a("v_lshl_add_u32 v%d, v%d, 3, v%d" % (VT0, T + 1, VT0))
    a("v_and_b32 v%d, 1, v%d" % (T + 1, G_))
    a("v_lshl_add_u32 v%d, v%d, 5, v%d" % (VT0, T + 1, VT0))
    a("v_add_u32 v%d, %s, v%d" % (VT0, hx(UBASE), VT0))
    a("v_xor_b32 v%d, 32, v%d" % (VT1, VT0))
    a("s_and_b32 s78, s22, 1")
    a("s_lshl_b32 s71, s78, 5")
    a("v_xor_b32 v%d, s71, v%d" % (VTX, VT0))
    a("v_and_b32 v%d, 3, v%d" % (VX0, M_))
    a("v_bfe_u32 v%d, v%d, 2, 1" % (T + 1, M_))
    a("v_lshl_add_u32 v%d, v%d, 4, v%d" % (VX0, T + 1, VX0))
    a("v_bfe_u32 v%d, v%d, 3, 1" % (T + 1, M_))
    a("v_lshl_add_u32 v%d, v%d, 2, v%d" % (VX0, T + 1, VX0))
    a("s_mov_b32 s71, %d" % (32 * 1152))
    a("v_mul_lo_u32 v%d, v%d, s71" % (VX0, VX0))
    a("v_lshl_add_u32 v%d, v%d, 3, v%d" % (VX0, G_, VX0))
    a("v_add_u32 v%d, %d, v%d" % (VX1, 8 * 32 * 1152, VX0))
    a("v_lshlrev_b32 v%d, 3, v%d" % (VB, G_))
    a("s_lshr_b32 s72, s70, 1")
    a("s_and_b32 s73, s70, 1")
    a("s_lshl_b32 s73, s73, 10")
    a("s_add_u32 s72, s72, s73")
    a("s_mul_i32 s72, s72, 1152")
    a("s_lshl_b32 s73, s68, 5")
    a("s_lshl_b32 s75, s69, 5")
    a("s_add_u32 s74, s72, s75")
    a("s_mul_i32 s76, s78, %d" % (8 * 32 * 1152))
    a("s_add_u32 s74, s74, s76")
    a("s_add_u32 s72, s72, s73")
    a("s_mul_i32 s76, s70, 36")
    a("s_add_u32 s77, s76, s69")
    a("s_add_u32 s76, s76, s68")
    a("s_lshl_b32 s76, s76, 10")
    a("s_add_u32 s76, s76, %s" % hx(PART_OFF))
    a("s_lshl_b32 s77, s77, 10")
    a("s_lshl_b32 s78, s78, 3")
    a("s_add_u32 s77, s77, s78")
    a("s_add_u32 s77, s77, %s" % hx(PART_OFF))
    a("v_lshrrev_b32 v240, 6, v%d" % vLane16)
    a("v_bfe_u32 v241, v%d, 8, 1" % vLane16)
    a("v_lshlrev_b32 v241, 5, v241")
    a("v_and_b32 v242, 48, v%d" % vLane16)
    a("v_xor_b32 v241, v241, v242")
    a("v_lshl_add_u32 v240, v240, 12, v241")
    a("s_and_b32 s83, s70, 1")
    a("s_lshl_b32 s83, s83, 11")
    a("s_lshl_b32 s84, s21, 6")
    a("s_add_u32 s83, s83, s84")
    a("s_lshl_b32 s84, s22, 16")
    a("s_add_u32 s83, s83, s84")
    a("s_add_u32 s83, s83, %s" % hx(UT_OFF))
    a("s_lshl_b32 s84, s22, 10")
    a("s_add_u32 s84, s84, %s" % hx(UBASE))
    a("v_add_u32 v241, s84, v%d" % vLane16)
    a("s_mov_b32 s86, 0")
    ch = cinv_gen(a, CA, 68, M_, G_, T, 64)
    for c in ch[:2]: c()
    lds_spin(a, lab + "_uok", SY + 60, "1")
    for i5 in range(5):
        a("s_add_u32 s80, s83, %d" % (i5 * 8 * 65536))
        a("buffer_load_dwordx4 %s, v240, s[12:15], s80 offen sc1" % vr(UR + 4 * i5, 4))
    for c in ch[2:4]: c()
    a("s_waitcnt vmcnt(0) lgkmcnt(0)")
    for i5 in range(5):
        a("ds_write_b128 v241, %s offset:%d" % (vr(UR + 4 * i5, 4), 8192 * i5))
    a("s_barrier")
    if est: a("s_memrealtime s[54:55]")
    for (s_, lo, hi, n) in ((4, 40, 41, 2048 * 1152), (8, 46, 47, 2048 * 1152), (16, 44, 45, 1152)):
        a("s_mov_b32 s%d, s%d" % (s_, lo))
        a("s_and_b32 s%d, s%d, 0xffff" % (s_ + 1, hi))
        a("s_mov_b32 s%d, %s" % (s_ + 2, hx(n)))
        a("s_mov_b32 s%d, 0x20000" % (s_ + 3))
    a("s_lshl_b32 s79, s21, 8")
    a("s_add_u32 s79, s79, %s" % hx(FLAG_OFF + 12288))
    a("s_cmp_lg_u32 s22, 0")
    a("s_cbranch_scc1 %s_noat" % lab)
    a("s_lshl_b32 s80, s20, 3")
    a("s_add_u32 s80, s80, s79")
    store_flag(a, "s80")
    a("%s_noat:" % lab)
    a("buffer_load_dwordx2 %s, v%d, s[4:7], s72 offen" % (vr(XV, 2), VX0))
    a("buffer_load_dwordx2 %s, v%d, s[4:7], s72 offen" % (vr(XV + 2, 2), VX1))
    a("buffer_load_dwordx2 %s, v%d, s[16:19], s73 offen" % (vr(B2R, 2), VB))
    a("buffer_load_dwordx2 %s, v%d, s[4:7], s74 offen" % (vr(XE, 2), VX0))
    a("buffer_load_dwordx2 %s, v%d, s[16:19], s75 offen" % (vr(B2E, 2), VB))
    for c in ch[4:G1]: c()
    if est: a("s_memrealtime s[56:57]")
    a("s_cmp_lg_u32 s22, 0")
    a("s_cbranch_scc1 %s_np" % lab)
    a("v_lshrrev_b32 v243, 1, v%d" % vLane16)
    poll_flags(a, lab + "_pp", 1, (0xff, 0), 243, 238, "s79", SLP)
    a("%s_np:" % lab)
    a("s_waitcnt lgkmcnt(0)")
    a("s_barrier")
    if est: a("s_memrealtime s[60:61]")
    pt = []
    for c in range(NPART):
        a("s_add_u32 s80, s76, %s" % hx(c * 64 * 36864))
        pt.append(a.vmem("buffer_load_dwordx4 %s, v%d, s[12:15], s80 offen sc1" % (vr(PT + 4 * c, 4), vLane16)))
    a("s_lshr_b32 s81, s22, 1")
    a("s_cmp_lg_u32 s81, 1")
    a("s_cbranch_scc1 %s_nx" % lab)
    for c in range(NPART):
        a("s_add_u32 s80, s77, %s" % hx(c * 64 * 36864))
        a("buffer_load_dwordx2 %s, v%d, s[12:15], s80 offen sc1" % (vr(PT + 32 + 2 * c, 2), vLane16))
    a("%s_nx:" % lab)
    for c in ch[G1:]: c()

    def mm(vs, acc):
        toks = {}
        def rd(t):
            b = BFR + 8 * (t % 3)
            toks[t] = [a.lds("ds_read_b64_tr_b16 %s, v%d offset:%d" % (vr(b + 4 * k + 2 * i, 2), v, t * 2048 + i * 1024)) for k, v in enumerate(vs) for i in range(2)]
        rd(0); rd(1)
        for t in range(18):
            if t + 2 < 18: rd(t + 2)
            b = BFR + 8 * (t % 3)
            for k, v in enumerate(vs):
                a.wait(lg=toks[t][2 * k: 2 * k + 2])
                d = acc + 4 * k
                a("v_mfma_f32_16x16x32_bf16 %s, %s, %s, %s" % (vr(d, 4), vr(CA + 4 * t, 4), vr(b + 4 * k, 4), "0" if t == 0 else vr(d, 4)))
    mm([VT0, VT1], ACC)
    S_ = 176; TT = 188; B2 = 196
    def psum(c, tok, src, n, dst):
        a.wait(vm=tok)
        for h in range(n):
            d_ = dst + 2 * h if c == 0 else TT + 2 * h
            a("v_lshlrev_b32 v%d, 16, v%d" % (d_, src + h))
            a("v_and_b32 v%d, 0xffff0000, v%d" % (d_ + 1, src + h))
        if c:
            for h in range(n):
                a("v_pk_add_f32 %s, %s, %s" % (vr(dst + 2 * h, 2), vr(dst + 2 * h, 2), vr(TT + 2 * h, 2)))
    for c in range(NPART):
        psum(c, pt[c], PT + 4 * c, 4, S_)
    for h in range(2):
        a("v_lshlrev_b32 v%d, 16, v%d" % (B2 + 2 * h, B2R + h))
        a("v_and_b32 v%d, 0xffff0000, v%d" % (B2 + 2 * h + 1, B2R + h))
    final_math(a, 4, S_, ACC, XV, B2, TT, T + 20 - 4)
    a("buffer_store_dwordx2 %s, v%d, s[8:11], s72 offen" % (vr(T + 16, 2), VX0))
    a("buffer_store_dwordx2 %s, v%d, s[8:11], s72 offen" % (vr(T + 18, 2), VX1))
    a("s_cmp_lg_u32 s81, 1")
    a("s_cbranch_scc1 %s_done" % lab)
    a("s_nop 1")
    for c in cinv_gen(a, CA, 69, M_, G_, T, 64): c()
    mm([VTX], ACC + 8)
    a("s_waitcnt vmcnt(2)")
    for c in range(NPART):
        psum(c, None, PT + 32 + 2 * c, 2, S_ + 8)
    for h in range(2):
        a("v_lshlrev_b32 v%d, 16, v%d" % (B2 + 2 * h, B2E + h))
        a("v_and_b32 v%d, 0xffff0000, v%d" % (B2 + 2 * h + 1, B2E + h))
    final_math(a, 2, S_ + 8, ACC + 8, XE, B2, TT, T + 4)
    a("buffer_store_dwordx2 %s, v%d, s[8:11], s74 offen" % (vr(T + 4, 2), VX0))
    a("%s_done:" % lab)
    if est:
        a("s_memrealtime s[62:63]")
        a("s_waitcnt lgkmcnt(0)")
        for k_, r_ in enumerate((100, 52, 54, 56, 60, 62, 88, 90, 92, 94, 96, 96)):
            a("v_mov_b32 v%d, s%d" % (100 + k_, r_))
        a("s_lshl_b32 s80, s2, 3")
        a("s_add_u32 s80, s80, s22")
        a("s_lshl_b32 s80, s80, 6")
        a("s_add_u32 s80, s80, %s" % hx(STAMP_OFF + 0x600000))
        a("v_mov_b32 v112, 0")
        a("s_mov_b64 exec, 1")
        a("buffer_store_dwordx4 v[100:103], v112, s[12:15], s80 offen")
        a("buffer_store_dwordx4 v[104:107], v112, s[12:15], s80 offen offset:16")
        a("buffer_store_dwordx4 v[108:111], v112, s[12:15], s80 offen offset:32")
    a("s_endpgm")
```

```python
from asmgen import *
from layout import *
from collections import deque
from gen_epi import epilogue, MAGIC576, INV576
from gen_fft2 import FFT
from gen_pro import *
from gen_epi2 import epilogue_shared

C0 = -2.0 * 1.4426950408889634 * 0.7978845608028654
C1 = C0 * 0.044715
MFMA = "v_mfma_f32_16x16x32_bf16"
XB = 0
PB = 73728
A16 = PB
TS = PB + 36864
BIASB = 147456
SY = BIASB + 2304
FSC = BIASB + 2560
MEGA_LDS = 163840
SPIN = 100000
TBS = 98


def srd(a, s, lo, hi, nbytes):
    a("s_mov_b32 s%d, s%d" % (s, lo))
    a("s_and_b32 s%d, s%d, 0xffff" % (s + 1, hi))
    a("s_mov_b32 s%d, %s" % (s + 2, hx(nbytes)))
    a("s_mov_b32 s%d, 0x20000" % (s + 3))


WIN = 1500


def poll_flags(a, lab, nf, execmask, va, vd, soff, slp, pre=None):
    a("s_mov_b32 exec_lo, %s" % hx(execmask[0]))
    a("s_mov_b32 exec_hi, %s" % hx(execmask[1]))
    a("s_mov_b32 s35, %d" % SPIN)
    a("%s_l:" % lab)
    a("s_sub_u32 s35, s35, 1")
    a("s_cbranch_scc1 %s_ok" % lab)
    if nf == 1:
        a("buffer_load_dwordx2 %s, v%d, s[12:15], %s offen sc1" % (vr(vd, 2), va, soff))
    else:
        for k in range(nf // 2):
            a("buffer_load_dwordx4 %s, v%d, s[12:15], %s offen offset:%d sc1" % (vr(vd + 4 * k, 4), va, soff, 16 * k))
    a("v_mov_b32 v13, s%d" % (TBS + 1))
    a("s_waitcnt vmcnt(0)")
    for i in range(nf):
        a("v_subrev_co_u32 v%d, vcc, s%d, v%d" % (vd + 2 * i, TBS, vd + 2 * i))
        a("v_subb_co_u32 v%d, vcc, v%d, v13, vcc" % (vd + 2 * i + 1, vd + 2 * i + 1))
        a("v_lshrrev_b32 v%d, 12, v%d" % (vd + 2 * i, vd + 2 * i))
        a("v_or_b32 v%d, v%d, v%d" % (vd + 2 * i, vd + 2 * i, vd + 2 * i + 1))
        if i: a("v_or_b32 v%d, v%d, v%d" % (vd, vd, vd + 2 * i))
    a("v_cmp_ne_u32 vcc, 0, v%d" % vd)
    a("s_nop 1")
    a("s_cmp_eq_u64 vcc, 0")
    a("s_cbranch_scc1 %s_ok" % lab)
    a("s_sleep %d" % slp)
    a("s_branch %s_l" % lab)
    a("%s_ok:" % lab)
    a("s_mov_b64 exec, -1")


def lds_spin(a, lab, addr, target):
    a("v_mov_b32 v12, %d" % addr)
    a("%s:" % lab)
    a("ds_read_b32 v13, v12")
    a("s_waitcnt lgkmcnt(0)")
    a("v_readfirstlane_b32 s35, v13")
    a("s_nop 3")
    a("s_cmp_ge_u32 s35, %s" % target)
    a("s_cbranch_scc1 %s_d" % lab)
    a("s_sleep 1")
    a("s_branch %s" % lab)
    a("%s_d:" % lab)


def gather_publish(a, lab, cnt_addr, last, soff_expr, need_nonce=False):
    a("v_mov_b32 v12, %d" % cnt_addr)
    a("v_mov_b32 v13, 1")
    a("s_mov_b64 exec, 1")
    a("ds_add_rtn_u32 v13, v12, v13")
    a("s_waitcnt lgkmcnt(0)")
    a("v_readfirstlane_b32 s35, v13")
    a("s_mov_b64 exec, -1")
    a("s_nop 1")
    a("s_cmp_lg_u32 s35, %s" % last)
    a("s_cbranch_scc1 %s" % lab)
    soff_expr()
    a("%s:" % lab)


def code_touch(a, lab_from, lab_to, nlines_max, uniq):
    a("s_getpc_b64 s[92:93]")
    a("%s:" % uniq)
    a("s_add_u32 s92, s92, %s-%s" % (lab_from, uniq))
    a("s_addc_u32 s93, s93, 0")
    for r in range((nlines_max + 63) // 64):
        a("v_lshlrev_b32 v12, 7, v9")
        if r: a("v_add_u32 v12, %d, v12" % (8192 * r))
        a("v_min_u32 v12, %s-%s, v12" % (lab_to, lab_from))
        a("global_load_dword v13, v12, s[92:93]")


def store_flag(a, soff):
    a("v_mov_b32 v12, s100")
    a("v_mov_b32 v13, s101")
    a("s_mov_b64 exec, 1")
    a("buffer_store_dwordx2 v[12:13], v1, s[12:15], %s offen sc1" % soff)
    a("s_mov_b64 exec, -1")


def gen_mega(name, DK=8, PB_D=1, cmap=2, RATE=8.5, est=0, SLP=4, G1=9, fprio=1, stf=1, nogelu=0, nostore=0, prio=0, xc=0, b0e=1, aplain=0, DKA=10, bprio=1, ctouch=0, nofft=0, P3AT=1, two=0, fpos=0, P2=3, AORD=1, KSP=1, FE=0, LNF=0, CH=1, PPRIO=0, ESH=0, POST=0):
    stamps = 0; epi = 1
    a = Asm()
    def pst(k):
        if est == 2:
            a("s_memrealtime vcc")
            a("s_waitcnt lgkmcnt(0)")
            a("v_writelane_b32 v253, vcc_lo, %d" % k)
            if 20 <= k < 30:
                a("s_memtime vcc")
                a("s_waitcnt lgkmcnt(0)")
                a("v_writelane_b32 v253, vcc_lo, %d" % (k + 30))
    AR = 16
    BR = AR + DK * 8
    ACC = [BR + (PB_D + 1) * 16, BR + (PB_D + 1) * 16 + 32]
    BIAS = ACC[1] + 32
    TMP = BIAS + 8
    PK = TMP + 4
    NV = PK + 8
    vL, vLP, vBias, vPw, vC1, vPw8 = 1, 2, 3, 4, 5, 6
    vXe, vXo, vXeH, vXoH, vLPH = 10, 11, 14, 15, 8
    LA = " sc1"
    a("s_cmp_ge_u32 s2, 256")
    a("s_cbranch_scc1 %s_end" % name)
    a("s_load_dwordx16 s[48:63], s[0:1], 0")
    a("s_load_dwordx2 s[46:47], s[0:1], 80")
    a("s_memrealtime s[100:101]")
    a("v_lshrrev_b32 v8, 6, v0")
    a("v_and_b32 v9, 63, v0")
    a("v_readfirstlane_b32 s22, v8")
    if ctouch:
        a("s_nop 3")
        a("s_cmp_lg_u32 s22, 6")
        a("s_cbranch_scc1 %s_nct" % name)
        code_touch(a, name + "_nct", name + "_end", 720, name + "_ct")
        a("%s_nct:" % name)
    if cmap == 0:
        a("s_and_b32 s20, s2, 7")
        a("s_lshr_b32 s21, s2, 3")
    elif cmap == 2:
        a("s_and_b32 s20, s2, 1")
        a("s_lshl_b32 s20, s20, 2")
        a("s_bfe_u32 s33, s2, 0x20003")
        a("s_add_u32 s20, s20, s33")
        a("s_bfe_u32 s21, s2, 0x20001")
        a("s_lshl_b32 s21, s21, 3")
        a("s_lshr_b32 s33, s2, 5")
        a("s_add_u32 s21, s21, s33")
    else:
        a("s_and_b32 s20, s2, 3")
        a("s_lshl_b32 s20, s20, 1")
        a("s_bfe_u32 s33, s2, 0x10003")
        a("s_add_u32 s20, s20, s33")
        a("s_bfe_u32 s21, s2, 0x10002")
        a("s_lshl_b32 s21, s21, 4")
        a("s_lshr_b32 s33, s2, 4")
        a("s_add_u32 s21, s21, s33")
    a("s_and_b32 s38, s22, 3")
    a("s_lshr_b32 s39, s22, 2")
    a("s_add_u32 s23, s22, s21")
    a("s_and_b32 s23, s23, 7")
    a("s_mul_i32 s24, s20, %d" % (36 * 18432))
    a("s_mul_i32 s25, s22, 36864")
    a("s_add_u32 s25, s25, s24")
    a("s_add_u32 s26, s25, %d" % (16 * 18432))
    a("s_mul_i32 s27, s38, 18432")
    a("s_add_u32 s27, s27, s24")
    a("s_add_u32 s27, s27, %d" % (32 * 18432))
    a("s_lshl_b32 s37, s20, 6")
    a("s_lshl_b32 s33, s21, 1")
    a("s_add_u32 s37, s37, s33")
    a("s_mul_i32 s37, s37, 36864")
    a("s_add_u32 s37, s37, %s" % hx(PART_OFF))
    a("s_mov_b32 s28, s24")
    a("s_mov_b32 s40, s37")
    a("s_mov_b32 s41, s24")
    a("s_lshl_b32 s42, s21, 1")
    a("s_mul_i32 s33, s42, 3641")
    a("s_lshr_b32 s33, s33, 16")
    a("s_mul_i32 s33, s33, 18")
    a("s_sub_u32 s42, s42, s33")
    a("v_lshlrev_b32 v%d, 4, v9" % vL)
    a("v_add_u32 v%d, %d, v%d" % (vLP, PB, vL))
    a("v_lshrrev_b32 v16, 4, v9")
    a("s_lshl_b32 s33, s22, 7")
    a("s_add_u32 s33, s33, %d" % BIASB)
    a("v_lshl_add_u32 v%d, v16, 4, s33" % vBias)
    a("s_lshl_b32 s33, s38, 6")
    a("s_add_u32 s33, s33, %d" % (BIASB + 2048))
    a("v_lshl_add_u32 v7, v16, 4, s33")
    a("s_lshl_b32 s33, s22, 10")
    a("v_add_u32 v%d, s33, v%d" % (vPw, vLP))
    a("s_lshr_b32 s33, s38, 1")
    a("s_lshl_b32 s33, s33, 10")
    a("s_and_b32 s34, s38, 1")
    a("s_lshl_b32 s34, s34, 3")
    a("s_add_u32 s33, s33, s34")
    a("s_add_u32 s33, s33, 16384")
    a("v_add_u32 v%d, s33, v%d" % (vPw8, vLP))
    a("v_mov_b32 v%d, %s" % (vC1, hx(f32bits(C1))))
    if two:
        a("v_add_u32 v%d, 0x10000, v%d" % (vLPH, vLP))
        a("v_mov_b32 v%d, v%d" % (vXe, vL)); a("v_mov_b32 v%d, v%d" % (vXo, vL))
        a("v_add_u32 v%d, 0x10000, v%d" % (vXeH, vL)); a("v_add_u32 v%d, 0x10000, v%d" % (vXoH, vL))
        a("s_lshl_b32 s36, s21, 2")
        a("s_add_u32 s36, s36, s38")
        a("s_mul_i32 s36, s36, 18432")
        a("s_add_u32 s36, s36, %s" % hx(XNF_OFF))
        a("s_mul_i32 s29, s38, 18432")
        a("s_mul_i32 s56, s20, 2304")
        a("s_waitcnt lgkmcnt(0)")
        a("s_sub_u32 s98, s100, 2048")
        a("s_subb_u32 s99, s101, 0")
        a("s_mul_i32 s56, s20, 2304")
        a("s_add_u32 s56, s56, %s" % hx(B1F_OFF))
        srd(a, 12, 46, 47, WS_BYTES)
        a("s_cmp_lg_u32 s39, 0")
        a("s_cbranch_scc1 %s_h1" % name)
    else:
        vN, vG = 248, 249
        a("v_and_b32 v%d, 15, v9" % vN)
        a("v_lshrrev_b32 v%d, 4, v9" % vG)
        a("v_xor_b32 v16, v%d, v%d" % (vG, vN))
        a("v_lshl_add_u32 v17, v%d, 4, v16" % vG)
        a("v_lshlrev_b32 v%d, 4, v17" % vXe)
        a("v_xor_b32 v%d, 64, v%d" % (vXo, vXe))
        a("v_add_u32 v%d, 0x10000, v%d" % (vXeH, vXe))
        a("v_add_u32 v%d, 0x10000, v%d" % (vXoH, vXo))
        a("v_add_u32 v%d, 0x10000, v%d" % (vLPH, vLP))
        vX, vXB0, vA0 = 250, 251, 252
        a("s_mov_b32 s33, %d" % (1152 if xc else 32 * 1152))
        a("v_mul_lo_u32 v%d, v%d, s33" % (vX, vG))
        a("v_lshl_add_u32 v%d, v%d, 3, v%d" % (vX, vN, vX))
        a("s_lshl_b32 s28, s22, 3")
        a("s_lshl_b32 s28, s28, 5")
        a("s_add_u32 s28, s28, s21")
        a("s_mul_i32 s28, s28, 1152")
        a("s_add_u32 s29, s28, %d" % (4 * 32 * 1152))
        if xc:
            a("s_lshl_b32 s28, s21, 3")
            a("s_add_u32 s28, s28, s22")
            a("s_mul_i32 s28, s28, %d" % (8 * 1152))
            a("s_add_u32 s29, s28, %d" % (4 * 1152))
        a("v_and_b32 v16, 3, v%d" % vN)
        a("v_lshrrev_b32 v17, 3, v%d" % vN)
        a("v_lshl_add_u32 v18, v17, 2, v16")
        a("v_lshlrev_b32 v19, 4, v16")
        a("v_lshl_add_u32 v19, v17, 6, v19")
        a("v_bfe_u32 v20, v%d, 2, 1" % vN)
        a("v_lshlrev_b32 v20, 3, v20")
        a("v_lshl_add_u32 v19, v19, 4, v20")
        a("s_lshr_b32 s33, s38, 1")
        a("s_lshl_b32 s33, s33, 2")
        a("v_add_u32 v21, s33, v%d" % vG)
        a("v_xor_b32 v21, v21, v18")
        a("v_lshl_add_u32 v21, v21, 4, v19")
        a("s_lshl_b32 s33, s39, 1")
        a("s_and_b32 s34, s38, 1")
        a("s_add_u32 s33, s33, s34")
        a("s_mul_i32 s33, s33, 18432")
        a("v_add_u32 v%d, s33, v21" % vXB0)
        a("s_lshl_b32 s34, s34, 3")
        a("v_add_u32 v21, s34, v%d" % vG)
        a("v_xor_b32 v21, v21, v18")
        a("v_lshl_add_u32 v21, v21, 4, v19")
        a("s_lshr_b32 s33, s38, 1")
        a("s_mul_i32 s33, s33, 18432")
        a("s_add_u32 s33, s33, %d" % A16)
        a("v_add_u32 v%d, s33, v21" % vA0)
        a("s_and_b32 s43, s20, 1")
        a("s_cmp_eq_u32 s43, s39")
        a("s_cselect_b32 s45, 1, 0")
        a("s_lshl_b32 s36, s22, 12")
        a("s_add_u32 s36, s36, %d" % TS)
        a("s_lshl_b32 s32, s22, 5")
        a("s_add_u32 s32, s32, s21")
        a("s_mov_b32 s88, %d" % MAGIC576)
        a("s_movk_i32 s89, 576")
        a("s_mov_b32 s90, %s" % INV576)
        a("s_waitcnt lgkmcnt(0)")
        a("s_sub_u32 s98, s100, 2048")
        a("s_subb_u32 s99, s101, 0")
        pst(40)
        srd(a, 12, 46, 47, WS_BYTES)
        srd(a, 4, 48, 49, 2048 * 1152)
        srd(a, 64, 56, 57, 576 * 9216)
        srd(a, 68, 60, 61, 4608 * 1152)
        srd(a, 72, 50, 51, 2048 * 578)
        srd(a, 76, 52, 53, 2048 * 578)
        srd(a, 16, 58, 59, 9216)
        XR0, XR1, T1, T2, WL, B1R, CF0, CF1 = 16, 34, 52, 68, 84, 94, 96, 168
        a("s_cmp_lg_u32 s22, 0")
        a("s_cbranch_scc1 %s_n0" % name)
        a("s_or_b32 s86, s86, 1")
        a("v_mov_b32 v246, s86")
        a("v_mov_b32 v247, 0")
        a("v_lshrrev_b32 v12, 2, v%d" % vL)
        a("v_add_u32 v12, %d, v12" % SY)
        a("s_mov_b64 exec, 0xffff")
        a("ds_write_b32 v12, v247")
        a("s_mov_b64 exec, -1")
        a("s_waitcnt lgkmcnt(0)")
        a("%s_n0:" % name)
        if b0e: a("s_barrier")
        pst(41)
        a("s_cmp_lg_u32 s39, 0")
        a("s_cbranch_scc1 %s_nt1" % name)
        tile_issue(a, 32, 20, 9, 244, T1, 64, 68, 92)
        a("s_add_u32 s32, s32, 128")
        a("s_cmp_ge_u32 s32, 162")
        a("s_cbranch_scc1 %s_nt1" % name)
        tile_issue(a, 32, 20, 9, 244, T2, 64, 68, 48)
        a("%s_nt1:" % name)
        a.vm = []
        pst(42)
        xt = []
        for b_, XR in enumerate((XR0, XR1)):
            for j in range(9):
                xt.append(a.vmem("buffer_load_dwordx2 %s, v%d, s[4:7], s%d offen offset:%d" % (vr(XR + 2 * j, 2), vX, 28 + b_, j * 128)))
        a("v_min_u32 v12, 287, v0")
        a("v_lshlrev_b32 v12, 2, v12")
        a("s_mul_i32 s33, s20, 1152")
        bt = a.vmem("buffer_load_dword v%d, v12, s[16:19], s33 offen" % B1R)
        pst(1)
        if not b0e: a("s_barrier")
        pst(2)
        XF, A0_, TT = 168, 204, 214
        a("s_cmp_lg_u32 s39, 0")
        a("s_cbranch_scc1 %s_nt1b" % name)
        a("s_waitcnt vmcnt(19)")
        tile_finish(a, 9, T1, 244, 36, 96, vL)
        a("s_cmp_ge_u32 s32, 162")
        a("s_cbranch_scc1 %s_nt1b" % name)
        tile_finish(a, 9, T2, 244, 36, 52, vL)
        a("%s_nt1b:" % name)
        a.vm = []; a.lg = []
        pst(3)
        a("s_lshr_b32 s37, s20, 1")
        a("s_mul_i32 s37, s37, 9")
        a("s_add_u32 s62, s37, 8")
        a("s_add_u32 s37, s37, s22")
        cf_gen(a, CF0, 37, vN, vG, 168, 180, 88)
        pst(4)
        a("s_cmp_lg_u32 s39, 0")
        a("s_cbranch_scc1 %s_w1" % name)
        a("s_cmp_ge_u32 s32, 162")
        a("s_cbranch_scc1 %s_w3" % name)
        a("s_waitcnt vmcnt(8)")
        a("s_branch %s_w2" % name)
        a("%s_w3:" % name)
        a("s_waitcnt vmcnt(4)")
        a("s_branch %s_w2" % name)
        a("%s_w1:" % name)
        a("s_waitcnt vmcnt(0)")
        a("%s_w2:" % name)
        pst(5)
        ln_batch(a, XR0, XF, A0_, TT, vXB0, vA0, 90, 45, name + "_l0", LNF)
        a.lg = []
        pst(6)
        a("s_waitcnt vmcnt(0)")
        pst(7)
        def f1():
            a("s_lshl_b32 s33, s20, 8")
            a("s_lshl_b32 s34, s21, 3")
            a("s_add_u32 s33, s33, s34")
            a("s_add_u32 s33, s33, %s" % hx(FLAG_OFF))
            store_flag(a, "s33")
        a("s_cmp_lg_u32 s39, 0")
        a("s_cbranch_scc1 %s_g1" % name)
        gather_publish(a, name + "_g1", SY, "3", f1, True)
        T2B = 52 if POST else T2
        if POST:
            a("s_cmp_ge_u32 s2, 128")
            a("s_cbranch_scc1 %s_nw" % name)
            a("s_cmp_eq_u32 s39, 0")
            a("s_cbranch_scc1 %s_nw" % name)
            a("s_lshr_b32 s33, s2, 5")
            a("s_lshl_b32 s33, s33, 2")
            a("s_add_u32 s33, s33, s38")
            a("s_lshl_b32 s33, s33, 6")
            a("s_and_b32 s34, s2, 31")
            a("s_lshl_b32 s34, s34, 1")
            a("s_add_u32 s33, s33, s34")
            a("s_mul_i32 s33, s33, 578")
            a("s_add_u32 s34, s33, %d" % (16 * 64 * 578))
            a("v_lshlrev_b32 v12, 2, v9")
            for mb in range(2):
                for arr in range(2):
                    for it in range(5):
                        if it == 4: a("s_mov_b32 exec_hi, 1")
                        a("buffer_load_dword v%d, v12, s[%d:%d], s%d offen offset:%d" % (68 + (mb * 2 + arr) * 5 + it, 72 + 4 * arr, 75 + 4 * arr, 33 + mb, 256 * it))
                        if it == 4: a("s_mov_b32 exec_hi, -1")
            a("%s_nw:" % name)
        else:
            a("s_cmp_ge_u32 s2, 128")
            a("s_cbranch_scc1 %s_nw" % name)
            a("s_lshr_b32 s33, s2, 5")
            a("s_lshl_b32 s33, s33, 2")
            a("s_add_u32 s33, s33, s38")
            a("s_lshl_b32 s34, s39, 4")
            a("s_add_u32 s33, s33, s34")
            a("s_lshl_b32 s33, s33, 6")
            a("s_and_b32 s34, s2, 31")
            a("s_lshl_b32 s34, s34, 1")
            a("s_add_u32 s33, s33, s34")
            a("s_mul_i32 s33, s33, 578")
            a("v_lshlrev_b32 v12, 2, v9")
            for arr in range(2):
                for it in range(5):
                    if it == 4: a("s_mov_b32 exec_hi, 1")
                    a("buffer_load_dword v%d, v12, s[%d:%d], s33 offen offset:%d" % (WL + arr * 5 + it, 72 + 4 * arr, 75 + 4 * arr, 256 * it))
                    if it == 4: a("s_mov_b32 exec_hi, -1")
            a("%s_nw:" % name)
        T3 = 224
        a("s_cmp_eq_u32 s39, 0")
        a("s_cbranch_scc1 %s_nt2" % name)
        a("s_lshl_b32 s63, s38, 5")
        a("s_add_u32 s63, s63, s21")
        a("s_add_u32 s63, s63, 162")
        tile_issue(a, 63, 20, 9, 240, T2B, 64, 68, 48)
        a("s_add_u32 s63, s63, 128")
        a("s_cmp_ge_u32 s63, 324")
        a("s_cbranch_scc1 %s_nt2" % name)
        tile_issue(a, 63, 20, 9, 240, T3, 64, 68, 53)
        a("%s_nt2:" % name)
        a.vm = []; a.lg = []
        pst(8)
        a("v_min_u32 v12, 287, v0")
        a("v_lshlrev_b32 v12, 3, v12")
        a("v_add_u32 v12, %d, v12" % BIASB)
        a("v_lshlrev_b32 v222, 16, v%d" % B1R)
        a("v_and_b32 v223, 0xffff0000, v%d" % B1R)
        a("ds_write_b64 v12, v[222:223]")
        a("v_xor_b32 v%d, 128, v%d" % (vXB0, vXB0))
        a("v_xor_b32 v%d, 64, v%d" % (vA0, vA0))
        ln_batch(a, XR1, XF, A0_, TT, vXB0, vA0, 90, 45, name + "_l1", LNF)
        a.lg = []
        if not POST:
            a("s_waitcnt vmcnt(0)")
            a("s_cmp_eq_u32 s39, 0")
            a("s_cbranch_scc1 %s_nt2b" % name)
            tile_finish(a, 9, T2, 240, 36, 52, vL)
            a("s_cmp_ge_u32 s63, 324")
            a("s_cbranch_scc1 %s_nt2b" % name)
            tile_finish(a, 9, T3, 240, 36, 57, vL)
            a("%s_nt2b:" % name)
            a("s_cmp_ge_u32 s2, 128")
            a("s_cbranch_scc1 %s_nwb" % name)
            a("v_lshlrev_b32 v12, 2, v9")
            a("v_add_u32 v12, s36, v12")
            for arr in range(2):
                for it in range(5):
                    if it == 4: a("s_mov_b32 exec_hi, 1")
                    a("ds_write_b32 v12, v%d offset:%d" % (WL + arr * 5 + it, arr * 1160 + 256 * it))
                    if it == 4: a("s_mov_b32 exec_hi, -1")
            a("%s_nwb:" % name)
            a.vm = []; a.lg = []
        pst(9)
        a("s_cmp_lg_u32 s22, 7")
        a("s_cbranch_scc1 %s_n7" % name)
        cf_gen(a, CF1, 62, vN, vG, 16, 28, 88)
        a("%s_n7:" % name)
        a("s_cmp_lg_u32 s22, 0")
        a("s_cbranch_scc1 %s_n2" % name)
        a("s_lshl_b32 s33, s20, 8")
        a("s_add_u32 s33, s33, %s" % hx(FLAG_OFF))
        a("v_lshlrev_b32 v16, 3, v9")
        poll_flags(a, name + "_p1", 1, (0xffffffff, 0), 16, 18, "s33", 3)
        a("%s_n2:" % name)
        a("s_waitcnt lgkmcnt(0)")
        pst(10)
        a("s_barrier")
        pst(11)
        if est: a("s_memrealtime s[96:97]")
        a("s_cmp_lg_u32 s39, 0")
        a("s_cbranch_scc1 %s_h1" % name)

    def body(hf):
        a.vm = []; a.lg = []
        if hf == 0:
            DK = DKA
            AR = 16; BR = AR + DK * 8
            ACC = [BR + 32, BR + 64]; ACC3 = BR + 96
            BIAS = ACC3 + 32; TMP = BIAS + 8; PK = TMP + 4
            assert PK + 8 <= 244, PK
        else:
            DK = 8
            AR = 16; BR = 80; ACC3 = 112
            ACC = [212, 144] if FE else [144, 212]; BIAS = 192; TMP = 200; PK = 204
        if prio and hf == prio - 1: a("s_setprio 1")
        npass = 3 if hf == 0 else 2
        G = [[0, 1, 2, 3], [8, 9, 10, 11], [16, 17], [4, 5, 6, 7], [12, 13, 14, 15]]
        grp_of = {t: g for g, ts in enumerate(G) for t in ts}
        steps = []
        P1O = ([2, 0, 1] if AORD else [0, 1, 2]) if hf == 0 else [0, 1]
        for ps in P1O:
            for t in range(18):
                steps.append((1, ps, 2 if ps < 2 else 1, t))
        NP1 = 18 * npass
        O = G[2] + G[0] + G[3] + G[1] + G[4] if FE else G[2] + G[0] + G[3] + G[4] + G[1] if AORD else G[0] + G[3] + G[1] + G[2] + G[4]
        W2 = {0: ([2, 2, 1], [2, 2]), 1: ([2, 2, 2], [2, 1]), 2: ([2, 2, 2, 1], [2]), 3: ([2, 2, 2, 1], [2, 1])}[P2][hf]
        nA = sum(1 for w_ in {0: ([2, 2, 1], [2, 2]), 1: ([2, 2, 2], [2, 1]), 2: ([2, 2, 2, 1], [2]), 3: ([2, 2, 2, 1], [2, 1])}[P2][0] if w_ == 2)
        def p2_base(ps):
            if W2[ps] == 2:
                a("s_add_u32 s33, s38, %d" % (4 * (ps + (nA if hf else 0))))
                a("s_mov_b32 s34, 0")
            else:
                a("s_lshr_b32 s33, s38, 1")
                a("s_add_u32 s33, s33, 16")
                a("s_and_b32 s34, s38, 1")
            a("s_add_u32 s33, s33, s42")
            a("s_sub_u32 s35, s33, 18")
            a("s_cselect_b32 s33, s33, s35")
            a("s_lshl_b32 s33, s33, 1")
            a("s_add_u32 s33, s33, s34")
            a("s_mul_i32 s23, s33, 18432")
            a("s_add_u32 s23, s23, s41")
            a("s_lshl_b32 s33, s33, 10")
            a("s_add_u32 s%d, s33, s40" % (64 + ps))
        seq = [(ps_, O) for ps_ in range(len(W2))]
        if KSP and hf == 0:
            seq = [(0, O[:10]), (1, O[:10]), (0, O[10:]), (1, O[10:])] + seq[2:]
        for ps, ts in seq:
            for t in ts:
                steps.append((2, ps, W2[ps], t))
        N = len(steps)
        FP = 18 if FE else NP1
        MID = hf == 1 and (not two or fpos == 1)
        first_i = {}; last_i = {}
        for i_, st_ in enumerate(steps):
            first_i.setdefault(st_[:2], i_); last_i[st_[:2]] = i_
        a_tok = {}; b_tok = {}
        sbase = {"key": None, "t0": None}

        def issue_a(i):
            ph, ps, nb, t = steps[i]
            base = (W1T_OFF if ph == 1 else W2T_OFF)
            sb_ = [25, 26, 27][ps] if ph == 1 else 23
            if ph == 2 and sbase["key"] != (ph, ps): p2_base(ps)
            new = sbase["key"] != (ph, ps) or not (sbase["t0"] <= t < sbase["t0"] + 4)
            if new:
                sbase["key"] = (ph, ps); sbase["t0"] = t
            toks = []
            for bi in range(nb):
                sreg = 30 + bi
                if new:
                    a("s_add_u32 s%d, s%d, %s" % (sreg, sb_, hx(base + bi * 18432 + t * 1024)))
                toks.append(a.vmem("buffer_load_dwordx4 %s, v%d, s[12:15], s%d offen offset:%d%s" % (vr(AR + (i % DK) * 8 + 4 * bi, 4), vL, sreg, (t - sbase["t0"]) * 1024, "" if (aplain or two) else LA)))
            a_tok[i] = toks

        def b_items(i):
            ph, ps, nb, t = steps[i]
            b_tok[i] = []
            out = []
            for sb in range(4):
                def rd(sb=sb):
                    off = (sb * 18 + t) * 1024
                    hi_ = off >= 65536
                    if hi_: off -= 65536
                    if ph == 1: v = [[vXe, vXo], [vXeH, vXoH]][hi_][t & 1]
                    else: v = vLPH if hi_ else vLP
                    b_tok[i].append(a.lds("ds_read_b128 %s, v%d offset:%d" % (vr(BR + (i % 2) * 16 + 4 * sb, 4), v, off)))
                out.append(rd)
            return out

        lab = "%s_r%d" % (name, hf)
        if two:
            a("v_mov_b32 v12, 0")
            a("s_mov_b32 s33, %s" % hx(CNT_OFF))
            nt = a.vmem("buffer_load_dword v250, v12, s[12:15], s33 offen")
            if hf == 0:
                XS = 96
                xt = []
                for k in range(18):
                    if k % 4 == 0: a("s_add_u32 s33, s36, %d" % (1024 * k))
                    xt.append(a.vmem("buffer_load_dwordx4 %s, v%d, s[12:15], s33 offen offset:%d" % (vr(XS + 4 * k, 4), vL, 1024 * (k % 4))))
                a("s_mul_i32 s33, s38, 576")
                a("s_add_u32 s34, s33, s56")
                xt.append(a.vmem("buffer_load_dwordx4 %s, v%d, s[12:15], s34 offen" % (vr(XS + 72, 4), vL)))
                for i in range(DK - 1): issue_a(i)
                a("v_lshrrev_b32 v12, 2, v%d" % vL)
                a("v_add_u32 v12, %d, v12" % SY)
                a("v_mov_b32 v13, 0")
                a("s_mov_b64 exec, 0xffff")
                a("ds_write_b32 v12, v13")
                a("s_mov_b64 exec, -1")
                a("v_add_u32 v12, s29, v%d" % vL)
                ws_ = []
                for k in range(18):
                    a.wait(vm=xt[k])
                    ws_.append(a.lds("ds_write_b128 v12, %s offset:%d" % (vr(XS + 4 * k, 4), 1024 * k)))
                a("s_add_u32 s33, s33, %d" % BIASB)
                a("v_add_u32 v12, s33, v%d" % vL)
                a.wait(vm=xt[18])
                a("s_mov_b32 exec_hi, 15")
                a("ds_write_b128 v12, %s" % vr(XS + 72, 4))
                a("s_mov_b32 exec_hi, -1")
                a("v_readfirstlane_b32 s3, v250")
                a.wait_all(vm=False, lg=True)
                a("s_barrier")
                if est: a("s_memrealtime s[88:89]")
        else:
            if hf == 0 or not POST:
                for i in range(DK - 1): issue_a(i)
            elif PPRIO: a("s_setprio 2")
            AFr, ACr = (168 if hf == 0 else (16 if POST else 72)), 240
            AC2 = 248 if est == 2 else 252
            a("v_add_u32 v12, %d, v%d" % (A16, vXe))
            a("v_add_u32 v13, %d, v%d" % (A16, vXo))
            a("v_lshlrev_b32 v244, 6, v%d" % vN)
            a("v_lshl_add_u32 v244, v%d, 4, v244" % vG)
            a("s_lshl_b32 s33, s21, 1")
            a("s_add_u32 s33, s33, s43")
            a("s_mul_i32 s33, s33, %d" % (576 * 64))
            a("s_add_u32 s33, s33, %s" % hx(ZF_OFF))
            def mm(cf, s_blk):
                toks = {}
                def rd(t):
                    af = AFr + 8 * (t % 3)
                    toks[t] = [a.lds("ds_read_b128 %s, v%d offset:%d" % (vr(af + 4 * mb, 4), 12 + (t & 1), (mb * 18 + t) * 1024)) for mb in range(2)]
                rd(0); rd(1)
                for t in range(18):
                    if t + 2 < 18: rd(t + 2)
                    af = AFr + 8 * (t % 3)
                    for mb in range(2):
                        a.wait(lg=toks[t][mb])
                        d = ACr if mb == 0 else AC2
                        a("v_mfma_f32_16x16x32_f16 %s, %s, %s, %s" % (vr(d, 4), vr(af + 4 * mb, 4), vr(cf + 4 * t, 4), "0" if t == 0 else vr(d, 4)))
                for mb in range(2):
                    d = ACr if mb == 0 else AC2
                    for i in range(4):
                        a("v_mul_f32 v%d, %s, v%d" % (d + i, hx(f32bits(2.0 ** -5)), d + i))
                    for h in range(2):
                        a("v_cvt_pk_f16_f32 v%d, v%d, v%d" % (AFr + 2 * mb + h, d + 2 * h, d + 2 * h + 1))
                a("s_lshl_b32 s34, s%d, 10" % s_blk)
                a("s_add_u32 s34, s34, s33")
                a.vmem("buffer_store_dwordx4 %s, v244, s[12:15], s34 offen sc1" % vr(AFr, 4))
            mm(96, 37)
            vm1 = list(a.vm)
            if hf == 1:
                a("s_cmp_lg_u32 s22, 7")
                a("s_cbranch_scc1 %s_n7" % lab)
                a("s_nop 1")
                mm(168, 62)
                a("%s_n7:" % lab)
                a("s_cmp_lg_u32 s22, 6")
                a("s_cbranch_scc1 %s_nc" % lab)
                a("s_sub_u32 s32, s2, 128")
                a("s_cmp_ge_u32 s32, 20")
                a("s_cbranch_scc1 %s_nc" % lab)
                fft_const(a, 32, vN, vG, vL, 96, 80)
                a("%s_nc:" % lab)
            a.lg = []
            pst(12)
            if not POST:
                a("s_cmp_ge_u32 s2, 128")
                a("s_cbranch_scc1 %s_nw" % lab)
                a("s_mul_i32 s33, s2, 18560")
                a("s_add_u32 s33, s33, %s" % hx(WT_OFF))
                for it in range(2 if hf == 0 else 1):
                    if it == 1:
                        a("s_cmp_ge_u32 s22, 2")
                        a("s_cbranch_scc1 %s_nw" % lab)
                    a("v_add_u32 v96, %d, v0" % (512 * it))
                    a("v_and_b32 v97, 1, v96")
                    a("v_lshrrev_b32 v98, 1, v96")
                    a("v_min_u32 v98, 288, v98")
                    a("v_mul_u32_u24 v99, 578, v97")
                    a("v_lshl_add_u32 v99, v98, 1, v99")
                    a("v_add_u32 v99, %d, v99" % TS)
                    for e in range(8):
                        a("ds_read_u16 v%d, v99 offset:%d" % (112 + e, e * 4096))
                        a("ds_read_u16 v%d, v99 offset:%d" % (120 + e, e * 4096 + 1160))
                    a("v_lshlrev_b32 v100, 6, v98")
                    a("v_lshl_add_u32 v100, v97, 5, v100")
                    a("s_waitcnt lgkmcnt(0)")
                    for e in range(8):
                        a("v_lshl_or_b32 v%d, v%d, 16, v%d" % (104 + e, 120 + e, 112 + e))
                    a("buffer_store_dwordx4 v[104:107], v100, s[12:15], s33 offen sc1")
                    a("buffer_store_dwordx4 v[108:111], v100, s[12:15], s33 offen offset:16 sc1")
                a("%s_nw:" % lab)
            a("v_mov_b32 v12, %d" % (SY + 36))
            a("v_mov_b32 v13, 1")
            a("s_mov_b64 exec, 1")
            a("ds_add_u32 v12, v13")
            a("s_mov_b64 exec, -1")
            if hf == 1 and POST:
                lds_spin(a, lab + "_c1", SY + 36, "8")
                a("s_mul_i32 s36, s38, 18432")
                a("s_add_u32 s36, s36, %d" % (PB + 8192))
                a("s_waitcnt vmcnt(0)")
                tile_finish(a, 9, 52, 240, 36, 52, vL)
                a("s_cmp_ge_u32 s63, 324")
                a("s_cbranch_scc1 %s_nt3" % lab)
                tile_finish(a, 9, 224, 240, 36, 57, vL)
                a("%s_nt3:" % lab)
                a("s_cmp_ge_u32 s2, 128")
                a("s_cbranch_scc1 %s_nw" % lab)
                a("v_lshlrev_b32 v12, 2, v9")
                a("v_add_u32 v12, s36, v12")
                for mb in range(2):
                    for arr in range(2):
                        for it in range(5):
                            if it == 4: a("s_mov_b32 exec_hi, 1")
                            a("ds_write_b32 v12, v%d offset:%d" % (68 + (mb * 2 + arr) * 5 + it, (mb * 2 + arr) * 1160 + 256 * it))
                            if it == 4: a("s_mov_b32 exec_hi, -1")
                a("s_waitcnt lgkmcnt(0)")
                a("v_mov_b32 v12, %d" % (SY + 8))
                a("v_mov_b32 v13, 1")
                a("s_mov_b64 exec, 1")
                a("ds_add_u32 v12, v13")
                a("s_mov_b64 exec, -1")
                lds_spin(a, lab + "_ws", SY + 8, "4")
                a("s_mul_i32 s33, s2, 18560")
                a("s_add_u32 s33, s33, %s" % hx(WT_OFF))
                for it in range(3):
                    if it == 2:
                        a("s_cmp_ge_u32 s22, 6")
                        a("s_cbranch_scc1 %s_nw" % lab)
                    a("v_add_u32 v96, %d, v0" % (256 * it - 256))
                    a("v_and_b32 v97, 1, v96")
                    a("v_lshrrev_b32 v98, 1, v96")
                    a("v_min_u32 v98, 288, v98")
                    a("v_mul_u32_u24 v99, 578, v97")
                    a("v_lshl_add_u32 v99, v98, 1, v99")
                    a("v_add_u32 v99, %d, v99" % (PB + 8192))
                    for e in range(8):
                        off = (e & 3) * 18432 + (e >> 2) * 2320
                        a("ds_read_u16 v%d, v99 offset:%d" % (112 + e, off))
                        a("ds_read_u16 v%d, v99 offset:%d" % (120 + e, off + 1160))
                    a("v_lshlrev_b32 v100, 6, v98")
                    a("v_lshl_add_u32 v100, v97, 5, v100")
                    a("s_waitcnt lgkmcnt(0)")
                    for e in range(8):
                        a("v_lshl_or_b32 v%d, v%d, 16, v%d" % (104 + e, 120 + e, 112 + e))
                    a("buffer_store_dwordx4 v[104:107], v100, s[12:15], s33 offen sc1")
                    a("buffer_store_dwordx4 v[108:111], v100, s[12:15], s33 offen offset:16 sc1")
                a("%s_nw:" % lab)
                a("v_mov_b32 v12, %d" % (SY + 24))
                a("v_mov_b32 v13, 1")
                a("s_mov_b64 exec, 1")
                a("ds_add_u32 v12, v13")
                a("s_mov_b64 exec, -1")
                a.vm = []; a.lg = []
                for i in range(DK - 1): issue_a(i)
                if PPRIO: a("s_setprio 0")
            else:
                a.vm = vm1; a.lg = []
            pst(13)
            pst(14)
            if est: a("s_memrealtime s[88:89]")
        def f2():
            a("s_lshl_b32 s33, s2, 3")
            a("s_add_u32 s33, s33, %s" % hx(FLAG_OFF + 32768))
            a("v_lshlrev_b32 v254, 11, v9")
            a("v_mov_b32 v12, s100")
            a("v_mov_b32 v13, s101")
            a("s_mov_b64 exec, 0xffff")
            a("buffer_store_dwordx2 v[12:13], v254, s[12:15], s33 offen sc1")
            a("s_mov_b64 exec, -1")
            a("s_lshl_b32 s33, s20, 8")
            a("s_lshl_b32 s34, s21, 3")
            a("s_add_u32 s33, s33, s34")
            a("s_add_u32 s33, s33, %s" % hx(FLAG_OFF + 2048))
            store_flag(a, "s33")
        nsync = [0]
        def fsync():
            n = nsync[0]; nsync[0] += 1
            a("s_add_u32 s87, s87, 4")
            a("v_mov_b32 v12, %d" % (SY + 16))
            a("v_mov_b32 v13, 1")
            a("s_mov_b64 exec, 1")
            a("ds_add_u32 v12, v13")
            a("s_mov_b64 exec, -1")
            lds_spin(a, "%s_fs%d" % (lab, n), SY + 16, "s87")
            a.lg = []
        def f2_check():
            a("s_cmp_lg_u32 s22, 4")
            a("s_cbranch_scc1 %s_np2" % lab)
            a("s_and_b32 s85, s2, 15")
            a("s_lshl_b32 s85, s85, 11")
            a("s_add_u32 s85, s85, %s" % hx(FLAG_OFF + 32768))
            a("v_lshlrev_b32 v254, 5, v9")
            poll_flags(a, lab + "_p2", 4, (0xffffffff, 0xffffffff), 254, 244, "s85", 16)
            a("v_mov_b32 v12, %d" % (SY + 12))
            a("v_mov_b32 v13, 1")
            a("ds_write_b32 v12, v13")
            a("%s_np2:" % lab)
            lds_spin(a, lab + "_w2", SY + 12, "1")
            a.lg = []
        def do_fft(flush):
            pst(15)
            ff = FFT(a, 16, 9, 38, FSC, 72, fsync, old=bool(two))
            D1 = ff.end; D2 = 192
            assert D1 + 42 <= 192 + 2, D1
            a("s_mov_b32 s87, 0")
            ff.addr()
            ff.data_loads(2, D1, 78, "c1")
            ff.const_loads()
            pst(17)
            flush()
            if fprio: a("s_setprio 2")
            pst(18)
            ff.twiddles()
            a("s_cmp_lt_u32 s2, 223")
            a("s_cbranch_scc1 %s_f1" % lab)
            vm_s = list(a.vm); tk = dict(ff.tok)
            a("s_add_u32 s82, s2, 33")
            ff.data_loads(82, D2 + 2, 64, "c2")
            ff.compute(D1, 78, "c1")
            fsync()
            ff.compute(D2 + 2, 64, "c2")
            a("s_add_u32 s87, s87, 0")
            a("s_branch %s_f2" % lab)
            a("%s_f1:" % lab)
            a.vm = vm_s; ff.tok = tk
            ff.compute(D1, 78, "c1")
            a("%s_f2:" % lab)
            if fprio: a("s_setprio %d" % (1 if bprio else 0))
            a("s_nop 1")
            a.lg = []
            pst(16)
        def publish2():
            gather_publish(a, lab + "_g2", SY + 4, "7", f2)
        def publish3():
            def f3():
                a("s_lshl_b32 s33, s2, 3")
                a("s_add_u32 s33, s33, %s" % hx(FLAG_OFF + 8192))
                store_flag(a, "s33")
                a("s_cmp_lt_u32 s2, 223")
                a("s_cbranch_scc1 %s_g3" % lab)
                a("s_add_u32 s33, s33, 264")
                store_flag(a, "s33")
            gather_publish(a, lab + "_g3", SY + 20, "3", f3)
        def check5():
            if hf == 0:
                a("s_cmp_lg_u32 s22, 0")
                a("s_cbranch_scc1 %s_n5" % lab)
                a("s_lshl_b32 s33, s20, 8")
                a("s_add_u32 s33, s33, %s" % hx(FLAG_OFF + 2048))
                a("v_lshrrev_b32 v244, 1, v%d" % vL)
                poll_flags(a, lab + "_p5", 1, (0xffffffff, 0), 244, 246, "s33", 8)
                a("v_mov_b32 v12, %d" % (SY + 32))
                a("v_mov_b32 v13, 1")
                a("ds_write_b32 v12, v13")
                a("%s_n5:" % lab)
            lds_spin(a, lab + "_w5", SY + 32, "1")
            a.lg = []
        if two and hf == 1:
            def bar():
                a.wait(vm=nt)
                a("v_readfirstlane_b32 s3, v250")
                a("s_barrier")
                if est: a("s_memrealtime s[88:89]")
            if fpos == 0:
                do_fft(bar)
            else:
                bar()
            for i in range(DK - 1): issue_a(i)
        if est: a("s_memrealtime s[90:91]")

        fill = deque()
        bucket = {"tok": 0.0}
        def cost_of(lines):
            c = 0
            for l in lines:
                op = l.split()[0]
                c += 8 if op in TRANS else (4 if op.startswith(("buffer", "ds_")) else (1 if op.startswith("s_") else 4))
            return c
        def fine(rate):
            bucket["tok"] += rate
            while fill and bucket["tok"] >= 4:
                n0 = len(a.lines)
                tag, f = fill.popleft(); f()
                bucket["tok"] -= cost_of(a.lines[n0:])
            if not fill: bucket["tok"] = 0.0
        def flush_tag(tag):
            while any(t == tag for t, _ in fill):
                fill.popleft()[1]()
        pw = {}

        def gelu_group(tag, regs, outs):
            T = [TMP + k for k in range(4)]
            seq = []
            for k in range(4): seq.append("v_mul_f32 v%d, v%d, v%d" % (T[k], regs[k], regs[k]))
            for k in range(4): seq.append("v_fmaak_f32 v%d, v%d, v%d, %s" % (T[k], T[k], vC1, hx(f32bits(C0))))
            for k in range(4): seq.append("v_mul_f32 v%d, v%d, v%d" % (T[k], regs[k], T[k]))
            for k in range(4): seq.append("v_exp_f32 v%d, v%d" % (T[k], T[k]))
            for k in range(4): seq.append("v_add_f32 v%d, 1.0, v%d" % (T[k], T[k]))
            for k in range(4): seq.append("v_rcp_f32 v%d, v%d" % (T[k], T[k]))
            for k in range(4): seq.append("v_mul_f32 v%d, v%d, v%d" % (T[k], regs[k], T[k]))
            seq.append("v_cvt_pk_bf16_f32 v%d, v%d, v%d" % (outs[0], T[0], T[1]))
            seq.append("v_cvt_pk_bf16_f32 v%d, v%d, v%d" % (outs[1], T[2], T[3]))
            if nogelu: seq = seq[-2:]
            for s_ in seq: fill.append((tag, lambda s_=s_: a(s_)))

        def accset(ph, ps):
            if ph == 1 and AORD and hf == 0: return [ACC[1], ACC[0], ACC[0]][ps]
            if ph == 1: return [ACC[0], ACC[1], ACC[0]][ps]
            if AORD and hf == 0: return [ACC3, ACC[1], ACC[0], ACC3][ps]
            return [ACC3, ACC[1], ACC[0], ACC3][ps] if hf == 0 else [ACC3, ACC[0]][ps]

        def queue_gelu(ps, nb):
            st = accset(1, ps); tag = "g%d" % ps
            pw[ps] = []
            for sb in range(4):
                pk = PK + 4 * (sb & 1)
                for bi in range(nb):
                    b = st + (bi * 4 + sb) * 4
                    gelu_group(tag, [b, b + 1, b + 2, b + 3], [pk + 2 * bi, pk + 2 * bi + 1])
                def wr(sb=sb, pk=pk):
                    if hf == 0 and ps == 1 and sb == 0 and POST:
                        lds_spin(a, lab + "_c2", SY + 24, "4")
                        a.lg = []
                    if ps == P1O[0] and sb == 0 and not two:
                        lds_spin(a, lab + "_pre", SY + 36, "8")
                        a.lg = []
                    if nb == 2:
                        pw[ps].append(a.lds("ds_write_b128 v%d, %s offset:%d" % (vPw, vr(pk, 4), sb * 18432 + ps * 8192)))
                    else:
                        pw[ps].append(a.lds("ds_write_b64 v%d, %s offset:%d" % (vPw8, vr(pk, 2), sb * 18432)))
                fill.append((tag, wr))
            for _ in range(3): fill.append((tag, lambda: a("s_nop 0")))
            def sig():
                a.wait(lg=pw[ps])
                a("v_mov_b32 v12, %d" % (SY + 40 + 4 * (ps + 3 * hf)))
                a("v_mov_b32 v13, 1")
                a("s_mov_b64 exec, 1")
                a.lds("ds_add_u32 v12, v13")
                a("s_mov_b64 exec, -1")
            fill.append((tag, sig))

        def queue_store(ps, nb):
            st = accset(2, ps); tag = "s%d" % ps
            fl = ["", " sc1", " sc0 sc1", " nt", " sc1 nt"][stf]
            k = 0
            for bi in range(nb):
                for rg in range(2):
                    pk = PK + 4 * (k & 1); k += 1
                    for s2 in range(2):
                        b = st + (bi * 4 + 2 * rg + s2) * 4
                        for h in range(2):
                            fill.append((tag, lambda pk=pk, s2=s2, b=b, h=h: a("v_cvt_pk_bf16_f32 v%d, v%d, v%d" % (pk + 2 * s2 + h, b + 2 * h, b + 2 * h + 1))))
                    def stv(pk=pk, bi=bi, rg=rg):
                        a("s_add_u32 s34, s%d, %d" % (64 + ps, rg * 36864))
                        a.vmem("buffer_store_dwordx4 %s, v%d, s[12:15], s34 offen offset:%d%s" % (vr(pk, 4), vL, bi * 1024, fl))
                    if not nostore: fill.append((tag, stv))

        bias_tok = {}
        def load_bias(ps):
            if ps < 2:
                bias_tok[ps] = [a.lds("ds_read_b128 %s, v%d offset:%d" % (vr(BIAS + 4 * bi, 4), vBias, 1024 * ps + 64 * bi)) for bi in range(2)]
            else:
                bias_tok[ps] = [a.lds("ds_read_b128 %s, v7" % vr(BIAS, 4))]

        seen_g = set()
        def sync(g):
            if g in seen_g: return
            seen_g.add(g)
            own = g - 3 * hf
            if 0 <= own < npass and (g < 3) == (hf == 0): flush_tag("g%d" % own)
            pst(30 + 2 * g)
            lds_spin(a, "%s_pg%d" % (lab, g), SY + 40 + 4 * g, "4")
            pst(31 + 2 * g)
            a.lg = []

        def hook(f):
            lg_save = list(a.lg)
            f()
            a.lg = lg_save

        load_bias(P1O[0])
        PBX = 2 if CH else PB_D
        for i in range(PBX):
            for r_ in b_items(i): r_()
        pend = {}
        for i in range(N):
            ph, ps, nb, t = steps[i]
            if CH and i % 2 == 0:
                continue_pair = True
            st = accset(ph, ps)
            first = first_i[(ph, ps)] == i
            if not CH:
                j = i + PB_D
                rds = []
                if MID and FP <= j < FP + PB_D:
                    pass
                elif j < N:
                    if steps[j][0] == 2: sync(grp_of[steps[j][3]])
                    rds = b_items(j)
            elif i % 2 == 0:
                j = i + 2
                rd2 = None
                if j < N and not (MID and j == FP):
                    if steps[j][0] == 2: sync(grp_of[steps[j][3]])
                    rd2 = [b_items(j), b_items(j + 1)]
            if first and P2 == 3 and ph == 2 and nb == 1:
                while fill: fill.popleft()[1]()
                a("s_cmp_ge_u32 s2, 223")
                a("s_cbranch_scc%d %s_opt" % (0 if hf == 1 else 1, lab))
                a("s_waitcnt vmcnt(4) lgkmcnt(0)")
                a("s_branch %s_e%dstart" % (name, 1 if ESH else hf))
                a("%s_opt:" % lab)
            if first:
                if ph == 1 and ps == 2 and not AORD: flush_tag("g0")
                if ph == 1 and ps == 1 and AORD and hf == 0: flush_tag("g2")
                if ph == 2:
                    for tg in ({0: [], 1: (["g0"] if AORD else ["g1", "g0"]), 2: ["g2", "g0", "g1"], 3: ["s0"]} if hf == 0 else {0: [], 1: ["g0"]})[ps]: flush_tag(tg)
            def emit_mfma(ii, bi, sb, frst):
                d = st + (bi * 4 + sb) * 4
                need = [b_tok[ii][sb]] if bi == 0 else []
                if frst:
                    c = "0" if ph == 2 else vr(BIAS + 4 * bi, 4)
                    if ph == 1: need = need + bias_tok[ps]
                else:
                    c = vr(d, 4)
                a.wait(vm=a_tok[ii][bi] if sb == 0 else None, lg=need)
                a("%s %s, %s, %s, %s" % (MFMA, vr(d, 4), vr(AR + (ii % DK) * 8 + 4 * bi, 4), vr(BR + (ii % 2) * 16 + 4 * sb, 4), c))
            if not CH:
                nm = 4 * nb
                for k in range(nm):
                    emit_mfma(i, k // 4, k % 4, first)
                    if rds and (nb == 1 or k % 2 == 0): rds.pop(0)()
                    fine(RATE)
            elif i % 2 == 0:
                assert steps[i + 1][:2] == (ph, ps)
                for sb in range(4):
                    for bi in range(nb):
                        emit_mfma(i, bi, sb, first)
                        fine(RATE)
                        emit_mfma(i + 1, bi, sb, False)
                        if bi == nb - 1 and rd2:
                            rd2[0][sb](); rd2[1][sb]()
                        fine(RATE)
            if i + DK - 1 == NP1 and (hf == 0 or FE) and not two:
                check5()
            if i + DK - 1 < N and not (MID and FP <= i + DK - 1 < FP + DK - 1): issue_a(i + DK - 1)
            if i == (DK if (hf == 0 or not POST) else 1) and not two: hook(publish2)
            if hf == 1 and i == (FP if MID else 0) + P3AT: hook(publish3)
            if hf == 1 and i == FP - (2 if FE else 6) and not two: hook(f2_check)
            if ph == 1 and t == 2 and P1O.index(ps) + 1 < npass and not (FE and MID): load_bias(P1O[P1O.index(ps) + 1])
            if last_i[(ph, ps)] == i:
                lg_s = list(a.lg); pst(20 + 3 * (ph - 1) + ps); a.lg = [] if est == 2 else lg_s
                if ph == 1: queue_gelu(ps, nb)
                else: queue_store(ps, nb)
                if est and i == NP1 - 1: a("s_memrealtime s[92:93]")
                if MID and i == FP - 1:
                    if not FE: flush_tag("g0")
                    do_fft(lambda: flush_tag("g0" if FE else "g1"))
                    if not two and not FE: check5()
                    for i2 in range(FP, FP + DK - 1): issue_a(i2)
                    if FE: load_bias(1)
                    for i2 in range(FP, FP + PBX):
                        if not FE: sync(grp_of[steps[i2][3]])
                        for r_ in b_items(i2): r_()
                if est and ph == 2 and ps == 0: a("s_memrealtime s[94:95]")
        while fill: fill.popleft()[1]()
        if est == 2:
            a("v_writelane_b32 v253, s100, 0")
            a("s_lshl_b32 s33, s2, 3")
            a("s_add_u32 s33, s33, s22")
            a("s_lshl_b32 s33, s33, 8")
            a("s_add_u32 s33, s33, %s" % hx(STAMP_OFF + 0x700000))
            a("v_lshrrev_b32 v12, 2, v%d" % vL)
            a("buffer_store_dword v253, v12, s[12:15], s33 offen")

        if ESH:
            if hf == 0:
                a("s_branch %s_e1start" % name)
            else:
                a("%s_e1start:" % name)
                epilogue_shared(a, name, XB, vL, poll_flags, store_flag, lds_spin, SY, est=est, SLP=SLP, G1=G1)
        else:
            a("%s_e%dstart:" % (name, hf))
            epilogue(a, name, hf, XB, vL, est=est, SLP=SLP, G1=G1, uload=1, mega=(poll_flags, store_flag, lds_spin, SY))

    body(0)
    a("%s_h1:" % name)
    body(1)
    a("%s_end:" % name)
    a("s_endpgm")
    n = a.fix_hazards()
    print("mega: nops inserted", n, "lines", len(a.lines))
    return kernel_header(name) + a.text() + kernel_desc(name, 256, 102), MEGA_LDS
```

```python
from asmgen import *
from layout import *

MAGIC576 = 7456541
INV576 = hx(f32bits(1.0 / 576.0))


def mod576(a, dst, src, tmp, smagic, s576):
    a("v_mul_hi_u32 v%d, v%d, s%d" % (tmp, src, smagic))
    a("v_mul_u32_u24 v%d, s%d, v%d" % (tmp, s576, tmp))
    a("v_sub_u32 v%d, v%d, v%d" % (dst, src, tmp))


def cinv_gen(a, base, s_db, vM, vG, T, S):
    D_, U0, DL, SH, SG, X = T, T + 1, T + 5, T + 6, T + 7, T + 8
    chunks = []
    def setup():
        a("s_lshl_b32 s%d, s%d, 4" % (S + 3, s_db))
        a("v_add_u32 v%d, s%d, v%d" % (D_, S + 3, vM))
        a("v_lshlrev_b32 v%d, 4, v%d" % (X, D_))
        mod576(a, X, X, X + 1, S, S + 1)
        a("v_cvt_f32_u32 v%d, v%d" % (X, X))
        a("v_mul_f32 v%d, s%d, v%d" % (DL, S + 2, X))
        a("v_lshlrev_b32 v%d, 1, v%d" % (X + 2, vG))
        for h in range(4):
            a("v_add_u32 v%d, %d, v%d" % (X, 8 * (h >> 1) + (h & 1), X + 2))
            a("v_mul_u32_u24 v%d, v%d, v%d" % (X, X, D_))
            mod576(a, X, X, X + 1, S, S + 1)
            a("v_cvt_f32_u32 v%d, v%d" % (X, X))
            a("v_mul_f32 v%d, s%d, v%d" % (U0 + h, S + 2, X))
        a("v_and_b32 v%d, 1, v%d" % (SH, D_))
        a("v_lshlrev_b32 v%d, 4, v%d" % (SH, SH))
        a("v_add_u32 v%d, 1, v%d" % (X, D_))
        a("v_bfe_u32 v%d, v%d, 1, 1" % (X, X))
        a("v_lshlrev_b32 v%d, 31, v%d" % (X, X))
        a("v_bfe_u32 v%d, v%d, 1, 1" % (X + 1, D_))
        a("v_lshl_or_b32 v%d, v%d, 15, v%d" % (SG, X + 1, X))
    chunks.append(setup)
    for t in range(9):
        def step(t=t):
            for h in range(4):
                if t:
                    a("v_fmamk_f32 v%d, v%d, %s, v%d" % (X + 8 + h, DL, hx(f32bits(float(t))), U0 + h))
            for h in range(4):
                u = X + 8 + h if t else U0 + h
                a("v_cos_f32 v%d, v%d" % (X + 2 * h, u))
                a("v_sin_f32 v%d, -v%d" % (X + 2 * h + 1, u))
            for h in range(4):
                a("v_cvt_pk_bf16_f32 v%d, v%d, v%d" % (base + 4 * t + h, X + 2 * h, X + 2 * h + 1))
            for h in range(4):
                a("v_alignbit_b32 v%d, v%d, v%d, v%d" % (base + 36 + 4 * t + h, base + 4 * t + h, base + 4 * t + h, SH))
            for h in range(4):
                a("v_xor_b32 v%d, v%d, v%d" % (base + 36 + 4 * t + h, SG, base + 36 + 4 * t + h))
            if t == 0:
                a("v_lshlrev_b32 v%d, 27, v%d" % (X, SH))
                a("v_or_b32 v%d, 0x3f803f80, v%d" % (X, X))
                a("v_cmp_eq_u32 vcc, 0, v%d" % vG)
                a("s_nop 1")
                a("v_cndmask_b32 v%d, v%d, v%d, vcc" % (base, base, X))
        chunks.append(step)
    return chunks


def final_math(a, nh, S_, Y, XV, B2, T, OUT):
    def rnd(r):
        a("v_cvt_pk_bf16_f32 v%d, v%d, v%d" % (T + 2, r, r + 1))
        a("v_lshlrev_b32 v%d, 16, v%d" % (r, T + 2))
        a("v_and_b32 v%d, 0xffff0000, v%d" % (r + 1, T + 2))
    for h in range(nh):
        s_ = S_ + 2 * h; y = Y + 2 * h
        rnd(s_)
        a("v_pk_add_f32 %s, %s, %s" % (vr(s_, 2), vr(s_, 2), vr(B2 + 2 * (h & 1), 2)))
        rnd(s_)
        rnd(y)
        a("v_lshlrev_b32 v%d, 16, v%d" % (T, XV + h))
        a("v_and_b32 v%d, 0xffff0000, v%d" % (T + 1, XV + h))
        a("v_pk_add_f32 %s, %s, %s" % (vr(y, 2), vr(y, 2), vr(T, 2)))
        rnd(y)
        a("v_pk_add_f32 %s, %s, %s" % (vr(y, 2), vr(y, 2), vr(s_, 2)))
        a("v_cvt_pk_bf16_f32 v%d, v%d, v%d" % (OUT + h, y, y + 1))


def epilogue(a, name, hf, UBASE, vLane16, NPART=8, est=0, SLP=4, G1=7, uload=0, early=None, mega=None):
    lab = "%s_e%d" % (name, hf)
    CA, CB = 16, 88
    ACC = 160
    BFR = 176
    T = 200
    M_, G_, VT0, VT1, VX0, VX1, VB = 220, 221, 222, 223, 224, 225, 226
    XV, B2R, XE, B2E = 228, 232, 234, 236
    PT = 16
    if est: a("s_memrealtime s[52:53]")
    a("s_load_dwordx2 s[40:41], s[0:1], 0")
    a("s_load_dwordx4 s[44:47], s[0:1], 56")
    a("s_load_dwordx2 s[42:43], s[0:1], 72")
    a("s_mov_b32 s64, %d" % MAGIC576)
    a("s_movk_i32 s65, 576")
    a("s_mov_b32 s66, %s" % INV576)
    a("v_lshrrev_b32 v%d, 4, v%d" % (T, vLane16))
    a("v_and_b32 v%d, 15, v%d" % (M_, T))
    a("v_lshrrev_b32 v%d, 4, v%d" % (G_, T))
    a("s_lshr_b32 s68, s20, 1")
    a("s_mul_i32 s68, s68, 9")
    a("s_add_u32 s69, s68, 8")
    a("s_add_u32 s68, s68, s22")
    a("s_and_b32 s70, s20, 1")
    a("s_lshl_b32 s71, s21, 1")
    a("s_add_u32 s70, s70, s71")
    a("v_bfe_u32 v%d, v%d, 2, 4" % (VT0, T))
    a("v_lshlrev_b32 v%d, 6, v%d" % (VT0, VT0))
    a("v_and_b32 v%d, 3, v%d" % (T + 1, T))
    a("v_lshl_add_u32 v%d, v%d, 3, v%d" % (VT0, T + 1, VT0))
    a("v_and_b32 v%d, 1, v%d" % (T + 1, G_))
    a("v_lshl_add_u32 v%d, v%d, 5, v%d" % (VT0, T + 1, VT0))
    a("v_add_u32 v%d, %s, v%d" % (VT0, hx(UBASE), VT0))
    a("v_xor_b32 v%d, 32, v%d" % (VT1, VT0))
    a("v_and_b32 v%d, 3, v%d" % (VX0, M_))
    a("v_bfe_u32 v%d, v%d, 2, 1" % (T + 1, M_))
    a("v_lshl_add_u32 v%d, v%d, 4, v%d" % (VX0, T + 1, VX0))
    a("v_bfe_u32 v%d, v%d, 3, 1" % (T + 1, M_))
    a("v_lshl_add_u32 v%d, v%d, 2, v%d" % (VX0, T + 1, VX0))
    a("s_mov_b32 s71, %d" % (32 * 1152))
    a("v_mul_lo_u32 v%d, v%d, s71" % (VX0, VX0))
    a("v_lshl_add_u32 v%d, v%d, 3, v%d" % (VX0, G_, VX0))
    a("v_add_u32 v%d, %d, v%d" % (VX1, 8 * 32 * 1152, VX0))
    a("v_lshlrev_b32 v%d, 3, v%d" % (VB, G_))
    a("s_lshr_b32 s72, s70, 1")
    a("s_and_b32 s73, s70, 1")
    a("s_lshl_b32 s73, s73, 10")
    a("s_add_u32 s72, s72, s73")
    a("s_mul_i32 s72, s72, 1152")
    a("s_lshl_b32 s73, s68, 5")
    a("s_lshl_b32 s75, s69, 5")
    a("s_add_u32 s74, s72, s75")
    a("s_and_b32 s78, s22, 1")
    a("s_mul_i32 s76, s78, %d" % (8 * 32 * 1152))
    a("s_add_u32 s74, s74, s76")
    a("s_add_u32 s72, s72, s73")
    a("s_mul_i32 s76, s70, 36")
    a("s_add_u32 s77, s76, s69")
    a("s_add_u32 s76, s76, s68")
    a("s_lshl_b32 s76, s76, 10")
    a("s_add_u32 s76, s76, %s" % hx(PART_OFF))
    a("s_lshl_b32 s77, s77, 10")
    a("s_lshl_b32 s78, s78, 3")
    a("s_add_u32 s77, s77, s78")
    a("s_add_u32 s77, s77, %s" % hx(PART_OFF))
    UR = 136
    def f3check(l2, fail, word):
        a("s_mov_b32 s85, %s" % hx(FLAG_OFF + 8192))
        a("v_lshlrev_b32 v252, 1, v%d" % vLane16)
        mega[0](a, l2 + "a", 4, (0xffffffff, 0xffffffff), 252, 244, "s85", 32, fail=fail)
        a("s_add_u32 s85, s85, 2048")
        a("v_lshrrev_b32 v252, 1, v%d" % vLane16)
        mega[0](a, l2 + "b", 1, (0xffffffff, 1), 252, 244, "s85", 32, fail=fail)
        a("v_mov_b32 v12, %d" % (mega[3] + word))
        a("v_mov_b32 v13, 1")
        a("ds_write_b32 v12, v13")
    if uload:
        a("v_lshrrev_b32 v240, 6, v%d" % vLane16)
        a("v_bfe_u32 v241, v%d, 8, 1" % vLane16)
        a("v_lshlrev_b32 v241, 5, v241")
        a("v_and_b32 v242, 48, v%d" % vLane16)
        a("v_xor_b32 v241, v241, v242")
        a("v_lshl_add_u32 v240, v240, 12, v241")
        if mega:
            a("s_and_b32 s83, s70, 1")
            a("s_lshl_b32 s83, s83, 11")
            a("s_lshl_b32 s84, s21, 6")
            a("s_add_u32 s83, s83, s84")
        else:
            a("s_lshl_b32 s83, s70, 6")
        a("s_lshl_b32 s84, s22, 16")
        a("s_add_u32 s83, s83, s84")
        a("s_add_u32 s83, s83, %s" % hx(UT_OFF))
        a("s_lshl_b32 s84, s22, 10")
        a("s_add_u32 s84, s84, %s" % hx(UBASE))
        a("v_add_u32 v241, s84, v%d" % vLane16)
        if hf == 0 and mega:
            a("s_cmp_lg_u32 s22, 0")
            a("s_cbranch_scc1 %s_fok" % lab)
            f3check(lab + "_e", (lab + "_ffail") if mega[4] else None, 60)
            a("s_branch %s_fok" % lab)
            a("%s_ffail:" % lab)
            a("v_mov_b32 v12, %d" % (mega[3] + 60))
            a("v_mov_b32 v13, 2")
            a("ds_write_b32 v12, v13")
            a("%s_fok:" % lab)
        elif hf == 0:
            a("s_cmp_lg_u32 s22, 0")
            a("s_cbranch_scc1 %s_fok" % lab)
            if early is not None:
                a("v_readfirstlane_b32 s80, v%d" % early)
                a("s_nop 3")
                a("s_cmp_ge_u32 s80, 289")
                a("s_cbranch_scc1 %s_fok" % lab)
            a("s_and_b32 s85, s2, 7")
            a("s_lshl_b32 s85, s85, 8")
            a("s_add_u32 s85, s85, %s" % hx(CNT_OFF + 8192))
            a("v_mov_b32 v238, 0")
            a("s_mov_b64 exec, 1")
            a("s_mov_b32 s81, 200000")
            a("%s_fpoll:" % lab)
            a("s_sub_u32 s81, s81, 1")
            a("s_cbranch_scc1 %s_fdone" % lab)
            a("buffer_load_dword v239, v238, s[12:15], s85 offen sc1")
            a("s_waitcnt vmcnt(0)")
            a("v_readfirstlane_b32 s80, v239")
            a("s_nop 3")
            a("s_cmp_ge_u32 s80, 289")
            a("s_cbranch_scc1 %s_fdone" % lab)
            a("s_sleep 8")
            a("s_branch %s_fpoll" % lab)
            a("%s_fdone:" % lab)
            a("s_mov_b64 exec, -1")
            a("%s_fok:" % lab)
    ch = cinv_gen(a, CA, 68, M_, G_, T, 64)
    nu = 5 if hf == 0 else 4
    def uloads():
        for i5 in range(nu):
            a("s_add_u32 s80, s83, %d" % (i5 * 8 * 65536))
            a("buffer_load_dwordx4 %s, v240, s[12:15], s80 offen sc1" % vr(UR + 4 * i5, 4))
    if mega:
        for c in ch[:2]: c()
        mega[2](a, lab + "_uok", mega[3] + 60, "1")
        a("s_mov_b32 s86, s35")
        a("s_cmp_lg_u32 s86, 1")
        a("s_cbranch_scc1 %s_u1" % lab)
        uloads()
        a("%s_u1:" % lab)
        for c in ch[2:4]: c()
    else:
        for c in ch[:4]: c()
    a.wait_all(vm=True, lg=True)
    def uwrites():
        for i5 in range(nu):
            a("ds_write_b128 v241, %s offset:%d" % (vr(UR + 4 * i5, 4), 8192 * i5))
    if mega:
        a("s_cmp_lg_u32 s86, 1")
        a("s_cbranch_scc1 %s_u2" % lab)
        uwrites()
        a("%s_u2:" % lab)
    a("s_barrier")
    if est: a("s_memrealtime s[54:55]")
    for (s_, lo, hi, n) in ((4, 40, 41, 2048 * 1152), (8, 46, 47, 2048 * 1152), (16, 44, 45, 1152)):
        a("s_mov_b32 s%d, s%d" % (s_, lo))
        a("s_and_b32 s%d, s%d, 0xffff" % (s_ + 1, hi))
        a("s_mov_b32 s%d, %s" % (s_ + 2, hx(n)))
        a("s_mov_b32 s%d, 0x20000" % (s_ + 3))
    a("s_lshl_b32 s79, s21, 8")
    a("s_add_u32 s79, s79, %s" % hx(FLAG_OFF + 12288 if mega else CNT_OFF))
    a("v_mov_b32 v%d, 0" % 238)
    a("v_mov_b32 v%d, 1" % 239)
    if hf == 0:
        a("s_cmp_lg_u32 s22, 0")
        a("s_cbranch_scc1 %s_noat" % lab)
        if mega:
            a("s_lshl_b32 s80, s20, 3")
            a("s_add_u32 s80, s80, s79")
            mega[1](a, "s80")
            a("s_cmp_eq_u32 s86, 1")
            a("s_cbranch_scc1 %s_noat" % lab)
            f3check(lab + "_l", None, 8)
        else:
            a("s_mov_b64 exec, 1")
            a("buffer_atomic_add v%d, v%d, s[12:15], s79 offen sc1" % (239, 238))
            a("s_mov_b64 exec, -1")
        a("%s_noat:" % lab)
    if uload and not mega: uloads()
    a("buffer_load_dwordx2 %s, v%d, s[4:7], s72 offen" % (vr(XV, 2), VX0))
    a("buffer_load_dwordx2 %s, v%d, s[4:7], s72 offen" % (vr(XV + 2, 2), VX1))
    a("buffer_load_dwordx2 %s, v%d, s[16:19], s73 offen" % (vr(B2R, 2), VB))
    PT = 88
    for c in ch[4:G1]: c()
    if mega:
        a("s_cmp_eq_u32 s86, 1")
        a("s_cbranch_scc1 %s_u3" % lab)
        mega[2](a, lab + "_uok2", mega[3] + 8, "1")
        uloads()
        a("s_waitcnt vmcnt(0)")
        uwrites()
        a("%s_u3:" % lab)

    def mm(sbs, acc):
        toks = {}
        def rd(t):
            b = BFR + 8 * (t % 3)
            toks[t] = [a.lds("ds_read_b64_tr_b16 %s, v%d offset:%d" % (vr(b + 4 * k + 2 * i, 2), VT0 + sb, t * 2048 + i * 1024)) for k, sb in enumerate(sbs) for i in range(2)]
        rd(0); rd(1)
        for t in range(18):
            if t + 2 < 18: rd(t + 2)
            b = BFR + 8 * (t % 3)
            for k, sb in enumerate(sbs):
                a.wait(lg=toks[t][2 * k: 2 * k + 2])
                d = acc + 4 * k
                a("v_mfma_f32_16x16x32_bf16 %s, %s, %s, %s" % (vr(d, 4), vr(CA + 4 * t, 4), vr(b + 4 * k, 4), "0" if t == 0 else vr(d, 4)))

    def tail(extra, poll):
        if est: a("s_memrealtime s[56:57]")
        if uload and not mega:
            a("s_waitcnt vmcnt(3)")
            for i5 in range(nu):
                a("ds_write_b128 v241, %s offset:%d" % (vr(UR + 4 * i5, 4), 8192 * i5))
        if poll and mega:
            a("v_lshrrev_b32 v243, 1, v%d" % vLane16)
            mega[0](a, lab + "_pp", 1, (0xff, 0), 243, 238, "s79", SLP)
        elif poll:
            a("s_mov_b64 exec, 1")
            a("s_mov_b32 s81, 200000")
            a("%s_poll:" % lab)
            a("s_sub_u32 s81, s81, 1")
            a("s_cbranch_scc1 %s_pdone" % lab)
            a("buffer_load_dword v239, v238, s[12:15], s79 offen sc1")
            a("s_waitcnt vmcnt(0)")
            a("v_readfirstlane_b32 s80, v239")
            a("s_nop 3")
            a("s_cmp_ge_u32 s80, %d" % NPART)
            a("s_cbranch_scc1 %s_pdone" % lab)
            a("s_sleep %d" % SLP)
            a("s_branch %s_poll" % lab)
            a("%s_pdone:" % lab)
            a("s_mov_b64 exec, -1")
        if uload: a("s_waitcnt lgkmcnt(0)")
        a("s_barrier")
        if est: a("s_memrealtime s[60:61]")
        a.vm = []
        pt = []; pe = []
        for c in range(NPART):
            a("s_add_u32 s80, s76, %s" % hx(c * 64 * 36864))
            pt.append(a.vmem("buffer_load_dwordx4 %s, v%d, s[12:15], s80 offen sc1" % (vr(PT + 4 * c, 4), vLane16)))
        if extra is not None:
            for c in range(NPART):
                a("s_add_u32 s80, s77, %s" % hx(c * 64 * 36864))
                pe.append(a.vmem("buffer_load_dwordx2 %s, v%d, s[12:15], s80 offen sc1" % (vr(PT + 32 + 2 * c, 2), vLane16)))
            a.vmem("buffer_load_dwordx2 %s, v%d, s[4:7], s74 offen" % (vr(XE, 2), VX0))
            xe = a.vmem("buffer_load_dwordx2 %s, v%d, s[16:19], s75 offen" % (vr(B2E, 2), VB))
        for c in ch[G1:]: c()
        mm([0, 1], ACC)
        if extra is not None:
            for c in cinv_gen(a, CA, 69, M_, G_, T, 64): c()
            mm([extra], ACC + 8)
        S_ = 176; TT = 188; B2 = 196
        def psum(c, tok, src, n, dst):
            a.wait(vm=tok)
            for h in range(n):
                d_ = dst + 2 * h if c == 0 else TT + 2 * h
                a("v_lshlrev_b32 v%d, 16, v%d" % (d_, src + h))
                a("v_and_b32 v%d, 0xffff0000, v%d" % (d_ + 1, src + h))
            if c:
                for h in range(n):
                    a("v_pk_add_f32 %s, %s, %s" % (vr(dst + 2 * h, 2), vr(dst + 2 * h, 2), vr(TT + 2 * h, 2)))
        for c in range(NPART):
            psum(c, pt[c], PT + 4 * c, 4, S_)
        for h in range(2):
            a("v_lshlrev_b32 v%d, 16, v%d" % (B2 + 2 * h, B2R + h))
            a("v_and_b32 v%d, 0xffff0000, v%d" % (B2 + 2 * h + 1, B2R + h))
        final_math(a, 4, S_, ACC, XV, B2, TT, T)
        a("buffer_store_dwordx2 %s, v%d, s[8:11], s72 offen" % (vr(T, 2), VX0))
        a("buffer_store_dwordx2 %s, v%d, s[8:11], s72 offen" % (vr(T + 2, 2), VX1))
        if extra is not None:
            a("s_waitcnt vmcnt(2)")
            for c in range(NPART):
                psum(c, None, PT + 32 + 2 * c, 2, S_ + 8)
            for h in range(2):
                a("v_lshlrev_b32 v%d, 16, v%d" % (B2 + 2 * h, B2E + h))
                a("v_and_b32 v%d, 0xffff0000, v%d" % (B2 + 2 * h + 1, B2E + h))
            final_math(a, 2, S_ + 8, ACC + 8, XE, B2, TT, T + 4)
            a("buffer_store_dwordx2 %s, v%d, s[8:11], s74 offen" % (vr(T + 4, 2), VX0))
        if est:
            a("s_memrealtime s[62:63]")
            a("s_waitcnt lgkmcnt(0)")
            for k_, r_ in enumerate((100, 52, 54, 56, 60, 62, 88, 90, 92, 94, 96, 96) if mega else (58, 52, 54, 56, 60, 62, 88, 90, 92, 94)):
                a("v_mov_b32 v%d, s%d" % (100 + k_, r_))
            a("s_lshl_b32 s80, s2, 3")
            a("s_add_u32 s80, s80, s22")
            a("s_lshl_b32 s80, s80, 6")
            a("s_add_u32 s80, s80, %s" % hx(STAMP_OFF + 0x600000))
            a("v_mov_b32 v112, 0")
            if est == 3:
                a("s_load_dwordx2 s[44:45], s[0:1], 72")
                a("s_waitcnt lgkmcnt(0)")
                a("s_mov_b32 s12, s44")
                a("s_and_b32 s13, s45, 0xffff")
                a("s_mov_b32 s14, 256")
                for k_ in range(1, 12):
                    a("v_sub_u32 v%d, v%d, v100" % (100 + k_, 100 + k_))
                a("s_lshl_b32 s80, s2, 3")
                a("s_add_u32 s80, s80, s22")
                a("s_cmp_eq_u32 s80, %d" % (37 * 8))
                a("s_cselect_b32 s80, 0, 0x1000")
            a("s_mov_b64 exec, 1")
            a("buffer_store_dwordx4 v[100:103], v112, s[12:15], s80 offen")
            a("buffer_store_dwordx4 v[104:107], v112, s[12:15], s80 offen offset:16")
            a("buffer_store_dwordx4 v[108:111], v112, s[12:15], s80 offen offset:32")
        a("s_endpgm")

    if hf == 0:
        a("s_cmp_eq_u32 s22, 2")
        a("s_cbranch_scc1 %s_w2" % lab)
        a("s_cmp_eq_u32 s22, 3")
        a("s_cbranch_scc1 %s_w3" % lab)
        a("s_cmp_eq_u32 s22, 1")
        a("s_cbranch_scc1 %s_plain" % lab)
        tail(None, True)
        a("%s_w2:" % lab)
        tail(0, False)
        a("%s_w3:" % lab)
        tail(1, False)
        a("%s_plain:" % lab)
    tail(None, False)
```

```python
from asmgen import *
from layout import *

MF = "v_mfma_f32_16x16x32_f16"


class FFT:
    def __init__(self, a, vb, lane, s_w, lds_base, st, sync, old=False):
        self.old = old
        self.a = a; self.lane = lane; self.s_w = s_w; self.lds = lds_base; self.st = st; self.sync = sync
        self.F0 = vb; self.F1 = vb + 16; self.FO = vb + 32; self.G = vb + 48; self.AC = vb + 64
        self.TW = vb + 88; self.TI = vb + 104; self.T = vb + 120
        T = self.T
        self.L16, self.N, self.Gq, self.VA, self.VB, self.VST, self.VZ, self.VW, self.VM = T + 4, T + 5, T + 6, T + 7, T + 8, T + 9, T + 10, T + 11, T + 12
        self.WS, self.FS = T + 13, T + 14
        self.end = T + 16
        self.tok = {}

    def ld(self, r, n, v, s, off=0):
        return self.a.vmem("buffer_load_dword%s %s, v%d, s[12:15], %s offen offset:%d%s" % ("" if n == 1 else "x%d" % n, vr(r, n), v, s, off, "" if self.old else " sc1"))

    def addr(self):
        a = self.a; S = lambda i: "s%d" % (self.st + i)
        lane, N, Gq = self.lane, self.N, self.Gq
        a("v_lshlrev_b32 v%d, 4, v%d" % (self.L16, lane))
        a("v_and_b32 v%d, 15, v%d" % (N, lane))
        a("v_lshrrev_b32 v%d, 4, v%d" % (Gq, lane))
        if self.old:
            a("v_lshlrev_b32 v%d, 2, v%d" % (self.VM, lane))
            a("v_lshlrev_b32 v%d, 5, v%d" % (self.VW, lane))
            return
        a("s_mov_b32 %s, %d" % (S(0), 2 * 576 * 64))
        a("v_mul_lo_u32 v%d, v%d, %s" % (self.VZ, N, S(0)))
        a("v_lshl_add_u32 v%d, v%d, 4, v%d" % (self.VZ, Gq, self.VZ))
        a("v_mul_u32_u24 v%d, 1280, v%d" % (self.VM, lane))
        a("v_lshrrev_b32 v%d, 1, v%d" % (self.VW, N))
        a("v_lshl_add_u32 v%d, v%d, 5, v%d" % (self.VW, Gq, self.VW))
        a("v_mul_u32_u24 v%d, 18560, v%d" % (self.VW, self.VW))
        a("v_and_b32 v%d, 1, v%d" % (self.VST, N))
        a("v_lshl_add_u32 v%d, v%d, 5, v%d" % (self.VW, self.VST, self.VW))

    def const_loads(self):
        a = self.a; S = lambda i: "s%d" % (self.st + i)
        a("s_lshl_b32 %s, s%d, 12" % (S(0), self.s_w))
        a("s_add_u32 %s, %s, %s" % (S(0), S(0), hx(CONST_OFF)))
        self.tok["fo"] = [self.ld(self.FO + 4 * i, 4, self.L16, S(0), 1024 * i) for i in range(4)]
        a("s_mov_b32 %s, %s" % (S(0), hx(CONST_OFF + 16384)))
        self.tok["g"] = [self.ld(self.G + 4 * i, 4, self.L16, S(0), 1024 * i) for i in range(4)]
        a("s_lshr_b32 %s, s%d, 1" % (S(1), self.s_w))
        a("s_lshl_b32 %s, %s, 13" % (S(0), S(1)))
        a("s_add_u32 %s, %s, %s" % (S(0), S(0), hx(CONST_OFF)))
        a("s_add_u32 %s, %s, 4096" % (S(1), S(0)))
        self.tok["f"] = [self.ld(self.F0 + 4 * i, 4, self.L16, S(i >> 2), 1024 * (i & 3)) for i in range(8)]

    def data_loads(self, s_col, D, sc, key, zr=None, wr=None):
        a = self.a; S = lambda i: "s%d" % (self.st + i); C = lambda i: "s%d" % (sc + i)
        a("s_lshl_b32 %s, s%d, 13" % (C(0), s_col))
        a("s_cmp_eq_u32 s%d, 288" % s_col)
        a("s_cselect_b32 %s, 4096, %s" % (C(0), C(0)))
        a("s_cselect_b32 %s, 1, 0" % S(2))
        a("s_cmp_eq_u32 s%d, 0" % s_col)
        a("s_cselect_b32 %s, 1, %s" % (S(2), S(2)))
        a("s_add_u32 %s, %s, 4096" % (C(1), C(0)))
        a("s_lshr_b32 %s, %s, 6" % (S(3), C(0)))
        a("s_add_u32 %s, %s, %s" % (S(3), S(3), hx(ZF_OFF)))
        a("s_add_u32 %s, %s, 64" % (S(4), S(3)))
        a("s_cmp_lg_u32 %s, 0" % S(2))
        a("s_cselect_b32 %s, 0x20000000, %s" % (C(1), C(1)))
        a("s_cselect_b32 %s, 0x20000000, %s" % (S(4), S(4)))
        a("s_cselect_b32 %s, 0, 0x800000" % C(2))
        a("s_add_u32 %s, %s, %s" % (C(2), C(2), hx(f32bits(1 / 36.))))
        t = {}
        if self.old:
            a("s_lshl_b32 %s, s%d, 8" % (S(0), s_col))
            a("s_add_u32 %s, %s, %s" % (S(0), S(0), hx(WMAX_OFF)))
            t["m"] = [self.ld(D + 40, 1, self.VM, S(0)), self.ld(D + 41, 1, self.VM, S(0))]
            for ri in range(2):
                a("s_add_u32 %s, %s, %s" % (S(0), C(ri), hx(ZF_OFF)))
                for f in range(4):
                    t[(ri, f)] = self.ld(D + 16 * ri + 4 * f, 4, self.L16, S(0), 1024 * f)
            a("s_lshl_b32 %s, s%d, 13" % (S(0), s_col))
            a("s_lshl_b32 %s, s%d, 11" % (S(1), self.s_w))
            a("s_add_u32 %s, %s, %s" % (S(0), S(0), S(1)))
            a("s_add_u32 %s, %s, %s" % (S(0), S(0), hx(WT_OFF)))
            t["w"] = [self.ld(D + 32 + 4 * i, 4, self.VW, S(0), 16 * i) for i in range(2)]
            self.tok[key] = t
            return
        a("s_cmp_ge_u32 s%d, 2" % self.s_w)
        a("s_cselect_b32 %s, %s, %s" % (S(0), S(4), S(3)))
        a("s_and_b32 %s, s%d, 1" % (S(1), self.s_w))
        a("s_mul_i32 %s, %s, %d" % (S(1), S(1), 32 * 576 * 64))
        a("s_add_u32 %s, %s, %s" % (S(0), S(0), S(1)))
        a("s_add_u32 %s, %s, %d" % (S(1), S(0), 576 * 64))
        t["zr"] = D if zr is None else zr
        t["wr"] = D + 32 if wr is None else wr
        t["z"] = [self.ld(t["zr"] + 4 * i, 4, self.VZ, S(i)) for i in range(2)]
        a("s_lshl_b32 %s, s%d, 6" % (S(0), s_col))
        a("s_mul_i32 %s, s%d, %d" % (S(1), self.s_w, 8 * 18560))
        a("s_add_u32 %s, %s, %s" % (S(0), S(0), S(1)))
        a("s_add_u32 %s, %s, %s" % (S(0), S(0), hx(WT_OFF)))
        t["w"] = [self.ld(t["wr"] + 4 * i, 4, self.VW, S(0), 16 * i) for i in range(2)]
        self.tok[key] = t

    def twiddles(self):
        a = self.a; S = lambda i: "s%d" % (self.st + i)
        T, TW, TI, N, Gq = self.T, self.TW, self.TI, self.N, self.Gq
        a("s_lshl_b32 %s, s%d, 4" % (S(0), self.s_w))
        a("v_add_u32 v%d, %s, v%d" % (T, S(0), N))
        a("v_cvt_f32_u32 v%d, v%d" % (T, T))
        a("v_mul_f32 v%d, %s, v%d" % (T, hx(f32bits(1 / 2048.)), T))
        a("v_lshlrev_b32 v%d, 2, v%d" % (T + 1, Gq))
        a("v_cvt_f32_u32 v%d, v%d" % (T + 1, T + 1))
        for e in range(8):
            a("v_add_f32 v%d, %s, v%d" % (T + 2 + (e & 1), hx(f32bits(float(16 * (e >> 2) + (e & 3)))), T + 1))
            a("v_mul_f32 v%d, v%d, v%d" % (T + 2 + (e & 1), T, T + 2 + (e & 1)))
            a("v_cos_f32 v%d, v%d" % (TW + 2 * e, T + 2 + (e & 1)))
            a("v_sin_f32 v%d, v%d" % (TW + 2 * e + 1, T + 2 + (e & 1)))
        X = T
        a("v_lshl_add_u32 v%d, v%d, 2, %s" % (X, Gq, S(0)))
        a("v_cvt_f32_u32 v%d, v%d" % (X, X))
        a("v_cvt_f32_u32 v%d, v%d" % (X + 1, N))
        a("v_mul_f32 v%d, %s, v%d" % (X + 1, hx(f32bits(1 / 2048.)), X + 1))
        a("v_add_f32 v%d, %s, v%d" % (X + 2, hx(f32bits(16 / 2048.)), X + 1))
        for e in range(8):
            a("v_add_f32 v%d, %s, v%d" % (X + 3, hx(f32bits(float(e & 3))), X))
            a("v_mul_f32 v%d, v%d, v%d" % (X + 3, X + 3, X + 1 + (e >> 2)))
            a("v_cos_f32 v%d, v%d" % (TI + 2 * e, X + 3))
            a("v_sin_f32 v%d, v%d" % (TI + 2 * e + 1, X + 3))
        a("s_lshr_b32 %s, s%d, 1" % (S(0), self.s_w))
        a("s_and_b32 %s, s%d, 1" % (S(1), self.s_w))
        a("s_lshl_b32 %s, %s, 10" % (S(2), S(0)))
        a("s_lshl_b32 %s, %s, 3" % (S(3), S(1)))
        a("s_add_u32 %s, %s, %s" % (S(2), S(2), S(3)))
        a("s_add_u32 %s, %s, %d" % (S(2), S(2), self.lds))
        a("v_add_u32 v%d, %s, v%d" % (self.VA, S(2), self.L16))
        a("s_lshl_b32 %s, %s, 11" % (S(2), S(1)))
        a("s_add_u32 %s, %s, %d" % (S(2), S(2), self.lds))
        a("v_add_u32 v%d, %s, v%d" % (self.VB, S(2), self.L16))
        a("v_lshlrev_b32 v%d, 6, v%d" % (self.VST, N))
        a("v_lshl_add_u32 v%d, v%d, 4, v%d" % (self.VST, Gq, self.VST))
        a("s_lshl_b32 %s, %s, 10" % (S(1), S(1)))
        a("s_lshl_b32 %s, %s, 11" % (S(0), S(0)))
        a("s_add_u32 %s, %s, %s" % (S(0), S(0), S(1)))
        a("s_add_u32 %s, %s, %s" % (S(0), S(0), hx(UT_OFF)))
        a("v_add_u32 v%d, %s, v%d" % (self.VST, S(0), self.VST))

    def compute(self, Z, sc, key, mid=None):
        a = self.a; S = lambda i: "s%d" % (self.st + i); C_ = lambda i: "s%d" % (sc + i)
        t = self.tok[key]
        AC, TW, TI, T, FO, F0, F1, G = self.AC, self.TW, self.TI, self.T, self.FO, self.F0, self.F1, self.G
        W = t.get("wr", Z + 32); D = Z; WS_, FS = self.WS, self.FS
        M = T + 2
        if self.old:
            a.wait(vm=t["m"])
            a("v_max_u32 v%d, v%d, v%d" % (M, Z + 40, Z + 41))
        else:
            a.wait(vm=t["z"])
            a("s_lshl_b32 %s, s%d, 11" % (S(0), self.s_w))
            a("s_add_u32 %s, %s, %d" % (S(0), S(0), self.lds))
            a("v_add_u32 v%d, %s, v%d" % (T, S(0), self.L16))
            zw = [a.lds("ds_write_b128 v%d, %s offset:%d" % (T, vr(t["zr"] + 4 * i, 4), 1024 * i)) for i in range(2)]
            a.wait(vm=t["w"])
            for e in range(8):
                a("v_lshlrev_b32 v%d, 16, v%d" % (T + 1, W + e))
                a("v_and_b32 v%d, 0x7fff0000, v%d" % (T + 3, W + e))
                if e == 0: a("v_max_f32 v%d, |v%d|, v%d" % (M, T + 1, T + 3))
                else: a("v_max3_f32 v%d, |v%d|, v%d, v%d" % (M, T + 1, T + 3, M))
        for sh in (8, 4, 2, 1):
            a("v_max_u32_dpp v%d, v%d, v%d row_ror:%d row_mask:0xf bank_mask:0xf" % (M, M, M, sh))
        for i in range(4):
            a("v_readlane_b32 %s, v%d, %d" % (S(i & 1) if i < 2 else S(2), M, 16 * i))
            if i >= 1:
                a("s_max_u32 %s, %s, %s" % (S(0), S(0), S(1) if i == 1 else S(2)))
        if not self.old:
            a("v_mov_b32 v%d, %s" % (M, S(0)))
            a("s_lshl_b32 %s, s%d, 2" % (S(1), self.s_w))
            a("s_add_u32 %s, %s, %d" % (S(1), S(1), self.lds + 8192))
            a("v_mov_b32 v%d, %s" % (T + 1, S(1)))
            zw.append(a.lds("ds_write_b32 v%d, v%d" % (T + 1, M)))
            a.wait(lg=zw)
            self.sync()
            a("v_add_u32 v%d, %d, v%d" % (T, self.lds, self.L16))
            a("v_mov_b32 v%d, %d" % (T + 1, self.lds + 8192))
            mr = a.lds("ds_read_b128 %s, v%d" % (vr(AC, 4), T + 1))
            zr = {}
            for ri in range(2):
                for f in range(4):
                    zr[(ri, f)] = a.lds("ds_read_b128 %s, v%d offset:%d" % (vr(Z + 16 * ri + 4 * f, 4), T, (ri * 4 + f) * 1024))
            a.wait(lg=mr)
            a("v_max3_u32 v%d, v%d, v%d, v%d" % (M, AC, AC + 1, AC + 2))
            a("v_max_u32 v%d, v%d, v%d" % (M, M, AC + 3))
            a("v_readfirstlane_b32 %s, v%d" % (S(0), M))
        a("s_lshr_b32 %s, %s, 23" % (S(0), S(0)))
        a("s_max_u32 %s, %s, 1" % (S(0), S(0)))
        a("s_min_u32 %s, %s, 252" % (S(0), S(0)))
        a("s_sub_u32 %s, 253, %s" % (S(1), S(0)))
        a("s_lshl_b32 %s, %s, 23" % (S(1), S(1)))
        a("v_mov_b32 v%d, %s" % (WS_, S(1)))
        a("s_add_u32 %s, %s, 1" % (S(0), S(0)))
        a("s_lshl_b32 %s, %s, 23" % (S(0), S(0)))
        a("v_mov_b32 v%d, %s" % (FS, S(0)))
        a("v_mul_f32 v%d, %s, v%d" % (FS, C_(2), FS))
        Zr = lambda mb, tt: vr(Z + 4 * (2 * mb + tt), 4)
        Zi = lambda mb, tt: vr(Z + 16 + 4 * (2 * mb + tt), 4)
        C = lambda b, tt: vr(b + 4 * tt, 4)
        Sn = lambda b, tt: vr(b + 8 + 4 * tt, 4)
        acc = lambda i, m: AC + 8 * i + 4 * m
        def mf(d, A, B, first):
            a("%s %s, %s, %s, %s" % (MF, vr(d, 4), A, B, "0" if first else vr(d, 4)))
        a.wait(vm=self.tok["fo"])
        for tt in range(2):
            for mb in range(2):
                if self.old: a.wait(vm=t[(0, 2 * mb + tt)])
                else: a.wait(lg=zr[(0, 2 * mb + tt)])
                mf(acc(0, mb), Zr(mb, tt), C(FO, tt), tt == 0)
                mf(acc(2, mb), Zr(mb, tt), Sn(FO, tt), tt == 0)
        for tt in range(2):
            for mb in range(2):
                if self.old: a.wait(vm=t[(1, 2 * mb + tt)])
                else: a.wait(lg=zr[(1, 2 * mb + tt)])
                mf(acc(0, mb), Zi(mb, tt), Sn(FO, tt), False)
                mf(acc(1, mb), Zi(mb, tt), C(FO, tt), tt == 0)
        X = T
        def cmul(re, im, c, s, sign, outr, outi):
            a("v_mul_f32 v%d, v%d, v%d" % (outr, re, c))
            a("v_mul_f32 v%d, v%d, v%d" % (outi, im, c))
            a("v_fma_f32 v%d, %sv%d, v%d, v%d" % (outr, "-" if sign > 0 else "", im, s, outr))
            a("v_fma_f32 v%d, %sv%d, v%d, v%d" % (outi, "" if sign > 0 else "-", re, s, outi))
        R_, I_ = D + 8, D + 16
        def pack():
            for h in range(4):
                a("v_cvt_pk_f16_f32 v%d, v%d, v%d" % (D + h, R_ + 2 * h, R_ + 2 * h + 1))
                a("v_cvt_pk_f16_f32 v%d, v%d, v%d" % (D + 4 + h, I_ + 2 * h, I_ + 2 * h + 1))
        a.wait(vm=t["w"])
        for e in range(8):
            a("v_sub_f32 v%d, v%d, v%d" % (AC + 8 + e, AC + 8 + e, AC + 16 + e))
        for e in range(8):
            cmul(AC + e, AC + 8 + e, TW + 2 * e, TW + 2 * e + 1, -1, R_ + e, I_ + e)
        pack()
        Dr, Di = vr(D, 4), vr(D + 4, 4)
        C32 = lambda b: vr(G + 8 * b, 4)
        S32 = lambda b: vr(G + 8 * b + 4, 4)
        a.wait(vm=self.tok["g"])
        for b in range(2):
            mf(acc(0, b), C32(b), Dr, True)
            mf(acc(1, b), C32(b), Di, True)
            mf(acc(2, b), S32(b), Dr, True)
        for b in range(2):
            mf(acc(0, b), S32(b), Di, False)
        for e in range(8):
            a("v_lshlrev_b32 v%d, 16, v%d" % (D + 24 + e, W + e))
            a("v_and_b32 v%d, 0xffff0000, v%d" % (W + e, W + e))
            a("v_mul_f32 v%d, v%d, v%d" % (D + 24 + e, D + 24 + e, WS_))
            a("v_mul_f32 v%d, v%d, v%d" % (W + e, W + e, WS_))
        for e in range(8):
            a("v_sub_f32 v%d, v%d, v%d" % (AC + 8 + e, AC + 8 + e, AC + 16 + e))
        for e in range(8):
            cmul(AC + e, AC + 8 + e, D + 24 + e, W + e, +1, R_ + e, I_ + e)
        pack()
        for b in range(2):
            mf(acc(0, b), Di, C32(b), True)
            mf(acc(1, b), Dr, C32(b), True)
            mf(acc(2, b), Di, S32(b), True)
        for b in range(2):
            mf(acc(0, b), Dr, S32(b), False)
        for e in range(8):
            a("v_sub_f32 v%d, v%d, v%d" % (AC + 8 + e, AC + 8 + e, AC + 16 + e))
        for e in range(8):
            cmul(AC + 8 + e, AC + e, TI + 2 * e, TI + 2 * e + 1, +1, R_ + e, I_ + e)
        pack()
        if mid: mid()
        if not self.old: self.sync()
        ww = []
        for ri in range(2):
            for nb in range(2):
                ww.append(a.lds("ds_write_b64 v%d, %s offset:%d" % (self.VA, vr(D + 4 * ri + 2 * nb, 2), (ri * 2 + nb) * 2048)))
        a.wait(lg=ww)
        self.sync()
        V = D + 8
        vt = {}
        for tt in range(2):
            for ri in range(2):
                vt[(ri, tt)] = a.lds("ds_read_b128 %s, v%d offset:%d" % (vr(V + 8 * ri + 4 * tt, 4), self.VB, ri * 4096 + tt * 1024))
        Vr = lambda tt: vr(V + 4 * tt, 4)
        Vi = lambda tt: vr(V + 8 + 4 * tt, 4)
        a.wait(vm=self.tok["f"])
        for tt in range(2):
            a.wait(lg=vt[(0, tt)])
            for m, Fb in enumerate((F0, F1)):
                mf(acc(1, m), C(Fb, tt), Vr(tt), tt == 0)
                mf(acc(0, m), Sn(Fb, tt), Vr(tt), tt == 0)
            a.wait(lg=vt[(1, tt)])
            for m, Fb in enumerate((F0, F1)):
                mf(acc(2, m), Sn(Fb, tt), Vi(tt), tt == 0)
                mf(acc(0, m), C(Fb, tt), Vi(tt), False)
        for e in range(8):
            a("v_sub_f32 v%d, v%d, v%d" % (AC + 8 + e, AC + 8 + e, AC + 16 + e))
        for e in range(8):
            a("v_mul_f32 v%d, v%d, v%d" % (AC + 8 + e, AC + 8 + e, FS))
            a("v_mul_f32 v%d, v%d, v%d" % (AC + e, AC + e, FS))
        for h in range(4):
            a("v_cvt_pk_bf16_f32 v%d, v%d, v%d" % (D + h, AC + 8 + 2 * h, AC + 9 + 2 * h))
            a("v_cvt_pk_bf16_f32 v%d, v%d, v%d" % (D + 4 + h, AC + 2 * h, AC + 1 + 2 * h))
        a.vmem("buffer_store_dwordx4 %s, v%d, s[12:15], %s offen sc1" % (vr(D, 4), self.VST, C_(0)))
        a.vmem("buffer_store_dwordx4 %s, v%d, s[12:15], %s offen sc1" % (vr(D + 4, 4), self.VST, C_(1)))
```

```python
from asmgen import *
from layout import *
from collections import deque
from gen_epi import epilogue, MAGIC576, INV576
from gen_fft2 import FFT
from gen_pro import *
from gen_epi2 import epilogue_shared

C0 = -2.0 * 1.4426950408889634 * 0.7978845608028654
C1 = C0 * 0.044715
MFMA = "v_mfma_f32_16x16x32_bf16"
XB = 0
PB = 73728
A16 = PB
TS = PB + 36864
BIASB = 147456
SY = BIASB + 2304
FSC = BIASB + 2560
MEGA_LDS = 163840
SPIN = 100000
TBS = 98


def srd(a, s, lo, hi, nbytes):
    a("s_mov_b32 s%d, s%d" % (s, lo))
    a("s_and_b32 s%d, s%d, 0xffff" % (s + 1, hi))
    a("s_mov_b32 s%d, %s" % (s + 2, hx(nbytes)))
    a("s_mov_b32 s%d, 0x20000" % (s + 3))


WIN = 1500


def poll_flags(a, lab, nf, execmask, va, vd, soff, slp, pre=None, fail=None):
    a("s_mov_b32 exec_lo, %s" % hx(execmask[0]))
    a("s_mov_b32 exec_hi, %s" % hx(execmask[1]))
    a("s_mov_b32 s35, %d" % SPIN)
    a("%s_l:" % lab)
    a("s_sub_u32 s35, s35, 1")
    a("s_cbranch_scc1 %s_ok" % lab)
    if nf == 1:
        a("buffer_load_dwordx2 %s, v%d, s[12:15], %s offen sc1" % (vr(vd, 2), va, soff))
    else:
        for k in range(nf // 2):
            a("buffer_load_dwordx4 %s, v%d, s[12:15], %s offen offset:%d sc1" % (vr(vd + 4 * k, 4), va, soff, 16 * k))
    a("v_mov_b32 v13, s%d" % (TBS + 1))
    a("s_waitcnt vmcnt(0)")
    for i in range(nf):
        a("v_subrev_co_u32 v%d, vcc, s%d, v%d" % (vd + 2 * i, TBS, vd + 2 * i))
        a("v_subb_co_u32 v%d, vcc, v%d, v13, vcc" % (vd + 2 * i + 1, vd + 2 * i + 1))
        a("v_lshrrev_b32 v%d, 12, v%d" % (vd + 2 * i, vd + 2 * i))
        a("v_or_b32 v%d, v%d, v%d" % (vd + 2 * i, vd + 2 * i, vd + 2 * i + 1))
        if i: a("v_or_b32 v%d, v%d, v%d" % (vd, vd, vd + 2 * i))
    a("v_cmp_ne_u32 vcc, 0, v%d" % vd)
    a("s_nop 1")
    a("s_cmp_eq_u64 vcc, 0")
    a("s_cbranch_scc1 %s_ok" % lab)
    if fail:
        a("s_mov_b64 exec, -1")
        a("s_branch %s" % fail)
    else:
        a("s_sleep %d" % slp)
        a("s_branch %s_l" % lab)
    a("%s_ok:" % lab)
    a("s_mov_b64 exec, -1")


def lds_spin(a, lab, addr, target):
    a("v_mov_b32 v12, %d" % addr)
    a("%s:" % lab)
    a("ds_read_b32 v13, v12")
    a("s_waitcnt lgkmcnt(0)")
    a("v_readfirstlane_b32 s35, v13")
    a("s_nop 3")
    a("s_cmp_ge_u32 s35, %s" % target)
    a("s_cbranch_scc1 %s_d" % lab)
    a("s_sleep 1")
    a("s_branch %s" % lab)
    a("%s_d:" % lab)


def gather_publish(a, lab, cnt_addr, last, soff_expr, need_nonce=False):
    a("v_mov_b32 v12, %d" % cnt_addr)
    a("v_mov_b32 v13, 1")
    a("s_mov_b64 exec, 1")
    a("ds_add_rtn_u32 v13, v12, v13")
    a("s_waitcnt lgkmcnt(0)")
    a("v_readfirstlane_b32 s35, v13")
    a("s_mov_b64 exec, -1")
    a("s_nop 1")
    a("s_cmp_lg_u32 s35, %s" % last)
    a("s_cbranch_scc1 %s" % lab)
    soff_expr()
    a("%s:" % lab)


def code_touch(a, lab_from, lab_to, nlines_max, uniq):
    a("s_getpc_b64 s[92:93]")
    a("%s:" % uniq)
    a("s_add_u32 s92, s92, %s-%s" % (lab_from, uniq))
    a("s_addc_u32 s93, s93, 0")
    for r in range((nlines_max + 63) // 64):
        a("v_lshlrev_b32 v12, 7, v9")
        if r: a("v_add_u32 v12, %d, v12" % (8192 * r))
        a("v_min_u32 v12, %s-%s, v12" % (lab_to, lab_from))
        a("global_load_dword v13, v12, s[92:93]")


def store_flag(a, soff):
    a("v_mov_b32 v12, s100")
    a("v_mov_b32 v13, s101")
    a("s_mov_b64 exec, 1")
    a("buffer_store_dwordx2 v[12:13], v1, s[12:15], %s offen sc1" % soff)
    a("s_mov_b64 exec, -1")


def gen_mega(name, DK=8, PB_D=1, cmap=2, RATE=8.5, est=0, SLP=4, G1=9, fprio=1, stf=1, nogelu=0, nostore=0, prio=0, xc=0, b0e=1, aplain=0, DKA=8, bprio=1, ctouch=0, nofft=0, P3AT=1, two=0, fpos=0, P2=3, AORD=1, KSP=1, FE=0, LNF=0, CH=1, PPRIO=0, ESH=0, POST=0, FEL=1, ONCE=0, CHF=1):
    stamps = 0; epi = 1
    a = Asm()
    def pst(k):
        if est == 2:
            a("s_memrealtime vcc")
            a("s_waitcnt lgkmcnt(0)")
            a("v_writelane_b32 v253, vcc_lo, %d" % k)
            if 20 <= k < 30:
                a("s_memtime vcc")
                a("s_waitcnt lgkmcnt(0)")
                a("v_writelane_b32 v253, vcc_lo, %d" % (k + 30))
    AR = 16
    BR = AR + DK * 8
    ACC = [BR + (PB_D + 1) * 16, BR + (PB_D + 1) * 16 + 32]
    BIAS = ACC[1] + 32
    TMP = BIAS + 8
    PK = TMP + 4
    NV = PK + 8
    vL, vLP, vBias, vPw, vC1, vPw8 = 1, 2, 3, 4, 5, 6
    vXe, vXo, vXeH, vXoH, vLPH = 10, 11, 14, 15, 8
    LA = " sc1"
    a("s_cmp_ge_u32 s2, 256")
    a("s_cbranch_scc1 %s_end" % name)
    a("s_load_dwordx16 s[48:63], s[0:1], 0")
    a("s_load_dwordx2 s[46:47], s[0:1], 80")
    a("s_memrealtime s[100:101]")
    a("v_lshrrev_b32 v8, 6, v0")
    a("v_and_b32 v9, 63, v0")
    a("v_readfirstlane_b32 s22, v8")
    if ctouch:
        a("s_nop 3")
        a("s_cmp_lg_u32 s22, 6")
        a("s_cbranch_scc1 %s_nct" % name)
        code_touch(a, name + "_nct", name + "_end", 720, name + "_ct")
        a("%s_nct:" % name)
    if cmap == 0:
        a("s_and_b32 s20, s2, 7")
        a("s_lshr_b32 s21, s2, 3")
    elif cmap == 2:
        a("s_and_b32 s20, s2, 1")
        a("s_lshl_b32 s20, s20, 2")
        a("s_bfe_u32 s33, s2, 0x20003")
        a("s_add_u32 s20, s20, s33")
        a("s_bfe_u32 s21, s2, 0x20001")
        a("s_lshl_b32 s21, s21, 3")
        a("s_lshr_b32 s33, s2, 5")
        a("s_add_u32 s21, s21, s33")
    else:
        a("s_and_b32 s20, s2, 3")
        a("s_lshl_b32 s20, s20, 1")
        a("s_bfe_u32 s33, s2, 0x10003")
        a("s_add_u32 s20, s20, s33")
        a("s_bfe_u32 s21, s2, 0x10002")
        a("s_lshl_b32 s21, s21, 4")
        a("s_lshr_b32 s33, s2, 4")
        a("s_add_u32 s21, s21, s33")
    a("s_and_b32 s38, s22, 3")
    a("s_lshr_b32 s39, s22, 2")
    a("s_add_u32 s23, s22, s21")
    a("s_and_b32 s23, s23, 7")
    a("s_mul_i32 s24, s20, %d" % (36 * 18432))
    a("s_mul_i32 s25, s22, 36864")
    a("s_add_u32 s25, s25, s24")
    a("s_add_u32 s26, s25, %d" % (16 * 18432))
    a("s_mul_i32 s27, s38, 18432")
    a("s_add_u32 s27, s27, s24")
    a("s_add_u32 s27, s27, %d" % (32 * 18432))
    a("s_lshl_b32 s37, s20, 6")
    a("s_lshl_b32 s33, s21, 1")
    a("s_add_u32 s37, s37, s33")
    a("s_mul_i32 s37, s37, 36864")
    a("s_add_u32 s37, s37, %s" % hx(PART_OFF))
    a("s_mov_b32 s28, s24")
    a("s_mov_b32 s40, s37")
    a("s_mov_b32 s41, s24")
    a("s_lshl_b32 s42, s21, 1")
    a("s_mul_i32 s33, s42, 3641")
    a("s_lshr_b32 s33, s33, 16")
    a("s_mul_i32 s33, s33, 18")
    a("s_sub_u32 s42, s42, s33")
    a("v_lshlrev_b32 v%d, 4, v9" % vL)
    a("v_add_u32 v%d, %d, v%d" % (vLP, PB, vL))
    a("v_lshrrev_b32 v16, 4, v9")
    a("s_lshl_b32 s33, s22, 7")
    a("s_add_u32 s33, s33, %d" % BIASB)
    a("v_lshl_add_u32 v%d, v16, 4, s33" % vBias)
    a("s_lshl_b32 s33, s38, 6")
    a("s_add_u32 s33, s33, %d" % (BIASB + 2048))
    a("v_lshl_add_u32 v7, v16, 4, s33")
    a("s_lshl_b32 s33, s22, 10")
    a("v_add_u32 v%d, s33, v%d" % (vPw, vLP))
    a("s_lshr_b32 s33, s38, 1")
    a("s_lshl_b32 s33, s33, 10")
    a("s_and_b32 s34, s38, 1")
    a("s_lshl_b32 s34, s34, 3")
    a("s_add_u32 s33, s33, s34")
    a("s_add_u32 s33, s33, 16384")
    a("v_add_u32 v%d, s33, v%d" % (vPw8, vLP))
    a("v_mov_b32 v%d, %s" % (vC1, hx(f32bits(C1))))
    if two:
        a("v_add_u32 v%d, 0x10000, v%d" % (vLPH, vLP))
        a("v_mov_b32 v%d, v%d" % (vXe, vL)); a("v_mov_b32 v%d, v%d" % (vXo, vL))
        a("v_add_u32 v%d, 0x10000, v%d" % (vXeH, vL)); a("v_add_u32 v%d, 0x10000, v%d" % (vXoH, vL))
        a("s_lshl_b32 s36, s21, 2")
        a("s_add_u32 s36, s36, s38")
        a("s_mul_i32 s36, s36, 18432")
        a("s_add_u32 s36, s36, %s" % hx(XNF_OFF))
        a("s_mul_i32 s29, s38, 18432")
        a("s_mul_i32 s56, s20, 2304")
        a("s_waitcnt lgkmcnt(0)")
        a("s_sub_u32 s98, s100, 2048")
        a("s_subb_u32 s99, s101, 0")
        a("s_mul_i32 s56, s20, 2304")
        a("s_add_u32 s56, s56, %s" % hx(B1F_OFF))
        srd(a, 12, 46, 47, WS_BYTES)
        a("s_cmp_lg_u32 s39, 0")
        a("s_cbranch_scc1 %s_h1" % name)
    else:
        vN, vG = 248, 249
        a("v_and_b32 v%d, 15, v9" % vN)
        a("v_lshrrev_b32 v%d, 4, v9" % vG)
        a("v_xor_b32 v16, v%d, v%d" % (vG, vN))
        a("v_lshl_add_u32 v17, v%d, 4, v16" % vG)
        a("v_lshlrev_b32 v%d, 4, v17" % vXe)
        a("v_xor_b32 v%d, 64, v%d" % (vXo, vXe))
        a("v_add_u32 v%d, 0x10000, v%d" % (vXeH, vXe))
        a("v_add_u32 v%d, 0x10000, v%d" % (vXoH, vXo))
        a("v_add_u32 v%d, 0x10000, v%d" % (vLPH, vLP))
        vX, vXB0, vA0 = 250, 251, 252
        a("s_mov_b32 s33, %d" % (1152 if xc else 32 * 1152))
        a("v_mul_lo_u32 v%d, v%d, s33" % (vX, vG))
        a("v_lshl_add_u32 v%d, v%d, 3, v%d" % (vX, vN, vX))
        a("s_lshl_b32 s28, s22, 3")
        a("s_lshl_b32 s28, s28, 5")
        a("s_add_u32 s28, s28, s21")
        a("s_mul_i32 s28, s28, 1152")
        a("s_add_u32 s29, s28, %d" % (4 * 32 * 1152))
        if xc:
            a("s_lshl_b32 s28, s21, 3")
            a("s_add_u32 s28, s28, s22")
            a("s_mul_i32 s28, s28, %d" % (8 * 1152))
            a("s_add_u32 s29, s28, %d" % (4 * 1152))
        a("v_and_b32 v16, 3, v%d" % vN)
        a("v_lshrrev_b32 v17, 3, v%d" % vN)
        a("v_lshl_add_u32 v18, v17, 2, v16")
        a("v_lshlrev_b32 v19, 4, v16")
        a("v_lshl_add_u32 v19, v17, 6, v19")
        a("v_bfe_u32 v20, v%d, 2, 1" % vN)
        a("v_lshlrev_b32 v20, 3, v20")
        a("v_lshl_add_u32 v19, v19, 4, v20")
        a("s_lshr_b32 s33, s38, 1")
        a("s_lshl_b32 s33, s33, 2")
        a("v_add_u32 v21, s33, v%d" % vG)
        a("v_xor_b32 v21, v21, v18")
        a("v_lshl_add_u32 v21, v21, 4, v19")
        a("s_lshl_b32 s33, s39, 1")
        a("s_and_b32 s34, s38, 1")
        a("s_add_u32 s33, s33, s34")
        a("s_mul_i32 s33, s33, 18432")
        a("v_add_u32 v%d, s33, v21" % vXB0)
        a("s_lshl_b32 s34, s34, 3")
        a("v_add_u32 v21, s34, v%d" % vG)
        a("v_xor_b32 v21, v21, v18")
        a("v_lshl_add_u32 v21, v21, 4, v19")
        a("s_lshr_b32 s33, s38, 1")
        a("s_mul_i32 s33, s33, 18432")
        a("s_add_u32 s33, s33, %d" % A16)
        a("v_add_u32 v%d, s33, v21" % vA0)
        a("s_and_b32 s43, s20, 1")
        a("s_cmp_eq_u32 s43, s39")
        a("s_cselect_b32 s45, 1, 0")
        a("s_lshl_b32 s36, s22, 12")
        a("s_add_u32 s36, s36, %d" % TS)
        a("s_lshl_b32 s32, s22, 5")
        a("s_add_u32 s32, s32, s21")
        a("s_mov_b32 s88, %d" % MAGIC576)
        a("s_movk_i32 s89, 576")
        a("s_mov_b32 s90, %s" % INV576)
        a("s_waitcnt lgkmcnt(0)")
        a("s_sub_u32 s98, s100, 2048")
        a("s_subb_u32 s99, s101, 0")
        pst(40)
        srd(a, 12, 46, 47, WS_BYTES)
        srd(a, 4, 48, 49, 2048 * 1152)
        srd(a, 64, 56, 57, 576 * 9216)
        srd(a, 68, 60, 61, 4608 * 1152)
        srd(a, 72, 50, 51, 2048 * 578)
        srd(a, 76, 52, 53, 2048 * 578)
        srd(a, 16, 58, 59, 9216)
        XR0, XR1, T1, T2, WL, B1R, CF0, CF1 = 16, 34, 52, 68, 84, 94, 96, 168
        a("s_cmp_lg_u32 s22, 0")
        a("s_cbranch_scc1 %s_n0" % name)
        a("s_or_b32 s86, s86, 1")
        a("v_mov_b32 v246, s86")
        a("v_mov_b32 v247, 0")
        a("v_lshrrev_b32 v12, 2, v%d" % vL)
        a("v_add_u32 v12, %d, v12" % SY)
        a("s_mov_b64 exec, 0xffff")
        a("ds_write_b32 v12, v247")
        a("s_mov_b64 exec, -1")
        a("s_waitcnt lgkmcnt(0)")
        a("%s_n0:" % name)
        if b0e: a("s_barrier")
        pst(41)
        a("s_cmp_lg_u32 s39, 0")
        a("s_cbranch_scc1 %s_nt1" % name)
        tile_issue(a, 32, 20, 9, 244, T1, 64, 68, 92)
        a("s_add_u32 s32, s32, 128")
        a("s_cmp_ge_u32 s32, 162")
        a("s_cbranch_scc1 %s_nt1" % name)
        tile_issue(a, 32, 20, 9, 244, T2, 64, 68, 48)
        a("%s_nt1:" % name)
        a.vm = []
        pst(42)
        xt = []
        for b_, XR in enumerate((XR0, XR1)):
            for j in range(9):
                xt.append(a.vmem("buffer_load_dwordx2 %s, v%d, s[4:7], s%d offen offset:%d" % (vr(XR + 2 * j, 2), vX, 28 + b_, j * 128)))
        a("v_min_u32 v12, 287, v0")
        a("v_lshlrev_b32 v12, 2, v12")
        a("s_mul_i32 s33, s20, 1152")
        bt = a.vmem("buffer_load_dword v%d, v12, s[16:19], s33 offen" % B1R)
        pst(1)
        if not b0e: a("s_barrier")
        pst(2)
        XF, A0_, TT = 168, 204, 214
        a("s_cmp_lg_u32 s39, 0")
        a("s_cbranch_scc1 %s_nt1b" % name)
        a("s_waitcnt vmcnt(19)")
        tile_finish(a, 9, T1, 244, 36, 96, vL)
        a("s_cmp_ge_u32 s32, 162")
        a("s_cbranch_scc1 %s_nt1b" % name)
        tile_finish(a, 9, T2, 244, 36, 52, vL)
        a("%s_nt1b:" % name)
        a.vm = []; a.lg = []
        pst(3)
        a("s_lshr_b32 s37, s20, 1")
        a("s_mul_i32 s37, s37, 9")
        a("s_add_u32 s62, s37, 8")
        a("s_add_u32 s37, s37, s22")
        cf_gen(a, CF0, 37, vN, vG, 168, 180, 88)
        pst(4)
        a("s_cmp_lg_u32 s39, 0")
        a("s_cbranch_scc1 %s_w1" % name)
        a("s_cmp_ge_u32 s32, 162")
        a("s_cbranch_scc1 %s_w3" % name)
        a("s_waitcnt vmcnt(8)")
        a("s_branch %s_w2" % name)
        a("%s_w3:" % name)
        a("s_waitcnt vmcnt(4)")
        a("s_branch %s_w2" % name)
        a("%s_w1:" % name)
        a("s_waitcnt vmcnt(0)")
        a("%s_w2:" % name)
        pst(5)
        ln_batch(a, XR0, XF, A0_, TT, vXB0, vA0, 90, 45, name + "_l0", LNF)
        a.lg = []
        pst(6)
        a("s_waitcnt vmcnt(0)")
        pst(7)
        def f1():
            a("s_lshl_b32 s33, s20, 8")
            a("s_lshl_b32 s34, s21, 3")
            a("s_add_u32 s33, s33, s34")
            a("s_add_u32 s33, s33, %s" % hx(FLAG_OFF))
            store_flag(a, "s33")
        a("s_cmp_lg_u32 s39, 0")
        a("s_cbranch_scc1 %s_g1" % name)
        gather_publish(a, name + "_g1", SY, "3", f1, True)
        T2B = 52 if POST else T2
        if POST:
            a("s_cmp_ge_u32 s2, 128")
            a("s_cbranch_scc1 %s_nw" % name)
            a("s_cmp_eq_u32 s39, 0")
            a("s_cbranch_scc1 %s_nw" % name)
            a("s_lshr_b32 s33, s2, 5")
            a("s_lshl_b32 s33, s33, 2")
            a("s_add_u32 s33, s33, s38")
            a("s_lshl_b32 s33, s33, 6")
            a("s_and_b32 s34, s2, 31")
            a("s_lshl_b32 s34, s34, 1")
            a("s_add_u32 s33, s33, s34")
            a("s_mul_i32 s33, s33, 578")
            a("s_add_u32 s34, s33, %d" % (16 * 64 * 578))
            a("v_lshlrev_b32 v12, 2, v9")
            for mb in range(2):
                for arr in range(2):
                    for it in range(5):
                        if it == 4: a("s_mov_b32 exec_hi, 1")
                        a("buffer_load_dword v%d, v12, s[%d:%d], s%d offen offset:%d" % (68 + (mb * 2 + arr) * 5 + it, 72 + 4 * arr, 75 + 4 * arr, 33 + mb, 256 * it))
                        if it == 4: a("s_mov_b32 exec_hi, -1")
            a("%s_nw:" % name)
        else:
            a("s_cmp_ge_u32 s2, 128")
            a("s_cbranch_scc1 %s_nw" % name)
            a("s_lshr_b32 s33, s2, 5")
            a("s_lshl_b32 s33, s33, 2")
            a("s_add_u32 s33, s33, s38")
            a("s_lshl_b32 s34, s39, 4")
            a("s_add_u32 s33, s33, s34")
            a("s_lshl_b32 s33, s33, 6")
            a("s_and_b32 s34, s2, 31")
            a("s_lshl_b32 s34, s34, 1")
            a("s_add_u32 s33, s33, s34")
            a("s_mul_i32 s33, s33, 578")
            a("v_lshlrev_b32 v12, 2, v9")
            for arr in range(2):
                for it in range(5):
                    if it == 4: a("s_mov_b32 exec_hi, 1")
                    a("buffer_load_dword v%d, v12, s[%d:%d], s33 offen offset:%d" % (WL + arr * 5 + it, 72 + 4 * arr, 75 + 4 * arr, 256 * it))
                    if it == 4: a("s_mov_b32 exec_hi, -1")
            a("%s_nw:" % name)
        T3 = 224
        a("s_cmp_eq_u32 s39, 0")
        a("s_cbranch_scc1 %s_nt2" % name)
        a("s_lshl_b32 s63, s38, 5")
        a("s_add_u32 s63, s63, s21")
        a("s_add_u32 s63, s63, 162")
        tile_issue(a, 63, 20, 9, 240, T2B, 64, 68, 48)
        a("s_add_u32 s63, s63, 128")
        a("s_cmp_ge_u32 s63, 324")
        a("s_cbranch_scc1 %s_nt2" % name)
        tile_issue(a, 63, 20, 9, 240, T3, 64, 68, 53)
        a("%s_nt2:" % name)
        a.vm = []; a.lg = []
        pst(8)
        a("v_min_u32 v12, 287, v0")
        a("v_lshlrev_b32 v12, 3, v12")
        a("v_add_u32 v12, %d, v12" % BIASB)
        a("v_lshlrev_b32 v222, 16, v%d" % B1R)
        a("v_and_b32 v223, 0xffff0000, v%d" % B1R)
        a("ds_write_b64 v12, v[222:223]")
        a("v_xor_b32 v%d, 128, v%d" % (vXB0, vXB0))
        a("v_xor_b32 v%d, 64, v%d" % (vA0, vA0))
        ln_batch(a, XR1, XF, A0_, TT, vXB0, vA0, 90, 45, name + "_l1", LNF)
        a.lg = []
        if not POST:
            a("s_waitcnt vmcnt(0)")
            a("s_cmp_eq_u32 s39, 0")
            a("s_cbranch_scc1 %s_nt2b" % name)
            tile_finish(a, 9, T2, 240, 36, 52, vL)
            a("s_cmp_ge_u32 s63, 324")
            a("s_cbranch_scc1 %s_nt2b" % name)
            tile_finish(a, 9, T3, 240, 36, 57, vL)
            a("%s_nt2b:" % name)
            a("s_cmp_ge_u32 s2, 128")
            a("s_cbranch_scc1 %s_nwb" % name)
            a("v_lshlrev_b32 v12, 2, v9")
            a("v_add_u32 v12, s36, v12")
            for arr in range(2):
                for it in range(5):
                    if it == 4: a("s_mov_b32 exec_hi, 1")
                    a("ds_write_b32 v12, v%d offset:%d" % (WL + arr * 5 + it, arr * 1160 + 256 * it))
                    if it == 4: a("s_mov_b32 exec_hi, -1")
            a("%s_nwb:" % name)
            a.vm = []; a.lg = []
        pst(9)
        a("s_cmp_lg_u32 s22, 7")
        a("s_cbranch_scc1 %s_n7" % name)
        cf_gen(a, CF1, 62, vN, vG, 16, 28, 88)
        a("%s_n7:" % name)
        a("s_cmp_lg_u32 s22, 0")
        a("s_cbranch_scc1 %s_n2" % name)
        a("s_lshl_b32 s33, s20, 8")
        a("s_add_u32 s33, s33, %s" % hx(FLAG_OFF))
        a("v_lshlrev_b32 v16, 3, v9")
        poll_flags(a, name + "_p1", 1, (0xffffffff, 0), 16, 18, "s33", 3)
        a("%s_n2:" % name)
        a("s_waitcnt lgkmcnt(0)")
        pst(10)
        a("s_barrier")
        pst(11)
        if est: a("s_memrealtime s[96:97]")
        a("s_cmp_lg_u32 s39, 0")
        a("s_cbranch_scc1 %s_h1" % name)

    def body(hf):
        a.vm = []; a.lg = []
        if hf == 0:
            DK = DKA
            AR = 16; BR = AR + DK * 8
            ACC = [BR + 32, BR + 64]; ACC3 = BR + 96
            BIAS = ACC3 + 32; TMP = BIAS + 8; PK = TMP + 4
            assert PK + 8 <= 244, PK
        else:
            DK = 8
            AR = 16; BR = 80; ACC3 = 112
            ACC = [212, 144] if FE else [144, 212]; BIAS = 192; TMP = 200; PK = 204
        if prio and hf == prio - 1: a("s_setprio 1")
        npass = 3 if hf == 0 else 2
        G = [[0, 1, 2, 3], [8, 9, 10, 11], [16, 17], [4, 5, 6, 7], [12, 13, 14, 15]]
        grp_of = {t: g for g, ts in enumerate(G) for t in ts}
        steps = []
        P1O = ([2, 0, 1] if AORD else [0, 1, 2]) if hf == 0 else [0, 1]
        for ps in P1O:
            for t in range(18):
                steps.append((1, ps, 2 if ps < 2 else 1, t))
        NP1 = 18 * npass
        O = G[2] + G[0] + G[3] + G[1] + G[4] if FE else G[2] + G[0] + G[3] + G[4] + G[1] if AORD else G[0] + G[3] + G[1] + G[2] + G[4]
        W2 = {0: ([2, 2, 1], [2, 2]), 1: ([2, 2, 2], [2, 1]), 2: ([2, 2, 2, 1], [2]), 3: ([2, 2, 2, 1], [2, 1])}[P2][hf]
        nA = sum(1 for w_ in {0: ([2, 2, 1], [2, 2]), 1: ([2, 2, 2], [2, 1]), 2: ([2, 2, 2, 1], [2]), 3: ([2, 2, 2, 1], [2, 1])}[P2][0] if w_ == 2)
        def p2_base(ps):
            if W2[ps] == 2:
                a("s_add_u32 s33, s38, %d" % (4 * (ps + (nA if hf else 0))))
                a("s_mov_b32 s34, 0")
            else:
                a("s_lshr_b32 s33, s38, 1")
                a("s_add_u32 s33, s33, 16")
                a("s_and_b32 s34, s38, 1")
            a("s_add_u32 s33, s33, s42")
            a("s_sub_u32 s35, s33, 18")
            a("s_cselect_b32 s33, s33, s35")
            a("s_lshl_b32 s33, s33, 1")
            a("s_add_u32 s33, s33, s34")
            a("s_mul_i32 s23, s33, 18432")
            a("s_add_u32 s23, s23, s41")
            a("s_lshl_b32 s33, s33, 10")
            a("s_add_u32 s%d, s33, s40" % (64 + ps))
        seq = [(ps_, O) for ps_ in range(len(W2))]
        if KSP and hf == 0:
            seq = [(0, O[:10]), (1, O[:10]), (0, O[10:]), (1, O[10:])] + seq[2:]
        for ps, ts in seq:
            for t in ts:
                steps.append((2, ps, W2[ps], t))
        N = len(steps)
        FP = 18 if FE else NP1
        MID = hf == 1 and (not two or fpos == 1)
        first_i = {}; last_i = {}
        for i_, st_ in enumerate(steps):
            first_i.setdefault(st_[:2], i_); last_i[st_[:2]] = i_
        a_tok = {}; b_tok = {}
        sbase = {"key": None, "t0": None}

        def issue_a(i):
            ph, ps, nb, t = steps[i]
            base = (W1T_OFF if ph == 1 else W2T_OFF)
            sb_ = [25, 26, 27][ps] if ph == 1 else 23
            if ph == 2 and sbase["key"] != (ph, ps): p2_base(ps)
            new = sbase["key"] != (ph, ps) or not (sbase["t0"] <= t < sbase["t0"] + 4)
            if new:
                sbase["key"] = (ph, ps); sbase["t0"] = t
            toks = []
            for bi in range(nb):
                sreg = 30 + bi
                if new:
                    a("s_add_u32 s%d, s%d, %s" % (sreg, sb_, hx(base + bi * 18432 + t * 1024)))
                toks.append(a.vmem("buffer_load_dwordx4 %s, v%d, s[12:15], s%d offen offset:%d%s" % (vr(AR + (i % DK) * 8 + 4 * bi, 4), vL, sreg, (t - sbase["t0"]) * 1024, "" if (aplain or two) else LA)))
            a_tok[i] = toks

        def b_items(i):
            ph, ps, nb, t = steps[i]
            b_tok[i] = []
            out = []
            for sb in range(4):
                def rd(sb=sb):
                    off = (sb * 18 + t) * 1024
                    hi_ = off >= 65536
                    if hi_: off -= 65536
                    if ph == 1: v = [[vXe, vXo], [vXeH, vXoH]][hi_][t & 1]
                    else: v = vLPH if hi_ else vLP
                    b_tok[i].append(a.lds("ds_read_b128 %s, v%d offset:%d" % (vr(BR + (i % 2) * 16 + 4 * sb, 4), v, off)))
                out.append(rd)
            return out

        lab = "%s_r%d" % (name, hf)
        if two:
            a("v_mov_b32 v12, 0")
            a("s_mov_b32 s33, %s" % hx(CNT_OFF))
            nt = a.vmem("buffer_load_dword v250, v12, s[12:15], s33 offen")
            if hf == 0:
                XS = 96
                xt = []
                for k in range(18):
                    if k % 4 == 0: a("s_add_u32 s33, s36, %d" % (1024 * k))
                    xt.append(a.vmem("buffer_load_dwordx4 %s, v%d, s[12:15], s33 offen offset:%d" % (vr(XS + 4 * k, 4), vL, 1024 * (k % 4))))
                a("s_mul_i32 s33, s38, 576")
                a("s_add_u32 s34, s33, s56")
                xt.append(a.vmem("buffer_load_dwordx4 %s, v%d, s[12:15], s34 offen" % (vr(XS + 72, 4), vL)))
                for i in range(DK - 1): issue_a(i)
                a("v_lshrrev_b32 v12, 2, v%d" % vL)
                a("v_add_u32 v12, %d, v12" % SY)
                a("v_mov_b32 v13, 0")
                a("s_mov_b64 exec, 0xffff")
                a("ds_write_b32 v12, v13")
                a("s_mov_b64 exec, -1")
                a("v_add_u32 v12, s29, v%d" % vL)
                ws_ = []
                for k in range(18):
                    a.wait(vm=xt[k])
                    ws_.append(a.lds("ds_write_b128 v12, %s offset:%d" % (vr(XS + 4 * k, 4), 1024 * k)))
                a("s_add_u32 s33, s33, %d" % BIASB)
                a("v_add_u32 v12, s33, v%d" % vL)
                a.wait(vm=xt[18])
                a("s_mov_b32 exec_hi, 15")
                a("ds_write_b128 v12, %s" % vr(XS + 72, 4))
                a("s_mov_b32 exec_hi, -1")
                a("v_readfirstlane_b32 s3, v250")
                a.wait_all(vm=False, lg=True)
                a("s_barrier")
                if est: a("s_memrealtime s[88:89]")
        else:
            if hf == 0 or not POST:
                for i in range(DK - 1): issue_a(i)
            elif PPRIO: a("s_setprio 2")
            AFr, ACr = (168 if hf == 0 else (16 if POST else 72)), 240
            AC2 = 248 if est == 2 else 252
            a("v_add_u32 v12, %d, v%d" % (A16, vXe))
            a("v_add_u32 v13, %d, v%d" % (A16, vXo))
            a("v_lshlrev_b32 v244, 6, v%d" % vN)
            a("v_lshl_add_u32 v244, v%d, 4, v244" % vG)
            a("s_lshl_b32 s33, s21, 1")
            a("s_add_u32 s33, s33, s43")
            a("s_mul_i32 s33, s33, %d" % (576 * 64))
            a("s_add_u32 s33, s33, %s" % hx(ZF_OFF))
            def mm(cf, s_blk):
                toks = {}
                def rd(t):
                    af = AFr + 8 * (t % 3)
                    toks[t] = [a.lds("ds_read_b128 %s, v%d offset:%d" % (vr(af + 4 * mb, 4), 12 + (t & 1), (mb * 18 + t) * 1024)) for mb in range(2)]
                rd(0); rd(1)
                for t in range(18):
                    if t + 2 < 18: rd(t + 2)
                    af = AFr + 8 * (t % 3)
                    for mb in range(2):
                        a.wait(lg=toks[t][mb])
                        d = ACr if mb == 0 else AC2
                        a("v_mfma_f32_16x16x32_f16 %s, %s, %s, %s" % (vr(d, 4), vr(af + 4 * mb, 4), vr(cf + 4 * t, 4), "0" if t == 0 else vr(d, 4)))
                for mb in range(2):
                    d = ACr if mb == 0 else AC2
                    for i in range(4):
                        a("v_mul_f32 v%d, %s, v%d" % (d + i, hx(f32bits(2.0 ** -5)), d + i))
                    for h in range(2):
                        a("v_cvt_pk_f16_f32 v%d, v%d, v%d" % (AFr + 2 * mb + h, d + 2 * h, d + 2 * h + 1))
                a("s_lshl_b32 s34, s%d, 10" % s_blk)
                a("s_add_u32 s34, s34, s33")
                a.vmem("buffer_store_dwordx4 %s, v244, s[12:15], s34 offen sc1" % vr(AFr, 4))
            mm(96, 37)
            vm1 = list(a.vm)
            if hf == 1:
                a("s_cmp_lg_u32 s22, 7")
                a("s_cbranch_scc1 %s_n7" % lab)
                a("s_nop 1")
                mm(168, 62)
                a("%s_n7:" % lab)
                a("s_cmp_lg_u32 s22, 6")
                a("s_cbranch_scc1 %s_nc" % lab)
                a("s_sub_u32 s32, s2, 128")
                a("s_cmp_ge_u32 s32, 20")
                a("s_cbranch_scc1 %s_nc" % lab)
                fft_const(a, 32, vN, vG, vL, 96, 80)
                a("%s_nc:" % lab)
            a.lg = []
            pst(12)
            if not POST:
                a("s_cmp_ge_u32 s2, 128")
                a("s_cbranch_scc1 %s_nw" % lab)
                a("s_mul_i32 s33, s2, 18560")
                a("s_add_u32 s33, s33, %s" % hx(WT_OFF))
                for it in range(2 if hf == 0 else 1):
                    if it == 1:
                        a("s_cmp_ge_u32 s22, 2")
                        a("s_cbranch_scc1 %s_nw" % lab)
                    a("v_add_u32 v96, %d, v0" % (512 * it))
                    a("v_and_b32 v97, 1, v96")
                    a("v_lshrrev_b32 v98, 1, v96")
                    a("v_min_u32 v98, 288, v98")
                    a("v_mul_u32_u24 v99, 578, v97")
                    a("v_lshl_add_u32 v99, v98, 1, v99")
                    a("v_add_u32 v99, %d, v99" % TS)
                    for e in range(8):
                        a("ds_read_u16 v%d, v99 offset:%d" % (112 + e, e * 4096))
                        a("ds_read_u16 v%d, v99 offset:%d" % (120 + e, e * 4096 + 1160))
                    a("v_lshlrev_b32 v100, 6, v98")
                    a("v_lshl_add_u32 v100, v97, 5, v100")
                    a("s_waitcnt lgkmcnt(0)")
                    for e in range(8):
                        a("v_lshl_or_b32 v%d, v%d, 16, v%d" % (104 + e, 120 + e, 112 + e))
                    a("buffer_store_dwordx4 v[104:107], v100, s[12:15], s33 offen sc1")
                    a("buffer_store_dwordx4 v[108:111], v100, s[12:15], s33 offen offset:16 sc1")
                a("%s_nw:" % lab)
            a("v_mov_b32 v12, %d" % (SY + 36))
            a("v_mov_b32 v13, 1")
            a("s_mov_b64 exec, 1")
            a("ds_add_u32 v12, v13")
            a("s_mov_b64 exec, -1")
            if hf == 1 and POST:
                lds_spin(a, lab + "_c1", SY + 36, "8")
                a("s_mul_i32 s36, s38, 18432")
                a("s_add_u32 s36, s36, %d" % (PB + 8192))
                a("s_waitcnt vmcnt(0)")
                tile_finish(a, 9, 52, 240, 36, 52, vL)
                a("s_cmp_ge_u32 s63, 324")
                a("s_cbranch_scc1 %s_nt3" % lab)
                tile_finish(a, 9, 224, 240, 36, 57, vL)
                a("%s_nt3:" % lab)
                a("s_cmp_ge_u32 s2, 128")
                a("s_cbranch_scc1 %s_nw" % lab)
                a("v_lshlrev_b32 v12, 2, v9")
                a("v_add_u32 v12, s36, v12")
                for mb in range(2):
                    for arr in range(2):
                        for it in range(5):
                            if it == 4: a("s_mov_b32 exec_hi, 1")
                            a("ds_write_b32 v12, v%d offset:%d" % (68 + (mb * 2 + arr) * 5 + it, (mb * 2 + arr) * 1160 + 256 * it))
                            if it == 4: a("s_mov_b32 exec_hi, -1")
                a("s_waitcnt lgkmcnt(0)")
                a("v_mov_b32 v12, %d" % (SY + 8))
                a("v_mov_b32 v13, 1")
                a("s_mov_b64 exec, 1")
                a("ds_add_u32 v12, v13")
                a("s_mov_b64 exec, -1")
                lds_spin(a, lab + "_ws", SY + 8, "4")
                a("s_mul_i32 s33, s2, 18560")
                a("s_add_u32 s33, s33, %s" % hx(WT_OFF))
                for it in range(3):
                    if it == 2:
                        a("s_cmp_ge_u32 s22, 6")
                        a("s_cbranch_scc1 %s_nw" % lab)
                    a("v_add_u32 v96, %d, v0" % (256 * it - 256))
                    a("v_and_b32 v97, 1, v96")
                    a("v_lshrrev_b32 v98, 1, v96")
                    a("v_min_u32 v98, 288, v98")
                    a("v_mul_u32_u24 v99, 578, v97")
                    a("v_lshl_add_u32 v99, v98, 1, v99")
                    a("v_add_u32 v99, %d, v99" % (PB + 8192))
                    for e in range(8):
                        off = (e & 3) * 18432 + (e >> 2) * 2320
                        a("ds_read_u16 v%d, v99 offset:%d" % (112 + e, off))
                        a("ds_read_u16 v%d, v99 offset:%d" % (120 + e, off + 1160))
                    a("v_lshlrev_b32 v100, 6, v98")
                    a("v_lshl_add_u32 v100, v97, 5, v100")
                    a("s_waitcnt lgkmcnt(0)")
                    for e in range(8):
                        a("v_lshl_or_b32 v%d, v%d, 16, v%d" % (104 + e, 120 + e, 112 + e))
                    a("buffer_store_dwordx4 v[104:107], v100, s[12:15], s33 offen sc1")
                    a("buffer_store_dwordx4 v[108:111], v100, s[12:15], s33 offen offset:16 sc1")
                a("%s_nw:" % lab)
                a("v_mov_b32 v12, %d" % (SY + 24))
                a("v_mov_b32 v13, 1")
                a("s_mov_b64 exec, 1")
                a("ds_add_u32 v12, v13")
                a("s_mov_b64 exec, -1")
                a.vm = []; a.lg = []
                for i in range(DK - 1): issue_a(i)
                if PPRIO: a("s_setprio 0")
            else:
                a.vm = vm1; a.lg = []
            pst(13)
            pst(14)
            if est: a("s_memrealtime s[88:89]")
        def f2():
            a("s_lshl_b32 s33, s2, 3")
            a("s_add_u32 s33, s33, %s" % hx(FLAG_OFF + 32768))
            a("v_lshlrev_b32 v254, 11, v9")
            a("v_mov_b32 v12, s100")
            a("v_mov_b32 v13, s101")
            a("s_mov_b64 exec, 0xffff")
            a("buffer_store_dwordx2 v[12:13], v254, s[12:15], s33 offen sc1")
            a("s_mov_b64 exec, -1")
            a("s_lshl_b32 s33, s20, 8")
            a("s_lshl_b32 s34, s21, 3")
            a("s_add_u32 s33, s33, s34")
            a("s_add_u32 s33, s33, %s" % hx(FLAG_OFF + 2048))
            store_flag(a, "s33")
        nsync = [0]
        def fsync():
            n = nsync[0]; nsync[0] += 1
            a("s_add_u32 s87, s87, 4")
            a("v_mov_b32 v12, %d" % (SY + 16))
            a("v_mov_b32 v13, 1")
            a("s_mov_b64 exec, 1")
            a("ds_add_u32 v12, v13")
            a("s_mov_b64 exec, -1")
            lds_spin(a, "%s_fs%d" % (lab, n), SY + 16, "s87")
            a.lg = []
        def f2_check():
            a("s_cmp_lg_u32 s22, 4")
            a("s_cbranch_scc1 %s_np2" % lab)
            a("s_and_b32 s85, s2, 15")
            a("s_lshl_b32 s85, s85, 11")
            a("s_add_u32 s85, s85, %s" % hx(FLAG_OFF + 32768))
            a("v_lshlrev_b32 v254, 5, v9")
            poll_flags(a, lab + "_p2", 4, (0xffffffff, 0xffffffff), 254, 244, "s85", 16)
            a("v_mov_b32 v12, %d" % (SY + 12))
            a("v_mov_b32 v13, 1")
            a("ds_write_b32 v12, v13")
            a("%s_np2:" % lab)
            lds_spin(a, lab + "_w2", SY + 12, "1")
            a.lg = []
        ffo = {}
        def fft_early():
            fe = FFT(a, ACC3 - 120, 9, 38, FSC, 72, fsync)
            fe.addr()
            fe.data_loads(2, 0, 78, "c1", 176, 184)
            ffo["tok"] = fe.tok["c1"]
        def do_fft(flush, mid=None):
            pst(15)
            ff = FFT(a, 16, 9, 38, FSC, 72, fsync, old=bool(two))
            D1 = ff.end; D2 = 192
            assert D1 + 32 <= 192, D1
            a("s_mov_b32 s87, 0")
            ff.addr()
            if "tok" in ffo:
                ff.tok["c1"] = ffo["tok"]
                Dz = D1 - 8 if False else D1
            else:
                ff.data_loads(2, D1, 78, "c1")
            ff.const_loads()
            pst(17)
            flush()
            if fprio: a("s_setprio 2")
            pst(18)
            ff.twiddles()
            a("s_cmp_lt_u32 s2, 223")
            a("s_cbranch_scc1 %s_f1" % lab)
            vm_s = list(a.vm); tk = dict(ff.tok); sb_s = dict(sbase); at_s = dict(a_tok)
            a("s_add_u32 s82, s2, 33")
            ff.data_loads(82, D2 + 2, 92, "c2")
            ff.compute(D1, 78, "c1")
            fsync()
            ff.compute(D2 + 2, 92, "c2", mid)
            a("s_branch %s_f2" % lab)
            a("%s_f1:" % lab)
            a.vm = vm_s; ff.tok = tk; sbase.update(sb_s)
            ff.compute(D1, 78, "c1", mid)
            a("%s_f2:" % lab)
            if fprio: a("s_setprio %d" % (1 if bprio else 0))
            a("s_nop 1")
            a.lg = []
            pst(16)
        def publish2():
            gather_publish(a, lab + "_g2", SY + 4, "7", f2)
        def publish3():
            def f3():
                a("s_lshl_b32 s33, s2, 3")
                a("s_add_u32 s33, s33, %s" % hx(FLAG_OFF + 8192))
                store_flag(a, "s33")
                a("s_cmp_lt_u32 s2, 223")
                a("s_cbranch_scc1 %s_g3" % lab)
                a("s_add_u32 s33, s33, 264")
                store_flag(a, "s33")
            gather_publish(a, lab + "_g3", SY + 20, "3", f3)
        def check5():
            if hf == 0:
                a("s_cmp_lg_u32 s22, 0")
                a("s_cbranch_scc1 %s_n5" % lab)
                a("s_lshl_b32 s33, s20, 8")
                a("s_add_u32 s33, s33, %s" % hx(FLAG_OFF + 2048))
                a("v_lshrrev_b32 v244, 1, v%d" % vL)
                poll_flags(a, lab + "_p5", 1, (0xffffffff, 0), 244, 246, "s33", 8)
                a("v_mov_b32 v12, %d" % (SY + 32))
                a("v_mov_b32 v13, 1")
                a("ds_write_b32 v12, v13")
                a("%s_n5:" % lab)
            lds_spin(a, lab + "_w5", SY + 32, "1")
            a.lg = []
        if two and hf == 1:
            def bar():
                a.wait(vm=nt)
                a("v_readfirstlane_b32 s3, v250")
                a("s_barrier")
                if est: a("s_memrealtime s[88:89]")
            if fpos == 0:
                do_fft(bar)
            else:
                bar()
            for i in range(DK - 1): issue_a(i)
        if est: a("s_memrealtime s[90:91]")

        fill = deque()
        bucket = {"tok": 0.0}
        def cost_of(lines):
            c = 0
            for l in lines:
                op = l.split()[0]
                c += 8 if op in TRANS else (4 if op.startswith(("buffer", "ds_")) else (1 if op.startswith("s_") else 4))
            return c
        def fine(rate):
            bucket["tok"] += rate
            while fill and bucket["tok"] >= 4:
                n0 = len(a.lines)
                tag, f = fill.popleft(); f()
                bucket["tok"] -= cost_of(a.lines[n0:])
            if not fill: bucket["tok"] = 0.0
        def flush_tag(tag):
            while any(t == tag for t, _ in fill):
                fill.popleft()[1]()
        pw = {}

        def gelu_group(tag, regs, outs):
            T = [TMP + k for k in range(4)]
            seq = []
            for k in range(4): seq.append("v_mul_f32 v%d, v%d, v%d" % (T[k], regs[k], regs[k]))
            for k in range(4): seq.append("v_fmaak_f32 v%d, v%d, v%d, %s" % (T[k], T[k], vC1, hx(f32bits(C0))))
            for k in range(4): seq.append("v_mul_f32 v%d, v%d, v%d" % (T[k], regs[k], T[k]))
            for k in range(4): seq.append("v_exp_f32 v%d, v%d" % (T[k], T[k]))
            for k in range(4): seq.append("v_add_f32 v%d, 1.0, v%d" % (T[k], T[k]))
            for k in range(4): seq.append("v_rcp_f32 v%d, v%d" % (T[k], T[k]))
            for k in range(4): seq.append("v_mul_f32 v%d, v%d, v%d" % (T[k], regs[k], T[k]))
            seq.append("v_cvt_pk_bf16_f32 v%d, v%d, v%d" % (outs[0], T[0], T[1]))
            seq.append("v_cvt_pk_bf16_f32 v%d, v%d, v%d" % (outs[1], T[2], T[3]))
            if nogelu: seq = seq[-2:]
            for s_ in seq: fill.append((tag, lambda s_=s_: a(s_)))

        def accset(ph, ps):
            if ph == 1 and AORD and hf == 0: return [ACC[1], ACC[0], ACC[0]][ps]
            if ph == 1: return [ACC[0], ACC[1], ACC[0]][ps]
            if AORD and hf == 0: return [ACC3, ACC[1], ACC[0], ACC3][ps]
            return [ACC3, ACC[1], ACC[0], ACC3][ps] if hf == 0 else [ACC3, ACC[0]][ps]

        def queue_gelu(ps, nb):
            st = accset(1, ps); tag = "g%d" % ps
            pw[ps] = []
            for sb in range(4):
                pk = PK + 4 * (sb & 1)
                for bi in range(nb):
                    b = st + (bi * 4 + sb) * 4
                    gelu_group(tag, [b, b + 1, b + 2, b + 3], [pk + 2 * bi, pk + 2 * bi + 1])
                def wr(sb=sb, pk=pk):
                    if hf == 0 and ps == 1 and sb == 0 and POST:
                        lds_spin(a, lab + "_c2", SY + 24, "4")
                        a.lg = []
                    if ps == P1O[0] and sb == 0 and not two:
                        lds_spin(a, lab + "_pre", SY + 36, "8")
                        a.lg = []
                    if nb == 2:
                        pw[ps].append(a.lds("ds_write_b128 v%d, %s offset:%d" % (vPw, vr(pk, 4), sb * 18432 + ps * 8192)))
                    else:
                        pw[ps].append(a.lds("ds_write_b64 v%d, %s offset:%d" % (vPw8, vr(pk, 2), sb * 18432)))
                fill.append((tag, wr))
            for _ in range(3): fill.append((tag, lambda: a("s_nop 0")))
            def sig():
                a.wait(lg=pw[ps])
                a("v_mov_b32 v12, %d" % (SY + 40 + 4 * (ps + 3 * hf)))
                a("v_mov_b32 v13, 1")
                a("s_mov_b64 exec, 1")
                a.lds("ds_add_u32 v12, v13")
                a("s_mov_b64 exec, -1")
            fill.append((tag, sig))

        def queue_store(ps, nb):
            st = accset(2, ps); tag = "s%d" % ps
            fl = ["", " sc1", " sc0 sc1", " nt", " sc1 nt"][stf]
            k = 0
            for bi in range(nb):
                for rg in range(2):
                    pk = PK + 4 * (k & 1); k += 1
                    for s2 in range(2):
                        b = st + (bi * 4 + 2 * rg + s2) * 4
                        for h in range(2):
                            fill.append((tag, lambda pk=pk, s2=s2, b=b, h=h: a("v_cvt_pk_bf16_f32 v%d, v%d, v%d" % (pk + 2 * s2 + h, b + 2 * h, b + 2 * h + 1))))
                    def stv(pk=pk, bi=bi, rg=rg):
                        a("s_add_u32 s34, s%d, %d" % (64 + ps, rg * 36864))
                        a.vmem("buffer_store_dwordx4 %s, v%d, s[12:15], s34 offen offset:%d%s" % (vr(pk, 4), vL, bi * 1024, fl))
                    if not nostore: fill.append((tag, stv))

        bias_tok = {}
        def load_bias(ps):
            if ps < 2:
                bias_tok[ps] = [a.lds("ds_read_b128 %s, v%d offset:%d" % (vr(BIAS + 4 * bi, 4), vBias, 1024 * ps + 64 * bi)) for bi in range(2)]
            else:
                bias_tok[ps] = [a.lds("ds_read_b128 %s, v7" % vr(BIAS, 4))]

        seen_g = set()
        def sync(g):
            if g in seen_g: return
            seen_g.add(g)
            own = g - 3 * hf
            if 0 <= own < npass and (g < 3) == (hf == 0): flush_tag("g%d" % own)
            pst(30 + 2 * g)
            lds_spin(a, "%s_pg%d" % (lab, g), SY + 40 + 4 * g, "4")
            pst(31 + 2 * g)
            a.lg = []

        def hook(f):
            lg_save = list(a.lg)
            f()
            a.lg = lg_save

        load_bias(P1O[0])
        PBX = 2 if CH else PB_D
        for i in range(PBX):
            for r_ in b_items(i): r_()
        pend = {}
        for i in range(N):
            ph, ps, nb, t = steps[i]
            if CH and i % 2 == 0:
                continue_pair = True
            st = accset(ph, ps)
            first = first_i[(ph, ps)] == i
            if not CH:
                j = i + PB_D
                rds = []
                if MID and FP <= j < FP + PB_D:
                    pass
                elif j < N:
                    if steps[j][0] == 2: sync(grp_of[steps[j][3]])
                    rds = b_items(j)
            elif i % 2 == 0:
                j = i + 2
                rd2 = None
                if j < N and not (MID and j == FP):
                    if steps[j][0] == 2: sync(grp_of[steps[j][3]])
                    rd2 = [b_items(j), b_items(j + 1)]
            if first and P2 == 3 and ph == 2 and nb == 1:
                while fill: fill.popleft()[1]()
                a("s_cmp_ge_u32 s2, 223")
                a("s_cbranch_scc%d %s_opt" % (0 if hf == 1 else 1, lab))
                a("s_waitcnt vmcnt(4) lgkmcnt(0)")
                a("s_branch %s_e%dstart" % (name, 1 if ESH else hf))
                a("%s_opt:" % lab)
            if first:
                if ph == 1 and ps == 2 and not AORD: flush_tag("g0")
                if ph == 1 and ps == 1 and AORD and hf == 0: flush_tag("g2")
                if ph == 2:
                    for tg in ({0: [], 1: (["g0"] if AORD else ["g1", "g0"]), 2: ["g2", "g0", "g1"], 3: ["s0"]} if hf == 0 else {0: [], 1: ["g0"]})[ps]: flush_tag(tg)
            def emit_mfma(ii, bi, sb, frst):
                d = st + (bi * 4 + sb) * 4
                need = [b_tok[ii][sb]] if bi == 0 else []
                if frst:
                    c = "0" if ph == 2 else vr(BIAS + 4 * bi, 4)
                    if ph == 1: need = need + bias_tok[ps]
                else:
                    c = vr(d, 4)
                a.wait(vm=a_tok[ii][bi] if sb == 0 else None, lg=need)
                a("%s %s, %s, %s, %s" % (MFMA, vr(d, 4), vr(AR + (ii % DK) * 8 + 4 * bi, 4), vr(BR + (ii % 2) * 16 + 4 * sb, 4), c))
            if not CH:
                nm = 4 * nb
                for k in range(nm):
                    emit_mfma(i, k // 4, k % 4, first)
                    if rds and (nb == 1 or k % 2 == 0): rds.pop(0)()
                    fine(RATE)
            elif i % 2 == 0:
                assert steps[i + 1][:2] == (ph, ps)
                for sb in range(4):
                    for bi in range(nb):
                        emit_mfma(i, bi, sb, first)
                        if not CHF: fine(RATE)
                        emit_mfma(i + 1, bi, sb, False)
                        if bi == nb - 1 and rd2:
                            rd2[0][sb](); rd2[1][sb]()
                        fine(RATE * (2 if CHF else 1))
            if i + DK - 1 == NP1 and (hf == 0 or FE) and not two:
                check5()
            if i + DK - 1 < N and not (MID and FP <= i + DK - 1 < FP + DK - 1): issue_a(i + DK - 1)
            if i == (DK if (hf == 0 or not POST) else 1) and not two: hook(publish2)
            if hf == 1 and i == (FP if MID else 0) + (5 if FEL else P3AT): hook(publish3)
            if hf == 1 and i == FP - (2 if FE else 6) and not two: hook(f2_check if not FEL else lambda: (f2_check(), fft_early()))
            if ph == 1 and t == 2 and P1O.index(ps) + 1 < npass and not (FE and MID): load_bias(P1O[P1O.index(ps) + 1])
            if last_i[(ph, ps)] == i:
                lg_s = list(a.lg); pst(20 + 3 * (ph - 1) + ps); a.lg = [] if est == 2 else lg_s
                if ph == 1: queue_gelu(ps, nb)
                else: queue_store(ps, nb)
                if est and i == NP1 - 1: a("s_memrealtime s[92:93]")
                if MID and i == FP - 1:
                    if not FE: flush_tag("g0")
                    if FEL:
                        check5()
                        do_fft(lambda: flush_tag("g1"), lambda: [issue_a(i2) for i2 in range(FP, FP + 4)])
                        for i2 in range(FP + 4, FP + DK - 1): issue_a(i2)
                    else:
                        do_fft(lambda: flush_tag("g0" if FE else "g1"))
                        if not two and not FE: check5()
                        for i2 in range(FP, FP + DK - 1): issue_a(i2)
                    if FE: load_bias(1)
                    for i2 in range(FP, FP + PBX):
                        if not FE: sync(grp_of[steps[i2][3]])
                        for r_ in b_items(i2): r_()
                if est and ph == 2 and ps == 0: a("s_memrealtime s[94:95]")
        while fill: fill.popleft()[1]()
        if est == 2:
            a("v_writelane_b32 v253, s100, 0")
            a("s_lshl_b32 s33, s2, 3")
            a("s_add_u32 s33, s33, s22")
            a("s_lshl_b32 s33, s33, 8")
            a("s_add_u32 s33, s33, %s" % hx(STAMP_OFF + 0x700000))
            a("v_lshrrev_b32 v12, 2, v%d" % vL)
            a("buffer_store_dword v253, v12, s[12:15], s33 offen")

        if ESH:
            if hf == 0:
                a("s_branch %s_e1start" % name)
            else:
                a("%s_e1start:" % name)
                epilogue_shared(a, name, XB, vL, poll_flags, store_flag, lds_spin, SY, est=est, SLP=SLP, G1=G1)
        else:
            a("%s_e%dstart:" % (name, hf))
            epilogue(a, name, hf, XB, vL, est=est, SLP=SLP, G1=G1, uload=1, mega=(poll_flags, store_flag, lds_spin, SY, ONCE))

    body(0)
    a("%s_h1:" % name)
    body(1)
    a("%s_end:" % name)
    a("s_endpgm")
    n = a.fix_hazards()
    print("mega: nops inserted", n, "lines", len(a.lines))
    return kernel_header(name) + a.text() + kernel_desc(name, 256, 102), MEGA_LDS
```

```python
from asmgen import *
from layout import *
from collections import deque
from gen_epi import epilogue, MAGIC576, INV576
from gen_fft2 import FFT
from gen_pro import *
from gen_epi2 import epilogue_shared

C0 = -2.0 * 1.4426950408889634 * 0.7978845608028654
C1 = C0 * 0.044715
MFMA = "v_mfma_f32_16x16x32_bf16"
XB = 0
PB = 73728
A16 = PB
TS = PB + 36864
BIASB = 147456
SY = BIASB + 2304
FSC = BIASB + 2560
MEGA_LDS = 163840
SPIN = 100000
TBS = 98


def srd(a, s, lo, hi, nbytes):
    a("s_mov_b32 s%d, s%d" % (s, lo))
    a("s_and_b32 s%d, s%d, 0xffff" % (s + 1, hi))
    a("s_mov_b32 s%d, %s" % (s + 2, hx(nbytes)))
    a("s_mov_b32 s%d, 0x20000" % (s + 3))


WIN = 1500


def poll_flags(a, lab, nf, execmask, va, vd, soff, slp, pre=None, fail=None):
    a("s_mov_b32 exec_lo, %s" % hx(execmask[0]))
    a("s_mov_b32 exec_hi, %s" % hx(execmask[1]))
    a("s_mov_b32 s35, %d" % SPIN)
    a("%s_l:" % lab)
    a("s_sub_u32 s35, s35, 1")
    a("s_cbranch_scc1 %s_ok" % lab)
    if nf == 1:
        a("buffer_load_dwordx2 %s, v%d, s[12:15], %s offen sc1" % (vr(vd, 2), va, soff))
    else:
        for k in range(nf // 2):
            a("buffer_load_dwordx4 %s, v%d, s[12:15], %s offen offset:%d sc1" % (vr(vd + 4 * k, 4), va, soff, 16 * k))
    a("v_mov_b32 v13, s%d" % (TBS + 1))
    a("s_waitcnt vmcnt(0)")
    for i in range(nf):
        a("v_subrev_co_u32 v%d, vcc, s%d, v%d" % (vd + 2 * i, TBS, vd + 2 * i))
        a("v_subb_co_u32 v%d, vcc, v%d, v13, vcc" % (vd + 2 * i + 1, vd + 2 * i + 1))
        a("v_lshrrev_b32 v%d, 12, v%d" % (vd + 2 * i, vd + 2 * i))
        a("v_or_b32 v%d, v%d, v%d" % (vd + 2 * i, vd + 2 * i, vd + 2 * i + 1))
        if i: a("v_or_b32 v%d, v%d, v%d" % (vd, vd, vd + 2 * i))
    a("v_cmp_ne_u32 vcc, 0, v%d" % vd)
    a("s_nop 1")
    a("s_cmp_eq_u64 vcc, 0")
    a("s_cbranch_scc1 %s_ok" % lab)
    if fail:
        a("s_mov_b64 exec, -1")
        a("s_branch %s" % fail)
    else:
        a("s_sleep %d" % slp)
        a("s_branch %s_l" % lab)
    a("%s_ok:" % lab)
    a("s_mov_b64 exec, -1")


def lds_spin(a, lab, addr, target):
    a("v_mov_b32 v12, %d" % addr)
    a("%s:" % lab)
    a("ds_read_b32 v13, v12")
    a("s_waitcnt lgkmcnt(0)")
    a("v_readfirstlane_b32 s35, v13")
    a("s_nop 3")
    a("s_cmp_ge_u32 s35, %s" % target)
    a("s_cbranch_scc1 %s_d" % lab)
    a("s_sleep 1")
    a("s_branch %s" % lab)
    a("%s_d:" % lab)


def gather_publish(a, lab, cnt_addr, last, soff_expr, need_nonce=False):
    a("v_mov_b32 v12, %d" % cnt_addr)
    a("v_mov_b32 v13, 1")
    a("s_mov_b64 exec, 1")
    a("ds_add_rtn_u32 v13, v12, v13")
    a("s_waitcnt lgkmcnt(0)")
    a("v_readfirstlane_b32 s35, v13")
    a("s_mov_b64 exec, -1")
    a("s_nop 1")
    a("s_cmp_lg_u32 s35, %s" % last)
    a("s_cbranch_scc1 %s" % lab)
    soff_expr()
    a("%s:" % lab)


def code_touch(a, lab_from, lab_to, nlines_max, uniq):
    a("s_getpc_b64 s[92:93]")
    a("%s:" % uniq)
    a("s_add_u32 s92, s92, %s-%s" % (lab_from, uniq))
    a("s_addc_u32 s93, s93, 0")
    for r in range((nlines_max + 63) // 64):
        a("v_lshlrev_b32 v12, 7, v9")
        if r: a("v_add_u32 v12, %d, v12" % (8192 * r))
        a("v_min_u32 v12, %s-%s, v12" % (lab_to, lab_from))
        a("global_load_dword v13, v12, s[92:93]")


def store_flag(a, soff):
    a("v_mov_b32 v12, s100")
    a("v_mov_b32 v13, s101")
    a("s_mov_b64 exec, 1")
    a("buffer_store_dwordx2 v[12:13], v1, s[12:15], %s offen sc1" % soff)
    a("s_mov_b64 exec, -1")


def gen_mega(name, DK=8, PB_D=1, cmap=2, RATE=8.5, est=0, SLP=4, G1=9, fprio=1, stf=1, nogelu=0, nostore=0, prio=0, xc=0, b0e=1, aplain=0, DKA=8, bprio=1, ctouch=0, nofft=0, P3AT=1, two=0, fpos=0, P2=3, AORD=1, KSP=1, FE=0, LNF=0, CH=1, PPRIO=0, ESH=0, POST=0, FEL=1, ONCE=0, CHF=1, TLBT=0):
    stamps = 0; epi = 1
    a = Asm()
    def pst(k):
        if est == 2:
            a("s_memrealtime vcc")
            a("s_waitcnt lgkmcnt(0)")
            a("v_writelane_b32 v253, vcc_lo, %d" % k)
            if 20 <= k < 30:
                a("s_memtime vcc")
                a("s_waitcnt lgkmcnt(0)")
                a("v_writelane_b32 v253, vcc_lo, %d" % (k + 30))
    AR = 16
    BR = AR + DK * 8
    ACC = [BR + (PB_D + 1) * 16, BR + (PB_D + 1) * 16 + 32]
    BIAS = ACC[1] + 32
    TMP = BIAS + 8
    PK = TMP + 4
    NV = PK + 8
    vL, vLP, vBias, vPw, vC1, vPw8 = 1, 2, 3, 4, 5, 6
    vXe, vXo, vXeH, vXoH, vLPH = 10, 11, 14, 15, 8
    LA = " sc1"
    a("s_cmp_ge_u32 s2, 256")
    a("s_cbranch_scc1 %s_end" % name)
    a("s_load_dwordx16 s[48:63], s[0:1], 0")
    a("s_load_dwordx2 s[46:47], s[0:1], 80")
    a("s_memrealtime s[100:101]")
    a("v_lshrrev_b32 v8, 6, v0")
    a("v_and_b32 v9, 63, v0")
    a("v_readfirstlane_b32 s22, v8")
    if ctouch:
        a("s_nop 3")
        a("s_cmp_lg_u32 s22, 6")
        a("s_cbranch_scc1 %s_nct" % name)
        code_touch(a, name + "_nct", name + "_end", 720, name + "_ct")
        a("%s_nct:" % name)
    if cmap == 0:
        a("s_and_b32 s20, s2, 7")
        a("s_lshr_b32 s21, s2, 3")
    elif cmap == 2:
        a("s_and_b32 s20, s2, 1")
        a("s_lshl_b32 s20, s20, 2")
        a("s_bfe_u32 s33, s2, 0x20003")
        a("s_add_u32 s20, s20, s33")
        a("s_bfe_u32 s21, s2, 0x20001")
        a("s_lshl_b32 s21, s21, 3")
        a("s_lshr_b32 s33, s2, 5")
        a("s_add_u32 s21, s21, s33")
    else:
        a("s_and_b32 s20, s2, 3")
        a("s_lshl_b32 s20, s20, 1")
        a("s_bfe_u32 s33, s2, 0x10003")
        a("s_add_u32 s20, s20, s33")
        a("s_bfe_u32 s21, s2, 0x10002")
        a("s_lshl_b32 s21, s21, 4")
        a("s_lshr_b32 s33, s2, 4")
        a("s_add_u32 s21, s21, s33")
    a("s_and_b32 s38, s22, 3")
    a("s_lshr_b32 s39, s22, 2")
    a("s_add_u32 s23, s22, s21")
    a("s_and_b32 s23, s23, 7")
    a("s_mul_i32 s24, s20, %d" % (36 * 18432))
    a("s_mul_i32 s25, s22, 36864")
    a("s_add_u32 s25, s25, s24")
    a("s_add_u32 s26, s25, %d" % (16 * 18432))
    a("s_mul_i32 s27, s38, 18432")
    a("s_add_u32 s27, s27, s24")
    a("s_add_u32 s27, s27, %d" % (32 * 18432))
    a("s_lshl_b32 s37, s20, 6")
    a("s_lshl_b32 s33, s21, 1")
    a("s_add_u32 s37, s37, s33")
    a("s_mul_i32 s37, s37, 36864")
    a("s_add_u32 s37, s37, %s" % hx(PART_OFF))
    a("s_mov_b32 s28, s24")
    a("s_mov_b32 s40, s37")
    a("s_mov_b32 s41, s24")
    a("s_lshl_b32 s42, s21, 1")
    a("s_mul_i32 s33, s42, 3641")
    a("s_lshr_b32 s33, s33, 16")
    a("s_mul_i32 s33, s33, 18")
    a("s_sub_u32 s42, s42, s33")
    a("v_lshlrev_b32 v%d, 4, v9" % vL)
    a("v_add_u32 v%d, %d, v%d" % (vLP, PB, vL))
    a("v_lshrrev_b32 v16, 4, v9")
    a("s_lshl_b32 s33, s22, 7")
    a("s_add_u32 s33, s33, %d" % BIASB)
    a("v_lshl_add_u32 v%d, v16, 4, s33" % vBias)
    a("s_lshl_b32 s33, s38, 6")
    a("s_add_u32 s33, s33, %d" % (BIASB + 2048))
    a("v_lshl_add_u32 v7, v16, 4, s33")
    a("s_lshl_b32 s33, s22, 10")
    a("v_add_u32 v%d, s33, v%d" % (vPw, vLP))
    a("s_lshr_b32 s33, s38, 1")
    a("s_lshl_b32 s33, s33, 10")
    a("s_and_b32 s34, s38, 1")
    a("s_lshl_b32 s34, s34, 3")
    a("s_add_u32 s33, s33, s34")
    a("s_add_u32 s33, s33, 16384")
    a("v_add_u32 v%d, s33, v%d" % (vPw8, vLP))
    a("v_mov_b32 v%d, %s" % (vC1, hx(f32bits(C1))))
    if two:
        a("v_add_u32 v%d, 0x10000, v%d" % (vLPH, vLP))
        a("v_mov_b32 v%d, v%d" % (vXe, vL)); a("v_mov_b32 v%d, v%d" % (vXo, vL))
        a("v_add_u32 v%d, 0x10000, v%d" % (vXeH, vL)); a("v_add_u32 v%d, 0x10000, v%d" % (vXoH, vL))
        a("s_lshl_b32 s36, s21, 2")
        a("s_add_u32 s36, s36, s38")
        a("s_mul_i32 s36, s36, 18432")
        a("s_add_u32 s36, s36, %s" % hx(XNF_OFF))
        a("s_mul_i32 s29, s38, 18432")
        a("s_mul_i32 s56, s20, 2304")
        a("s_waitcnt lgkmcnt(0)")
        a("s_sub_u32 s98, s100, 2048")
        a("s_subb_u32 s99, s101, 0")
        a("s_mul_i32 s56, s20, 2304")
        a("s_add_u32 s56, s56, %s" % hx(B1F_OFF))
        srd(a, 12, 46, 47, WS_BYTES)
        a("s_cmp_lg_u32 s39, 0")
        a("s_cbranch_scc1 %s_h1" % name)
    else:
        vN, vG = 248, 249
        a("v_and_b32 v%d, 15, v9" % vN)
        a("v_lshrrev_b32 v%d, 4, v9" % vG)
        a("v_xor_b32 v16, v%d, v%d" % (vG, vN))
        a("v_lshl_add_u32 v17, v%d, 4, v16" % vG)
        a("v_lshlrev_b32 v%d, 4, v17" % vXe)
        a("v_xor_b32 v%d, 64, v%d" % (vXo, vXe))
        a("v_add_u32 v%d, 0x10000, v%d" % (vXeH, vXe))
        a("v_add_u32 v%d, 0x10000, v%d" % (vXoH, vXo))
        a("v_add_u32 v%d, 0x10000, v%d" % (vLPH, vLP))
        vX, vXB0, vA0 = 250, 251, 252
        a("s_mov_b32 s33, %d" % (1152 if xc else 32 * 1152))
        a("v_mul_lo_u32 v%d, v%d, s33" % (vX, vG))
        a("v_lshl_add_u32 v%d, v%d, 3, v%d" % (vX, vN, vX))
        a("s_lshl_b32 s28, s22, 3")
        a("s_lshl_b32 s28, s28, 5")
        a("s_add_u32 s28, s28, s21")
        a("s_mul_i32 s28, s28, 1152")
        a("s_add_u32 s29, s28, %d" % (4 * 32 * 1152))
        if xc:
            a("s_lshl_b32 s28, s21, 3")
            a("s_add_u32 s28, s28, s22")
            a("s_mul_i32 s28, s28, %d" % (8 * 1152))
            a("s_add_u32 s29, s28, %d" % (4 * 1152))
        a("v_and_b32 v16, 3, v%d" % vN)
        a("v_lshrrev_b32 v17, 3, v%d" % vN)
        a("v_lshl_add_u32 v18, v17, 2, v16")
        a("v_lshlrev_b32 v19, 4, v16")
        a("v_lshl_add_u32 v19, v17, 6, v19")
        a("v_bfe_u32 v20, v%d, 2, 1" % vN)
        a("v_lshlrev_b32 v20, 3, v20")
        a("v_lshl_add_u32 v19, v19, 4, v20")
        a("s_lshr_b32 s33, s38, 1")
        a("s_lshl_b32 s33, s33, 2")
        a("v_add_u32 v21, s33, v%d" % vG)
        a("v_xor_b32 v21, v21, v18")
        a("v_lshl_add_u32 v21, v21, 4, v19")
        a("s_lshl_b32 s33, s39, 1")
        a("s_and_b32 s34, s38, 1")
        a("s_add_u32 s33, s33, s34")
        a("s_mul_i32 s33, s33, 18432")
        a("v_add_u32 v%d, s33, v21" % vXB0)
        a("s_lshl_b32 s34, s34, 3")
        a("v_add_u32 v21, s34, v%d" % vG)
        a("v_xor_b32 v21, v21, v18")
        a("v_lshl_add_u32 v21, v21, 4, v19")
        a("s_lshr_b32 s33, s38, 1")
        a("s_mul_i32 s33, s33, 18432")
        a("s_add_u32 s33, s33, %d" % A16)
        a("v_add_u32 v%d, s33, v21" % vA0)
        a("s_and_b32 s43, s20, 1")
        a("s_cmp_eq_u32 s43, s39")
        a("s_cselect_b32 s45, 1, 0")
        a("s_lshl_b32 s36, s22, 12")
        a("s_add_u32 s36, s36, %d" % TS)
        a("s_lshl_b32 s32, s22, 5")
        a("s_add_u32 s32, s32, s21")
        a("s_mov_b32 s88, %d" % MAGIC576)
        a("s_movk_i32 s89, 576")
        a("s_mov_b32 s90, %s" % INV576)
        a("s_waitcnt lgkmcnt(0)")
        a("s_sub_u32 s98, s100, 2048")
        a("s_subb_u32 s99, s101, 0")
        pst(40)
        srd(a, 12, 46, 47, WS_BYTES)
        srd(a, 4, 48, 49, 2048 * 1152)
        srd(a, 64, 56, 57, 576 * 9216)
        srd(a, 68, 60, 61, 4608 * 1152)
        srd(a, 72, 50, 51, 2048 * 578)
        srd(a, 76, 52, 53, 2048 * 578)
        srd(a, 16, 58, 59, 9216)
        XR0, XR1, T1, T2, WL, B1R, CF0, CF1 = 16, 34, 52, 68, 84, 94, 96, 168
        a("s_cmp_lg_u32 s22, 0")
        a("s_cbranch_scc1 %s_n0" % name)
        a("s_or_b32 s86, s86, 1")
        a("v_mov_b32 v246, s86")
        a("v_mov_b32 v247, 0")
        a("v_lshrrev_b32 v12, 2, v%d" % vL)
        a("v_add_u32 v12, %d, v12" % SY)
        a("s_mov_b64 exec, 0xffff")
        a("ds_write_b32 v12, v247")
        a("s_mov_b64 exec, -1")
        a("s_waitcnt lgkmcnt(0)")
        a("%s_n0:" % name)
        if b0e: a("s_barrier")
        pst(41)
        a("s_cmp_lg_u32 s39, 0")
        a("s_cbranch_scc1 %s_nt1" % name)
        tile_issue(a, 32, 20, 9, 244, T1, 64, 68, 92)
        a("s_add_u32 s32, s32, 128")
        a("s_cmp_ge_u32 s32, 162")
        a("s_cbranch_scc1 %s_nt1" % name)
        tile_issue(a, 32, 20, 9, 244, T2, 64, 68, 48)
        a("%s_nt1:" % name)
        a.vm = []
        pst(42)
        xt = []
        for b_, XR in enumerate((XR0, XR1)):
            for j in range(9):
                xt.append(a.vmem("buffer_load_dwordx2 %s, v%d, s[4:7], s%d offen offset:%d" % (vr(XR + 2 * j, 2), vX, 28 + b_, j * 128)))
        a("v_min_u32 v12, 287, v0")
        a("v_lshlrev_b32 v12, 2, v12")
        a("s_mul_i32 s33, s20, 1152")
        bt = a.vmem("buffer_load_dword v%d, v12, s[16:19], s33 offen" % B1R)
        if TLBT:
            a("s_cmp_lg_u32 s22, 6")
            a("s_cbranch_scc1 %s_ntl" % name)
            a("v_lshlrev_b32 v12, %d, v9" % TLBT)
            a("v_min_u32 v12, %s, v12" % hx(PART_OFF + 0x1200000 - 128))
            for r_ in range(1 if TLBT >= 20 else 10):
                a("buffer_load_dword v95, v12, s[12:15], 0 offen")
                if TLBT < 20: a("v_add_u32 v12, %s, v12" % hx(64 << TLBT))
            a("%s_ntl:" % name)
        pst(1)
        if not b0e: a("s_barrier")
        pst(2)
        XF, A0_, TT = 168, 204, 214
        a("s_cmp_lg_u32 s39, 0")
        a("s_cbranch_scc1 %s_nt1b" % name)
        a("s_waitcnt vmcnt(19)")
        tile_finish(a, 9, T1, 244, 36, 96, vL)
        a("s_cmp_ge_u32 s32, 162")
        a("s_cbranch_scc1 %s_nt1b" % name)
        tile_finish(a, 9, T2, 244, 36, 52, vL)
        a("%s_nt1b:" % name)
        a.vm = []; a.lg = []
        pst(3)
        a("s_lshr_b32 s37, s20, 1")
        a("s_mul_i32 s37, s37, 9")
        a("s_add_u32 s62, s37, 8")
        a("s_add_u32 s37, s37, s22")
        cf_gen(a, CF0, 37, vN, vG, 168, 180, 88)
        pst(4)
        a("s_cmp_lg_u32 s39, 0")
        a("s_cbranch_scc1 %s_w1" % name)
        a("s_cmp_ge_u32 s32, 162")
        a("s_cbranch_scc1 %s_w3" % name)
        a("s_waitcnt vmcnt(8)")
        a("s_branch %s_w2" % name)
        a("%s_w3:" % name)
        a("s_waitcnt vmcnt(4)")
        a("s_branch %s_w2" % name)
        a("%s_w1:" % name)
        a("s_waitcnt vmcnt(0)")
        a("%s_w2:" % name)
        pst(5)
        ln_batch(a, XR0, XF, A0_, TT, vXB0, vA0, 90, 45, name + "_l0", LNF)
        a.lg = []
        pst(6)
        a("s_waitcnt vmcnt(0)")
        pst(7)
        def f1():
            a("s_lshl_b32 s33, s20, 8")
            a("s_lshl_b32 s34, s21, 3")
            a("s_add_u32 s33, s33, s34")
            a("s_add_u32 s33, s33, %s" % hx(FLAG_OFF))
            store_flag(a, "s33")
        a("s_cmp_lg_u32 s39, 0")
        a("s_cbranch_scc1 %s_g1" % name)
        gather_publish(a, name + "_g1", SY, "3", f1, True)
        T2B = 52 if POST else T2
        if POST:
            a("s_cmp_ge_u32 s2, 128")
            a("s_cbranch_scc1 %s_nw" % name)
            a("s_cmp_eq_u32 s39, 0")
            a("s_cbranch_scc1 %s_nw" % name)
            a("s_lshr_b32 s33, s2, 5")
            a("s_lshl_b32 s33, s33, 2")
            a("s_add_u32 s33, s33, s38")
            a("s_lshl_b32 s33, s33, 6")
            a("s_and_b32 s34, s2, 31")
            a("s_lshl_b32 s34, s34, 1")
            a("s_add_u32 s33, s33, s34")
            a("s_mul_i32 s33, s33, 578")
            a("s_add_u32 s34, s33, %d" % (16 * 64 * 578))
            a("v_lshlrev_b32 v12, 2, v9")
            for mb in range(2):
                for arr in range(2):
                    for it in range(5):
                        if it == 4: a("s_mov_b32 exec_hi, 1")
                        a("buffer_load_dword v%d, v12, s[%d:%d], s%d offen offset:%d" % (68 + (mb * 2 + arr) * 5 + it, 72 + 4 * arr, 75 + 4 * arr, 33 + mb, 256 * it))
                        if it == 4: a("s_mov_b32 exec_hi, -1")
            a("%s_nw:" % name)
        else:
            a("s_cmp_ge_u32 s2, 128")
            a("s_cbranch_scc1 %s_nw" % name)
            a("s_lshr_b32 s33, s2, 5")
            a("s_lshl_b32 s33, s33, 2")
            a("s_add_u32 s33, s33, s38")
            a("s_lshl_b32 s34, s39, 4")
            a("s_add_u32 s33, s33, s34")
            a("s_lshl_b32 s33, s33, 6")
            a("s_and_b32 s34, s2, 31")
            a("s_lshl_b32 s34, s34, 1")
            a("s_add_u32 s33, s33, s34")
            a("s_mul_i32 s33, s33, 578")
            a("v_lshlrev_b32 v12, 2, v9")
            for arr in range(2):
                for it in range(5):
                    if it == 4: a("s_mov_b32 exec_hi, 1")
                    a("buffer_load_dword v%d, v12, s[%d:%d], s33 offen offset:%d" % (WL + arr * 5 + it, 72 + 4 * arr, 75 + 4 * arr, 256 * it))
                    if it == 4: a("s_mov_b32 exec_hi, -1")
            a("%s_nw:" % name)
        T3 = 224
        a("s_cmp_eq_u32 s39, 0")
        a("s_cbranch_scc1 %s_nt2" % name)
        a("s_lshl_b32 s63, s38, 5")
        a("s_add_u32 s63, s63, s21")
        a("s_add_u32 s63, s63, 162")
        tile_issue(a, 63, 20, 9, 240, T2B, 64, 68, 48)
        a("s_add_u32 s63, s63, 128")
        a("s_cmp_ge_u32 s63, 324")
        a("s_cbranch_scc1 %s_nt2" % name)
        tile_issue(a, 63, 20, 9, 240, T3, 64, 68, 53)
        a("%s_nt2:" % name)
        a.vm = []; a.lg = []
        pst(8)
        a("v_min_u32 v12, 287, v0")
        a("v_lshlrev_b32 v12, 3, v12")
        a("v_add_u32 v12, %d, v12" % BIASB)
        a("v_lshlrev_b32 v222, 16, v%d" % B1R)
        a("v_and_b32 v223, 0xffff0000, v%d" % B1R)
        a("ds_write_b64 v12, v[222:223]")
        a("v_xor_b32 v%d, 128, v%d" % (vXB0, vXB0))
        a("v_xor_b32 v%d, 64, v%d" % (vA0, vA0))
        ln_batch(a, XR1, XF, A0_, TT, vXB0, vA0, 90, 45, name + "_l1", LNF)
        a.lg = []
        if not POST:
            a("s_waitcnt vmcnt(0)")
            a("s_cmp_eq_u32 s39, 0")
            a("s_cbranch_scc1 %s_nt2b" % name)
            tile_finish(a, 9, T2, 240, 36, 52, vL)
            a("s_cmp_ge_u32 s63, 324")
            a("s_cbranch_scc1 %s_nt2b" % name)
            tile_finish(a, 9, T3, 240, 36, 57, vL)
            a("%s_nt2b:" % name)
            a("s_cmp_ge_u32 s2, 128")
            a("s_cbranch_scc1 %s_nwb" % name)
            a("v_lshlrev_b32 v12, 2, v9")
            a("v_add_u32 v12, s36, v12")
            for arr in range(2):
                for it in range(5):
                    if it == 4: a("s_mov_b32 exec_hi, 1")
                    a("ds_write_b32 v12, v%d offset:%d" % (WL + arr * 5 + it, arr * 1160 + 256 * it))
                    if it == 4: a("s_mov_b32 exec_hi, -1")
            a("%s_nwb:" % name)
            a.vm = []; a.lg = []
        pst(9)
        a("s_cmp_lg_u32 s22, 7")
        a("s_cbranch_scc1 %s_n7" % name)
        cf_gen(a, CF1, 62, vN, vG, 16, 28, 88)
        a("%s_n7:" % name)
        a("s_cmp_lg_u32 s22, 0")
        a("s_cbranch_scc1 %s_n2" % name)
        a("s_lshl_b32 s33, s20, 8")
        a("s_add_u32 s33, s33, %s" % hx(FLAG_OFF))
        a("v_lshlrev_b32 v16, 3, v9")
        poll_flags(a, name + "_p1", 1, (0xffffffff, 0), 16, 18, "s33", 3)
        a("%s_n2:" % name)
        a("s_waitcnt lgkmcnt(0)")
        pst(10)
        a("s_barrier")
        pst(11)
        if est: a("s_memrealtime s[96:97]")
        a("s_cmp_lg_u32 s39, 0")
        a("s_cbranch_scc1 %s_h1" % name)

    def body(hf):
        a.vm = []; a.lg = []
        if hf == 0:
            DK = DKA
            AR = 16; BR = AR + DK * 8
            ACC = [BR + 32, BR + 64]; ACC3 = BR + 96
            BIAS = ACC3 + 32; TMP = BIAS + 8; PK = TMP + 4
            assert PK + 8 <= 244, PK
        else:
            DK = 8
            AR = 16; BR = 80; ACC3 = 112
            ACC = [212, 144] if FE else [144, 212]; BIAS = 192; TMP = 200; PK = 204
        if prio and hf == prio - 1: a("s_setprio 1")
        npass = 3 if hf == 0 else 2
        G = [[0, 1, 2, 3], [8, 9, 10, 11], [16, 17], [4, 5, 6, 7], [12, 13, 14, 15]]
        grp_of = {t: g for g, ts in enumerate(G) for t in ts}
        steps = []
        P1O = ([2, 0, 1] if AORD else [0, 1, 2]) if hf == 0 else [0, 1]
        for ps in P1O:
            for t in range(18):
                steps.append((1, ps, 2 if ps < 2 else 1, t))
        NP1 = 18 * npass
        O = G[2] + G[0] + G[3] + G[1] + G[4] if FE else G[2] + G[0] + G[3] + G[4] + G[1] if AORD else G[0] + G[3] + G[1] + G[2] + G[4]
        W2 = {0: ([2, 2, 1], [2, 2]), 1: ([2, 2, 2], [2, 1]), 2: ([2, 2, 2, 1], [2]), 3: ([2, 2, 2, 1], [2, 1])}[P2][hf]
        nA = sum(1 for w_ in {0: ([2, 2, 1], [2, 2]), 1: ([2, 2, 2], [2, 1]), 2: ([2, 2, 2, 1], [2]), 3: ([2, 2, 2, 1], [2, 1])}[P2][0] if w_ == 2)
        def p2_base(ps):
            if W2[ps] == 2:
                a("s_add_u32 s33, s38, %d" % (4 * (ps + (nA if hf else 0))))
                a("s_mov_b32 s34, 0")
            else:
                a("s_lshr_b32 s33, s38, 1")
                a("s_add_u32 s33, s33, 16")
                a("s_and_b32 s34, s38, 1")
            a("s_add_u32 s33, s33, s42")
            a("s_sub_u32 s35, s33, 18")
            a("s_cselect_b32 s33, s33, s35")
            a("s_lshl_b32 s33, s33, 1")
            a("s_add_u32 s33, s33, s34")
            a("s_mul_i32 s23, s33, 18432")
            a("s_add_u32 s23, s23, s41")
            a("s_lshl_b32 s33, s33, 10")
            a("s_add_u32 s%d, s33, s40" % (64 + ps))
        seq = [(ps_, O) for ps_ in range(len(W2))]
        if KSP and hf == 0:
            seq = [(0, O[:10]), (1, O[:10]), (0, O[10:]), (1, O[10:])] + seq[2:]
        for ps, ts in seq:
            for t in ts:
                steps.append((2, ps, W2[ps], t))
        N = len(steps)
        FP = 18 if FE else NP1
        MID = hf == 1 and (not two or fpos == 1)
        first_i = {}; last_i = {}
        for i_, st_ in enumerate(steps):
            first_i.setdefault(st_[:2], i_); last_i[st_[:2]] = i_
        a_tok = {}; b_tok = {}
        sbase = {"key": None, "t0": None}

        def issue_a(i):
            ph, ps, nb, t = steps[i]
            base = (W1T_OFF if ph == 1 else W2T_OFF)
            sb_ = [25, 26, 27][ps] if ph == 1 else 23
            if ph == 2 and sbase["key"] != (ph, ps): p2_base(ps)
            new = sbase["key"] != (ph, ps) or not (sbase["t0"] <= t < sbase["t0"] + 4)
            if new:
                sbase["key"] = (ph, ps); sbase["t0"] = t
            toks = []
            for bi in range(nb):
                sreg = 30 + bi
                if new:
                    a("s_add_u32 s%d, s%d, %s" % (sreg, sb_, hx(base + bi * 18432 + t * 1024)))
                toks.append(a.vmem("buffer_load_dwordx4 %s, v%d, s[12:15], s%d offen offset:%d%s" % (vr(AR + (i % DK) * 8 + 4 * bi, 4), vL, sreg, (t - sbase["t0"]) * 1024, "" if (aplain or two) else LA)))
            a_tok[i] = toks

        def b_items(i):
            ph, ps, nb, t = steps[i]
            b_tok[i] = []
            out = []
            for sb in range(4):
                def rd(sb=sb):
                    off = (sb * 18 + t) * 1024
                    hi_ = off >= 65536
                    if hi_: off -= 65536
                    if ph == 1: v = [[vXe, vXo], [vXeH, vXoH]][hi_][t & 1]
                    else: v = vLPH if hi_ else vLP
                    b_tok[i].append(a.lds("ds_read_b128 %s, v%d offset:%d" % (vr(BR + (i % 2) * 16 + 4 * sb, 4), v, off)))
                out.append(rd)
            return out

        lab = "%s_r%d" % (name, hf)
        if two:
            a("v_mov_b32 v12, 0")
            a("s_mov_b32 s33, %s" % hx(CNT_OFF))
            nt = a.vmem("buffer_load_dword v250, v12, s[12:15], s33 offen")
            if hf == 0:
                XS = 96
                xt = []
                for k in range(18):
                    if k % 4 == 0: a("s_add_u32 s33, s36, %d" % (1024 * k))
                    xt.append(a.vmem("buffer_load_dwordx4 %s, v%d, s[12:15], s33 offen offset:%d" % (vr(XS + 4 * k, 4), vL, 1024 * (k % 4))))
                a("s_mul_i32 s33, s38, 576")
                a("s_add_u32 s34, s33, s56")
                xt.append(a.vmem("buffer_load_dwordx4 %s, v%d, s[12:15], s34 offen" % (vr(XS + 72, 4), vL)))
                for i in range(DK - 1): issue_a(i)
                a("v_lshrrev_b32 v12, 2, v%d" % vL)
                a("v_add_u32 v12, %d, v12" % SY)
                a("v_mov_b32 v13, 0")
                a("s_mov_b64 exec, 0xffff")
                a("ds_write_b32 v12, v13")
                a("s_mov_b64 exec, -1")
                a("v_add_u32 v12, s29, v%d" % vL)
                ws_ = []
                for k in range(18):
                    a.wait(vm=xt[k])
                    ws_.append(a.lds("ds_write_b128 v12, %s offset:%d" % (vr(XS + 4 * k, 4), 1024 * k)))
                a("s_add_u32 s33, s33, %d" % BIASB)
                a("v_add_u32 v12, s33, v%d" % vL)
                a.wait(vm=xt[18])
                a("s_mov_b32 exec_hi, 15")
                a("ds_write_b128 v12, %s" % vr(XS + 72, 4))
                a("s_mov_b32 exec_hi, -1")
                a("v_readfirstlane_b32 s3, v250")
                a.wait_all(vm=False, lg=True)
                a("s_barrier")
                if est: a("s_memrealtime s[88:89]")
        else:
            if hf == 0 or not POST:
                for i in range(DK - 1): issue_a(i)
            elif PPRIO: a("s_setprio 2")
            AFr, ACr = (168 if hf == 0 else (16 if POST else 72)), 240
            AC2 = 248 if est == 2 else 252
            a("v_add_u32 v12, %d, v%d" % (A16, vXe))
            a("v_add_u32 v13, %d, v%d" % (A16, vXo))
            a("v_lshlrev_b32 v244, 6, v%d" % vN)
            a("v_lshl_add_u32 v244, v%d, 4, v244" % vG)
            a("s_lshl_b32 s33, s21, 1")
            a("s_add_u32 s33, s33, s43")
            a("s_mul_i32 s33, s33, %d" % (576 * 64))
            a("s_add_u32 s33, s33, %s" % hx(ZF_OFF))
            def mm(cf, s_blk):
                toks = {}
                def rd(t):
                    af = AFr + 8 * (t % 3)
                    toks[t] = [a.lds("ds_read_b128 %s, v%d offset:%d" % (vr(af + 4 * mb, 4), 12 + (t & 1), (mb * 18 + t) * 1024)) for mb in range(2)]
                rd(0); rd(1)
                for t in range(18):
                    if t + 2 < 18: rd(t + 2)
                    af = AFr + 8 * (t % 3)
                    for mb in range(2):
                        a.wait(lg=toks[t][mb])
                        d = ACr if mb == 0 else AC2
                        a("v_mfma_f32_16x16x32_f16 %s, %s, %s, %s" % (vr(d, 4), vr(af + 4 * mb, 4), vr(cf + 4 * t, 4), "0" if t == 0 else vr(d, 4)))
                for mb in range(2):
                    d = ACr if mb == 0 else AC2
                    for i in range(4):
                        a("v_mul_f32 v%d, %s, v%d" % (d + i, hx(f32bits(2.0 ** -5)), d + i))
                    for h in range(2):
                        a("v_cvt_pk_f16_f32 v%d, v%d, v%d" % (AFr + 2 * mb + h, d + 2 * h, d + 2 * h + 1))
                a("s_lshl_b32 s34, s%d, 10" % s_blk)
                a("s_add_u32 s34, s34, s33")
                a.vmem("buffer_store_dwordx4 %s, v244, s[12:15], s34 offen sc1" % vr(AFr, 4))
            mm(96, 37)
            vm1 = list(a.vm)
            if hf == 1:
                a("s_cmp_lg_u32 s22, 7")
                a("s_cbranch_scc1 %s_n7" % lab)
                a("s_nop 1")
                mm(168, 62)
                a("%s_n7:" % lab)
                a("s_cmp_lg_u32 s22, 6")
                a("s_cbranch_scc1 %s_nc" % lab)
                a("s_sub_u32 s32, s2, 128")
                a("s_cmp_ge_u32 s32, 20")
                a("s_cbranch_scc1 %s_nc" % lab)
                fft_const(a, 32, vN, vG, vL, 96, 80)
                a("%s_nc:" % lab)
            a.lg = []
            pst(12)
            if not POST:
                a("s_cmp_ge_u32 s2, 128")
                a("s_cbranch_scc1 %s_nw" % lab)
                a("s_mul_i32 s33, s2, 18560")
                a("s_add_u32 s33, s33, %s" % hx(WT_OFF))
                for it in range(2 if hf == 0 else 1):
                    if it == 1:
                        a("s_cmp_ge_u32 s22, 2")
                        a("s_cbranch_scc1 %s_nw" % lab)
                    a("v_add_u32 v96, %d, v0" % (512 * it))
                    a("v_and_b32 v97, 1, v96")
                    a("v_lshrrev_b32 v98, 1, v96")
                    a("v_min_u32 v98, 288, v98")
                    a("v_mul_u32_u24 v99, 578, v97")
                    a("v_lshl_add_u32 v99, v98, 1, v99")
                    a("v_add_u32 v99, %d, v99" % TS)
                    for e in range(8):
                        a("ds_read_u16 v%d, v99 offset:%d" % (112 + e, e * 4096))
                        a("ds_read_u16 v%d, v99 offset:%d" % (120 + e, e * 4096 + 1160))
                    a("v_lshlrev_b32 v100, 6, v98")
                    a("v_lshl_add_u32 v100, v97, 5, v100")
                    a("s_waitcnt lgkmcnt(0)")
                    for e in range(8):
                        a("v_lshl_or_b32 v%d, v%d, 16, v%d" % (104 + e, 120 + e, 112 + e))
                    a("buffer_store_dwordx4 v[104:107], v100, s[12:15], s33 offen sc1")
                    a("buffer_store_dwordx4 v[108:111], v100, s[12:15], s33 offen offset:16 sc1")
                a("%s_nw:" % lab)
            a("v_mov_b32 v12, %d" % (SY + 36))
            a("v_mov_b32 v13, 1")
            a("s_mov_b64 exec, 1")
            a("ds_add_u32 v12, v13")
            a("s_mov_b64 exec, -1")
            if hf == 1 and POST:
                lds_spin(a, lab + "_c1", SY + 36, "8")
                a("s_mul_i32 s36, s38, 18432")
                a("s_add_u32 s36, s36, %d" % (PB + 8192))
                a("s_waitcnt vmcnt(0)")
                tile_finish(a, 9, 52, 240, 36, 52, vL)
                a("s_cmp_ge_u32 s63, 324")
                a("s_cbranch_scc1 %s_nt3" % lab)
                tile_finish(a, 9, 224, 240, 36, 57, vL)
                a("%s_nt3:" % lab)
                a("s_cmp_ge_u32 s2, 128")
                a("s_cbranch_scc1 %s_nw" % lab)
                a("v_lshlrev_b32 v12, 2, v9")
                a("v_add_u32 v12, s36, v12")
                for mb in range(2):
                    for arr in range(2):
                        for it in range(5):
                            if it == 4: a("s_mov_b32 exec_hi, 1")
                            a("ds_write_b32 v12, v%d offset:%d" % (68 + (mb * 2 + arr) * 5 + it, (mb * 2 + arr) * 1160 + 256 * it))
                            if it == 4: a("s_mov_b32 exec_hi, -1")
                a("s_waitcnt lgkmcnt(0)")
                a("v_mov_b32 v12, %d" % (SY + 8))
                a("v_mov_b32 v13, 1")
                a("s_mov_b64 exec, 1")
                a("ds_add_u32 v12, v13")
                a("s_mov_b64 exec, -1")
                lds_spin(a, lab + "_ws", SY + 8, "4")
                a("s_mul_i32 s33, s2, 18560")
                a("s_add_u32 s33, s33, %s" % hx(WT_OFF))
                for it in range(3):
                    if it == 2:
                        a("s_cmp_ge_u32 s22, 6")
                        a("s_cbranch_scc1 %s_nw" % lab)
                    a("v_add_u32 v96, %d, v0" % (256 * it - 256))
                    a("v_and_b32 v97, 1, v96")
                    a("v_lshrrev_b32 v98, 1, v96")
                    a("v_min_u32 v98, 288, v98")
                    a("v_mul_u32_u24 v99, 578, v97")
                    a("v_lshl_add_u32 v99, v98, 1, v99")
                    a("v_add_u32 v99, %d, v99" % (PB + 8192))
                    for e in range(8):
                        off = (e & 3) * 18432 + (e >> 2) * 2320
                        a("ds_read_u16 v%d, v99 offset:%d" % (112 + e, off))
                        a("ds_read_u16 v%d, v99 offset:%d" % (120 + e, off + 1160))
                    a("v_lshlrev_b32 v100, 6, v98")
                    a("v_lshl_add_u32 v100, v97, 5, v100")
                    a("s_waitcnt lgkmcnt(0)")
                    for e in range(8):
                        a("v_lshl_or_b32 v%d, v%d, 16, v%d" % (104 + e, 120 + e, 112 + e))
                    a("buffer_store_dwordx4 v[104:107], v100, s[12:15], s33 offen sc1")
                    a("buffer_store_dwordx4 v[108:111], v100, s[12:15], s33 offen offset:16 sc1")
                a("%s_nw:" % lab)
                a("v_mov_b32 v12, %d" % (SY + 24))
                a("v_mov_b32 v13, 1")
                a("s_mov_b64 exec, 1")
                a("ds_add_u32 v12, v13")
                a("s_mov_b64 exec, -1")
                a.vm = []; a.lg = []
                for i in range(DK - 1): issue_a(i)
                if PPRIO: a("s_setprio 0")
            else:
                a.vm = vm1; a.lg = []
            pst(13)
            pst(14)
            if est: a("s_memrealtime s[88:89]")
        def f2():
            a("s_lshl_b32 s33, s2, 3")
            a("s_add_u32 s33, s33, %s" % hx(FLAG_OFF + 32768))
            a("v_lshlrev_b32 v254, 11, v9")
            a("v_mov_b32 v12, s100")
            a("v_mov_b32 v13, s101")
            a("s_mov_b64 exec, 0xffff")
            a("buffer_store_dwordx2 v[12:13], v254, s[12:15], s33 offen sc1")
            a("s_mov_b64 exec, -1")
            a("s_lshl_b32 s33, s20, 8")
            a("s_lshl_b32 s34, s21, 3")
            a("s_add_u32 s33, s33, s34")
            a("s_add_u32 s33, s33, %s" % hx(FLAG_OFF + 2048))
            store_flag(a, "s33")
        nsync = [0]
        def fsync():
            n = nsync[0]; nsync[0] += 1
            a("s_add_u32 s87, s87, 4")
            a("v_mov_b32 v12, %d" % (SY + 16))
            a("v_mov_b32 v13, 1")
            a("s_mov_b64 exec, 1")
            a("ds_add_u32 v12, v13")
            a("s_mov_b64 exec, -1")
            lds_spin(a, "%s_fs%d" % (lab, n), SY + 16, "s87")
            a.lg = []
        def f2_check():
            a("s_cmp_lg_u32 s22, 4")
            a("s_cbranch_scc1 %s_np2" % lab)
            a("s_and_b32 s85, s2, 15")
            a("s_lshl_b32 s85, s85, 11")
            a("s_add_u32 s85, s85, %s" % hx(FLAG_OFF + 32768))
            a("v_lshlrev_b32 v254, 5, v9")
            poll_flags(a, lab + "_p2", 4, (0xffffffff, 0xffffffff), 254, 244, "s85", 16)
            a("v_mov_b32 v12, %d" % (SY + 12))
            a("v_mov_b32 v13, 1")
            a("ds_write_b32 v12, v13")
            a("%s_np2:" % lab)
            lds_spin(a, lab + "_w2", SY + 12, "1")
            a.lg = []
        ffo = {}
        def fft_early():
            fe = FFT(a, ACC3 - 120, 9, 38, FSC, 72, fsync)
            fe.addr()
            fe.data_loads(2, 0, 78, "c1", 176, 184)
            ffo["tok"] = fe.tok["c1"]
        def do_fft(flush, mid=None):
            pst(15)
            ff = FFT(a, 16, 9, 38, FSC, 72, fsync, old=bool(two))
            D1 = ff.end; D2 = 192
            assert D1 + 32 <= 192, D1
            a("s_mov_b32 s87, 0")
            ff.addr()
            if "tok" in ffo:
                ff.tok["c1"] = ffo["tok"]
                Dz = D1 - 8 if False else D1
            else:
                ff.data_loads(2, D1, 78, "c1")
            ff.const_loads()
            pst(17)
            flush()
            if fprio: a("s_setprio 2")
            pst(18)
            ff.twiddles()
            a("s_cmp_lt_u32 s2, 223")
            a("s_cbranch_scc1 %s_f1" % lab)
            vm_s = list(a.vm); tk = dict(ff.tok); sb_s = dict(sbase); at_s = dict(a_tok)
            a("s_add_u32 s82, s2, 33")
            ff.data_loads(82, D2 + 2, 92, "c2")
            ff.compute(D1, 78, "c1")
            fsync()
            ff.compute(D2 + 2, 92, "c2", mid)
            a("s_branch %s_f2" % lab)
            a("%s_f1:" % lab)
            a.vm = vm_s; ff.tok = tk; sbase.update(sb_s)
            ff.compute(D1, 78, "c1", mid)
            a("%s_f2:" % lab)
            if fprio: a("s_setprio %d" % (1 if bprio else 0))
            a("s_nop 1")
            a.lg = []
            pst(16)
        def publish2():
            gather_publish(a, lab + "_g2", SY + 4, "7", f2)
        def publish3():
            def f3():
                a("s_lshl_b32 s33, s2, 3")
                a("s_add_u32 s33, s33, %s" % hx(FLAG_OFF + 8192))
                store_flag(a, "s33")
                a("s_cmp_lt_u32 s2, 223")
                a("s_cbranch_scc1 %s_g3" % lab)
                a("s_add_u32 s33, s33, 264")
                store_flag(a, "s33")
            gather_publish(a, lab + "_g3", SY + 20, "3", f3)
        def check5():
            if hf == 0:
                a("s_cmp_lg_u32 s22, 0")
                a("s_cbranch_scc1 %s_n5" % lab)
                a("s_lshl_b32 s33, s20, 8")
                a("s_add_u32 s33, s33, %s" % hx(FLAG_OFF + 2048))
                a("v_lshrrev_b32 v244, 1, v%d" % vL)
                poll_flags(a, lab + "_p5", 1, (0xffffffff, 0), 244, 246, "s33", 8)
                a("v_mov_b32 v12, %d" % (SY + 32))
                a("v_mov_b32 v13, 1")
                a("ds_write_b32 v12, v13")
                a("%s_n5:" % lab)
            lds_spin(a, lab + "_w5", SY + 32, "1")
            a.lg = []
        if two and hf == 1:
            def bar():
                a.wait(vm=nt)
                a("v_readfirstlane_b32 s3, v250")
                a("s_barrier")
                if est: a("s_memrealtime s[88:89]")
            if fpos == 0:
                do_fft(bar)
            else:
                bar()
            for i in range(DK - 1): issue_a(i)
        if est: a("s_memrealtime s[90:91]")

        fill = deque()
        bucket = {"tok": 0.0}
        def cost_of(lines):
            c = 0
            for l in lines:
                op = l.split()[0]
                c += 8 if op in TRANS else (4 if op.startswith(("buffer", "ds_")) else (1 if op.startswith("s_") else 4))
            return c
        def fine(rate):
            bucket["tok"] += rate
            while fill and bucket["tok"] >= 4:
                n0 = len(a.lines)
                tag, f = fill.popleft(); f()
                bucket["tok"] -= cost_of(a.lines[n0:])
            if not fill: bucket["tok"] = 0.0
        def flush_tag(tag):
            while any(t == tag for t, _ in fill):
                fill.popleft()[1]()
        pw = {}

        def gelu_group(tag, regs, outs):
            T = [TMP + k for k in range(4)]
            seq = []
            for k in range(4): seq.append("v_mul_f32 v%d, v%d, v%d" % (T[k], regs[k], regs[k]))
            for k in range(4): seq.append("v_fmaak_f32 v%d, v%d, v%d, %s" % (T[k], T[k], vC1, hx(f32bits(C0))))
            for k in range(4): seq.append("v_mul_f32 v%d, v%d, v%d" % (T[k], regs[k], T[k]))
            for k in range(4): seq.append("v_exp_f32 v%d, v%d" % (T[k], T[k]))
            for k in range(4): seq.append("v_add_f32 v%d, 1.0, v%d" % (T[k], T[k]))
            for k in range(4): seq.append("v_rcp_f32 v%d, v%d" % (T[k], T[k]))
            for k in range(4): seq.append("v_mul_f32 v%d, v%d, v%d" % (T[k], regs[k], T[k]))
            seq.append("v_cvt_pk_bf16_f32 v%d, v%d, v%d" % (outs[0], T[0], T[1]))
            seq.append("v_cvt_pk_bf16_f32 v%d, v%d, v%d" % (outs[1], T[2], T[3]))
            if nogelu: seq = seq[-2:]
            for s_ in seq: fill.append((tag, lambda s_=s_: a(s_)))

        def accset(ph, ps):
            if ph == 1 and AORD and hf == 0: return [ACC[1], ACC[0], ACC[0]][ps]
            if ph == 1: return [ACC[0], ACC[1], ACC[0]][ps]
            if AORD and hf == 0: return [ACC3, ACC[1], ACC[0], ACC3][ps]
            return [ACC3, ACC[1], ACC[0], ACC3][ps] if hf == 0 else [ACC3, ACC[0]][ps]

        def queue_gelu(ps, nb):
            st = accset(1, ps); tag = "g%d" % ps
            pw[ps] = []
            for sb in range(4):
                pk = PK + 4 * (sb & 1)
                for bi in range(nb):
                    b = st + (bi * 4 + sb) * 4
                    gelu_group(tag, [b, b + 1, b + 2, b + 3], [pk + 2 * bi, pk + 2 * bi + 1])
                def wr(sb=sb, pk=pk):
                    if hf == 0 and ps == 1 and sb == 0 and POST:
                        lds_spin(a, lab + "_c2", SY + 24, "4")
                        a.lg = []
                    if ps == P1O[0] and sb == 0 and not two:
                        lds_spin(a, lab + "_pre", SY + 36, "8")
                        a.lg = []
                    if nb == 2:
                        pw[ps].append(a.lds("ds_write_b128 v%d, %s offset:%d" % (vPw, vr(pk, 4), sb * 18432 + ps * 8192)))
                    else:
                        pw[ps].append(a.lds("ds_write_b64 v%d, %s offset:%d" % (vPw8, vr(pk, 2), sb * 18432)))
                fill.append((tag, wr))
            for _ in range(3): fill.append((tag, lambda: a("s_nop 0")))
            def sig():
                a.wait(lg=pw[ps])
                a("v_mov_b32 v12, %d" % (SY + 40 + 4 * (ps + 3 * hf)))
                a("v_mov_b32 v13, 1")
                a("s_mov_b64 exec, 1")
                a.lds("ds_add_u32 v12, v13")
                a("s_mov_b64 exec, -1")
            fill.append((tag, sig))

        def queue_store(ps, nb):
            st = accset(2, ps); tag = "s%d" % ps
            fl = ["", " sc1", " sc0 sc1", " nt", " sc1 nt"][stf]
            k = 0
            for bi in range(nb):
                for rg in range(2):
                    pk = PK + 4 * (k & 1); k += 1
                    for s2 in range(2):
                        b = st + (bi * 4 + 2 * rg + s2) * 4
                        for h in range(2):
                            fill.append((tag, lambda pk=pk, s2=s2, b=b, h=h: a("v_cvt_pk_bf16_f32 v%d, v%d, v%d" % (pk + 2 * s2 + h, b + 2 * h, b + 2 * h + 1))))
                    def stv(pk=pk, bi=bi, rg=rg):
                        a("s_add_u32 s34, s%d, %d" % (64 + ps, rg * 36864))
                        a.vmem("buffer_store_dwordx4 %s, v%d, s[12:15], s34 offen offset:%d%s" % (vr(pk, 4), vL, bi * 1024, fl))
                    if not nostore: fill.append((tag, stv))

        bias_tok = {}
        def load_bias(ps):
            if ps < 2:
                bias_tok[ps] = [a.lds("ds_read_b128 %s, v%d offset:%d" % (vr(BIAS + 4 * bi, 4), vBias, 1024 * ps + 64 * bi)) for bi in range(2)]
            else:
                bias_tok[ps] = [a.lds("ds_read_b128 %s, v7" % vr(BIAS, 4))]

        seen_g = set()
        def sync(g):
            if g in seen_g: return
            seen_g.add(g)
            own = g - 3 * hf
            if 0 <= own < npass and (g < 3) == (hf == 0): flush_tag("g%d" % own)
            pst(30 + 2 * g)
            lds_spin(a, "%s_pg%d" % (lab, g), SY + 40 + 4 * g, "4")
            pst(31 + 2 * g)
            a.lg = []

        def hook(f):
            lg_save = list(a.lg)
            f()
            a.lg = lg_save

        load_bias(P1O[0])
        PBX = 2 if CH else PB_D
        for i in range(PBX):
            for r_ in b_items(i): r_()
        pend = {}
        for i in range(N):
            ph, ps, nb, t = steps[i]
            if CH and i % 2 == 0:
                continue_pair = True
            st = accset(ph, ps)
            first = first_i[(ph, ps)] == i
            if not CH:
                j = i + PB_D
                rds = []
                if MID and FP <= j < FP + PB_D:
                    pass
                elif j < N:
                    if steps[j][0] == 2: sync(grp_of[steps[j][3]])
                    rds = b_items(j)
            elif i % 2 == 0:
                j = i + 2
                rd2 = None
                if j < N and not (MID and j == FP):
                    if steps[j][0] == 2: sync(grp_of[steps[j][3]])
                    rd2 = [b_items(j), b_items(j + 1)]
            if first and P2 == 3 and ph == 2 and nb == 1:
                while fill: fill.popleft()[1]()
                a("s_cmp_ge_u32 s2, 223")
                a("s_cbranch_scc%d %s_opt" % (0 if hf == 1 else 1, lab))
                a("s_waitcnt vmcnt(4) lgkmcnt(0)")
                a("s_branch %s_e%dstart" % (name, 1 if ESH else hf))
                a("%s_opt:" % lab)
            if first:
                if ph == 1 and ps == 2 and not AORD: flush_tag("g0")
                if ph == 1 and ps == 1 and AORD and hf == 0: flush_tag("g2")
                if ph == 2:
                    for tg in ({0: [], 1: (["g0"] if AORD else ["g1", "g0"]), 2: ["g2", "g0", "g1"], 3: ["s0"]} if hf == 0 else {0: [], 1: ["g0"]})[ps]: flush_tag(tg)
            def emit_mfma(ii, bi, sb, frst):
                d = st + (bi * 4 + sb) * 4
                need = [b_tok[ii][sb]] if bi == 0 else []
                if frst:
                    c = "0" if ph == 2 else vr(BIAS + 4 * bi, 4)
                    if ph == 1: need = need + bias_tok[ps]
                else:
                    c = vr(d, 4)
                a.wait(vm=a_tok[ii][bi] if sb == 0 else None, lg=need)
                a("%s %s, %s, %s, %s" % (MFMA, vr(d, 4), vr(AR + (ii % DK) * 8 + 4 * bi, 4), vr(BR + (ii % 2) * 16 + 4 * sb, 4), c))
            if not CH:
                nm = 4 * nb
                for k in range(nm):
                    emit_mfma(i, k // 4, k % 4, first)
                    if rds and (nb == 1 or k % 2 == 0): rds.pop(0)()
                    fine(RATE)
            elif i % 2 == 0:
                assert steps[i + 1][:2] == (ph, ps)
                for sb in range(4):
                    for bi in range(nb):
                        emit_mfma(i, bi, sb, first)
                        if not CHF: fine(RATE)
                        emit_mfma(i + 1, bi, sb, False)
                        if bi == nb - 1 and rd2:
                            rd2[0][sb](); rd2[1][sb]()
                        fine(RATE * (2 if CHF else 1))
            if i + DK - 1 == NP1 and (hf == 0 or FE) and not two:
                check5()
            if i + DK - 1 < N and not (MID and FP <= i + DK - 1 < FP + DK - 1): issue_a(i + DK - 1)
            if i == (DK if (hf == 0 or not POST) else 1) and not two: hook(publish2)
            if hf == 1 and i == (FP if MID else 0) + (5 if FEL else P3AT): hook(publish3)
            if hf == 1 and i == FP - (2 if FE else 6) and not two: hook(f2_check if not FEL else lambda: (f2_check(), fft_early()))
            if ph == 1 and t == 2 and P1O.index(ps) + 1 < npass and not (FE and MID): load_bias(P1O[P1O.index(ps) + 1])
            if last_i[(ph, ps)] == i:
                lg_s = list(a.lg); pst(20 + 3 * (ph - 1) + ps); a.lg = [] if est == 2 else lg_s
                if ph == 1: queue_gelu(ps, nb)
                else: queue_store(ps, nb)
                if est and i == NP1 - 1: a("s_memrealtime s[92:93]")
                if MID and i == FP - 1:
                    if not FE: flush_tag("g0")
                    if FEL:
                        check5()
                        do_fft(lambda: flush_tag("g1"), lambda: [issue_a(i2) for i2 in range(FP, FP + 4)])
                        for i2 in range(FP + 4, FP + DK - 1): issue_a(i2)
                    else:
                        do_fft(lambda: flush_tag("g0" if FE else "g1"))
                        if not two and not FE: check5()
                        for i2 in range(FP, FP + DK - 1): issue_a(i2)
                    if FE: load_bias(1)
                    for i2 in range(FP, FP + PBX):
                        if not FE: sync(grp_of[steps[i2][3]])
                        for r_ in b_items(i2): r_()
                if est and ph == 2 and ps == 0: a("s_memrealtime s[94:95]")
        while fill: fill.popleft()[1]()
        if est == 2:
            a("v_writelane_b32 v253, s100, 0")
            a("s_lshl_b32 s33, s2, 3")
            a("s_add_u32 s33, s33, s22")
            a("s_lshl_b32 s33, s33, 8")
            a("s_add_u32 s33, s33, %s" % hx(STAMP_OFF + 0x700000))
            a("v_lshrrev_b32 v12, 2, v%d" % vL)
            a("buffer_store_dword v253, v12, s[12:15], s33 offen")

        if ESH:
            if hf == 0:
                a("s_branch %s_e1start" % name)
            else:
                a("%s_e1start:" % name)
                epilogue_shared(a, name, XB, vL, poll_flags, store_flag, lds_spin, SY, est=est, SLP=SLP, G1=G1)
        else:
            a("%s_e%dstart:" % (name, hf))
            epilogue(a, name, hf, XB, vL, est=est, SLP=SLP, G1=G1, uload=1, mega=(poll_flags, store_flag, lds_spin, SY, ONCE))

    body(0)
    a("%s_h1:" % name)
    body(1)
    a("%s_end:" % name)
    a("s_endpgm")
    n = a.fix_hazards()
    print("mega: nops inserted", n, "lines", len(a.lines))
    return kernel_header(name) + a.text() + kernel_desc(name, 256, 102), MEGA_LDS
```
